```python
import torch

def _softmax(x, axis=-1):
    return torch.softmax(x, dim=axis)
def _gelu(x):
    return torch.nn.functional.gelu(x, approximate="tanh")
def _silu(x):
    return torch.nn.functional.silu(x)
def _sigmoid(x):
    return torch.sigmoid(x)
def _layernorm(x, axis=-1, eps=1e-5):
    m = x.mean(dim=axis, keepdim=True)
    v = x.var(dim=axis, keepdim=True, unbiased=False)
    return (x - m) / torch.sqrt(v + eps)
def _scatter_add(tgt, idx, src, axis=0):
    return tgt.clone().index_add_(axis, idx, src)
def _segment_sum(src, seg, n):
    out = torch.zeros((n,) + src.shape[1:], dtype=src.dtype)
    return out.index_add_(0, seg, src)
def _pad(x, pw):
    flat = tuple(v for pair in reversed(pw) for v in pair)
    return torch.nn.functional.pad(x, flat)

kernel_name = 'sequential_preLN__sliding_block_cached__mixer_channel_mlp__decode'

def setup_inputs():

    _w = (lambda a: (lambda t: t.to(torch.bfloat16) if t.is_floating_point() else t)(torch.as_tensor(a)))
    def _A_setup():
        B, Sq, D = 2, 1, 640
        Hq, Hkv, Sk, Dh = 32, 32, 4096, 128
        assert Hq % Hkv == 0, (Hq, Hkv)
        return {
            "x": _w((lambda *s: torch.randn(*s, dtype=torch.bfloat16) * 0.05)(B, Sq, D)),
            "k_cache": _w((lambda *s: torch.randn(*s, dtype=torch.bfloat16) * 3.2)(B, Hkv, Sk, Dh)),
            "v_cache": _w((lambda *s: torch.randn(*s, dtype=torch.bfloat16) * 0.4)(B, Hkv, Sk, Dh)),
            "wq": _w((lambda *s: torch.randn(*s, dtype=torch.bfloat16) * 3.2)(D, Hq * Dh) * (D ** -0.5)),
            "wo": _w((lambda *s: torch.randn(*s, dtype=torch.bfloat16) * 0.4)(Hq * Dh, D) * ((Hq * Dh) ** -0.5)),
        }
    _A_in = _A_setup()

    def _B_setup():
        B, S, D, F = 2, 1, 640, 1728
        return {
            "x": _w((lambda *s: torch.randn(*s, dtype=torch.bfloat16) * 0.05)(B, S, D)),
            "w1": _w((lambda *s: torch.randn(*s, dtype=torch.bfloat16) * 3.2)(D, F) * (D ** -0.5)),
            "b1": _w((lambda *s: torch.randn(*s, dtype=torch.bfloat16) * 1.6)(F)),
            "w2": _w((lambda *s: torch.randn(*s, dtype=torch.bfloat16) * 0.1)(F, D) * (F ** -0.5)),
            "b2": _w((lambda *s: torch.randn(*s, dtype=torch.bfloat16) * 0.1)(D)),
        }
    _B_in = _B_setup()

    return {
        "A_x": _A_in["x"],
        "A_k_cache": _A_in["k_cache"],
        "A_v_cache": _A_in["v_cache"],
        "A_wq": _A_in["wq"],
        "A_wo": _A_in["wo"],
        "B_x": _B_in["x"],
        "B_w1": _B_in["w1"],
        "B_b1": _B_in["b1"],
        "B_w2": _B_in["w2"],
        "B_b2": _B_in["b2"],
    }

def reference(A_x, A_k_cache, A_v_cache, A_wq, A_wo, B_x, B_w1, B_b1, B_w2, B_b2):
    def _A_ref(x, k_cache, v_cache, wq, wo):
        B, Sq, D = x.shape
        Hq, Dh = 32, 128
        Hkv, Sk = k_cache.shape[1], k_cache.shape[2]
        W = min(4096, max(256, Sk // 4))
        rep = Hq // Hkv
        q = (lambda x, *d: x.permute(*d))((x @ wq).reshape(B, Sq, Hq, Dh), 0, 2, 1, 3)
        k = (lambda x, n, axis: torch.repeat_interleave(x, n, dim=axis))(k_cache[:, :, Sk - W:, :], rep, axis=1)
        v = (lambda x, n, axis: torch.repeat_interleave(x, n, dim=axis))(v_cache[:, :, Sk - W:, :], rep, axis=1)
        scores = torch.einsum("bhqd,bhkd->bhqk", q, k) * (Dh ** -0.5)
        p = _softmax(scores, axis=-1)
        o = torch.einsum("bhqk,bhkd->bhqd", p, v)
        return (lambda x, *d: x.permute(*d))(o, 0, 2, 1, 3).reshape(B, Sq, Hq * Dh) @ wo

    def _B_ref(x, w1, b1, w2, b2):
        y = _layernorm(x, axis=-1)
        h = _gelu(torch.einsum("bsd,df->bsf", y, w1) + b1)
        return torch.einsum("bsf,fd->bsd", h, w2) + b2

    x = A_x
    h = x + _A_ref(_layernorm(x, axis=-1), A_k_cache, A_v_cache, A_wq, A_wo)
    h2 = h + _B_ref(_layernorm(h, axis=-1), B_w1, B_b1, B_w2, B_b2)
    return h2
```

```python
import re
REG = re.compile(r'\b([vsa])(\d+)\b|\b([vsa])\[(\d+):(\d+)\]|\b(vcc|exec|m0)\b')
def regs(tok):
    out = set()
    for m in REG.finditer(tok):
        if m.group(1): out.add(m.group(1) + m.group(2))
        elif m.group(3):
            for i in range(int(m.group(4)), int(m.group(5)) + 1): out.add(m.group(3) + str(i))
        else: out.add(m.group(6))
    return out
TRANS = ("v_exp_f32", "v_log_f32", "v_rcp_f32", "v_rsq_f32", "v_sqrt_f32", "v_sin_f32", "v_cos_f32")
class I:
    def __init__(self, line):
        self.line = line
        s = line.split(";")[0].strip()
        self.real = bool(s) and not s.endswith(":") and not s.startswith(".")
        self.ws = 0; self.op = ""; self.w = set(); self.r = set(); self.kind = "none"
        self.A = self.B = self.C = set(); self.data = set(); self.dpp = False
        if not self.real: return
        p = s.split(None, 1); op = p[0]; self.op = op
        rest = p[1] if len(p) > 1 else ""
        ops = [o.strip() for o in re.split(r',(?![^\[]*\])', rest)]
        self.ws = 1
        if op == "s_nop": self.ws = int(rest, 0) + 1; self.kind = "nop"; return
        R = [regs(o) for o in ops]
        if op.startswith("v_mfma"):
            self.kind = "mfma"; self.w = R[0]; self.A, self.B, self.C = R[1], R[2], R[3]; self.r = R[1] | R[2] | R[3]
            self.passes = 8 if "32x32" in op else 4
        elif op.startswith("v_"):
            self.kind = "valu"
            self.dpp = "_dpp" in op
            self.trans = op.replace("_e32", "").replace("_e64", "") in TRANS
            self.dot = op.startswith("v_dot")
            self.perm = op.startswith("v_permlane")
            self.rdl = op.startswith("v_readlane") or op.startswith("v_readfirstlane")
            self.wrl = op.startswith("v_writelane")
            self.w = set(R[0]); self.r = set().union(*R[1:]) if len(R) > 1 else set()
            if self.perm: self.w |= R[1]; self.r |= R[0]
            if "_co_" in op: self.w |= R[1]; self.r = set().union(*R[2:])
            if op.startswith("v_fmac") or op.startswith("v_dot2c") or self.dpp or self.wrl: self.r |= R[0]
            if op.startswith("v_cmpx"): self.w.add("exec")
            if op.startswith("v_cndmask") and len(R) == 3: self.r.add("vcc")
            self.sdwa = "_sdwa" in op or "op_sel:" in rest
        elif op.startswith(("buffer_", "global_")):
            self.kind = "vmem"
            isld = "_load" in op
            lds = rest.rstrip().endswith(" lds") or "_lds_" in op
            self.lds = lds
            if isld and not lds:
                self.w = set(R[0]); self.r = set().union(*R[1:])
                if "d16" in op: self.r |= R[0]
            else:
                self.r = set().union(*R)
                if not isld and ("x4" in op or "x3" in op):
                    self.data = R[0] if op.startswith("buffer_") else R[1]
            if lds: self.r.add("m0")
        elif op.startswith("ds_"):
            self.kind = "ds"
            if "read" in op or "bpermute" in op or "swizzle" in op:
                self.w = set(R[0]); self.r = set().union(*R[1:])
                if "d16" in op: self.r |= R[0]
            else: self.r = set().union(*R)
        elif op.startswith("s_"):
            self.kind = "salu"
            if op.startswith(("s_cmp", "s_bitcmp", "s_cbranch", "s_branch", "s_waitcnt", "s_barrier", "s_endpgm", "s_sleep", "s_setprio")):
                self.r = set().union(*R) if R else set()
            else:
                self.w = set(R[0]); self.r = set().union(*R[1:]) if len(R) > 1 else set()
                if "saveexec" in op: self.w.add("exec")
def need(p, c):
    n = 0
    isv = lambda x: {r for r in x if r[0] in "va" and r != "vcc"}
    iss = lambda x: {r for r in x if r[0] == "s" or r == "vcc"}
    if p.kind == "valu":
        vw = isv(p.w); sw = iss(p.w)
        if c.kind == "valu":
            if c.dpp and vw & c.r: n = max(n, 2)
            if c.perm and vw & c.r: n = max(n, 2)
            if c.rdl and vw & c.r: n = max(n, 1)
            if p.trans and vw & c.r: n = max(n, 1)
            if p.sdwa and vw & (c.r | c.w): n = max(n, 1)
            if p.dot and vw & (c.r | c.w):
                if not (c.dot and c.op == p.op and not (vw & c.dotAB if hasattr(c, "dotAB") else False)): n = max(n, 3)
            if sw & c.r: n = max(n, 4 if (c.rdl or c.wrl) else 2)
            if "exec" in p.w:
                if c.dpp: n = max(n, 5)
                if c.rdl or c.wrl or c.perm: n = max(n, 4)
        if c.kind == "mfma":
            if vw & c.r: n = max(n, 3 if p.dot else 2)
            if "exec" in p.w: n = max(n, 4)
        if c.kind == "vmem" and sw & c.r: n = max(n, 5)
        if c.kind in ("vmem", "ds") and p.dot and vw & c.r: n = max(n, 3)
    if p.kind == "mfma":
        t = {4: (0, 6, 8, 3), 8: (0, 10, 12, 7)}[p.passes]
        if c.kind == "mfma":
            if p.w & c.C: n = max(n, t[0] if (p.w == c.C and p.passes == c.passes) else t[1])
            if p.w & (c.A | c.B): n = max(n, t[2])
            if p.w & c.w and not (p.w & c.C): n = max(n, t[1])
        if c.kind in ("valu", "vmem", "ds"):
            if p.w & (c.r | c.w): n = max(n, t[2])
        if c.kind == "valu" and p.C & c.w: n = max(n, t[3])
    if p.kind == "vmem" and p.data:
        if c.kind == "valu" and p.data & c.w: n = max(n, 2)
        elif p.data & c.w: n = max(n, 1)
    if p.kind == "salu" and "m0" in p.w and c.kind == "vmem" and getattr(c, "lds", False): n = max(n, 1)
    return n
def fix(lines):
    out = []
    for line in lines:
        c = I(line)
        if c.real and c.kind == "valu" and c.dot:
            ops = [o.strip() for o in line.split(";")[0].split(None, 1)[1].split(",")]
            c.dotAB = regs(ops[1]) | regs(ops[2])
        if c.real and c.kind != "nop":
            d = 0; pad = 0
            for p in reversed(out):
                if d >= 20: break
                if p.real:
                    pad = max(pad, need(p, c) - d)
                    d += p.ws
            if pad > 0: out.append(I(f"s_nop {pad-1}"))
        out.append(c)
    return [i.line for i in out]
```

```python
import sys
from hz import fix
NAME = "sequential_preLN__sliding_block_cached__mixer_channel_mlp__decode"
HDR = open("cdna_kernels/%s.s.ref" % NAME).read().split("; Override launch")[0]

WS_EPOCH = 0; WS_FLAGS = 1024; WS_QP = 0x10000; WS_ML = 0x50000; WS_OP = 0x60000; WS_AP = 0x80000; WS_MP = 0x90000
WS_STAMP = 0x100000
OOB = 0xF0000000
L_W1 = 0; L_W2 = 40960
L_RED = 81920
L_ML = L_RED + 4096
L_OB = L_ML + 64
OBS = 1088
L_HB = L_OB + 2 * OBS
L_YB = L_HB + 2560
YBS = 1344
L_PB = L_YB + 2 * YBS
L_H1 = L_PB + 1024
LDS_BYTES = L_H1 + 512
SPIN = 200000
LOG2E = 0x3FB8AA3B

def gen(diag=False, nt="nt", win=8, wnt="nt"):
    L = []
    def A(s):
        for l in s.split("\n"): L.append("    " + l.strip() if not l.strip().endswith(":") else l.strip())
    nst = [0]
    def stamp(i):
        if diag:
            A("s_memrealtime s[92:93]"); A("s_waitcnt lgkmcnt(0)"); A(f"v_writelane_b32 v255, s92, {i}")
    def bf16r(d, x):
        A(f"v_cvt_pk_bf16_f32 v{d}, v{x}, v{x}"); A(f"v_and_b32 v{d}, 0xffff0000, v{d}")
    def row_allred(op, v):
        for c in ("row_mirror", "row_half_mirror", "quad_perm:[2,3,0,1]", "quad_perm:[1,0,3,2]"):
            A(f"{op}_dpp v{v}, v{v}, v{v} {c} row_mask:0xf bank_mask:0xf")
    def swap_allred(op, v, t, which):
        A(f"v_mov_b32 v{t}, v{v}"); A(f"v_permlane{which}_swap_b32 v{v}, v{t}"); A(f"{op} v{v}, v{v}, v{t}")
    def srd(r, base, size):
        A(f"s_mov_b32 s{r}, s{base}"); A(f"s_mov_b32 s{r+1}, s{base+1}"); A(f"s_mov_b32 s{r+2}, {size}"); A(f"s_mov_b32 s{r+3}, 0x20000")
    WS = "s[40:43]"
    K0, V0, WQ0, QP0, XS0, XG0 = 64, 128, 192, 212, 228, 238
    SENT = 24
    ACC = 28

    if diag: A("s_memrealtime s[88:89]")
    A("s_cmp_ge_u32 s2, 256"); A("s_cbranch_scc1 L_end")
    A("s_load_dwordx16 s[4:19], s[0:1], 0")
    A("s_load_dwordx8 s[20:27], s[0:1], 64")
    A("s_load_dwordx2 s[28:29], s[0:1], 96")
    A("v_lshrrev_b32 v7, 6, v0"); A("v_and_b32 v1, 63, v0"); A("v_readfirstlane_b32 s3, v7")
    A("s_and_b32 s30, s2, 7"); A("s_lshr_b32 s31, s2, 3"); A("s_lshr_b32 s78, s31, 3")
    A("s_lshl_b32 s32, s30, 2"); A("s_add_u32 s32, s32, s78")
    A("s_and_b32 s33, s31, 7"); A("s_lshr_b32 s34, s33, 2"); A("s_and_b32 s35, s33, 3")
    A("v_lshlrev_b32 v2, 4, v1"); A("v_lshrrev_b32 v8, 4, v1"); A("v_and_b32 v9, 15, v1")
    A("v_lshrrev_b32 v10, 5, v1"); A("v_mul_u32_u24 v10, 1280, v10"); A("v_and_b32 v7, 31, v1"); A("v_mul_u32_u24 v7, 40, v7"); A("v_add_u32 v10, v10, v7")
    A("s_mul_i32 s79, s33, 80"); A("s_mul_i32 s78, s3, 20"); A("s_add_u32 s79, s79, s78")
    A("v_add_u32 v7, s79, v8")
    A("v_bfe_u32 v11, v1, 3, 1"); A("v_mul_u32_u24 v11, 1280, v11"); A("v_lshl_add_u32 v11, v7, 1, v11")
    A("s_lshl_b32 s78, s32, 8")
    A("v_lshlrev_b32 v12, 13, v7"); A("v_lshl_add_u32 v12, v9, 4, v12"); A("v_add_u32 v12, s78, v12")
    for t in range(1, 5): A(f"v_add_u32 v{12+t}, {t*32768}, v12")
    A("s_lshl_b32 s78, s34, 25"); A("s_lshl_b32 s80, s32, 20"); A("s_add_u32 s78, s78, s80")
    A("s_lshl_b32 s80, s35, 16"); A("s_add_u32 s78, s78, s80"); A("s_lshl_b32 s80, s3, 14"); A("s_add_u32 s78, s78, s80")
    A(f"s_add_u32 s78, s78, {3072*256 + 4096}")
    A("v_add_u32 v17, s78, v2"); A("v_add_u32 v18, 8192, v17")
    for t in range(5): A(f"v_mov_b32 v{XG0+t}, 0")
    A("s_sub_u32 s78, s31, 10"); A("s_lshr_b32 s80, s78, 1"); A("s_lshl_b32 s80, s80, 3"); A("s_add_u32 s80, s80, s30")
    A("s_and_b32 s78, s78, 1"); A("s_lshl_b32 s37, s80, 1"); A("s_add_u32 s37, s37, s78")
    A("s_cmp_lt_u32 s80, 27"); A("s_cselect_b32 s36, 2, 0")
    A("s_cmp_lt_u32 s31, 10"); A("s_cselect_b32 s36, 1, s36"); A("s_cselect_b32 s37, s31, s37")
    for r in range(4): A(f"v_mov_b32 v{SENT+r}, -1")
    A(f"v_mov_b32 v23, {OOB}")
    A("s_lshl_b32 s78, s32, 3"); A("s_add_u32 s78, s78, s33")
    A("s_lshl_b32 s38, s78, 9"); A(f"s_add_u32 s38, s38, {WS_OP}")
    A("v_add_u32 v19, s38, v2"); A("v_cmp_gt_u32 vcc, 32, v0"); A("v_cndmask_b32 v19, v23, v19, vcc")
    A("s_mul_i32 s80, s30, 5120"); A("s_lshl_b32 s81, s37, 2"); A("s_add_u32 s81, s81, s3"); A("s_lshl_b32 s81, s81, 7")
    A("s_add_u32 s80, s80, s81"); A(f"s_add_u32 s80, s80, {WS_AP}")
    A("v_lshlrev_b32 v20, 6, v9"); A("v_lshl_add_u32 v20, v8, 4, v20"); A("v_add_u32 v20, s80, v20")
    A("v_cmp_gt_u32 vcc, 2, v9"); A("v_cndmask_b32 v20, v23, v20, vcc")
    A("s_mul_i32 s80, s37, 5120"); A("s_mul_i32 s81, s3, 640"); A("s_add_u32 s80, s80, s81"); A(f"s_add_u32 s80, s80, {WS_MP}")
    A("v_and_b32 v7, 1, v1"); A("v_mul_u32_u24 v7, 2560, v7"); A("v_lshl_add_u32 v7, v8, 4, v7")
    A("v_lshrrev_b32 v21, 1, v9"); A("v_lshl_add_u32 v7, v21, 6, v7"); A("v_add_u32 v7, s80, v7")
    A("v_add_u32 v21, 512, v7"); A("v_cmp_gt_u32 vcc, 4, v9"); A("v_cndmask_b32 v21, v23, v21, vcc")
    A("s_cmp_eq_u32 s36, 2"); A("s_cselect_b64 vcc, -1, 0")
    A("v_cndmask_b32 v20, v20, v7, vcc"); A("v_cndmask_b32 v21, v23, v21, vcc")
    A("s_cmp_eq_u32 s36, 0"); A("s_cselect_b64 vcc, -1, 0"); A("v_cndmask_b32 v20, v20, v23, vcc")
    A("v_lshlrev_b32 v22, 7, v1")
    A("s_lshl_b32 s80, s3, 5"); A("s_add_u32 s80, s80, s31"); A("s_cmp_eq_u32 s80, 31"); A("s_cselect_b64 vcc, -1, 0")
    A("v_cndmask_b32 v22, v23, v22, vcc")
    A("s_getpc_b64 s[52:53]"); A("L_pc:")
    A("s_mov_b32 s54, L_end-L_pc"); A("s_mov_b32 s55, 0x20000")
    A("s_waitcnt lgkmcnt(0)")
    A(f"global_load_dwordx4 v[{XS0}:{XS0+3}], v10, s[4:5]")
    A(f"global_load_dwordx4 v[{XS0+4}:{XS0+7}], v10, s[4:5] offset:16")
    A(f"global_load_dwordx2 v[{XS0+8}:{XS0+9}], v10, s[4:5] offset:32")
    for t in range(5): A(f"global_load_short_d16_hi v{XG0+t}, v11, s[4:5] offset:{8*t}")
    for t in range(5): A(f"global_load_dwordx4 v[{WQ0+4*t}:{WQ0+4*t+3}], v{12+t}, s[10:11] {nt}")
    A("s_load_dword s56, s[28:29], 0")
    srd(40, 28, 0x10000000)
    A(f"buffer_store_dwordx4 v[{SENT}:{SENT+3}], v19, {WS}, 0 offen sc1")
    A(f"buffer_store_dwordx4 v[{SENT}:{SENT+3}], v20, {WS}, 0 offen sc1")
    A(f"buffer_store_dwordx4 v[{SENT}:{SENT+3}], v21, {WS}, 0 offen sc1")
    A("s_movk_i32 s80, 0x2000")
    A("buffer_load_dword v243, v22, s[52:55], 0 offen")
    A("buffer_load_dword v244, v22, s[52:55], s80 offen")
    def ldKV(base, ptr, t):
        A(f"global_load_dwordx4 v[{base+4*t}:{base+4*t+3}], v{17 + t//8}, {ptr} offset:{(t%8)*1024-4096} {nt}")
    for t in range(8): ldKV(K0, "s[6:7]", t)
    if diag:
        A("v_mov_b32 v255, 0"); A("s_waitcnt lgkmcnt(0)"); A("v_writelane_b32 v255, s88, 0")
    stamp(1)
    A("v_and_b32 v7, 1, v1"); A("v_lshlrev_b32 v7, 4, v7"); A("v_mov_b32 v32, 0xffff"); A("v_lshlrev_b32 v7, v7, v32")
    A("v_bfe_u32 v32, v1, 1, 2")
    for r in range(4):
        A(f"v_cmp_eq_u32 vcc, {r}, v32"); A(f"v_cndmask_b32 v{3+r}, 0, v7, vcc")
    def ln_stats(src, n, X, mean, tmp, half):
        for i in range(n):
            A(f"v_lshlrev_b32 v{X+2*i}, 16, v{src+i}"); A(f"v_and_b32 v{X+2*i+1}, 0xffff0000, v{src+i}")
        stats(n, X, mean, tmp, half)
    def stats(n, X, mean, tmp, half):
        A(f"v_pk_add_f32 v[{tmp}:{tmp+1}], v[{X}:{X+1}], v[{X+2}:{X+3}]")
        A(f"v_pk_add_f32 v[{tmp+2}:{tmp+3}], v[{X+4}:{X+5}], v[{X+6}:{X+7}]")
        for i in range(4, n):
            t = tmp + 2 * (i & 1)
            A(f"v_pk_add_f32 v[{t}:{t+1}], v[{t}:{t+1}], v[{X+2*i}:{X+2*i+1}]")
        A(f"v_pk_add_f32 v[{tmp}:{tmp+1}], v[{tmp}:{tmp+1}], v[{tmp+2}:{tmp+3}]")
        A(f"v_add_f32 v{mean}, v{tmp}, v{tmp+1}")
        row_allred("v_add_f32", mean); swap_allred("v_add_f32", mean, tmp, 16)
        if not half: swap_allred("v_add_f32", mean, tmp, 32)
        A(f"v_mul_f32 v{mean}, 0x3acccccd, v{mean}")
        D = tmp + 4
        for i in range(n):
            t = tmp + 2 * (i & 1)
            A(f"v_pk_add_f32 v[{D}:{D+1}], v[{X+2*i}:{X+2*i+1}], v[{mean}:{mean+1}] op_sel_hi:[1,0] neg_lo:[0,1] neg_hi:[0,1]")
            if i < 2: A(f"v_pk_mul_f32 v[{t}:{t+1}], v[{D}:{D+1}], v[{D}:{D+1}]")
            else: A(f"v_pk_fma_f32 v[{t}:{t+1}], v[{D}:{D+1}], v[{D}:{D+1}], v[{t}:{t+1}]")
        A(f"v_pk_add_f32 v[{tmp}:{tmp+1}], v[{tmp}:{tmp+1}], v[{tmp+2}:{tmp+3}]")
        va = mean + 2
        A(f"v_add_f32 v{va}, v{tmp}, v{tmp+1}")
        row_allred("v_add_f32", va); swap_allred("v_add_f32", va, tmp, 16)
        if not half: swap_allred("v_add_f32", va, tmp, 32)
        A(f"v_mul_f32 v{va}, 0x3acccccd, v{va}")
        bf16r(mean, mean); bf16r(va, va)
        A(f"v_add_f32 v{va}, 0x3727c5ac, v{va}"); bf16r(va, va)
        A(f"v_sqrt_f32 v{va}, v{va}"); bf16r(va, va)
        A(f"v_rcp_f32 v{va}, v{va}")
    A("s_waitcnt vmcnt(23)")
    ln_stats(XS0, 10, 32, 52, 56, True)
    A("v_mov_b32 v53, v52"); A("v_mov_b32 v55, v54")
    A("v_permlane32_swap_b32 v52, v53"); A("v_permlane32_swap_b32 v54, v55")
    A("s_mov_b32 vcc_lo, 0xff00ff00"); A("s_mov_b32 vcc_hi, 0xff00ff00")
    A("v_cndmask_b32 v52, v52, v53, vcc"); A("v_cndmask_b32 v54, v54, v55, vcc")
    A("s_waitcnt vmcnt(18)")
    for t in range(5):
        x = XG0 + t
        A(f"v_sub_f32 v{x}, v{x}, v52"); bf16r(x, x); A(f"v_mul_f32 v{x}, v{x}, v54"); A(f"v_cvt_pk_bf16_f32 v{x}, v{x}, v{x}")
        for r in range(4): A(f"v_and_b32 v{32+4*t+r}, v{x}, v{3+r}")
    for t in range(5):
        A(f"s_waitcnt vmcnt({17-t})")
        A(f"v_mfma_f32_16x16x32_bf16 v[{ACC}:{ACC+3}], v[{32+4*t}:{35+4*t}], v[{WQ0+4*t}:{WQ0+4*t+3}], {'0' if t == 0 else f'v[{ACC}:{ACC+3}]'}")
    A("s_lshl_b32 s78, s3, 10"); A(f"s_add_u32 s78, s78, {L_RED}"); A("v_add_u32 v7, s78, v2")
    A(f"ds_write_b128 v7, v[{ACC}:{ACC+3}]")
    A(f"s_lshl_b32 s39, s38, 1"); A(f"s_add_u32 s39, s39, {(WS_QP - 2*WS_OP) & 0xffffffff}")
    A("v_add_u32 v52, s39, v2"); A("v_cmp_eq_u32 vcc, s3, v8"); A("v_cndmask_b32 v52, v23, v52, vcc")
    A("s_lshl_b32 s78, s2, 2"); A(f"s_add_u32 s78, s78, {WS_FLAGS}"); A("v_mov_b32 v53, s78")
    A("v_cmp_eq_u32 vcc, 0, v0"); A("v_cndmask_b32 v53, v23, v53, vcc")
    A("s_waitcnt vmcnt(10) lgkmcnt(0)")
    A("s_barrier")
    for k in range(4): A(f"ds_read_b128 v[{32+4*k}:{35+4*k}], v2 offset:{L_RED + 1024*k}") if L_RED + 1024*k < 65536 else None
    if L_RED >= 65536:
        A(f"v_add_u32 v7, {L_RED}, v2")
        for k in range(4): A(f"ds_read_b128 v[{32+4*k}:{35+4*k}], v7 offset:{1024*k}")
    A("s_add_u32 s56, s56, 0x01010101")
    A("s_lshr_b32 s57, s56, 8"); A("s_lshr_b32 s58, s56, 16"); A("s_lshr_b32 s59, s56, 24")
    A("v_mov_b32 v54, 0xff"); A("v_mov_b32 v55, s56")
    A("s_waitcnt lgkmcnt(0)")
    def sum4(b):
        for hh in (0, 2):
            A(f"v_pk_add_f32 v[{b+hh}:{b+hh+1}], v[{b+hh}:{b+hh+1}], v[{b+4+hh}:{b+5+hh}]")
            A(f"v_pk_add_f32 v[{b+8+hh}:{b+9+hh}], v[{b+8+hh}:{b+9+hh}], v[{b+12+hh}:{b+13+hh}]")
        for hh in (0, 2):
            A(f"v_pk_add_f32 v[{b+hh}:{b+hh+1}], v[{b+hh}:{b+hh+1}], v[{b+8+hh}:{b+9+hh}]")
    sum4(32)
    for r in range(4): A(f"v_bfi_b32 v{32+r}, v54, s{56+r}, v{32+r}")
    A(f"buffer_store_dwordx4 v[32:35], v52, {WS}, 0 offen sc1")
    A(f"buffer_store_dword v55, v53, {WS}, 0 offen sc1")
    stamp(2)
    for t in range(8, 12): ldKV(K0, "s[6:7]", t)
    A("s_lshl_b32 s78, s32, 13"); A("s_lshl_b32 s80, s34, 9"); A("s_add_u32 s78, s78, s80"); A(f"s_add_u32 s78, s78, {WS_QP}")
    A("v_lshlrev_b32 v56, 11, v8"); A("v_lshl_add_u32 v56, v9, 4, v56"); A("v_add_u32 v56, s78, v56")
    A(f"v_add_u32 v57, {WS_FLAGS}, v2"); A("v_cmp_gt_u32 vcc, 64, v0"); A("v_cndmask_b32 v57, v23, v57, vcc")
    def qpoll():
        for jj in range(2):
            for hf in range(2):
                r = QP0 + 8*jj + 4*hf
                A(f"buffer_load_dwordx4 v[{r}:{r+3}], v56, {WS}, 0 offen offset:{jj*1024 + hf*256} sc1")
    A("s_waitcnt vmcnt(10)")
    qpoll()
    for t in range(12, 16): ldKV(K0, "s[6:7]", t)
    A("s_waitcnt vmcnt(14)")
    for t in range(0, 4): ldKV(V0, "s[8:9]", t)
    A("s_waitcnt vmcnt(8)")
    for t in range(4, 8): ldKV(V0, "s[8:9]", t)
    A(f"buffer_load_dwordx4 v[244:247], v57, {WS}, 0 offen sc1")
    A(f"s_mov_b32 s90, {SPIN}")
    A("L_qchk:")
    A(f"v_xor_b32 v32, s56, v{QP0}")
    for i in range(1, 16): A(f"v_bitop3_b32 v32, v32, v{QP0+i}, s{56 + (i&3)} bitop3:0xf6")
    A("v_and_b32 v32, 0xff, v32"); A("v_cmp_ne_u32 vcc, 0, v32")
    A("s_cbranch_vccz L_qok")
    A("s_sub_u32 s90, s90, 1"); A("s_cbranch_scc1 L_qok")
    qpoll()
    A("s_waitcnt vmcnt(0)")
    A("s_branch L_qchk")
    A("L_qok:")
    stamp(3)
    for i in range(16): A(f"v_and_b32 v{QP0+i}, 0xffffff00, v{QP0+i}")
    for i in range(0, 8, 2): A(f"v_pk_add_f32 v[{QP0+i}:{QP0+i+1}], v[{QP0+i}:{QP0+i+1}], v[{QP0+8+i}:{QP0+9+i}]")
    for which in (16, 32):
        for i in range(8): A(f"v_mov_b32 v{QP0+8+i}, v{QP0+i}")
        for i in range(8): A(f"v_permlane{which}_swap_b32 v{QP0+i}, v{QP0+8+i}")
        for i in range(0, 8, 2): A(f"v_pk_add_f32 v[{QP0+i}:{QP0+i+1}], v[{QP0+i}:{QP0+i+1}], v[{QP0+8+i}:{QP0+9+i}]")
    Q = 60
    for r in range(4): A(f"v_cvt_pk_bf16_f32 v{Q+r}, v{QP0+2*r}, v{QP0+2*r+1}")
    P = 32
    def qk(ts):
        for r in range(4):
            for t in ts:
                A(f"v_dot2_f32_bf16 v{P+t}, v{K0+4*t+r}, v{Q+r}, {'0' if r == 0 else f'v{P+t}'}")
    qk(range(0, 12))
    A("s_waitcnt vmcnt(9)")
    for t in range(8, 12): ldKV(V0, "s[8:9]", t)
    qk(range(12, 16))
    R = 48
    for t in range(8): A(f"v_add_f32_dpp v{R+t}, v{P+t}, v{P+t} row_mirror row_mask:0xf bank_mask:0x3")
    for t in range(8): A(f"v_add_f32_dpp v{R+t}, v{P+t+8}, v{P+t+8} row_mirror row_mask:0xf bank_mask:0xc")
    for t in range(4): A(f"v_add_f32_dpp v{P+t}, v{R+t}, v{R+t} row_half_mirror row_mask:0xf bank_mask:0x5")
    for t in range(4): A(f"v_add_f32_dpp v{P+t}, v{R+t+4}, v{R+t+4} row_half_mirror row_mask:0xf bank_mask:0xa")
    for t in range(4): A(f"v_add_f32_dpp v{R+t}, v{P+t}, v{P+t} quad_perm:[2,3,0,1] row_mask:0xf bank_mask:0xf")
    A("s_mov_b32 vcc_lo, 0xcccccccc"); A("s_mov_b32 vcc_hi, 0xcccccccc")
    for t in range(2): A(f"v_cndmask_b32 v{P+t}, v{R+t}, v{R+t+2}, vcc")
    for t in range(2): A(f"v_add_f32_dpp v{R+t}, v{P+t}, v{P+t} quad_perm:[1,0,3,2] row_mask:0xf bank_mask:0xf")
    A("s_mov_b32 vcc_lo, 0xaaaaaaaa"); A("s_mov_b32 vcc_hi, 0xaaaaaaaa")
    S = 40
    A(f"v_cndmask_b32 v{S}, v{R}, v{R+1}, vcc")
    bf16r(S, S); A(f"v_mul_f32 v{S}, 0x3db504f3, v{S}"); bf16r(S, S)
    A(f"v_mov_b32 v42, v{S}")
    row_allred("v_max_f32", 42); swap_allred("v_max_f32", 42, 44, 16); swap_allred("v_max_f32", 42, 44, 32)
    A(f"v_sub_f32 v43, v{S}, v42"); A(f"v_mul_f32 v43, {LOG2E:#x}, v43"); A("v_exp_f32 v43, v43")
    row_allred("v_add_f32", 43); swap_allred("v_add_f32", 43, 44, 16); swap_allred("v_add_f32", 43, 44, 32)
    A("s_lshl_b32 s78, s3, 3"); A(f"s_add_u32 s78, s78, {L_ML}"); A("v_mov_b32 v44, s78")
    A("ds_write_b64 v44, v[42:43]")
    A(f"v_mov_b32 v44, {L_ML}")
    A("s_lshl_b32 s78, s34, 5"); A("s_add_u32 s78, s78, s32"); A("s_lshl_b32 s78, s78, 7"); A(f"s_add_u32 s78, s78, {WS_ML}")
    A("s_add_u32 s76, s28, s78"); A("s_addc_u32 s77, s29, 0")
    A("s_lshl_b32 s80, s35, 4"); A("s_add_u32 s78, s78, s80"); A("v_mov_b32 v45, s78")
    A("v_cmp_eq_u32 vcc, 0, v0"); A("v_cndmask_b32 v45, v23, v45, vcc")
    A("s_waitcnt lgkmcnt(0)"); A("s_barrier")
    A("ds_read_b128 v[48:51], v44"); A("ds_read_b128 v[52:55], v44 offset:16")
    A("s_waitcnt lgkmcnt(0)")
    def mlcomb(ms, ls, M, Lr, t):
        A(f"v_mov_b32 v{M}, {ms[0]}")
        for i in range(1, 4): A(f"v_max_f32 v{M}, {ms[i]}, v{M}")
        for i in range(4):
            A(f"v_sub_f32 v{t+i}, {ms[i]}, v{M}"); A(f"v_mul_f32 v{t+i}, {LOG2E:#x}, v{t+i}"); A(f"v_exp_f32 v{t+i}, v{t+i}")
        A(f"v_mul_f32 v{Lr}, {ls[0]}, v{t}")
        for i in range(1, 4): A(f"v_fmac_f32 v{Lr}, {ls[i]}, v{t+i}")
    mlcomb(["v48", "v50", "v52", "v54"], ["v49", "v51", "v53", "v55"], 32, 33, 36)
    A("v_mov_b32 v34, s56"); A("v_mov_b32 v35, s56")
    A(f"buffer_store_dwordx4 v[32:35], v45, {WS}, 0 offen sc1")
    for t in range(12, 16): ldKV(V0, "s[8:9]", t)
    stamp(4)
    A(f"s_mov_b32 s90, {SPIN}")
    A("L_mlpoll:")
    A("s_load_dwordx16 s[60:75], s[76:77], 0 glc")
    A("s_waitcnt lgkmcnt(0)")
    A("s_xor_b32 s78, s62, s56")
    for r in (63, 66, 67, 70, 71, 74, 75):
        A(f"s_xor_b32 s80, s{r}, s56"); A("s_or_b32 s78, s78, s80")
    A("s_cbranch_scc0 L_mlok")
    A("s_sub_u32 s90, s90, 1"); A("s_cbranch_scc0 L_mlpoll")
    A("L_mlok:")
    mlcomb(["s60", "s64", "s68", "s72"], ["s61", "s65", "s69", "s73"], 48, 49, 52)
    A("v_rcp_f32 v49, v49")
    A(f"v_sub_f32 v43, v{S}, v48"); A(f"v_mul_f32 v43, {LOG2E:#x}, v43"); A("v_exp_f32 v43, v43")
    A("v_mul_f32 v43, v43, v49"); A("v_cvt_pk_bf16_f32 v43, v43, v43")
    for t in range(16):
        for r in range(4): A(f"v_and_b32_dpp v{K0+4*t+r}, v43, v{3+r} row_newbcast:{t} row_mask:0xf bank_mask:0xf")
    stamp(5)
    A("v_lshlrev_b32 v46, 5, v9"); A("v_lshl_add_u32 v46, v8, 4, v46"); A("s_lshl_b32 s78, s3, 9"); A(f"s_add_u32 s78, s78, {L_RED}"); A("v_add_u32 v46, s78, v46")
    A(f"v_add_u32 v47, {L_RED}, v2")
    A("v_lshrrev_b32 v58, 3, v1"); A("v_mul_u32_u24 v58, 1280, v58"); A("v_bfe_u32 v7, v1, 1, 2"); A("v_xor_b32 v7, v7, v8")
    A("v_lshl_add_u32 v58, v7, 5, v58"); A("v_and_b32 v59, 1, v1"); A("v_lshlrev_b32 v59, 4, v59"); A("v_add_u32 v58, v58, v59")
    A("v_and_b32 v7, 1, v7"); A("v_lshl_add_u32 v59, v7, 5, v59"); A("v_lshrrev_b32 v7, 2, v1"); A("v_mul_u32_u24 v7, 3456, v7"); A("v_add_u32 v59, v59, v7")
    A("s_cmp_eq_u32 s36, 1"); A("s_cbranch_scc1 L_wo")
    A("s_cmp_eq_u32 s36, 2"); A("s_cbranch_scc1 L_mlp")

    def flags_check(tag):
        A("s_cmp_lg_u32 s3, 0"); A(f"s_cbranch_scc1 L_fok{tag}")
        A(f"s_mov_b32 s90, {SPIN}")
        A(f"L_fchk{tag}:")
        A("v_xor_b32 v7, s56, v244")
        for i in range(1, 4): A(f"v_bitop3_b32 v7, v7, v{244+i}, s56 bitop3:0xf6")
        A("v_cmp_ne_u32 vcc, 0, v7")
        A(f"s_cbranch_vccz L_fok{tag}")
        A("s_sub_u32 s90, s90, 1"); A(f"s_cbranch_scc1 L_fok{tag}")
        A(f"buffer_load_dwordx4 v[244:247], v57, {WS}, 0 offen sc1")
        A("s_waitcnt vmcnt(0)")
        A(f"s_branch L_fchk{tag}")
        A(f"L_fok{tag}:")

    def pv(dma, tag, check):
        after = lambda t: (15 - t) + (1 if t < 8 else 0) + (1 if t < 12 else 0)
        nd = 0
        for t in range(16):
            A(f"s_waitcnt vmcnt({after(t) + nd})")
            A(f"v_mfma_f32_16x16x32_bf16 v[{ACC}:{ACC+3}], v[{K0+4*t}:{K0+4*t+3}], v[{V0+4*t}:{V0+4*t+3}], {'0' if t == 0 else f'v[{ACC}:{ACC+3}]'}")
            if t == 8 and check: flags_check(tag)
            while nd < len(dma) and (15 - t) + nd < win and t < 15:
                dma[nd](); nd += 1
        stamp(6)
        A("s_mov_b32 exec_hi, 0")
        A(f"ds_write_b128 v46, v[{ACC}:{ACC+3}]")
        A("s_mov_b64 exec, -1")
        A("s_waitcnt lgkmcnt(0)"); A("s_barrier")
        for k in range(4): A(f"ds_read_b128 v[{32+4*k}:{35+4*k}], v47 offset:{512*k}")
        A("s_waitcnt lgkmcnt(0)")
        sum4(32)
        A(f"buffer_store_dwordx4 v[32:35], v19, {WS}, 0 offen sc1")
        stamp(7)
        while nd < len(dma):
            dma[nd](); nd += 1

    def poll(tag, loads, first_done=True):
        A(f"s_mov_b32 s90, {SPIN}")
        A(f"L_p{tag}:")
        A("s_waitcnt vmcnt(0)")
        regs = [r for r, _ in loads]
        A(f"v_max3_u32 v7, v{regs[0]}, v{regs[1]}, v{regs[2]}")
        rest = regs[3:]
        while rest:
            if len(rest) >= 2: A(f"v_max3_u32 v7, v7, v{rest[0]}, v{rest[1]}"); rest = rest[2:]
            else: A(f"v_max_u32 v7, v7, v{rest[0]}"); rest = rest[1:]
        A("v_cmp_eq_u32 vcc, -1, v7")
        A(f"s_cbranch_vccz L_pd{tag}")
        A("s_sub_u32 s90, s90, 1"); A(f"s_cbranch_scc1 L_pd{tag}")
        for i, (r, _) in enumerate(loads): A(f"v_cmp_eq_u32 s[{60+2*i}:{61+2*i}], -1, v{r}")
        for i, (r, a) in enumerate(loads):
            A(f"s_mov_b64 exec, s[{60+2*i}:{61+2*i}]")
            A(f"buffer_load_dwordx4 v[{r}:{r+3}], {a} sc1")
        A("s_mov_b64 exec, -1")
        A(f"s_branch L_p{tag}")
        A(f"L_pd{tag}:")

    def dump_stamps():
        if diag:
            A("s_mov_b64 exec, -1")
            A("s_getreg_b32 s92, hwreg(HW_REG_XCC_ID)"); A("v_writelane_b32 v255, s92, 62"); A("v_writelane_b32 v255, s36, 63")
            A("s_lshl_b32 s78, s2, 2"); A("s_add_u32 s78, s78, s3"); A("s_lshl_b32 s78, s78, 8"); A(f"s_add_u32 s78, s78, {WS_STAMP}")
            A("v_lshlrev_b32 v7, 2, v1")
            A(f"buffer_store_dword v255, v7, {WS}, s78 offen")

    pv([], "n", True)
    A("s_cmp_lg_u32 s2, 255"); A("s_cbranch_scc1 L_nend")
    A("v_cmp_eq_u32 vcc, 0, v0"); A("v_cndmask_b32 v7, v23, 0, vcc"); A("v_mov_b32 v8, s56")
    A(f"buffer_store_dword v8, v7, {WS}, 0 offen")
    A("L_nend:")
    dump_stamps()
    A("s_endpgm")

    A("L_wo:")
    srd(44, 12, 5242880)
    A("s_lshl_b32 s82, s30, 2"); A("s_add_u32 s82, s82, s3"); A(f"s_mul_i32 s82, s82, {128*1280}"); A("s_lshl_b32 s78, s37, 7"); A("s_add_u32 s82, s82, s78")
    A("s_lshl_b32 s83, s3, 14")
    def dma_wo(n):
        def f():
            A(f"s_add_u32 m0, s83, {n*1024}"); A(f"s_add_u32 s78, s82, {n*10240}")
            A(f"buffer_load_dwordx4 v58, s[44:47], s78 offen {wnt} lds")
        return f
    pv([dma_wo(n) for n in range(16)], "w", True)
    A("s_lshl_b32 s78, s30, 2"); A("s_add_u32 s78, s78, s3"); A("s_lshl_b32 s78, s78, 12"); A(f"s_add_u32 s78, s78, {WS_OP}")
    A("v_lshrrev_b32 v10, 5, v1"); A("v_and_b32 v11, 31, v1"); A("v_lshlrev_b32 v12, 11, v10"); A("v_lshl_add_u32 v12, v11, 4, v12"); A("v_add_u32 v12, s78, v12")
    ld1 = [(192 + 4*s, f"v12, {WS}, 0 offen offset:{512*s}") for s in range(4)]
    for r, a in ld1: A(f"buffer_load_dwordx4 v[{r}:{r+3}], {a} sc1")
    A(f"v_mul_u32_u24 v13, {OBS}, v10"); A("v_lshrrev_b32 v7, 3, v11"); A("v_lshl_add_u32 v13, v7, 6, v13")
    A("v_and_b32 v7, 3, v1"); A("v_lshl_add_u32 v13, v7, 4, v13"); A("v_bfe_u32 v7, v1, 2, 1"); A("v_lshl_add_u32 v13, v7, 3, v13")
    A("s_lshl_b32 s78, s3, 8"); A(f"s_add_u32 s78, s78, {L_OB}"); A("v_add_u32 v13, s78, v13")
    A("v_and_b32 v14, 1, v1"); A(f"v_mul_u32_u24 v14, {OBS}, v14"); A("v_lshl_add_u32 v14, v8, 4, v14"); A(f"v_add_u32 v14, {L_OB}, v14")
    def traddr1280(d):
        A("v_bfe_u32 v7, v1, 2, 3"); A(f"v_lshlrev_b32 v{d}, 7, v7"); A("v_lshrrev_b32 v7, 1, v7"); A(f"v_lshl_add_u32 v{d}, v7, 5, v{d}")
        A("v_lshrrev_b32 v7, 5, v1"); A(f"v_lshl_add_u32 v{d}, v7, 10, v{d}"); A("v_and_b32 v7, 3, v1"); A(f"v_lshl_add_u32 v{d}, v7, 3, v{d}")
    traddr1280(15)
    A("s_lshl_b32 s78, s3, 5"); A("v_xor_b32 v15, s78, v15")
    A("s_waitcnt vmcnt(4)"); A("s_barrier")
    stamp(8)
    for ks in range(16):
        for u in range(2): A(f"ds_read_b64_tr_b16 v[{64+4*ks+2*u}:{65+4*ks+2*u}], v15 offset:{(4*ks+2*u)*1024}")
    poll("1", ld1)
    stamp(9)
    sum4(192)
    A("v_cvt_pk_bf16_f32 v192, v192, v193"); A("v_cvt_pk_bf16_f32 v193, v194, v195")
    A("ds_write_b64 v13, v[192:193]")
    A("s_waitcnt lgkmcnt(0)"); A("s_barrier")
    for ks in range(16): A(f"ds_read_b128 v[{128+4*ks}:{131+4*ks}], v14 offset:{64*ks}")
    for ks in range(16):
        A(f"s_waitcnt lgkmcnt({15-ks})")
        A(f"v_mfma_f32_16x16x32_bf16 v[{ACC}:{ACC+3}], v[{64+4*ks}:{67+4*ks}], v[{128+4*ks}:{131+4*ks}], {'0' if ks == 0 else f'v[{ACC}:{ACC+3}]'}")
    A(f"buffer_store_dwordx4 v[{ACC}:{ACC+3}], v20, {WS}, 0 offen sc1")
    stamp(10)
    dump_stamps()
    A("s_endpgm")

    A("L_mlp:")
    srd(44, 16, 2211840); srd(48, 20, 2211840)
    A(f"s_mul_i32 s82, s3, {160*3456}"); A("s_lshl_b32 s78, s37, 6"); A("s_add_u32 s82, s82, s78")
    A("s_mul_i32 s83, s3, 10240")
    A(f"s_mul_i32 s84, s37, {32*1280}")
    A("s_mul_i32 s85, s3, 10")
    def dma_w1(n):
        def f():
            A(f"s_add_u32 m0, s83, {L_W1 + n*1024}"); A(f"s_add_u32 s78, s82, {n*16*3456}")
            A(f"buffer_load_dwordx4 v59, s[44:47], s78 offen {wnt} lds")
        return f
    def dma_w2(n):
        def f():
            A(f"s_add_u32 s78, s85, {n}"); A("s_and_b32 s80, s78, 3"); A("s_mul_i32 s80, s80, 10240"); A("s_lshr_b32 s78, s78, 2"); A("s_lshl_b32 s78, s78, 7")
            A("s_add_u32 s78, s78, s80"); A(f"s_add_u32 m0, s83, {L_W2 + n*1024}"); A("s_add_u32 s78, s78, s84")
            A(f"buffer_load_dwordx4 v58, s[48:51], s78 offen {wnt} lds")
        return f
    pv([dma_w1(n) for n in range(10)] + [dma_w2(n) for n in range(10)], "m", True)
    A("v_lshrrev_b32 v7, 3, v9"); A("v_lshlrev_b32 v10, 4, v7"); A("v_and_b32 v7, 3, v9"); A("v_lshl_add_u32 v10, v7, 2, v10"); A("v_add_u32 v10, v10, v8")
    A("v_bfe_u32 v7, v9, 2, 1"); A("v_mul_u32_u24 v7, 640, v7"); A("v_add_u32 v10, v10, v7"); A("s_mul_i32 s78, s3, 160"); A("v_add_lshl_u32 v10, v10, s78, 1")
    for i in range(7): A(f"v_mov_b32 v{232+i}, 0")
    for k in range(5): A(f"global_load_short_d16_hi v{232+k}, v10, s[4:5] offset:{64*k}")
    A("v_and_b32 v11, 31, v1"); A("s_lshl_b32 s78, s37, 5"); A("v_add_lshl_u32 v7, v11, s78, 1")
    A("global_load_short_d16_hi v237, v7, s[18:19]")
    A("s_cmp_ge_u32 s37, 20"); A("s_cselect_b32 s80, 20, 0"); A("s_sub_u32 s80, s37, s80"); A("s_lshl_b32 s80, s80, 5")
    A("s_min_u32 s80, s80, 608")
    A("v_and_b32 v7, 7, v1"); A("v_lshl_add_u32 v7, v7, 2, v8"); A("v_add_lshl_u32 v12, v7, s80, 1")
    A("global_load_short_d16_hi v238, v12, s[22:23]")
    A("v_mul_u32_u24 v13, 5120, v8"); A("v_lshl_add_u32 v13, v9, 4, v13"); A("s_mul_i32 s78, s3, 1280"); A(f"s_add_u32 s78, s78, {WS_AP}"); A("v_add_u32 v13, s78, v13")
    A("s_movk_i32 s81, 20480")
    ld2 = [(192 + 20*ph + 4*blk, f"v13, {WS}, {'s81' if ph else '0'} offen offset:{256*blk}") for ph in range(2) for blk in range(5)]
    for r, a in ld2: A(f"buffer_load_dwordx4 v[{r}:{r+3}], {a} sc1")
    A(f"v_add_u32 v10, {L_HB}, v10")
    A("v_lshrrev_b32 v7, 2, v1"); A("v_lshlrev_b32 v14, 6, v7"); A("v_and_b32 v7, 1, v8"); A("v_lshl_add_u32 v14, v7, 5, v14")
    A("v_and_b32 v7, 3, v1"); A("v_lshl_add_u32 v14, v7, 3, v14"); A("v_add_u32 v14, s83, v14"); A("v_xor_b32 v15, 32, v14")
    traddr1280(16)
    for i in range(10):
        A(f"s_add_u32 s78, s85, {i}"); A("s_and_b32 s80, s78, 3"); A("s_lshl_b32 s80, s80, 5"); A(f"v_xor_b32 v{48+i}, s80, v16")
        A("s_lshr_b32 s78, s78, 2"); A("s_lshl_b32 s78, s78, 12"); A(f"v_add_u32 v{48+i}, s78, v{48+i}")
    for i in range(0, 32, 2): A(f"v_mov_b64 v[{160+i}:{161+i}], 0")
    A("s_mul_i32 s78, s3, 1280"); A(f"s_add_u32 s78, s78, {L_HB}"); A("v_lshl_add_u32 v17, v1, 2, s78")
    A("v_lshlrev_b32 v18, 6, v8"); A("v_bfe_u32 v7, v1, 1, 2"); A("v_lshl_add_u32 v18, v7, 4, v18"); A("v_bfe_u32 v7, v1, 3, 1"); A("v_lshl_add_u32 v18, v7, 3, v18")
    A("v_and_b32 v7, 1, v1"); A("v_lshl_add_u32 v18, v7, 2, v18"); A(f"s_mul_i32 s78, s3, {YBS}"); A(f"s_add_u32 s78, s78, {L_YB}"); A("v_add_u32 v18, s78, v18")
    A(f"v_mul_u32_u24 v19, {YBS}, v7"); A("v_lshl_add_u32 v19, v8, 4, v19"); A("s_mul_i32 s78, s3, 320"); A(f"s_add_u32 s78, s78, {L_YB}"); A("v_add_u32 v19, s78, v19")
    A("v_lshlrev_b32 v22, 7, v7"); A("v_lshl_add_u32 v22, v8, 4, v22"); A("s_lshl_b32 s78, s3, 8"); A(f"s_add_u32 s78, s78, {L_PB}"); A("v_add_u32 v22, s78, v22")
    A("v_lshlrev_b32 v60, 6, v7"); A("v_lshl_add_u32 v60, v8, 4, v60"); A("s_lshl_b32 s78, s3, 7"); A(f"s_add_u32 s78, s78, {L_H1}"); A("v_add_u32 v60, s78, v60")
    A(f"v_lshlrev_b32 v61, 2, v1"); A(f"v_add_u32 v61, {L_PB}, v61")
    A("v_lshrrev_b32 v7, 5, v1"); A("v_lshlrev_b32 v62, 6, v7"); A("v_bfe_u32 v7, v1, 2, 2"); A("v_lshl_add_u32 v62, v7, 4, v62")
    A("v_bfe_u32 v7, v1, 4, 1"); A("v_lshl_add_u32 v62, v7, 3, v62"); A("v_and_b32 v7, 3, v1"); A("v_lshl_add_u32 v62, v7, 1, v62"); A("v_add_u32 v62, s78, v62")
    A("s_waitcnt vmcnt(10)"); A("s_barrier")
    stamp(8)
    for ks in range(5):
        for ct in range(2):
            for u in range(2):
                r = 64 + 8*ks + 4*ct + 2*u
                A(f"ds_read_b64_tr_b16 v[{r}:{r+1}], v{14+ct} offset:{L_W1 + (2*ks+u)*1024}")
    for i in range(10):
        for u in range(2):
            r = 104 + 4*i + 2*u
            A(f"ds_read_b64_tr_b16 v[{r}:{r+1}], v{48+i} offset:{L_W2 + u*2048}")
    poll("2", ld2)
    stamp(9)
    for i in range(0, 20, 2): A(f"v_pk_add_f32 v[{192+i}:{193+i}], v[{192+i}:{193+i}], v[{212+i}:{213+i}]")
    for blk in range(5):
        b = 192 + 4*blk
        A(f"v_permlane32_swap_b32 v{b}, v{b+2}"); A(f"v_permlane32_swap_b32 v{b+1}, v{b+3}")
    for blk in range(5):
        b = 192 + 4*blk
        A(f"v_pk_add_f32 v[{b}:{b+1}], v[{b}:{b+1}], v[{b+2}:{b+3}]")
    for blk in range(5):
        b = 192 + 4*blk
        A(f"v_permlane16_swap_b32 v{b}, v{b+1}")
    for blk in range(5):
        b = 192 + 4*blk
        A(f"v_add_f32 v{b}, v{b}, v{b+1}")
    for blk in range(5): bf16r(192 + 4*blk, 192 + 4*blk)
    for blk in range(5): A(f"v_add_f32 v{192+4*blk}, v{192+4*blk}, v{232+blk}")
    for blk in range(5): A(f"v_cvt_pk_bf16_f32 v{192+4*blk}, v{192+4*blk}, v{192+4*blk}")
    for blk in range(5): A(f"ds_write_b16 v10, v{192+4*blk} offset:{64*blk}")
    A("s_waitcnt lgkmcnt(0)"); A("s_barrier")
    A("s_cmp_ge_u32 s3, 2"); A("s_cbranch_scc1 L_lnskip")
    for i in range(5): A(f"ds_read_b32 v{192+i}, v17 offset:{256*i}")
    A("s_waitcnt lgkmcnt(0)")
    X = 200
    def ln_apply(last):
        for i in range(5):
            A(f"v_pk_add_f32 v[{X+2*i}:{X+2*i+1}], v[{X+2*i}:{X+2*i+1}], v[212:213] op_sel_hi:[1,0] neg_lo:[0,1] neg_hi:[0,1]")
        for i in range(5): A(f"v_cvt_pk_bf16_f32 v{192+i}, v{X+2*i}, v{X+2*i+1}")
        for i in range(5):
            A(f"v_lshlrev_b32 v{X+2*i}, 16, v{192+i}"); A(f"v_and_b32 v{X+2*i+1}, 0xffff0000, v{192+i}")
        for i in range(5):
            A(f"v_pk_mul_f32 v[{X+2*i}:{X+2*i+1}], v[{X+2*i}:{X+2*i+1}], v[214:215] op_sel_hi:[1,0]")
        for i in range(5): A(f"v_cvt_pk_bf16_f32 v{192+i}, v{X+2*i}, v{X+2*i+1}")
    ln_stats(192, 5, X, 212, 216, False); ln_apply(False)
    ln_stats(192, 5, X, 212, 216, False); ln_apply(True)
    for i in range(5): A(f"ds_write_b32 v18, v{192+i} offset:{256*i}")
    A("L_lnskip:")
    A("s_waitcnt lgkmcnt(0)"); A("s_barrier")
    stamp(10)
    for ks in range(5): A(f"ds_read_b128 v[{192+4*ks}:{195+4*ks}], v19 offset:{64*ks}")
    for ks in range(5):
        A(f"s_waitcnt lgkmcnt({4-ks})")
        for ct in range(2):
            d = 28 + 4*ct
            A(f"v_mfma_f32_16x16x32_bf16 v[{d}:{d+3}], v[{64+8*ks+4*ct}:{67+8*ks+4*ct}], v[{192+4*ks}:{195+4*ks}], {'0' if ks == 0 else f'v[{d}:{d+3}]'}")
    A("s_mov_b32 exec_lo, 0x00030003"); A("s_mov_b32 exec_hi, 0x00030003")
    A("ds_write_b128 v22, v[28:31]"); A("ds_write_b128 v22, v[32:35] offset:64")
    A("s_mov_b64 exec, -1")
    A("s_waitcnt lgkmcnt(0)"); A("s_barrier")
    A("ds_read2st64_b32 v[36:37], v61 offset0:0 offset1:1"); A("ds_read2st64_b32 v[38:39], v61 offset0:2 offset1:3")
    A("s_waitcnt lgkmcnt(0)")
    A("v_pk_add_f32 v[36:37], v[36:37], v[38:39]"); A("v_add_f32 v36, v36, v37")
    bf16r(36, 36); A("v_add_f32 v36, v36, v237"); bf16r(36, 36)
    A("v_mul_f32 v37, v36, v36"); A("v_mov_b32 v38, 0xc0135761")
    A("v_mov_b32 v39, 0xbdd2d3e8")
    A("v_fma_f32 v37, v37, v39, v38"); A("v_mul_f32 v37, v37, v36"); A("v_exp_f32 v37, v37")
    A("v_add_f32 v37, 1.0, v37"); A("v_rcp_f32 v37, v37"); A("v_mul_f32 v36, v36, v37")
    A("v_cvt_pk_bf16_f32 v36, v36, v36")
    A("ds_write_b16 v62, v36")
    A("s_mov_b32 s60, 0x00030003"); A("s_mov_b32 s61, 0x00030003")
    A("s_waitcnt lgkmcnt(0)")
    for t in range(8):
        A(f"s_lshl_b64 exec, s[60:61], {2*t}")
        A(f"ds_read_b128 v[{160+4*t}:{163+4*t}], v60")
    A("s_mov_b64 exec, -1")
    order = [0, 8, 1, 9, 2, 3, 4, 5, 6, 7]
    for i in order:
        t = i & 7; d = 28 + 4*(i >> 3)
        if i < 8: A(f"s_waitcnt lgkmcnt({7-t})")
        A(f"v_mfma_f32_16x16x32_bf16 v[{d}:{d+3}], v[{104+4*i}:{107+4*i}], v[{160+4*t}:{163+4*t}], {'0' if t == 0 else f'v[{d}:{d+3}]'}")
    A(f"buffer_store_dwordx4 v[32:35], v21, {WS}, 0 offen sc1")
    A(f"buffer_store_dwordx4 v[28:31], v20, {WS}, 0 offen sc1")
    stamp(11)
    A("s_cmp_lg_u32 s3, 0"); A("s_cbranch_scc1 L_mend")
    A("s_cmp_ge_u32 s37, 40"); A("s_cbranch_scc1 L_mend")
    A("v_lshrrev_b32 v7, 3, v1"); A("v_mul_u32_u24 v13, 5120, v7"); A("v_and_b32 v14, 7, v1"); A("v_lshl_add_u32 v13, v14, 4, v13")
    A("s_lshl_b32 s78, s37, 7"); A(f"s_add_u32 s78, s78, {WS_MP}"); A("v_add_u32 v13, s78, v13")
    A("v_cmp_gt_u32 vcc, 6, v7"); A("v_cndmask_b32 v14, v23, v13, vcc")
    for n in range(1, 7): A(f"s_mov_b32 s{80+n}, {n*40960}")
    ld3 = [(192 + 4*n, f"v{14 if n == 6 else 13}, {WS}, {f's{80+n}' if n else '0'} offen") for n in range(7)]
    for r, a in ld3: A(f"buffer_load_dwordx4 v[{r}:{r+3}], {a} sc1")
    A("s_cmp_ge_u32 s37, 20"); A("s_cselect_b32 s78, 1280, 0"); A("v_add_u32 v12, s78, v12")
    A(f"v_add_u32 v15, {L_HB}, v12"); A("v_mov_b32 v16, 0")
    A("ds_read_u16_d16_hi v16, v15")
    srd(44, 24, 2560)
    A("v_bfe_u32 v7, v1, 3, 1"); A("v_cmp_eq_u32 vcc, 0, v7"); A("v_cndmask_b32 v12, v23, v12, vcc")
    A("s_waitcnt lgkmcnt(0)")
    poll("3", ld3)
    stamp(12)
    for hh in (0, 2):
        A(f"v_pk_add_f32 v[{208+hh}:{209+hh}], v[{208+hh}:{209+hh}], v[{212+hh}:{213+hh}]")
        A(f"v_pk_add_f32 v[{192+hh}:{193+hh}], v[{192+hh}:{193+hh}], v[{216+hh}:{217+hh}]")
    for hh in (0, 2): A(f"v_pk_add_f32 v[{196+hh}:{197+hh}], v[{196+hh}:{197+hh}], v[{208+hh}:{209+hh}]")
    sum4(192)
    A("v_permlane32_swap_b32 v192, v194"); A("v_permlane32_swap_b32 v193, v195")
    A("v_pk_add_f32 v[192:193], v[192:193], v[194:195]")
    A("v_permlane16_swap_b32 v192, v193"); A("v_add_f32 v192, v192, v193")
    A("v_add_f32_dpp v192, v192, v192 row_ror:8 row_mask:0xf bank_mask:0xf")
    bf16r(192, 192); A("v_add_f32 v192, v192, v238"); bf16r(192, 192); A("v_add_f32 v192, v192, v16")
    A("v_cvt_pk_bf16_f32 v192, v192, v192")
    A("buffer_store_short v192, v12, s[44:47], 0 offen")
    stamp(13)
    A("L_mend:")
    dump_stamps()
    A("L_end:")
    A("s_endpgm")

    body = fix(L)
    out = [HDR.rstrip("\n"),
           "; One launch, 256 workgroups (one per CU); hand-offs between workgroups go through d_ws.",
           f"; @launch grid=(256,1,1) block=(256,1,1) lds={LDS_BYTES}",
           '.amdgcn_target "amdgcn-amd-amdhsa--gfx950"', ".text", f".globl {NAME}_kernel", ".p2align 8",
           f".type {NAME}_kernel,@function", f"{NAME}_kernel:"] + body + [
           '.section .rodata,"a"', ".p2align 6", f".amdhsa_kernel {NAME}_kernel",
           "  .amdhsa_next_free_vgpr 256", "  .amdhsa_next_free_sgpr 96", "  .amdhsa_accum_offset 256",
           "  .amdhsa_group_segment_fixed_size 0", "  .amdhsa_kernarg_size 104", "  .amdhsa_user_sgpr_count 2",
           "  .amdhsa_user_sgpr_kernarg_segment_ptr 1", "  .amdhsa_system_sgpr_workgroup_id_x 1",
           "  .amdhsa_float_denorm_mode_32 3",
           ".end_amdhsa_kernel"]
    return "\n".join(out) + "\n"

if __name__ == "__main__":
    import argparse
    ap = argparse.ArgumentParser(); ap.add_argument("-o", default=f"cdna_kernels/{NAME}.s"); ap.add_argument("--diag", action="store_true")
    a = ap.parse_args()
    open(a.o, "w").write(gen(diag=a.diag))
```

```python
import sys, struct
from hz import fix
NAME = "sequential_preLN__sliding_block_cached__mixer_channel_mlp__decode"
HDR = open("cdna_kernels/%s.s.ref" % NAME).read().split("; Override launch")[0]
def F(x): return "0x%08x" % struct.unpack("<I", struct.pack("<f", x))[0]

WS_FLAGS = 1024; WS_ML = 0x4000; WS_AP = 0x10000; WS_OP = 0x20000; WS_MP = 0x40000; WS_QP = 0x90000
WS_STAMP = 0x200000
OOB = 0xF0000000
L_W2 = 0; L_W1 = 40960
L_RED = 81920
L_Q = L_RED + 2048
L_ML = L_Q + 256
L_SB = L_ML + 64
L_OB = L_SB + 128
OBS = 1088
L_HB = L_OB + 2 * OBS
L_YB = L_HB + 2560
YBS = 1344
L_PB = L_YB + 2 * YBS
L_H1 = L_PB + 1024
LDS_BYTES = L_H1 + 512
SPIN = 400000
LOG2E = 0x3FB8AA3B

def gen(diag=False, nt="nt", W=7, W0=3, wnt="nt", WD=8, prio=True, KQ=6, depth=0, qdelay=None, ND=16, D0=2, DS=2, local=False, exp=(), T0='half', PT0=32, PT1=32, xnt='nt', tnt='nt'):
    L = []
    pend = []
    def A(s):
        for l in s.split("\n"):
            l = l.strip()
            if pend and l.startswith(("s_cbranch", "s_branch")) and not l.endswith("; nf"):
                A("s_waitcnt lgkmcnt(0)")
            L.append("    " + l if not l.endswith(":") else l)
            if pend and l.startswith("s_waitcnt") and "lgkmcnt(0)" in l:
                for r, i in pend: L.append(f"    v_writelane_b32 v255, s{r}, {i}")
                pend.clear()
    def stamp(i, clk=False):
        if diag:
            if len(pend) == 5: A("s_waitcnt lgkmcnt(0)")
            r = 92 + 2 * len(pend)
            A(f"{'s_memtime' if clk else 's_memrealtime'} s[{r}:{r+1}]"); pend.append((r, i))
    def flush():
        if pend: A("s_waitcnt lgkmcnt(0)")
    def bf16r(d, x):
        A(f"v_cvt_pk_bf16_f32 v{d}, v{x}, v{x}"); A(f"v_and_b32 v{d}, 0xffff0000, v{d}")
    def row_allred(op, v):
        for c in ("row_mirror", "row_half_mirror", "quad_perm:[2,3,0,1]", "quad_perm:[1,0,3,2]"):
            A(f"{op}_dpp v{v}, v{v}, v{v} {c} row_mask:0xf bank_mask:0xf")
    def swap_allred(op, v, t, which):
        A(f"v_mov_b32 v{t}, v{v}"); A(f"v_permlane{which}_swap_b32 v{v}, v{t}"); A(f"{op} v{v}, v{v}, v{t}")
    def srd(r, base, size):
        A(f"s_mov_b32 s{r}, s{base}"); A(f"s_mov_b32 s{r+1}, s{base+1}"); A(f"s_mov_b32 s{r+2}, {size}"); A(f"s_mov_b32 s{r+3}, 0x20000")
    def pk(op, d, a, b, c=None, mod=""):
        A(f"v_pk_{op}_f32 v[{d}:{d+1}], v[{a}:{a+1}], v[{b}:{b+1}]" + (f", v[{c}:{c+1}]" if c is not None else "") + (" " + mod if mod else ""))
    def mfma(d, a, b, first):
        A(f"v_mfma_f32_16x16x32_bf16 v[{d}:{d+3}], v[{a}:{a+3}], v[{b}:{b+3}], {'0' if first else f'v[{d}:{d+3}]'}")
    def sum4(b):
        for hh in (0, 2):
            pk("add", b+hh, b+hh, b+4+hh); pk("add", b+8+hh, b+8+hh, b+12+hh)
        for hh in (0, 2): pk("add", b+hh, b+hh, b+8+hh)
    def role_decode():
        A("s_sub_u32 s78, s31, 10"); A("s_lshr_b32 s80, s78, 1"); A("s_lshl_b32 s80, s80, 3"); A("s_add_u32 s80, s80, s30")
        A("s_and_b32 s78, s78, 1"); A("s_lshl_b32 s37, s80, 1"); A("s_add_u32 s37, s37, s78")
        A("s_cmp_lt_u32 s80, 27"); A("s_cselect_b32 s36, 2, 0")
        A("s_cmp_lt_u32 s31, 10"); A("s_cselect_b32 s36, 1, s36"); A("s_cselect_b32 s37, s31, s37")
    WS = "s[40:43]"
    def ldtext(r, a, n=4):
        return f"buffer_load_dwordx{n} v[{r}:{r+n-1}], {a} sc1"
    def poll_init(loads):
        for r, a, n, chk in loads:
            for c in chk: A(f"v_mov_b32 v{r+c}, -1")
    def poll_first(loads):
        for r, a, n, chk in loads: A(ldtext(r, a, n))
    def poll(tag, loads, pre=True):
        n = len(loads)
        A(f"s_mov_b32 s90, {SPIN}")
        flush()
        if pre and depth == 0: A("s_waitcnt vmcnt(0)")
        A(f"L_p{tag}:")
        for i, (r, a, nd, chk) in enumerate(loads):
            if len(chk) == 1: A(f"v_cmp_eq_u32 s[{60+2*i}:{61+2*i}], -1, v{r+chk[0]}")
            else:
                A(f"v_max_u32 v{6+(i&1)}, v{r+chk[0]}, v{r+chk[1]}"); A(f"v_cmp_eq_u32 s[{60+2*i}:{61+2*i}], -1, v{6+(i&1)}")
        A("s_or_b64 vcc, s[60:61], s[62:63]")
        for i in range(2, n): A(f"s_or_b64 vcc, vcc, s[{60+2*i}:{61+2*i}]")
        A(f"s_cbranch_scc0 L_pd{tag}")
        for i, (r, a, nd, chk) in enumerate(loads):
            A(f"s_mov_b64 exec, s[{60+2*i}:{61+2*i}]")
            A(ldtext(r, a, nd))
        A("s_mov_b64 exec, -1")
        A(f"s_waitcnt vmcnt({depth*n})")
        A("s_sub_u32 s90, s90, 1"); A(f"s_cbranch_scc0 L_p{tag}")
        A(f"L_pd{tag}:")
        A("s_waitcnt vmcnt(0)")
    def fin():
        if diag:
            A("s_mov_b64 exec, -1")
            stamp(59); stamp(61, True); A("s_waitcnt lgkmcnt(0)")
            A("s_getreg_b32 s92, hwreg(HW_REG_XCC_ID)"); A("v_writelane_b32 v255, s92, 62")
            A("s_cmp_eq_u32 s3, 0"); A("s_cselect_b32 s92, 3, 0"); A("s_add_u32 s92, s92, s36"); A("v_writelane_b32 v255, s92, 63")
            A("s_mul_i32 s78, s2, 5"); A("s_add_u32 s78, s78, s3"); A("s_lshl_b32 s78, s78, 8"); A(f"s_add_u32 s78, s78, {WS_STAMP}")
            A("v_lshlrev_b32 v7, 2, v1")
            A(f"buffer_store_dword v255, v7, {WS}, s78 offen")
        A("s_endpgm")
    def traddr1280(d, blk):
        A("v_bfe_u32 v7, v1, 2, 3"); A(f"v_lshlrev_b32 v{d}, 7, v7"); A("v_lshrrev_b32 v7, 1, v7"); A(f"v_lshl_add_u32 v{d}, v7, 5, v{d}")
        A("v_lshrrev_b32 v7, 5, v1"); A(f"v_mul_u32_u24 v7, {blk}, v7"); A(f"v_add_u32 v{d}, v{d}, v7")
        A("v_and_b32 v7, 3, v1"); A(f"v_lshl_add_u32 v{d}, v7, 3, v{d}")

    K0, V0 = 64, 128
    ACC = 28
    XS, XO, WQ, AO = 228, 238, 64, 144

    if diag: A("v_mov_b32 v255, 0")
    stamp(0); stamp(60, True)
    A("s_cmp_ge_u32 s2, 256"); A("s_cbranch_scc1 L_end ; nf")
    A("s_load_dwordx16 s[4:19], s[0:1], 0")
    A("s_load_dwordx8 s[20:27], s[0:1], 64")
    A("s_load_dwordx2 s[28:29], s[0:1], 96")
    A("v_lshrrev_b32 v7, 6, v0"); A("v_and_b32 v1, 63, v0"); A("v_readfirstlane_b32 s3, v7")
    A("s_and_b32 s30, s2, 7"); A("s_lshr_b32 s31, s2, 3"); A("s_lshr_b32 s78, s31, 3")
    A("s_lshl_b32 s32, s30, 2"); A("s_add_u32 s32, s32, s78")
    A("s_and_b32 s33, s31, 7"); A("s_lshr_b32 s34, s33, 2"); A("s_and_b32 s35, s33, 3")
    A("v_lshlrev_b32 v2, 4, v1"); A("v_lshrrev_b32 v8, 4, v1"); A("v_and_b32 v9, 15, v1")
    A("s_cmp_eq_u32 s3, 0"); A("s_cbranch_scc1 L_aux ; nf")
    pend_at_fork = list(pend)
    A("s_sub_u32 s91, s3, 1")
    A("s_lshl_b32 s78, s34, 25"); A("s_lshl_b32 s80, s32, 20"); A("s_add_u32 s78, s78, s80")
    A("s_lshl_b32 s80, s35, 16"); A("s_add_u32 s78, s78, s80"); A("s_lshl_b32 s80, s91, 14"); A("s_add_u32 s78, s78, s80")
    A(f"s_add_u32 s78, s78, {3072*256 + 4096}")
    A("v_add_u32 v17, s78, v2"); A("v_add_u32 v18, 8192, v17")
    def ldKV(base, ptr, t):
        return lambda: A(f"global_load_dwordx4 v[{base+4*t}:{base+4*t+3}], v{17 + t//8}, {ptr} offset:{(t%8)*1024-4096} {nt}")
    def dma_a(n):
        def f():
            if n == 10:
                A("s_cmp_eq_u32 s36, 2")
                A("s_cselect_b32 s44, s16, s44"); A("s_cselect_b32 s45, s17, s45"); A("s_cselect_b32 s82, s84, s82")
                A(f"s_cselect_b32 s87, {16*3456}, s87"); A(f"s_cselect_b32 s78, {L_W1 - 10240}, 0"); A("s_cselect_b64 vcc, -1, 0")
                A("s_add_u32 s83, s83, s78"); A("v_cndmask_b32 v58, v58, v59, vcc")
            A(f"s_add_u32 m0, s83, {n*1024}")
            if n: A("s_add_u32 s82, s82, s87")
            A(f"buffer_load_dwordx4 v58, s[44:47], s82 offen {wnt} lds")
        return f
    kv = [ldKV(K0, "s[6:7]", t) for t in range(16)] + [ldKV(V0, "s[8:9]", t) for t in range(16)]
    seq = []; pos = []; nd = 0
    touch0 = lambda: A(f"buffer_load_dword v4, v56, s[48:51], 0 offen {tnt}")
    touch1 = lambda: A(f"buffer_load_dword v5, v57, s[52:55], 0 offen {tnt}")
    ntt = 0
    for i, f in enumerate(kv + [None]):
        if T0 and PT0 == i: seq.append(touch0); ntt += i == 32
        if T0 and PT1 == i: seq.append(touch1); ntt += i == 32
        if f is None: break
        while nd < ND and D0 + nd * DS <= i:
            seq.append(dma_a(nd)); nd += 1
        pos.append(len(seq)); seq.append(f)
    NDE = nd
    NTAIL = min(W - 1 - ntt, 16 - NDE)
    seq.extend(dma_a(n) for n in range(NDE, NDE + NTAIL))
    NPRE = len(seq)
    assert pos[W0 - 1] == W0 - 1
    st = dict(issued=0, waited=-1)
    def issue_to(n):
        while st["issued"] < min(n, len(seq)):
            seq[st["issued"]](); st["issued"] += 1
    def wait_for(k):
        if k > st["waited"]:
            A(f"s_waitcnt vmcnt({st['issued'] - k - 1})"); st["waited"] = k
    def pump(w=None, lim=None):
        k = st["waited"] + 1
        if lim is not None and k > lim: return
        wait_for(k); issue_to(k + 1 + (w or W))
    A("s_waitcnt lgkmcnt(0)")
    issue_to(W0)
    A("s_branch L_stream ; nf")

    A("L_aux:")
    pend.extend(pend_at_fork)
    if prio: A("s_setprio 3")
    if "noaux" in exp:
        A("s_waitcnt lgkmcnt(0)"); role_decode(); srd(40, 28, 0x10000000); A("s_barrier"); A("s_barrier"); fin()
    A("v_lshrrev_b32 v10, 5, v1"); A("v_mul_u32_u24 v10, 1280, v10"); A("v_and_b32 v7, 31, v1"); A("v_mad_u32_u24 v10, v7, 40, v10")
    A("s_mul_i32 s78, s33, 80"); A("v_mad_u32_u24 v7, v8, 20, s78")
    A("v_bfe_u32 v11, v1, 3, 1"); A("v_mul_u32_u24 v11, 1280, v11"); A("v_lshl_add_u32 v11, v7, 1, v11")
    A("s_lshl_b32 s78, s32, 8"); A("v_lshlrev_b32 v12, 13, v7"); A("v_lshl_add_u32 v12, v9, 4, v12"); A("v_add_u32 v12, s78, v12")
    A("s_mov_b32 s46, 5242880"); A("s_mov_b32 s47, 0x20000")
    A(f"v_mov_b32 v23, {OOB}")
    A("s_getpc_b64 s[52:53]"); A("L_pc:")
    A(f"s_mov_b32 s54, L_end-L_pc"); A("s_mov_b32 s55, 0x20000")
    A("v_lshlrev_b32 v22, 7, v1"); A("s_and_b32 s78, s31, 15"); A("s_cmp_eq_u32 s78, 0"); A("s_cselect_b64 vcc, -1, 0"); A("v_cndmask_b32 v22, v23, v22, vcc")
    A("s_movk_i32 s80, 0x2000")
    A("buffer_load_dword v4, v22, s[52:55], 0 offen"); A("buffer_load_dword v5, v22, s[52:55], s80 offen")
    A("s_waitcnt lgkmcnt(0)")
    for base, a in ((XS, 10), (XO, 11)):
        A(f"global_load_dwordx4 v[{base}:{base+3}], v{a}, s[4:5] {xnt}")
        A(f"global_load_dwordx4 v[{base+4}:{base+7}], v{a}, s[4:5] offset:16 {xnt}")
        A(f"global_load_dwordx2 v[{base+8}:{base+9}], v{a}, s[4:5] offset:32 {xnt}")
    A("s_mov_b32 s44, s10"); A("s_mov_b32 s45, s11"); A("s_mov_b32 s78, 0")
    for t in range(20):
        if t: A("s_add_u32 s78, s78, s80")
        A(f"buffer_load_dwordx4 v[{WQ+4*t}:{WQ+4*t+3}], v12, s[44:47], s78 offen {nt}")
    A("s_load_dword s56, s[28:29], 0")
    stamp(1)
    role_decode()
    srd(40, 28, 0x10000000)
    A("v_and_b32 v7, 1, v1"); A("v_cmp_eq_u32 vcc, 1, v7"); A("v_bfe_u32 v7, v1, 1, 2")
    A("v_mov_b32 v24, 0x0c0c0100"); A("v_mov_b32 v25, 0x01000c0c"); A("v_cndmask_b32 v24, v24, v25, vcc")
    A("v_mov_b32 v25, 0x0c0c0302"); A("v_mov_b32 v26, 0x03020c0c"); A("v_cndmask_b32 v25, v25, v26, vcc")
    A("v_mov_b32 v26, 0x0c0c0c0c")
    for r in range(4):
        A(f"v_cmp_eq_u32 vcc, {r}, v7"); A(f"v_cndmask_b32 v{14+r}, v26, v24, vcc"); A(f"v_cndmask_b32 v{18+r}, v26, v25, vcc")
    for r in range(4): A(f"v_mov_b32 v{24+r}, -1")
    A(f"v_mov_b32 v13, {L_ML}")
    A("ds_write_b128 v13, v[24:27]"); A("ds_write_b128 v13, v[24:27] offset:16")
    A("s_lshl_b32 s39, s32, 3"); A("s_add_u32 s39, s39, s33")
    A("s_lshl_b32 s38, s39, 9"); A(f"s_add_u32 s38, s38, {WS_OP}")
    A("s_mul_i32 s80, s30, 5120"); A("s_lshl_b32 s81, s37, 9"); A("s_add_u32 s80, s80, s81"); A(f"s_add_u32 s80, s80, {WS_AP}")
    A("s_mul_i32 s81, s37, 5120"); A(f"s_add_u32 s81, s81, {WS_MP}")
    A("s_cmp_eq_u32 s36, 2"); A(f"s_cselect_b32 s81, s81, {OOB}"); A("s_add_u32 s82, s81, 4096")
    A("s_cmp_eq_u32 s36, 1"); A("s_cselect_b32 s82, s80, s82"); A("s_cselect_b32 s83, 0, -1")
    A("s_lshl_b32 s85, s30, 1"); A("s_add_u32 s85, s85, s34"); A("s_lshl_b32 s85, s85, 2"); A("s_lshr_b32 s78, s31, 3"); A("s_add_u32 s85, s85, s78")
    A("s_lshl_b32 s85, s85, 2"); A("s_add_u32 s85, s85, s35"); A("s_lshl_b32 s85, s85, 3"); A(f"s_add_u32 s85, s85, {WS_ML}")
    if "noclear" in exp: A("s_mov_b32 s42, 0")
    A("s_mov_b64 exec, 1")
    A(f"buffer_store_dwordx2 v[24:25], v2, {WS}, s85 offen sc1")
    A("s_mov_b32 exec_lo, -1")
    A(f"buffer_store_dwordx4 v[24:27], v2, {WS}, s38 offen sc1")
    A("s_mov_b32 exec_hi, s83")
    A(f"buffer_store_dwordx4 v[24:27], v2, {WS}, s82 offen sc1")
    A("s_mov_b64 exec, -1")
    for k in range(4): A(f"buffer_store_dwordx4 v[24:27], v2, {WS}, s81 offen offset:{1024*k} sc1")
    if "noclear" in exp: A("s_mov_b32 s42, 0x10000000")
    A("s_waitcnt vmcnt(30)")
    stamp(2)
    X, mean, tmp = 32, 52, 56
    for i in range(10):
        A(f"v_lshlrev_b32 v{X+2*i}, 16, v{XS+i}"); A(f"v_and_b32 v{X+2*i+1}, 0xffff0000, v{XS+i}")
    pk("add", tmp, X, X+2); pk("add", tmp+2, X+4, X+6)
    for i in range(4, 10): pk("add", tmp+2*(i&1), tmp+2*(i&1), X+2*i)
    pk("add", tmp, tmp, tmp+2); A(f"v_add_f32 v{mean}, v{tmp}, v{tmp+1}")
    row_allred("v_add_f32", mean); swap_allred("v_add_f32", mean, tmp, 16)
    A(f"v_mul_f32 v{mean}, {F(1/640)}, v{mean}")
    for i in range(10): pk("add", X+2*i, X+2*i, mean, mod="op_sel_hi:[1,0] neg_lo:[0,1] neg_hi:[0,1]")
    for i in range(10):
        t = tmp + 2*(i&1)
        if i < 2: pk("mul", t, X+2*i, X+2*i)
        else: pk("fma", t, X+2*i, X+2*i, t)
    pk("add", tmp, tmp, tmp+2)
    va = mean + 2
    A(f"v_add_f32 v{va}, v{tmp}, v{tmp+1}")
    row_allred("v_add_f32", va); swap_allred("v_add_f32", va, tmp, 16)
    A(f"v_mul_f32 v{va}, {F(1/640)}, v{va}")
    bf16r(mean, mean); bf16r(va, va)
    A(f"v_add_f32 v{va}, {F(1e-5)}, v{va}"); bf16r(va, va)
    A(f"v_sqrt_f32 v{va}, v{va}"); bf16r(va, va)
    A(f"v_rcp_f32 v{va}, v{va}")
    A("v_mov_b32 v53, v52"); A("v_mov_b32 v55, v54")
    A("s_waitcnt vmcnt(27)")
    for i in range(10):
        A(f"v_lshlrev_b32 v{X+2*i}, 16, v{XO+i}"); A(f"v_and_b32 v{X+2*i+1}, 0xffff0000, v{XO+i}")
    A("v_permlane32_swap_b32 v52, v53"); A("v_permlane32_swap_b32 v54, v55")
    A("s_mov_b32 vcc_lo, 0xff00ff00"); A("s_mov_b32 vcc_hi, 0xff00ff00")
    A("v_cndmask_b32 v52, v52, v53, vcc"); A("v_cndmask_b32 v54, v54, v55, vcc")
    for i in range(10): pk("add", X+2*i, X+2*i, mean, mod="op_sel_hi:[1,0] neg_lo:[0,1] neg_hi:[0,1]")
    for i in range(10): A(f"v_cvt_pk_bf16_f32 v{XO+i}, v{X+2*i}, v{X+2*i+1}")
    for i in range(10):
        A(f"v_lshlrev_b32 v{X+2*i}, 16, v{XO+i}"); A(f"v_and_b32 v{X+2*i+1}, 0xffff0000, v{XO+i}")
    for i in range(10): pk("mul", X+2*i, X+2*i, va, mod="op_sel_hi:[1,0]")
    for i in range(10): A(f"v_cvt_pk_bf16_f32 v{XO+i}, v{X+2*i}, v{X+2*i+1}")
    stamp(3)
    for t in range(21):
        if t < 20:
            for r in range(4): A(f"v_perm_b32 v{AO+4*t+r}, v{XO+t//2}, v{XO+t//2}, v{14+4*(t&1)+r}")
        if t > 0:
            A(f"s_waitcnt vmcnt({27-t})"); mfma(ACC, AO+4*(t-1), WQ+4*(t-1), t == 1)
    A("s_waitcnt lgkmcnt(0)")
    A("s_add_u32 s56, s56, 0x01010101")
    A("s_lshl_b32 s39, s39, 11"); A(f"s_add_u32 s39, s39, {WS_QP}")
    A("v_mov_b32 v34, s56"); A("v_mov_b32 v35, s56"); A("v_mov_b32 v38, s56"); A("v_mov_b32 v39, s56")
    A("v_mov_b64 v[32:33], v[28:29]"); A("v_mov_b64 v[36:37], v[30:31]")
    A(f"buffer_store_dwordx4 v[32:35], v2, {WS}, s39 offen sc1")
    A(f"buffer_store_dwordx4 v[36:39], v2, {WS}, s39 offen offset:1024 sc1")
    stamp(4)
    if "noq" in exp:
        A("s_barrier"); A("s_barrier"); fin()
    A("s_lshl_b32 s78, s32, 14"); A("s_lshl_b32 s80, s34, 9"); A("s_add_u32 s78, s78, s80"); A(f"s_add_u32 s78, s78, {WS_QP}")
    A("v_lshrrev_b32 v40, 5, v1"); A("v_and_b32 v41, 31, v1"); A("v_lshlrev_b32 v42, 10, v40"); A("v_lshl_add_u32 v42, v41, 4, v42"); A("v_add_u32 v42, s78, v42")
    for k in range(1, 4): A(f"s_movk_i32 s{80+k}, {4096*k}")
    A("v_lshlrev_b32 v43, 4, v9"); A("v_and_b32 v7, 1, v8"); A("v_lshl_add_u32 v43, v7, 3, v43"); A("v_lshl_add_u32 v43, v40, 2, v43"); A(f"v_add_u32 v43, {L_Q}, v43")
    A("s_lshl_b32 s78, s30, 5"); A("s_add_u32 s78, s78, s31"); A("s_lshl_b32 s78, s78, 2"); A(f"s_add_u32 s78, s78, {WS_FLAGS}")
    A("s_waitcnt vmcnt(2)")
    A("s_mov_b64 exec, 1")
    A(f"buffer_store_dword v34, v2, {WS}, s78 offen sc1")
    A("s_mov_b64 exec, -1")
    if qdelay is None: A("s_waitcnt vmcnt(1)")
    elif qdelay: A(f"s_sleep {qdelay}")
    stamp(5)
    A(f"s_mov_b32 s90, {SPIN}")
    flush()
    A("L_qpoll:")
    for jj in range(8):
        A(f"buffer_load_dwordx4 v[{64+4*jj}:{67+4*jj}], v42, {WS}, {f's{80+jj//2}' if jj//2 else '0'} offen offset:{2048*(jj&1)} sc1")
    A("s_waitcnt vmcnt(0)")
    A("v_xor_b32 v7, s56, v66")
    for i in range(1, 16): A(f"v_bitop3_b32 v7, v7, v{66 + 4*(i//2) + (i&1)}, s56 bitop3:0xf6")
    A("v_cmp_ne_u32 vcc, 0, v7")
    A("s_cbranch_vccz L_qok")
    A("s_sub_u32 s90, s90, 1"); A("s_cbranch_scc0 L_qpoll")
    A("L_qok:")
    A(f"s_movk_i32 s84, {WS_FLAGS}")
    A("s_cmp_eq_u32 s2, 255"); A("s_cselect_b32 s59, 1, s36"); A("s_cmp_eq_u32 s59, 0"); A(f"s_cselect_b32 s84, {OOB}, s84")
    A(f"buffer_load_dwordx4 v[48:51], v2, {WS}, s84 offen sc1")
    for i in range(4): pk("add", 64+8*i, 64+8*i, 68+8*i)
    pk("add", 64, 64, 72); pk("add", 80, 80, 88); pk("add", 64, 64, 80)
    A("v_cvt_pk_bf16_f32 v64, v64, v65")
    A("ds_write_b32 v43, v64")
    stamp(6)
    A("v_lshlrev_b32 v45, 4, v41"); A(f"v_add_u32 v45, {L_RED}, v45")
    A("s_cmp_eq_u32 s36, 2"); A("s_cbranch_scc0 L_nofin")
    A("s_min_u32 s57, s37, 39")
    A("s_mul_i32 s78, s57, 52"); A("s_lshr_b32 s78, s78, 9")
    A("s_mul_i32 s80, s78, 10"); A("s_sub_u32 s80, s57, s80")
    A("s_mul_i32 s78, s78, 160")
    A("s_and_b32 s81, s80, 1"); A("s_lshl_b32 s82, s81, 6"); A("s_lshr_b32 s83, s80, 1"); A("s_lshl_b32 s83, s83, 2"); A("s_add_u32 s82, s82, s83")
    A("s_lshl_b32 s81, s81, 3"); A("s_add_u32 s81, s81, 128")
    A("v_bfe_u32 v7, v1, 1, 2"); A("v_lshlrev_b32 v12, 4, v7")
    A("v_bfe_u32 v7, v1, 1, 1"); A("v_lshlrev_b32 v15, 4, v7"); A("v_bfe_u32 v7, v1, 2, 1"); A("v_lshl_add_u32 v15, v7, 2, v15")
    A("s_cmp_lt_u32 s80, 8"); A("s_cselect_b32 s82, s82, s81"); A("s_cselect_b64 vcc, -1, 0"); A("s_add_u32 s78, s78, s82")
    A("v_cndmask_b32 v12, v15, v12, vcc"); A("v_add3_u32 v12, v12, v8, s78"); A("v_lshlrev_b32 v12, 1, v12")
    A("v_mov_b32 v238, 0"); A("v_mov_b32 v16, 0")
    A("global_load_short_d16_hi v238, v12, s[22:23]")
    A("v_and_b32 v7, 1, v1"); A("v_mul_u32_u24 v7, 1280, v7"); A("v_add_u32 v12, v12, v7"); A(f"v_add_u32 v15, {L_HB}, v12")
    A("v_bfe_u32 v7, v1, 3, 1"); A("v_cmp_eq_u32 vcc, 0, v7"); A("v_cndmask_b32 v12, v23, v12, vcc")
    A("v_lshrrev_b32 v7, 3, v1"); A("v_mul_u32_u24 v56, 5120, v7"); A("v_and_b32 v57, 7, v1"); A("v_lshl_add_u32 v56, v57, 4, v56")
    A("s_lshl_b32 s78, s57, 7"); A(f"s_add_u32 s78, s78, {WS_MP}"); A("v_add_u32 v56, s78, v56")
    A("v_cmp_gt_u32 vcc, 6, v7"); A("v_cndmask_b32 v57, v23, v56, vcc")
    srd(52, 24, 2560)
    A("L_nofin:")
    A("s_waitcnt lgkmcnt(0)"); A("s_barrier")
    stamp(7)
    A(f"s_mov_b32 s90, {SPIN}")
    A("s_cmp_eq_u32 s59, 0"); A("s_cbranch_scc1 L_fok")
    A("L_fchk:")
    A("s_waitcnt vmcnt(0)")
    A("v_xor_b32 v7, s56, v48")
    for i in range(1, 4): A(f"v_bitop3_b32 v7, v7, v{48+i}, s56 bitop3:0xf6")
    A("v_cmp_ne_u32 vcc, 0, v7")
    A("s_cbranch_vccz L_fok")
    A(f"buffer_load_dwordx4 v[48:51], v2, {WS}, s84 offen sc1")
    A("s_sub_u32 s90, s90, 1"); A("s_cbranch_scc0 L_fchk")
    A("L_fok:")
    stamp(8)
    A("s_cmp_lg_u32 s2, 255"); A("s_cbranch_scc1 L_noep")
    A("s_mov_b64 exec, 1")
    A(f"buffer_store_dword v34, v2, {WS}, 0 offen")
    A("s_mov_b64 exec, -1")
    A("L_noep:")
    A(f"s_mov_b32 s90, {SPIN*8}")
    A("L_mlw:")
    A("ds_read_b128 v[64:67], v13"); A("ds_read_b128 v[68:71], v13 offset:16")
    A("s_waitcnt lgkmcnt(0)")
    A("v_max3_u32 v7, v65, v67, v69"); A("v_max_u32 v7, v7, v71"); A("v_cmp_eq_u32 vcc, -1, v7")
    A("s_cbranch_vccz L_mlw2")
    A("s_sleep 1")
    A("s_sub_u32 s90, s90, 1"); A("s_cbranch_scc0 L_mlw")
    A("L_mlw2:")
    A("v_max3_f32 v36, v64, v66, v68"); A("v_max_f32 v36, v36, v70")
    for i in range(4): A(f"v_sub_f32 v{64+2*i}, v{64+2*i}, v36")
    for i in range(4): A(f"v_mul_f32 v{64+2*i}, {LOG2E:#x}, v{64+2*i}")
    for i in range(4): A(f"v_exp_f32 v{64+2*i}, v{64+2*i}")
    A("v_mul_f32 v37, v64, v65")
    for i in range(1, 4): A(f"v_fmac_f32 v37, v{64+2*i}, v{65+2*i}")
    A("s_mov_b64 exec, 1")
    A(f"buffer_store_dwordx2 v[36:37], v2, {WS}, s85 offen sc1")
    A("s_mov_b64 exec, -1")
    for n in range(1, 7): A(f"s_mov_b32 s{80+n}, {n*40960}")
    stamp(9)
    A("s_barrier")
    for k in range(4): A(f"ds_read_b128 v[{72+4*k}:{75+4*k}], v45 offset:{512*k}")
    for k in range(4):
        A(f"s_waitcnt lgkmcnt({3-k})")
        for hh in (0, 2):
            if k == 0: pk("mul", 32+hh, 72+hh, 64, mod="op_sel_hi:[1,0]")
            else: pk("fma", 32+hh, 72+4*k+hh, 64+2*k, 32+hh, mod="op_sel_hi:[1,0,1]")
    A("s_mov_b32 exec_hi, 0")
    A(f"buffer_store_dwordx4 v[32:35], v2, {WS}, s38 offen sc1")
    A("s_mov_b64 exec, -1")
    stamp(16)
    if "notail" not in exp:
        A("s_cmp_eq_u32 s36, 2"); A("s_cbranch_scc1 L_mlp5")
    fin()

    A("L_stream:")
    stamp(1)
    assert D0 >= W + 2 or ND == 0
    pump(); stamp(2); pump()
    role_decode()
    srd(40, 28, 0x10000000)
    A("s_lshl_b32 s82, s30, 2"); A("s_add_u32 s82, s82, s91"); A(f"s_mul_i32 s82, s82, {128*1280}"); A("s_lshl_b32 s78, s37, 7"); A("s_add_u32 s82, s82, s78")
    A("s_lshl_b32 s78, s37, 2"); A("s_add_u32 s78, s78, s91"); A("s_mul_i32 s78, s78, 10240")
    A("s_lshl_b32 s83, s91, 14"); A("s_mul_i32 s80, s91, 10240")
    A("s_cmp_eq_u32 s36, 1")
    A("s_cselect_b32 s44, s12, s20"); A("s_cselect_b32 s45, s13, s21"); A("s_cselect_b32 s46, 5242880, 0"); A("s_mov_b32 s47, 0x20000")
    A("s_cselect_b32 s82, s82, s78"); A("s_cselect_b32 s83, s83, s80"); A("s_cselect_b32 s87, 10240, 0")
    A("s_cmp_eq_u32 s36, 2"); A("s_cselect_b32 s46, 2211840, s46"); A("s_cselect_b32 s87, 128, s87")
    A("v_and_b32 v7, 1, v1"); A("v_lshlrev_b32 v7, 4, v7"); A("v_mov_b32 v32, 0xffff"); A("v_lshlrev_b32 v7, v7, v32")
    A("v_bfe_u32 v32, v1, 1, 2")
    for r in range(4):
        A(f"v_cmp_eq_u32 vcc, {r}, v32"); A(f"v_cndmask_b32 v{20+r}, 0, v7, vcc")
    A(f"v_lshlrev_b32 v10, 4, v9"); A(f"v_add_u32 v10, {L_Q}, v10")
    A("s_lshl_b32 s78, s91, 3"); A(f"s_add_u32 s78, s78, {L_ML}"); A("v_mov_b32 v11, s78")
    A("v_lshlrev_b32 v12, 5, v9"); A("v_lshl_add_u32 v12, v8, 4, v12"); A("s_lshl_b32 s78, s91, 9"); A(f"s_add_u32 s78, s78, {L_RED}"); A("v_add_u32 v12, s78, v12")
    A("v_lshrrev_b32 v58, 3, v1"); A("v_mul_u32_u24 v58, 1280, v58"); A("v_bfe_u32 v7, v1, 1, 2"); A("v_xor_b32 v7, v7, v8")
    A("v_lshl_add_u32 v58, v7, 5, v58"); A("v_and_b32 v59, 1, v1"); A("v_lshlrev_b32 v59, 4, v59"); A("v_add_u32 v58, v58, v59")
    A("v_and_b32 v7, 1, v7"); A("v_lshl_add_u32 v59, v7, 5, v59"); A("v_lshrrev_b32 v7, 2, v1"); A("v_mul_u32_u24 v7, 3456, v7"); A("v_add_u32 v59, v59, v7")
    A(f"s_mul_i32 s84, s91, {160*3456}"); A("s_lshl_b32 s78, s37, 6"); A("s_add_u32 s84, s84, s78"); A(f"s_sub_u32 s84, s84, {16*3456}")
    if T0:
        srd(48, 12, 5242880); srd(52, 16, 2211840)
        A("s_sub_u32 s78, s31, 18"); A("s_lshl_b32 s78, s78, 2"); A("s_add_u32 s78, s78, s91"); A("s_mul_i32 s78, s78, 46")
        A("v_add_u32 v32, s78, v1"); A("v_mul_u32_u24 v33, 6554, v32"); A("v_lshrrev_b32 v33, 22, v33")
        A("v_mul_u32_u24 v34, 640, v33"); A("v_sub_u32 v34, v32, v34")
        A("s_cmp_ge_u32 s31, 18"); A("s_cselect_b32 s80, 46, 0"); A("v_cmp_gt_u32 s[60:61], s80, v1"); A("v_cmp_gt_u32 vcc, 4, v33"); A("s_and_b64 s[60:61], s[60:61], vcc")
        A(f"v_mov_b32 v35, {OOB}")
        A("v_lshl_add_u32 v36, v33, 3, s30"); A("v_cmp_gt_u32 vcc, 27, v36"); A("s_and_b64 vcc, vcc, s[60:61]")
        A("v_mul_u32_u24 v57, 3456, v34"); A("v_lshl_add_u32 v57, v36, 7, v57"); A("v_cndmask_b32 v57, v35, v57, vcc")
        A("s_mul_i32 s80, s30, 655360")
        if T0 == 'half':
            A("s_add_u32 s80, s80, 81920"); A("v_mul_u32_u24 v56, 163840, v33"); A("v_lshl_add_u32 v56, v34, 7, v56"); A("v_add_u32 v56, s80, v56")
            A("v_cndmask_b32 v56, v35, v56, s[60:61]")
        else:
            A("s_lshl_b32 s78, s31, 2"); A("s_add_u32 s78, s78, s91"); A("s_mul_i32 s78, s78, 5120"); A("s_add_u32 s80, s80, s78")
            A("v_lshl_add_u32 v56, v1, 7, s80"); A("v_cmp_gt_u32 vcc, 40, v1"); A("v_cndmask_b32 v56, v35, v56, vcc")
    while st["waited"] < pos[16 + KQ]:
        pump()
        if st["waited"] == pos[15]: stamp(3)
    stamp(4)
    A("s_barrier")
    Q = 60
    A(f"ds_read_b128 v[{Q}:{Q+3}], v10")
    L_mark = len(L)
    stamp(5)
    A("s_waitcnt lgkmcnt(0)")
    P = 32
    LIM = pos[31] - 1
    for half in range(2):
        for r in range(4):
            for t in range(8*half, 8*half+8):
                A(f"v_dot2_f32_bf16 v{P+t}, v{K0+4*t+r}, v{Q+r}, {'0' if r == 0 else f'v{P+t}'}")
    pump(lim=LIM)
    R = 48
    for t in range(8): A(f"v_add_f32_dpp v{R+t}, v{P+t}, v{P+t} row_mirror row_mask:0xf bank_mask:0x3")
    for t in range(8): A(f"v_add_f32_dpp v{R+t}, v{P+t+8}, v{P+t+8} row_mirror row_mask:0xf bank_mask:0xc")
    for t in range(4): A(f"v_add_f32_dpp v{P+t}, v{R+t}, v{R+t} row_half_mirror row_mask:0xf bank_mask:0x5")
    for t in range(4): A(f"v_add_f32_dpp v{P+t}, v{R+t+4}, v{R+t+4} row_half_mirror row_mask:0xf bank_mask:0xa")
    for t in range(4): A(f"v_add_f32_dpp v{R+t}, v{P+t}, v{P+t} quad_perm:[2,3,0,1] row_mask:0xf bank_mask:0xf")
    A("s_mov_b32 vcc_lo, 0xcccccccc"); A("s_mov_b32 vcc_hi, 0xcccccccc")
    for t in range(2): A(f"v_cndmask_b32 v{P+t}, v{R+t}, v{R+t+2}, vcc")
    for t in range(2): A(f"v_add_f32_dpp v{R+t}, v{P+t}, v{P+t} quad_perm:[1,0,3,2] row_mask:0xf bank_mask:0xf")
    A("s_mov_b32 vcc_lo, 0xaaaaaaaa"); A("s_mov_b32 vcc_hi, 0xaaaaaaaa")
    S = 40
    A(f"v_cndmask_b32 v{S}, v{R}, v{R+1}, vcc")
    bf16r(S, S); A(f"v_mul_f32 v{S}, {F(128**-0.5)}, v{S}"); bf16r(S, S)
    A(f"v_mov_b32 v42, v{S}")
    row_allred("v_max_f32", 42); swap_allred("v_max_f32", 42, 44, 16); swap_allred("v_max_f32", 42, 44, 32)
    A(f"v_sub_f32 v43, v{S}, v42"); A(f"v_mul_f32 v43, {LOG2E:#x}, v43"); A("v_exp_f32 v43, v43")
    A("v_cvt_pk_bf16_f32 v45, v43, v43")
    row_allred("v_add_f32", 43); swap_allred("v_add_f32", 43, 44, 16); swap_allred("v_add_f32", 43, 44, 32)
    A("ds_write_b64 v11, v[42:43]")
    stamp(6)
    pump(lim=LIM)
    done = 0
    for t in range(16):
        for r in range(4): A(f"v_and_b32_dpp v{K0+4*t+r}, v45, v{20+r} row_newbcast:{t} row_mask:0xf bank_mask:0xf")
        if t >= 1 and pos[16 + done] <= st["waited"]:
            mfma(ACC, K0+4*done, V0+4*done, done == 0); done += 1
    if "noqk" in exp:
        L[L_mark:] = [l for l in L[L_mark:] if not l.strip().startswith(("v_dot2", "v_add_f32_dpp", "v_and_b32_dpp", "v_max_f32_dpp", "v_permlane"))]
    stamp(7)
    for t in range(done, 16):
        while st["waited"] < pos[16 + t] - 1: pump()
        wait_for(pos[16 + t]); mfma(ACC, K0+4*t, V0+4*t, t == 0)
        if t < 15: issue_to(pos[16 + t] + 1 + W)
    stamp(8)
    A("s_mov_b32 exec_hi, 0")
    A(f"ds_write_b128 v12, v[{ACC}:{ACC+3}]")
    A("s_mov_b64 exec, -1")
    A("s_waitcnt lgkmcnt(0)"); A("s_barrier")
    assert st["issued"] == len(seq) == NPRE
    if "notail" in exp: A("s_branch L_sfin")
    A("s_cmp_eq_u32 s36, 2"); A("s_cbranch_scc1 L_mlp")
    A("s_cmp_eq_u32 s36, 0"); A("s_cbranch_scc1 L_sfin")
    save = dict(st)

    seq.extend(dma_a(n) for n in range(NDE + NTAIL, 16))
    WOREST = 16 - NDE
    issue_to(pos[31] + 1 + WD)
    A("s_lshl_b32 s78, s30, 2"); A("s_add_u32 s78, s78, s91"); A("s_lshl_b32 s78, s78, 12"); A(f"s_add_u32 s78, s78, {WS_OP}")
    A("v_lshrrev_b32 v10, 5, v1"); A("v_and_b32 v11, 31, v1"); A("v_lshlrev_b32 v12, 11, v10"); A("v_lshl_add_u32 v12, v11, 4, v12"); A("v_add_u32 v12, s78, v12")
    A("s_lshl_b32 s78, s30, 8"); A("s_lshl_b32 s80, s91, 5"); A("s_add_u32 s78, s78, s80"); A(f"s_add_u32 s78, s78, {WS_ML}")
    A("v_and_b32 v7, 3, v1"); A("v_lshlrev_b32 v17, 3, v7"); A("v_lshl_add_u32 v17, v10, 7, v17"); A("v_add_u32 v17, s78, v17")
    ld1 = [(192 + 4*s, f"v12, {WS}, 0 offen offset:{512*s}", 4, (0,)) for s in range(4)] + [(208, f"v17, {WS}, 0 offen", 2, (1,))]
    poll_init(ld1)
    A(f"v_mul_u32_u24 v13, {OBS}, v10"); A("v_lshrrev_b32 v18, 3, v11"); A("v_lshl_add_u32 v13, v18, 6, v13")
    A("v_lshl_add_u32 v13, v7, 4, v13"); A("v_bfe_u32 v7, v1, 2, 1"); A("v_lshl_add_u32 v13, v7, 3, v13")
    A("s_lshl_b32 s78, s91, 8"); A(f"s_add_u32 s78, s78, {L_OB}"); A("v_add_u32 v13, s78, v13")
    A("v_and_b32 v14, 1, v1"); A(f"v_mul_u32_u24 v14, {OBS}, v14"); A("v_lshl_add_u32 v14, v8, 4, v14"); A(f"v_add_u32 v14, {L_OB}, v14")
    traddr1280(15, 1024)
    A("s_lshl_b32 s78, s91, 5"); A("v_xor_b32 v15, s78, v15")
    A("s_mul_i32 s80, s30, 5120"); A("s_lshl_b32 s81, s37, 2"); A("s_add_u32 s81, s81, s91"); A("s_lshl_b32 s81, s81, 7")
    A("s_add_u32 s84, s80, s81"); A(f"s_add_u32 s84, s84, {WS_AP}"); A("v_lshlrev_b32 v16, 3, v9")
    while st["issued"] < len(seq): pump(WD)
    stamp(9)
    poll_first(ld1)
    if WOREST:
        A("s_waitcnt vmcnt(5)"); A("s_barrier")
    stamp(10)
    for ks in range(16):
        for u in range(2): A(f"ds_read_b64_tr_b16 v[{64+4*ks+2*u}:{65+4*ks+2*u}], v15 offset:{(4*ks+2*u)*1024}")
    poll("1", ld1)
    stamp(11)
    A("v_max_f32_dpp v210, v208, v208 quad_perm:[1,0,3,2] row_mask:0xf bank_mask:0xf")
    A("v_max_f32_dpp v210, v210, v210 quad_perm:[2,3,0,1] row_mask:0xf bank_mask:0xf")
    A("v_sub_f32 v208, v208, v210"); A(f"v_mul_f32 v208, {LOG2E:#x}, v208"); A("v_exp_f32 v208, v208")
    A("v_mul_f32 v209, v208, v209")
    for r in range(4): A(f"v_mul_f32_dpp v{212+r}, v208, v{192+r} quad_perm:[0,0,0,0] row_mask:0xf bank_mask:0xf")
    A("v_add_f32_dpp v209, v209, v209 quad_perm:[1,0,3,2] row_mask:0xf bank_mask:0xf")
    for r in range(4): A(f"v_fmac_f32_dpp v{212+r}, v208, v{196+r} quad_perm:[1,1,1,1] row_mask:0xf bank_mask:0xf")
    A("v_add_f32_dpp v209, v209, v209 quad_perm:[2,3,0,1] row_mask:0xf bank_mask:0xf")
    for r in range(4): A(f"v_fmac_f32_dpp v{212+r}, v208, v{200+r} quad_perm:[2,2,2,2] row_mask:0xf bank_mask:0xf")
    A("v_rcp_f32 v210, v209")
    for r in range(4): A(f"v_fmac_f32_dpp v{212+r}, v208, v{204+r} quad_perm:[3,3,3,3] row_mask:0xf bank_mask:0xf")
    pk("mul", 212, 212, 210, mod="op_sel_hi:[1,0]"); pk("mul", 214, 214, 210, mod="op_sel_hi:[1,0]")
    A("v_cvt_pk_bf16_f32 v212, v212, v213"); A("v_cvt_pk_bf16_f32 v213, v214, v215")
    A("ds_write_b64 v13, v[212:213]")
    A("s_waitcnt lgkmcnt(0)"); A("s_barrier")
    for ks in range(16): A(f"ds_read_b128 v[{128+4*ks}:{131+4*ks}], v14 offset:{64*ks}")
    for ks in range(16):
        A(f"s_waitcnt lgkmcnt({15-ks})"); mfma(ACC, 128+4*ks, 64+4*ks, ks == 0)
    A("s_mov_b64 exec, 0xffff")
    A(f"buffer_store_dwordx2 v[{ACC}:{ACC+1}], v16, {WS}, s84 offen sc1")
    stamp(12)
    flush()
    A("L_sfin:")
    fin()

    A("L_mlp:")
    st.update(save); del seq[NPRE:]
    seq.extend(dma_a(n) for n in range(NDE + NTAIL, 20))
    issue_to(pos[31] + 1 + WD)
    A("s_mul_i32 s85, s91, 10"); A("s_mul_i32 s86, s91, 10240")
    def mp():
        if st["issued"] < len(seq): pump(WD)
    A("v_mov_b32 v237, 0"); A("v_and_b32 v11, 31, v1"); A("s_lshl_b32 s78, s37, 5"); A("v_add_lshl_u32 v11, v11, s78, 1")
    A("v_lshrrev_b32 v7, 2, v1"); A("v_lshlrev_b32 v14, 6, v7"); A("v_and_b32 v7, 1, v8"); A("v_lshl_add_u32 v14, v7, 5, v14")
    A("v_and_b32 v7, 3, v1"); A("v_lshl_add_u32 v14, v7, 3, v14"); A("v_add_u32 v14, s86, v14"); A("v_xor_b32 v15, 32, v14")
    mp()
    traddr1280(16, 10240)
    for i in range(10):
        A(f"s_add_u32 s78, s85, {i}"); A("s_and_b32 s80, s78, 3"); A("s_lshl_b32 s80, s80, 5"); A(f"v_xor_b32 v{48+i}, s80, v16")
        A("s_lshr_b32 s78, s78, 2"); A("s_lshl_b32 s78, s78, 10"); A(f"v_add_u32 v{48+i}, s78, v{48+i}")
        if i in (3, 7): mp()
    for i in range(0, 32, 2): A(f"v_mov_b64 v[{160+i}:{161+i}], 0")
    mp()
    A("v_and_b32 v7, 1, v1")
    A(f"v_mul_u32_u24 v19, {YBS}, v7"); A("v_lshl_add_u32 v19, v8, 4, v19"); A("s_mul_i32 s78, s91, 320"); A(f"s_add_u32 s78, s78, {L_YB}"); A("v_add_u32 v19, s78, v19")
    A("v_lshlrev_b32 v22, 7, v7"); A("v_lshl_add_u32 v22, v8, 4, v22"); A("s_lshl_b32 s78, s91, 8"); A(f"s_add_u32 s78, s78, {L_PB}"); A("v_add_u32 v22, s78, v22")
    A("v_lshlrev_b32 v60, 6, v7"); A("v_lshl_add_u32 v60, v8, 4, v60"); A("s_lshl_b32 s78, s91, 7"); A(f"s_add_u32 s78, s78, {L_H1}"); A("v_add_u32 v60, s78, v60")
    A(f"v_lshlrev_b32 v61, 2, v1"); A(f"v_add_u32 v61, {L_PB}, v61")
    A("v_lshrrev_b32 v7, 5, v1"); A("v_lshlrev_b32 v62, 6, v7"); A("v_bfe_u32 v7, v1, 2, 2"); A("v_lshl_add_u32 v62, v7, 4, v62")
    A("v_bfe_u32 v7, v1, 4, 1"); A("v_lshl_add_u32 v62, v7, 3, v62"); A("v_and_b32 v7, 3, v1"); A("v_lshl_add_u32 v62, v7, 1, v62"); A("v_add_u32 v62, s78, v62")
    A("s_mul_i32 s86, s37, 5120"); A("s_mul_i32 s78, s91, 1280"); A("s_add_u32 s86, s86, s78"); A(f"s_add_u32 s86, s86, {WS_MP}")
    A("v_lshl_add_u32 v21, v8, 2, v9"); A("v_lshlrev_b32 v21, 4, v21")
    A(f"v_mov_b32 v38, {F(-2*0.7978845608028654*1.4426950408889634)}"); A(f"v_mov_b32 v39, {F(-2*0.7978845608028654*1.4426950408889634*0.044715)}")
    while st["issued"] < len(seq): pump(WD)
    A("global_load_short_d16_hi v237, v11, s[18:19]")
    stamp(9)
    flush()
    A("L_mlp5:")
    A("v_lshlrev_b32 v10, 2, v0")
    A("global_load_dword v230, v10, s[4:5]"); A("global_load_dword v231, v10, s[4:5] offset:1280")
    A("v_lshlrev_b32 v13, 4, v0"); A(f"v_add_u32 v13, {WS_AP}, v13")
    sofr = [None, 76, 77, 87, 88, 89, 57, 58]
    for p in range(1, 8): A(f"s_mov_b32 s{sofr[p]}, {p*5120}")
    ld2 = [(192 + 4*p, f"v13, {WS}, {f's{sofr[p]}' if p else '0'} offen", 4, (0, 2)) for p in range(8)]
    poll_init(ld2)
    A(f"v_add_u32 v10, {L_HB}, v10")
    A("v_lshrrev_b32 v18, 4, v0"); A("v_lshlrev_b32 v18, 6, v18"); A("v_bfe_u32 v7, v0, 1, 2"); A("v_lshl_add_u32 v18, v7, 4, v18")
    A("v_bfe_u32 v7, v0, 3, 1"); A("v_lshl_add_u32 v18, v7, 3, v18"); A("v_and_b32 v7, 1, v0"); A("v_lshl_add_u32 v18, v7, 2, v18"); A(f"v_add_u32 v18, {L_YB}, v18")
    A("s_lshl_b32 s78, s3, 4"); A(f"s_add_u32 s78, s78, {L_SB}"); A("v_lshl_add_u32 v17, v8, 2, s78"); A(f"v_mov_b32 v23, {L_SB}")
    A(f"v_mov_b32 v24, {F(1/640)}"); A(f"v_mov_b32 v26, {F(1+1e-5)}"); A(f"v_mov_b32 v27, {F(1e-10)}")
    A("s_waitcnt vmcnt(0)")
    poll_first(ld2)
    A("s_barrier")
    stamp(10)
    A("v_lshlrev_b32 v232, 16, v230"); A("v_lshlrev_b32 v233, 16, v231"); A("v_and_b32 v234, 0xffff0000, v230"); A("v_and_b32 v235, 0xffff0000, v231")
    A("s_cmp_eq_u32 s3, 0"); A("s_cbranch_scc1 L_notr")
    for ks in range(5):
        for ct in range(2):
            for u in range(2):
                r = 64 + 8*ks + 4*ct + 2*u
                A(f"ds_read_b64_tr_b16 v[{r}:{r+1}], v{14+ct} offset:{L_W1 + (2*ks+u)*1024}")
    for i in range(10):
        for u in range(2):
            r = 104 + 4*i + 2*u
            A(f"ds_read_b64_tr_b16 v[{r}:{r+1}], v{48+i} offset:{L_W2 + u*20480}")
    A("L_notr:")
    poll("2", ld2)
    stamp(11)
    for i in range(0, 16, 2): pk("add", 192+i, 192+i, 208+i)
    sum4(192)
    def unpack():
        A("v_lshlrev_b32 v192, 16, v196"); A("v_lshlrev_b32 v193, 16, v197"); A("v_and_b32 v194, 0xffff0000, v196"); A("v_and_b32 v195, 0xffff0000, v197")
    A("v_cvt_pk_bf16_f32 v196, v192, v194"); A("v_cvt_pk_bf16_f32 v197, v193, v195"); unpack()
    pk("add", 192, 192, 232); pk("add", 194, 194, 234)
    A("v_cvt_pk_bf16_f32 v196, v192, v194"); A("v_cvt_pk_bf16_f32 v197, v193, v195"); unpack()
    pk("mul", 200, 192, 192); pk("add", 198, 192, 194); pk("fma", 200, 194, 194, 200)
    A("ds_write_b32 v10, v196"); A("ds_write_b32 v10, v197 offset:1280")
    A("v_permlane32_swap_b32 v198, v200"); A("v_permlane32_swap_b32 v199, v201"); pk("add", 198, 198, 200)
    A("v_permlane16_swap_b32 v198, v199"); A("v_add_f32 v198, v198, v199")
    row_allred("v_add_f32", 198)
    A("ds_write_b32 v17, v198")
    A("s_waitcnt lgkmcnt(0)"); A("s_barrier")
    stamp(18)
    for k in range(5): A(f"ds_read_b128 v[{200+4*k}:{203+4*k}], v23 offset:{16*k}")
    A("s_waitcnt lgkmcnt(1)")
    sum4(200)
    A("s_waitcnt lgkmcnt(0)")
    pk("add", 200, 200, 216); pk("add", 202, 202, 218)
    pk("mul", 200, 200, 24, mod="op_sel_hi:[1,0]"); pk("mul", 202, 202, 24, mod="op_sel_hi:[1,0]")
    pk("fma", 202, 200, 200, 202, mod="neg_lo:[1,0,0] neg_hi:[1,0,0]")
    pk("add", 192, 192, 200, mod="neg_lo:[0,1] neg_hi:[0,1]"); pk("add", 194, 194, 200, mod="neg_lo:[0,1] neg_hi:[0,1]")
    A("v_max_f32 v202, 0, v202"); A("v_max_f32 v203, 0, v203")
    A("v_fma_f32 v202, v202, v26, v27"); A("v_fma_f32 v203, v203, v26, v27")
    A("v_rsq_f32 v202, v202"); A("v_rsq_f32 v203, v203")
    pk("mul", 192, 192, 202); pk("mul", 194, 194, 202)
    A("v_cvt_pk_bf16_f32 v196, v192, v194"); A("v_cvt_pk_bf16_f32 v197, v193, v195")
    A("ds_write_b32 v18, v196"); A(f"ds_write_b32 v18, v197 offset:{YBS}")
    A("s_waitcnt lgkmcnt(0)"); A("s_barrier")
    stamp(12)
    A("s_cmp_eq_u32 s3, 0"); A("s_cbranch_scc1 L_final ; nf")
    pend_fin = list(pend)
    for ks in range(5): A(f"ds_read_b128 v[{192+4*ks}:{195+4*ks}], v19 offset:{64*ks}")
    for ks in range(5):
        A(f"s_waitcnt lgkmcnt({4-ks})")
        for ct in range(2): mfma(28+4*ct, 64+8*ks+4*ct, 192+4*ks, ks == 0)
    A("s_mov_b32 exec_lo, 0x00030003"); A("s_mov_b32 exec_hi, 0x00030003")
    A("s_mov_b64 s[60:61], exec")
    A("ds_write_b128 v22, v[28:31]"); A("ds_write_b128 v22, v[32:35] offset:64")
    A("s_mov_b64 exec, -1")
    A("s_waitcnt lgkmcnt(0)"); A("s_barrier")
    stamp(19)
    A("ds_read2st64_b32 v[36:37], v61 offset0:0 offset1:1"); A("ds_read2st64_b32 v[40:41], v61 offset0:2 offset1:3")
    A("s_waitcnt lgkmcnt(0)")
    pk("add", 36, 36, 40); A("v_add_f32 v36, v36, v37")
    bf16r(36, 36); A("v_add_f32 v36, v36, v237"); bf16r(36, 36)
    A("v_mul_f32 v37, v36, v36"); A("v_fma_f32 v37, v37, v39, v38"); A("v_mul_f32 v37, v37, v36"); A("v_exp_f32 v37, v37")
    A("v_add_f32 v37, 1.0, v37"); A("v_rcp_f32 v37, v37"); A("v_mul_f32 v36, v36, v37")
    A("v_cvt_pk_bf16_f32 v36, v36, v36")
    A("ds_write_b16 v62, v36")
    for t in range(8):
        A(f"s_lshl_b64 exec, s[60:61], {2*t}")
        A(f"ds_read_b128 v[{160+4*t}:{163+4*t}], v60")
    A("s_mov_b64 exec, -1")
    for i in [0, 8, 1, 9, 2, 3, 4, 5, 6, 7]:
        t = i & 7
        if i < 8: A(f"s_waitcnt lgkmcnt({7-t})")
        mfma(28 + 4*(i >> 3), 104+4*i, 160+4*t, t == 0)
    A("s_mov_b32 exec_lo, 0x000f000f"); A("s_mov_b32 exec_hi, 0x000f000f")
    A(f"buffer_store_dwordx4 v[32:35], v21, {WS}, s86 offen offset:1024 sc1")
    A("s_mov_b64 exec, -1")
    A(f"buffer_store_dwordx4 v[28:31], v2, {WS}, s86 offen sc1")
    stamp(13)
    fin()

    A("L_final:")
    pend.extend(pend_fin)
    A("ds_read_u16_d16_hi v16, v15")
    ld3 = [(64 + 4*n, f"v{57 if n == 6 else 56}, {WS}, {f's{80+n}' if n else '0'} offen", 4, (0,)) for n in range(7)]
    poll_init(ld3)
    A("s_waitcnt lgkmcnt(0)")
    A("s_barrier")
    A("s_cmp_ge_u32 s37, 40"); A("s_cbranch_scc1 L_fend")
    poll("3", ld3, pre=False)
    stamp(14)
    for hh in (0, 2):
        pk("add", 80+hh, 80+hh, 84+hh); pk("add", 64+hh, 64+hh, 88+hh)
    for hh in (0, 2): pk("add", 68+hh, 68+hh, 80+hh)
    sum4(64)
    A("v_permlane32_swap_b32 v64, v66"); A("v_permlane32_swap_b32 v65, v67"); pk("add", 64, 64, 66)
    A("v_permlane16_swap_b32 v64, v65"); A("v_add_f32 v64, v64, v65")
    A("v_add_f32_dpp v64, v64, v64 row_ror:8 row_mask:0xf bank_mask:0xf")
    bf16r(64, 64); A("v_add_f32 v64, v64, v238"); bf16r(64, 64); A("v_add_f32 v64, v64, v16")
    A("v_cvt_pk_bf16_f32 v64, v64, v64")
    A("buffer_store_short v64, v12, s[52:55], 0 offen")
    stamp(15)
    flush()
    A("L_fend:")
    if diag: fin()
    A("L_end:")
    A("s_endpgm")

    body = fix(L)
    out = [HDR.rstrip("\n"),
           "; One launch, 256 workgroups (one per CU); hand-offs between workgroups go through d_ws.",
           f"; @launch grid=(256,1,1) block=(320,1,1) lds={LDS_BYTES}",
           '.amdgcn_target "amdgcn-amd-amdhsa--gfx950"', ".text", f".globl {NAME}_kernel", ".p2align 8",
           f".type {NAME}_kernel,@function", f"{NAME}_kernel:"] + body + [
           '.section .rodata,"a"', ".p2align 6", f".amdhsa_kernel {NAME}_kernel",
           "  .amdhsa_next_free_vgpr 256", "  .amdhsa_next_free_sgpr 102", "  .amdhsa_accum_offset 256",
           "  .amdhsa_group_segment_fixed_size 0", "  .amdhsa_kernarg_size 104", "  .amdhsa_user_sgpr_count 2",
           "  .amdhsa_user_sgpr_kernarg_segment_ptr 1", "  .amdhsa_system_sgpr_workgroup_id_x 1",
           "  .amdhsa_float_denorm_mode_32 3",
           ".end_amdhsa_kernel"]
    return "\n".join(out) + "\n"

if __name__ == "__main__":
    import argparse
    ap = argparse.ArgumentParser(); ap.add_argument("-o", default=f"cdna_kernels/{NAME}.s"); ap.add_argument("--diag", action="store_true")
    ap.add_argument("--kw", default="")
    a = ap.parse_args()
    open(a.o, "w").write(gen(diag=a.diag, **eval("dict(%s)" % a.kw)))
```

```python
import sys, struct
from hz import fix
NAME = "sequential_preLN__sliding_block_cached__mixer_channel_mlp__decode"
HDR = open("cdna_kernels/%s.s.ref" % NAME).read().split("; Override launch")[0]
def F(x): return "0x%08x" % struct.unpack("<I", struct.pack("<f", x))[0]

WS_FLAGS = 1024; WS_ML = 0x4000; WS_AP = 0x10000; WS_OP = 0x20000; WS_MP = 0x40000; WS_QP = 0x90000
WS_STAMP = 0x200000
OOB = 0xF0000000
L_W2 = 0; L_W1 = 40960
L_RED = 81920
L_Q = L_RED + 2048
L_ML = L_Q + 256
L_SB = L_ML + 64
L_OB = L_SB + 128
OBS = 1088
L_HB = L_OB + 2 * OBS
L_YB = L_HB + 2560
YBS = 1344
L_PB = L_YB + 2 * YBS
L_H1 = L_PB + 1024
LDS_BYTES = L_H1 + 512
SPIN = 400000
LOG2E = 0x3FB8AA3B

def gen(diag=False, nt="nt", W=7, W0=3, wnt="nt", WD=8, prio=True, KQ=6, depth=0, qdelay=None, ND=16, D0=2, DS=2, local=False, exp=(), T0='half', PT0=32, PT1=32, xnt='nt', tnt='nt', probe=None):
    L = []
    pend = []
    def A(s):
        for l in s.split("\n"):
            l = l.strip()
            if pend and l.startswith(("s_cbranch", "s_branch")) and not l.endswith("; nf"):
                A("s_waitcnt lgkmcnt(0)")
            L.append("    " + l if not l.endswith(":") else l)
            if pend and l.startswith("s_waitcnt") and "lgkmcnt(0)" in l:
                for r, i in pend: L.append(f"    v_writelane_b32 v255, s{r}, {i}")
                pend.clear()
    def stamp(i, clk=False):
        if diag:
            if len(pend) == 5: A("s_waitcnt lgkmcnt(0)")
            r = 92 + 2 * len(pend)
            A(f"{'s_memtime' if clk else 's_memrealtime'} s[{r}:{r+1}]"); pend.append((r, i))
    def flush():
        if pend: A("s_waitcnt lgkmcnt(0)")
    def bf16r(d, x):
        A(f"v_cvt_pk_bf16_f32 v{d}, v{x}, v{x}"); A(f"v_and_b32 v{d}, 0xffff0000, v{d}")
    def row_allred(op, v):
        for c in ("row_mirror", "row_half_mirror", "quad_perm:[2,3,0,1]", "quad_perm:[1,0,3,2]"):
            A(f"{op}_dpp v{v}, v{v}, v{v} {c} row_mask:0xf bank_mask:0xf")
    def swap_allred(op, v, t, which):
        A(f"v_mov_b32 v{t}, v{v}"); A(f"v_permlane{which}_swap_b32 v{v}, v{t}"); A(f"{op} v{v}, v{v}, v{t}")
    def srd(r, base, size):
        A(f"s_mov_b32 s{r}, s{base}"); A(f"s_mov_b32 s{r+1}, s{base+1}"); A(f"s_mov_b32 s{r+2}, {size}"); A(f"s_mov_b32 s{r+3}, 0x20000")
    def pk(op, d, a, b, c=None, mod=""):
        A(f"v_pk_{op}_f32 v[{d}:{d+1}], v[{a}:{a+1}], v[{b}:{b+1}]" + (f", v[{c}:{c+1}]" if c is not None else "") + (" " + mod if mod else ""))
    def mfma(d, a, b, first):
        A(f"v_mfma_f32_16x16x32_bf16 v[{d}:{d+3}], v[{a}:{a+3}], v[{b}:{b+3}], {'0' if first else f'v[{d}:{d+3}]'}")
    def sum4(b):
        for hh in (0, 2):
            pk("add", b+hh, b+hh, b+4+hh); pk("add", b+8+hh, b+8+hh, b+12+hh)
        for hh in (0, 2): pk("add", b+hh, b+hh, b+8+hh)
    def role_decode():
        A("s_sub_u32 s78, s31, 10"); A("s_lshr_b32 s80, s78, 1"); A("s_lshl_b32 s80, s80, 3"); A("s_add_u32 s80, s80, s30")
        A("s_and_b32 s78, s78, 1"); A("s_lshl_b32 s37, s80, 1"); A("s_add_u32 s37, s37, s78")
        A("s_cmp_lt_u32 s80, 27"); A("s_cselect_b32 s36, 2, 0")
        A("s_cmp_lt_u32 s31, 10"); A("s_cselect_b32 s36, 1, s36"); A("s_cselect_b32 s37, s31, s37")
    WS = "s[40:43]"
    def ldtext(r, a, n=4):
        return f"buffer_load_dwordx{n} v[{r}:{r+n-1}], {a} sc1"
    def poll_init(loads):
        for r, a, n, chk in loads:
            for c in chk: A(f"v_mov_b32 v{r+c}, -1")
    def poll_first(loads):
        for r, a, n, chk in loads: A(ldtext(r, a, n))
    def poll(tag, loads, pre=True):
        n = len(loads)
        A(f"s_mov_b32 s90, {SPIN}")
        flush()
        if pre and depth == 0: A("s_waitcnt vmcnt(0)")
        A(f"L_p{tag}:")
        for i, (r, a, nd, chk) in enumerate(loads):
            if len(chk) == 1: A(f"v_cmp_eq_u32 s[{60+2*i}:{61+2*i}], -1, v{r+chk[0]}")
            else:
                A(f"v_max_u32 v{6+(i&1)}, v{r+chk[0]}, v{r+chk[1]}"); A(f"v_cmp_eq_u32 s[{60+2*i}:{61+2*i}], -1, v{6+(i&1)}")
        A("s_or_b64 vcc, s[60:61], s[62:63]")
        for i in range(2, n): A(f"s_or_b64 vcc, vcc, s[{60+2*i}:{61+2*i}]")
        A(f"s_cbranch_scc0 L_pd{tag}")
        for i, (r, a, nd, chk) in enumerate(loads):
            A(f"s_mov_b64 exec, s[{60+2*i}:{61+2*i}]")
            A(ldtext(r, a, nd))
        A("s_mov_b64 exec, -1")
        A(f"s_waitcnt vmcnt({depth*n})")
        A("s_sub_u32 s90, s90, 1"); A(f"s_cbranch_scc0 L_p{tag}")
        A(f"L_pd{tag}:")
        A("s_waitcnt vmcnt(0)")
    def fin():
        if diag:
            A("s_mov_b64 exec, -1")
            stamp(59); stamp(61, True); A("s_waitcnt lgkmcnt(0)")
            A("s_getreg_b32 s92, hwreg(HW_REG_XCC_ID)"); A("v_writelane_b32 v255, s92, 62")
            A("s_cmp_eq_u32 s3, 0"); A("s_cselect_b32 s92, 3, 0"); A("s_add_u32 s92, s92, s36"); A("v_writelane_b32 v255, s92, 63")
            A("s_mul_i32 s78, s2, 5"); A("s_add_u32 s78, s78, s3"); A("s_lshl_b32 s78, s78, 8"); A(f"s_add_u32 s78, s78, {WS_STAMP}")
            A("v_lshlrev_b32 v7, 2, v1")
            A(f"buffer_store_dword v255, v7, {WS}, s78 offen")
            if probe is not None:
                fin.n = getattr(fin, "n", 0) + 1
                pi, pw = probe
                if pw < 2:
                    A("s_cmp_eq_u32 s3, 0"); A(f"s_cbranch_scc{1 if pw == 1 else 0} L_pe{fin.n}")
                A(f"v_readlane_b32 s78, v255, {pi}"); A("s_nop 4"); A("s_cmp_eq_u32 s78, 0"); A(f"s_cbranch_scc1 L_pe{fin.n}")
                A("s_add_u32 s78, s78, 3000")
                A(f"L_pw{fin.n}:"); A("s_sleep 2"); A("s_memrealtime s[92:93]"); A("s_waitcnt lgkmcnt(0)"); A("s_sub_u32 s92, s92, s78"); A("s_cmp_lt_i32 s92, 0"); A(f"s_cbranch_scc1 L_pw{fin.n}")
                A(f"L_pe{fin.n}:")
        A("s_endpgm")
    def traddr1280(d, blk):
        A("v_bfe_u32 v7, v1, 2, 3"); A(f"v_lshlrev_b32 v{d}, 7, v7"); A("v_lshrrev_b32 v7, 1, v7"); A(f"v_lshl_add_u32 v{d}, v7, 5, v{d}")
        A("v_lshrrev_b32 v7, 5, v1"); A(f"v_mul_u32_u24 v7, {blk}, v7"); A(f"v_add_u32 v{d}, v{d}, v7")
        A("v_and_b32 v7, 3, v1"); A(f"v_lshl_add_u32 v{d}, v7, 3, v{d}")

    K0, V0 = 64, 128
    ACC = 28
    XS, XO, WQ, AO = 228, 238, 64, 144

    if diag: A("v_mov_b32 v255, 0")
    stamp(0); stamp(60, True)
    A("s_cmp_ge_u32 s2, 256"); A("s_cbranch_scc1 L_end ; nf")
    A("s_load_dwordx16 s[4:19], s[0:1], 0")
    A("s_load_dwordx8 s[20:27], s[0:1], 64")
    A("s_load_dwordx2 s[28:29], s[0:1], 96")
    A("v_lshrrev_b32 v7, 6, v0"); A("v_and_b32 v1, 63, v0"); A("v_readfirstlane_b32 s3, v7")
    A("s_and_b32 s30, s2, 7"); A("s_lshr_b32 s31, s2, 3"); A("s_lshr_b32 s78, s31, 3")
    A("s_lshl_b32 s32, s30, 2"); A("s_add_u32 s32, s32, s78")
    A("s_and_b32 s33, s31, 7"); A("s_lshr_b32 s34, s33, 2"); A("s_and_b32 s35, s33, 3")
    A("v_lshlrev_b32 v2, 4, v1"); A("v_lshrrev_b32 v8, 4, v1"); A("v_and_b32 v9, 15, v1")
    A("s_cmp_eq_u32 s3, 0"); A("s_cbranch_scc1 L_aux ; nf")
    pend_at_fork = list(pend)
    A("s_sub_u32 s91, s3, 1")
    A("s_lshl_b32 s78, s34, 25"); A("s_lshl_b32 s80, s32, 20"); A("s_add_u32 s78, s78, s80")
    A("s_lshl_b32 s80, s35, 16"); A("s_add_u32 s78, s78, s80"); A("s_lshl_b32 s80, s91, 14"); A("s_add_u32 s78, s78, s80")
    A(f"s_add_u32 s78, s78, {3072*256 + 4096}")
    A("v_add_u32 v17, s78, v2"); A("v_add_u32 v18, 8192, v17")
    def ldKV(base, ptr, t):
        return lambda: A(f"global_load_dwordx4 v[{base+4*t}:{base+4*t+3}], v{17 + t//8}, {ptr} offset:{(t%8)*1024-4096} {nt}")
    def dma_a(n):
        def f():
            if n == 10:
                A("s_cmp_eq_u32 s36, 2")
                A("s_cselect_b32 s44, s16, s44"); A("s_cselect_b32 s45, s17, s45"); A("s_cselect_b32 s82, s84, s82")
                A(f"s_cselect_b32 s87, {16*3456}, s87"); A(f"s_cselect_b32 s78, {L_W1 - 10240}, 0"); A("s_cselect_b64 vcc, -1, 0")
                A("s_add_u32 s83, s83, s78"); A("v_cndmask_b32 v58, v58, v59, vcc")
            A(f"s_add_u32 m0, s83, {n*1024}")
            if n: A("s_add_u32 s82, s82, s87")
            A(f"buffer_load_dwordx4 v58, s[44:47], s82 offen {wnt} lds")
        return f
    kv = [ldKV(K0, "s[6:7]", t) for t in range(16)] + [ldKV(V0, "s[8:9]", t) for t in range(16)]
    seq = []; pos = []; nd = 0
    touch0 = lambda: A(f"buffer_load_dword v4, v56, s[48:51], 0 offen {tnt}")
    touch1 = lambda: A(f"buffer_load_dword v5, v57, s[52:55], 0 offen {tnt}")
    ntt = 0
    for i, f in enumerate(kv + [None]):
        if T0 and PT0 == i: seq.append(touch0); ntt += i == 32
        if T0 and PT1 == i: seq.append(touch1); ntt += i == 32
        if f is None: break
        while nd < ND and D0 + nd * DS <= i:
            seq.append(dma_a(nd)); nd += 1
        pos.append(len(seq)); seq.append(f)
    NDE = nd
    NTAIL = min(W - 1 - ntt, 16 - NDE)
    seq.extend(dma_a(n) for n in range(NDE, NDE + NTAIL))
    NPRE = len(seq)
    assert pos[W0 - 1] == W0 - 1
    st = dict(issued=0, waited=-1)
    def issue_to(n):
        while st["issued"] < min(n, len(seq)):
            seq[st["issued"]](); st["issued"] += 1
    def wait_for(k):
        if k > st["waited"]:
            A(f"s_waitcnt vmcnt({st['issued'] - k - 1})"); st["waited"] = k
    def pump(w=None, lim=None):
        k = st["waited"] + 1
        if lim is not None and k > lim: return
        wait_for(k); issue_to(k + 1 + (w or W))
    A("s_waitcnt lgkmcnt(0)")
    issue_to(W0)
    A("s_branch L_stream ; nf")

    A("L_aux:")
    pend.extend(pend_at_fork)
    if prio: A("s_setprio 3")
    if "noaux" in exp:
        A("s_waitcnt lgkmcnt(0)"); role_decode(); srd(40, 28, 0x10000000); A("s_barrier"); A("s_barrier"); fin()
    A("v_lshrrev_b32 v10, 5, v1"); A("v_mul_u32_u24 v10, 1280, v10"); A("v_and_b32 v7, 31, v1"); A("v_mad_u32_u24 v10, v7, 40, v10")
    A("s_mul_i32 s78, s33, 80"); A("v_mad_u32_u24 v7, v8, 20, s78")
    A("v_bfe_u32 v11, v1, 3, 1"); A("v_mul_u32_u24 v11, 1280, v11"); A("v_lshl_add_u32 v11, v7, 1, v11")
    A("s_lshl_b32 s78, s32, 8"); A("v_lshlrev_b32 v12, 13, v7"); A("v_lshl_add_u32 v12, v9, 4, v12"); A("v_add_u32 v12, s78, v12")
    A("s_mov_b32 s46, 5242880"); A("s_mov_b32 s47, 0x20000")
    A(f"v_mov_b32 v23, {OOB}")
    A("s_getpc_b64 s[52:53]"); A("L_pc:")
    A(f"s_mov_b32 s54, L_end-L_pc"); A("s_mov_b32 s55, 0x20000")
    A("v_lshlrev_b32 v22, 7, v1"); A("s_and_b32 s78, s31, 15"); A("s_cmp_eq_u32 s78, 0"); A("s_cselect_b64 vcc, -1, 0"); A("v_cndmask_b32 v22, v23, v22, vcc")
    A("s_movk_i32 s80, 0x2000")
    A("buffer_load_dword v4, v22, s[52:55], 0 offen"); A("buffer_load_dword v5, v22, s[52:55], s80 offen")
    A("s_waitcnt lgkmcnt(0)")
    for base, a in ((XS, 10), (XO, 11)):
        A(f"global_load_dwordx4 v[{base}:{base+3}], v{a}, s[4:5] {xnt}")
        A(f"global_load_dwordx4 v[{base+4}:{base+7}], v{a}, s[4:5] offset:16 {xnt}")
        A(f"global_load_dwordx2 v[{base+8}:{base+9}], v{a}, s[4:5] offset:32 {xnt}")
    A("s_mov_b32 s44, s10"); A("s_mov_b32 s45, s11"); A("s_mov_b32 s78, 0")
    for t in range(20):
        if t: A("s_add_u32 s78, s78, s80")
        A(f"buffer_load_dwordx4 v[{WQ+4*t}:{WQ+4*t+3}], v12, s[44:47], s78 offen {nt}")
    A("s_load_dword s56, s[28:29], 0")
    stamp(1)
    role_decode()
    srd(40, 28, 0x10000000)
    A("v_and_b32 v7, 1, v1"); A("v_cmp_eq_u32 vcc, 1, v7"); A("v_bfe_u32 v7, v1, 1, 2")
    A("v_mov_b32 v24, 0x0c0c0100"); A("v_mov_b32 v25, 0x01000c0c"); A("v_cndmask_b32 v24, v24, v25, vcc")
    A("v_mov_b32 v25, 0x0c0c0302"); A("v_mov_b32 v26, 0x03020c0c"); A("v_cndmask_b32 v25, v25, v26, vcc")
    A("v_mov_b32 v26, 0x0c0c0c0c")
    for r in range(4):
        A(f"v_cmp_eq_u32 vcc, {r}, v7"); A(f"v_cndmask_b32 v{14+r}, v26, v24, vcc"); A(f"v_cndmask_b32 v{18+r}, v26, v25, vcc")
    for r in range(4): A(f"v_mov_b32 v{24+r}, -1")
    A(f"v_mov_b32 v13, {L_ML}")
    A("ds_write_b128 v13, v[24:27]"); A("ds_write_b128 v13, v[24:27] offset:16")
    A("s_lshl_b32 s39, s32, 3"); A("s_add_u32 s39, s39, s33")
    A("s_lshl_b32 s38, s39, 9"); A(f"s_add_u32 s38, s38, {WS_OP}")
    A("s_mul_i32 s80, s30, 5120"); A("s_lshl_b32 s81, s37, 9"); A("s_add_u32 s80, s80, s81"); A(f"s_add_u32 s80, s80, {WS_AP}")
    A("s_mul_i32 s81, s37, 5120"); A(f"s_add_u32 s81, s81, {WS_MP}")
    A("s_cmp_eq_u32 s36, 2"); A(f"s_cselect_b32 s81, s81, {OOB}"); A("s_add_u32 s82, s81, 4096")
    A("s_cmp_eq_u32 s36, 1"); A("s_cselect_b32 s82, s80, s82"); A("s_cselect_b32 s83, 0, -1")
    A("s_lshl_b32 s85, s30, 1"); A("s_add_u32 s85, s85, s34"); A("s_lshl_b32 s85, s85, 2"); A("s_lshr_b32 s78, s31, 3"); A("s_add_u32 s85, s85, s78")
    A("s_lshl_b32 s85, s85, 2"); A("s_add_u32 s85, s85, s35"); A("s_lshl_b32 s85, s85, 3"); A(f"s_add_u32 s85, s85, {WS_ML}")
    if "noclear" in exp: A("s_mov_b32 s42, 0")
    A("s_mov_b64 exec, 1")
    A(f"buffer_store_dwordx2 v[24:25], v2, {WS}, s85 offen sc1")
    A("s_mov_b32 exec_lo, -1")
    A(f"buffer_store_dwordx4 v[24:27], v2, {WS}, s38 offen sc1")
    A("s_mov_b32 exec_hi, s83")
    A(f"buffer_store_dwordx4 v[24:27], v2, {WS}, s82 offen sc1")
    A("s_mov_b64 exec, -1")
    for k in range(4): A(f"buffer_store_dwordx4 v[24:27], v2, {WS}, s81 offen offset:{1024*k} sc1")
    if "noclear" in exp: A("s_mov_b32 s42, 0x10000000")
    A("s_waitcnt vmcnt(30)")
    stamp(2)
    X, mean, tmp = 32, 52, 56
    for i in range(10):
        A(f"v_lshlrev_b32 v{X+2*i}, 16, v{XS+i}"); A(f"v_and_b32 v{X+2*i+1}, 0xffff0000, v{XS+i}")
    pk("add", tmp, X, X+2); pk("add", tmp+2, X+4, X+6)
    for i in range(4, 10): pk("add", tmp+2*(i&1), tmp+2*(i&1), X+2*i)
    pk("add", tmp, tmp, tmp+2); A(f"v_add_f32 v{mean}, v{tmp}, v{tmp+1}")
    row_allred("v_add_f32", mean); swap_allred("v_add_f32", mean, tmp, 16)
    A(f"v_mul_f32 v{mean}, {F(1/640)}, v{mean}")
    for i in range(10): pk("add", X+2*i, X+2*i, mean, mod="op_sel_hi:[1,0] neg_lo:[0,1] neg_hi:[0,1]")
    for i in range(10):
        t = tmp + 2*(i&1)
        if i < 2: pk("mul", t, X+2*i, X+2*i)
        else: pk("fma", t, X+2*i, X+2*i, t)
    pk("add", tmp, tmp, tmp+2)
    va = mean + 2
    A(f"v_add_f32 v{va}, v{tmp}, v{tmp+1}")
    row_allred("v_add_f32", va); swap_allred("v_add_f32", va, tmp, 16)
    A(f"v_mul_f32 v{va}, {F(1/640)}, v{va}")
    bf16r(mean, mean); bf16r(va, va)
    A(f"v_add_f32 v{va}, {F(1e-5)}, v{va}"); bf16r(va, va)
    A(f"v_sqrt_f32 v{va}, v{va}"); bf16r(va, va)
    A(f"v_rcp_f32 v{va}, v{va}")
    A("v_mov_b32 v53, v52"); A("v_mov_b32 v55, v54")
    A("s_waitcnt vmcnt(27)")
    for i in range(10):
        A(f"v_lshlrev_b32 v{X+2*i}, 16, v{XO+i}"); A(f"v_and_b32 v{X+2*i+1}, 0xffff0000, v{XO+i}")
    A("v_permlane32_swap_b32 v52, v53"); A("v_permlane32_swap_b32 v54, v55")
    A("s_mov_b32 vcc_lo, 0xff00ff00"); A("s_mov_b32 vcc_hi, 0xff00ff00")
    A("v_cndmask_b32 v52, v52, v53, vcc"); A("v_cndmask_b32 v54, v54, v55, vcc")
    for i in range(10): pk("add", X+2*i, X+2*i, mean, mod="op_sel_hi:[1,0] neg_lo:[0,1] neg_hi:[0,1]")
    for i in range(10): A(f"v_cvt_pk_bf16_f32 v{XO+i}, v{X+2*i}, v{X+2*i+1}")
    for i in range(10):
        A(f"v_lshlrev_b32 v{X+2*i}, 16, v{XO+i}"); A(f"v_and_b32 v{X+2*i+1}, 0xffff0000, v{XO+i}")
    for i in range(10): pk("mul", X+2*i, X+2*i, va, mod="op_sel_hi:[1,0]")
    for i in range(10): A(f"v_cvt_pk_bf16_f32 v{XO+i}, v{X+2*i}, v{X+2*i+1}")
    stamp(3)
    for t in range(21):
        if t < 20:
            for r in range(4): A(f"v_perm_b32 v{AO+4*t+r}, v{XO+t//2}, v{XO+t//2}, v{14+4*(t&1)+r}")
        if t > 0:
            A(f"s_waitcnt vmcnt({27-t})"); mfma(ACC, AO+4*(t-1), WQ+4*(t-1), t == 1)
    A("s_waitcnt lgkmcnt(0)")
    A("s_add_u32 s56, s56, 0x01010101")
    A("s_lshl_b32 s39, s39, 11"); A(f"s_add_u32 s39, s39, {WS_QP}")
    A("v_mov_b32 v34, s56"); A("v_mov_b32 v35, s56"); A("v_mov_b32 v38, s56"); A("v_mov_b32 v39, s56")
    A("v_mov_b64 v[32:33], v[28:29]"); A("v_mov_b64 v[36:37], v[30:31]")
    A(f"buffer_store_dwordx4 v[32:35], v2, {WS}, s39 offen sc1")
    A(f"buffer_store_dwordx4 v[36:39], v2, {WS}, s39 offen offset:1024 sc1")
    stamp(4)
    if "noq" in exp:
        A("s_barrier"); A("s_barrier"); fin()
    A("s_lshl_b32 s78, s32, 14"); A("s_lshl_b32 s80, s34, 9"); A("s_add_u32 s78, s78, s80"); A(f"s_add_u32 s78, s78, {WS_QP}")
    A("v_lshrrev_b32 v40, 5, v1"); A("v_and_b32 v41, 31, v1"); A("v_lshlrev_b32 v42, 10, v40"); A("v_lshl_add_u32 v42, v41, 4, v42"); A("v_add_u32 v42, s78, v42")
    for k in range(1, 4): A(f"s_movk_i32 s{80+k}, {4096*k}")
    A("v_lshlrev_b32 v43, 4, v9"); A("v_and_b32 v7, 1, v8"); A("v_lshl_add_u32 v43, v7, 3, v43"); A("v_lshl_add_u32 v43, v40, 2, v43"); A(f"v_add_u32 v43, {L_Q}, v43")
    A("s_lshl_b32 s78, s30, 5"); A("s_add_u32 s78, s78, s31"); A("s_lshl_b32 s78, s78, 2"); A(f"s_add_u32 s78, s78, {WS_FLAGS}")
    A("s_waitcnt vmcnt(2)")
    A("s_mov_b64 exec, 1")
    A(f"buffer_store_dword v34, v2, {WS}, s78 offen sc1")
    A("s_mov_b64 exec, -1")
    if qdelay is None: A("s_waitcnt vmcnt(1)")
    elif qdelay: A(f"s_sleep {qdelay}")
    stamp(5)
    A(f"s_mov_b32 s90, {SPIN}")
    flush()
    A("L_qpoll:")
    for jj in range(8):
        A(f"buffer_load_dwordx4 v[{64+4*jj}:{67+4*jj}], v42, {WS}, {f's{80+jj//2}' if jj//2 else '0'} offen offset:{2048*(jj&1)} sc1")
    A("s_waitcnt vmcnt(0)")
    A("v_xor_b32 v7, s56, v66")
    for i in range(1, 16): A(f"v_bitop3_b32 v7, v7, v{66 + 4*(i//2) + (i&1)}, s56 bitop3:0xf6")
    A("v_cmp_ne_u32 vcc, 0, v7")
    A("s_cbranch_vccz L_qok")
    A("s_sub_u32 s90, s90, 1"); A("s_cbranch_scc0 L_qpoll")
    A("L_qok:")
    A(f"s_movk_i32 s84, {WS_FLAGS}")
    A("s_cmp_eq_u32 s2, 255"); A("s_cselect_b32 s59, 1, s36"); A("s_cmp_eq_u32 s59, 0"); A(f"s_cselect_b32 s84, {OOB}, s84")
    A(f"buffer_load_dwordx4 v[48:51], v2, {WS}, s84 offen sc1")
    for i in range(4): pk("add", 64+8*i, 64+8*i, 68+8*i)
    pk("add", 64, 64, 72); pk("add", 80, 80, 88); pk("add", 64, 64, 80)
    A("v_cvt_pk_bf16_f32 v64, v64, v65")
    A("ds_write_b32 v43, v64")
    stamp(6)
    A("v_lshlrev_b32 v45, 4, v41"); A(f"v_add_u32 v45, {L_RED}, v45")
    A("s_cmp_eq_u32 s36, 2"); A("s_cbranch_scc0 L_nofin")
    A("s_min_u32 s57, s37, 39")
    A("s_mul_i32 s78, s57, 52"); A("s_lshr_b32 s78, s78, 9")
    A("s_mul_i32 s80, s78, 10"); A("s_sub_u32 s80, s57, s80")
    A("s_mul_i32 s78, s78, 160")
    A("s_and_b32 s81, s80, 1"); A("s_lshl_b32 s82, s81, 6"); A("s_lshr_b32 s83, s80, 1"); A("s_lshl_b32 s83, s83, 2"); A("s_add_u32 s82, s82, s83")
    A("s_lshl_b32 s81, s81, 3"); A("s_add_u32 s81, s81, 128")
    A("v_bfe_u32 v7, v1, 1, 2"); A("v_lshlrev_b32 v12, 4, v7")
    A("v_bfe_u32 v7, v1, 1, 1"); A("v_lshlrev_b32 v15, 4, v7"); A("v_bfe_u32 v7, v1, 2, 1"); A("v_lshl_add_u32 v15, v7, 2, v15")
    A("s_cmp_lt_u32 s80, 8"); A("s_cselect_b32 s82, s82, s81"); A("s_cselect_b64 vcc, -1, 0"); A("s_add_u32 s78, s78, s82")
    A("v_cndmask_b32 v12, v15, v12, vcc"); A("v_add3_u32 v12, v12, v8, s78"); A("v_lshlrev_b32 v12, 1, v12")
    A("v_mov_b32 v238, 0"); A("v_mov_b32 v16, 0")
    A("global_load_short_d16_hi v238, v12, s[22:23]")
    A("v_and_b32 v7, 1, v1"); A("v_mul_u32_u24 v7, 1280, v7"); A("v_add_u32 v12, v12, v7"); A(f"v_add_u32 v15, {L_HB}, v12")
    A("v_bfe_u32 v7, v1, 3, 1"); A("v_cmp_eq_u32 vcc, 0, v7"); A("v_cndmask_b32 v12, v23, v12, vcc")
    A("v_lshrrev_b32 v7, 3, v1"); A("v_mul_u32_u24 v56, 5120, v7"); A("v_and_b32 v57, 7, v1"); A("v_lshl_add_u32 v56, v57, 4, v56")
    A("s_lshl_b32 s78, s57, 7"); A(f"s_add_u32 s78, s78, {WS_MP}"); A("v_add_u32 v56, s78, v56")
    A("v_cmp_gt_u32 vcc, 6, v7"); A("v_cndmask_b32 v57, v23, v56, vcc")
    srd(52, 24, 2560)
    A("L_nofin:")
    A("s_waitcnt lgkmcnt(0)"); A("s_barrier")
    stamp(7)
    A(f"s_mov_b32 s90, {SPIN}")
    A("s_cmp_eq_u32 s59, 0"); A("s_cbranch_scc1 L_fok")
    A("L_fchk:")
    A("s_waitcnt vmcnt(0)")
    A("v_xor_b32 v7, s56, v48")
    for i in range(1, 4): A(f"v_bitop3_b32 v7, v7, v{48+i}, s56 bitop3:0xf6")
    A("v_cmp_ne_u32 vcc, 0, v7")
    A("s_cbranch_vccz L_fok")
    A(f"buffer_load_dwordx4 v[48:51], v2, {WS}, s84 offen sc1")
    A("s_sub_u32 s90, s90, 1"); A("s_cbranch_scc0 L_fchk")
    A("L_fok:")
    stamp(8)
    A("s_cmp_lg_u32 s2, 255"); A("s_cbranch_scc1 L_noep")
    A("s_mov_b64 exec, 1")
    A(f"buffer_store_dword v34, v2, {WS}, 0 offen")
    A("s_mov_b64 exec, -1")
    A("L_noep:")
    A(f"s_mov_b32 s90, {SPIN*8}")
    A("L_mlw:")
    A("ds_read_b128 v[64:67], v13"); A("ds_read_b128 v[68:71], v13 offset:16")
    A("s_waitcnt lgkmcnt(0)")
    A("v_max3_u32 v7, v65, v67, v69"); A("v_max_u32 v7, v7, v71"); A("v_cmp_eq_u32 vcc, -1, v7")
    A("s_cbranch_vccz L_mlw2")
    A("s_sleep 1")
    A("s_sub_u32 s90, s90, 1"); A("s_cbranch_scc0 L_mlw")
    A("L_mlw2:")
    A("v_max3_f32 v36, v64, v66, v68"); A("v_max_f32 v36, v36, v70")
    for i in range(4): A(f"v_sub_f32 v{64+2*i}, v{64+2*i}, v36")
    for i in range(4): A(f"v_mul_f32 v{64+2*i}, {LOG2E:#x}, v{64+2*i}")
    for i in range(4): A(f"v_exp_f32 v{64+2*i}, v{64+2*i}")
    A("v_mul_f32 v37, v64, v65")
    for i in range(1, 4): A(f"v_fmac_f32 v37, v{64+2*i}, v{65+2*i}")
    A("s_mov_b64 exec, 1")
    A(f"buffer_store_dwordx2 v[36:37], v2, {WS}, s85 offen sc1")
    A("s_mov_b64 exec, -1")
    for n in range(1, 7): A(f"s_mov_b32 s{80+n}, {n*40960}")
    stamp(9)
    A("s_barrier")
    for k in range(4): A(f"ds_read_b128 v[{72+4*k}:{75+4*k}], v45 offset:{512*k}")
    for k in range(4):
        A(f"s_waitcnt lgkmcnt({3-k})")
        for hh in (0, 2):
            if k == 0: pk("mul", 32+hh, 72+hh, 64, mod="op_sel_hi:[1,0]")
            else: pk("fma", 32+hh, 72+4*k+hh, 64+2*k, 32+hh, mod="op_sel_hi:[1,0,1]")
    A("s_mov_b32 exec_hi, 0")
    A(f"buffer_store_dwordx4 v[32:35], v2, {WS}, s38 offen sc1")
    A("s_mov_b64 exec, -1")
    stamp(16)
    if "notail" not in exp:
        A("s_cmp_eq_u32 s36, 2"); A("s_cbranch_scc1 L_mlp5")
    fin()

    A("L_stream:")
    stamp(1)
    assert D0 >= W + 2 or ND == 0
    pump(); stamp(2); pump()
    role_decode()
    srd(40, 28, 0x10000000)
    A("s_lshl_b32 s82, s30, 2"); A("s_add_u32 s82, s82, s91"); A(f"s_mul_i32 s82, s82, {128*1280}"); A("s_lshl_b32 s78, s37, 7"); A("s_add_u32 s82, s82, s78")
    A("s_lshl_b32 s78, s37, 2"); A("s_add_u32 s78, s78, s91"); A("s_mul_i32 s78, s78, 10240")
    A("s_lshl_b32 s83, s91, 14"); A("s_mul_i32 s80, s91, 10240")
    A("s_cmp_eq_u32 s36, 1")
    A("s_cselect_b32 s44, s12, s20"); A("s_cselect_b32 s45, s13, s21"); A("s_cselect_b32 s46, 5242880, 0"); A("s_mov_b32 s47, 0x20000")
    A("s_cselect_b32 s82, s82, s78"); A("s_cselect_b32 s83, s83, s80"); A("s_cselect_b32 s87, 10240, 0")
    A("s_cmp_eq_u32 s36, 2"); A("s_cselect_b32 s46, 2211840, s46"); A("s_cselect_b32 s87, 128, s87")
    A("v_and_b32 v7, 1, v1"); A("v_lshlrev_b32 v7, 4, v7"); A("v_mov_b32 v32, 0xffff"); A("v_lshlrev_b32 v7, v7, v32")
    A("v_bfe_u32 v32, v1, 1, 2")
    for r in range(4):
        A(f"v_cmp_eq_u32 vcc, {r}, v32"); A(f"v_cndmask_b32 v{20+r}, 0, v7, vcc")
    A(f"v_lshlrev_b32 v10, 4, v9"); A(f"v_add_u32 v10, {L_Q}, v10")
    A("s_lshl_b32 s78, s91, 3"); A(f"s_add_u32 s78, s78, {L_ML}"); A("v_mov_b32 v11, s78")
    A("v_lshlrev_b32 v12, 5, v9"); A("v_lshl_add_u32 v12, v8, 4, v12"); A("s_lshl_b32 s78, s91, 9"); A(f"s_add_u32 s78, s78, {L_RED}"); A("v_add_u32 v12, s78, v12")
    A("v_lshrrev_b32 v58, 3, v1"); A("v_mul_u32_u24 v58, 1280, v58"); A("v_bfe_u32 v7, v1, 1, 2"); A("v_xor_b32 v7, v7, v8")
    A("v_lshl_add_u32 v58, v7, 5, v58"); A("v_and_b32 v59, 1, v1"); A("v_lshlrev_b32 v59, 4, v59"); A("v_add_u32 v58, v58, v59")
    A("v_and_b32 v7, 1, v7"); A("v_lshl_add_u32 v59, v7, 5, v59"); A("v_lshrrev_b32 v7, 2, v1"); A("v_mul_u32_u24 v7, 3456, v7"); A("v_add_u32 v59, v59, v7")
    A(f"s_mul_i32 s84, s91, {160*3456}"); A("s_lshl_b32 s78, s37, 6"); A("s_add_u32 s84, s84, s78"); A(f"s_sub_u32 s84, s84, {16*3456}")
    if T0:
        srd(48, 12, 5242880); srd(52, 16, 2211840)
        A("s_sub_u32 s78, s31, 18"); A("s_lshl_b32 s78, s78, 2"); A("s_add_u32 s78, s78, s91"); A("s_mul_i32 s78, s78, 46")
        A("v_add_u32 v32, s78, v1"); A("v_mul_u32_u24 v33, 6554, v32"); A("v_lshrrev_b32 v33, 22, v33")
        A("v_mul_u32_u24 v34, 640, v33"); A("v_sub_u32 v34, v32, v34")
        A("s_cmp_ge_u32 s31, 18"); A("s_cselect_b32 s80, 46, 0"); A("v_cmp_gt_u32 s[60:61], s80, v1"); A("v_cmp_gt_u32 vcc, 4, v33"); A("s_and_b64 s[60:61], s[60:61], vcc")
        A(f"v_mov_b32 v35, {OOB}")
        A("v_lshl_add_u32 v36, v33, 3, s30"); A("v_cmp_gt_u32 vcc, 27, v36"); A("s_and_b64 vcc, vcc, s[60:61]")
        A("v_mul_u32_u24 v57, 3456, v34"); A("v_lshl_add_u32 v57, v36, 7, v57"); A("v_cndmask_b32 v57, v35, v57, vcc")
        A("s_mul_i32 s80, s30, 655360")
        if T0 == 'half':
            A("s_add_u32 s80, s80, 81920"); A("v_mul_u32_u24 v56, 163840, v33"); A("v_lshl_add_u32 v56, v34, 7, v56"); A("v_add_u32 v56, s80, v56")
            A("v_cndmask_b32 v56, v35, v56, s[60:61]")
        else:
            A("s_lshl_b32 s78, s31, 2"); A("s_add_u32 s78, s78, s91"); A("s_mul_i32 s78, s78, 5120"); A("s_add_u32 s80, s80, s78")
            A("v_lshl_add_u32 v56, v1, 7, s80"); A("v_cmp_gt_u32 vcc, 40, v1"); A("v_cndmask_b32 v56, v35, v56, vcc")
    while st["waited"] < pos[16 + KQ]:
        pump()
        if st["waited"] == pos[15]: stamp(3)
    stamp(4)
    A("s_barrier")
    Q = 60
    A(f"ds_read_b128 v[{Q}:{Q+3}], v10")
    L_mark = len(L)
    stamp(5)
    A("s_waitcnt lgkmcnt(0)")
    P = 32
    LIM = pos[31] - 1
    for half in range(2):
        for r in range(4):
            for t in range(8*half, 8*half+8):
                A(f"v_dot2_f32_bf16 v{P+t}, v{K0+4*t+r}, v{Q+r}, {'0' if r == 0 else f'v{P+t}'}")
    pump(lim=LIM)
    R = 48
    for t in range(8): A(f"v_add_f32_dpp v{R+t}, v{P+t}, v{P+t} row_mirror row_mask:0xf bank_mask:0x3")
    for t in range(8): A(f"v_add_f32_dpp v{R+t}, v{P+t+8}, v{P+t+8} row_mirror row_mask:0xf bank_mask:0xc")
    for t in range(4): A(f"v_add_f32_dpp v{P+t}, v{R+t}, v{R+t} row_half_mirror row_mask:0xf bank_mask:0x5")
    for t in range(4): A(f"v_add_f32_dpp v{P+t}, v{R+t+4}, v{R+t+4} row_half_mirror row_mask:0xf bank_mask:0xa")
    for t in range(4): A(f"v_add_f32_dpp v{R+t}, v{P+t}, v{P+t} quad_perm:[2,3,0,1] row_mask:0xf bank_mask:0xf")
    A("s_mov_b32 vcc_lo, 0xcccccccc"); A("s_mov_b32 vcc_hi, 0xcccccccc")
    for t in range(2): A(f"v_cndmask_b32 v{P+t}, v{R+t}, v{R+t+2}, vcc")
    for t in range(2): A(f"v_add_f32_dpp v{R+t}, v{P+t}, v{P+t} quad_perm:[1,0,3,2] row_mask:0xf bank_mask:0xf")
    A("s_mov_b32 vcc_lo, 0xaaaaaaaa"); A("s_mov_b32 vcc_hi, 0xaaaaaaaa")
    S = 40
    A(f"v_cndmask_b32 v{S}, v{R}, v{R+1}, vcc")
    bf16r(S, S); A(f"v_mul_f32 v{S}, {F(128**-0.5)}, v{S}"); bf16r(S, S)
    A(f"v_mov_b32 v42, v{S}")
    row_allred("v_max_f32", 42); swap_allred("v_max_f32", 42, 44, 16); swap_allred("v_max_f32", 42, 44, 32)
    A(f"v_sub_f32 v43, v{S}, v42"); A(f"v_mul_f32 v43, {LOG2E:#x}, v43"); A("v_exp_f32 v43, v43")
    A("v_cvt_pk_bf16_f32 v45, v43, v43")
    row_allred("v_add_f32", 43); swap_allred("v_add_f32", 43, 44, 16); swap_allred("v_add_f32", 43, 44, 32)
    A("ds_write_b64 v11, v[42:43]")
    stamp(6)
    pump(lim=LIM)
    done = 0
    for t in range(16):
        for r in range(4): A(f"v_and_b32_dpp v{K0+4*t+r}, v45, v{20+r} row_newbcast:{t} row_mask:0xf bank_mask:0xf")
        if t >= 1 and pos[16 + done] <= st["waited"]:
            mfma(ACC, K0+4*done, V0+4*done, done == 0); done += 1
    if "noqk" in exp:
        L[L_mark:] = [l for l in L[L_mark:] if not l.strip().startswith(("v_dot2", "v_add_f32_dpp", "v_and_b32_dpp", "v_max_f32_dpp", "v_permlane"))]
    stamp(7)
    for t in range(done, 16):
        while st["waited"] < pos[16 + t] - 1: pump()
        wait_for(pos[16 + t]); mfma(ACC, K0+4*t, V0+4*t, t == 0)
        if t < 15: issue_to(pos[16 + t] + 1 + W)
    stamp(8)
    A("s_mov_b32 exec_hi, 0")
    A(f"ds_write_b128 v12, v[{ACC}:{ACC+3}]")
    A("s_mov_b64 exec, -1")
    A("s_waitcnt lgkmcnt(0)"); A("s_barrier")
    assert st["issued"] == len(seq) == NPRE
    if "notail" in exp: A("s_branch L_sfin")
    A("s_cmp_eq_u32 s36, 2"); A("s_cbranch_scc1 L_mlp")
    A("s_cmp_eq_u32 s36, 0"); A("s_cbranch_scc1 L_sfin")
    save = dict(st)

    seq.extend(dma_a(n) for n in range(NDE + NTAIL, 16))
    WOREST = 16 - NDE
    issue_to(pos[31] + 1 + WD)
    A("s_lshl_b32 s78, s30, 2"); A("s_add_u32 s78, s78, s91"); A("s_lshl_b32 s78, s78, 12"); A(f"s_add_u32 s78, s78, {WS_OP}")
    A("v_lshrrev_b32 v10, 5, v1"); A("v_and_b32 v11, 31, v1"); A("v_lshlrev_b32 v12, 11, v10"); A("v_lshl_add_u32 v12, v11, 4, v12"); A("v_add_u32 v12, s78, v12")
    A("s_lshl_b32 s78, s30, 8"); A("s_lshl_b32 s80, s91, 5"); A("s_add_u32 s78, s78, s80"); A(f"s_add_u32 s78, s78, {WS_ML}")
    A("v_and_b32 v7, 3, v1"); A("v_lshlrev_b32 v17, 3, v7"); A("v_lshl_add_u32 v17, v10, 7, v17"); A("v_add_u32 v17, s78, v17")
    ld1 = [(192 + 4*s, f"v12, {WS}, 0 offen offset:{512*s}", 4, (0,)) for s in range(4)] + [(208, f"v17, {WS}, 0 offen", 2, (1,))]
    poll_init(ld1)
    A(f"v_mul_u32_u24 v13, {OBS}, v10"); A("v_lshrrev_b32 v18, 3, v11"); A("v_lshl_add_u32 v13, v18, 6, v13")
    A("v_lshl_add_u32 v13, v7, 4, v13"); A("v_bfe_u32 v7, v1, 2, 1"); A("v_lshl_add_u32 v13, v7, 3, v13")
    A("s_lshl_b32 s78, s91, 8"); A(f"s_add_u32 s78, s78, {L_OB}"); A("v_add_u32 v13, s78, v13")
    A("v_and_b32 v14, 1, v1"); A(f"v_mul_u32_u24 v14, {OBS}, v14"); A("v_lshl_add_u32 v14, v8, 4, v14"); A(f"v_add_u32 v14, {L_OB}, v14")
    traddr1280(15, 1024)
    A("s_lshl_b32 s78, s91, 5"); A("v_xor_b32 v15, s78, v15")
    A("s_mul_i32 s80, s30, 5120"); A("s_lshl_b32 s81, s37, 2"); A("s_add_u32 s81, s81, s91"); A("s_lshl_b32 s81, s81, 7")
    A("s_add_u32 s84, s80, s81"); A(f"s_add_u32 s84, s84, {WS_AP}"); A("v_lshlrev_b32 v16, 3, v9")
    while st["issued"] < len(seq): pump(WD)
    stamp(9)
    poll_first(ld1)
    if WOREST:
        A("s_waitcnt vmcnt(5)"); A("s_barrier")
    stamp(10)
    for ks in range(16):
        for u in range(2): A(f"ds_read_b64_tr_b16 v[{64+4*ks+2*u}:{65+4*ks+2*u}], v15 offset:{(4*ks+2*u)*1024}")
    poll("1", ld1)
    stamp(11)
    A("v_max_f32_dpp v210, v208, v208 quad_perm:[1,0,3,2] row_mask:0xf bank_mask:0xf")
    A("v_max_f32_dpp v210, v210, v210 quad_perm:[2,3,0,1] row_mask:0xf bank_mask:0xf")
    A("v_sub_f32 v208, v208, v210"); A(f"v_mul_f32 v208, {LOG2E:#x}, v208"); A("v_exp_f32 v208, v208")
    A("v_mul_f32 v209, v208, v209")
    for r in range(4): A(f"v_mul_f32_dpp v{212+r}, v208, v{192+r} quad_perm:[0,0,0,0] row_mask:0xf bank_mask:0xf")
    A("v_add_f32_dpp v209, v209, v209 quad_perm:[1,0,3,2] row_mask:0xf bank_mask:0xf")
    for r in range(4): A(f"v_fmac_f32_dpp v{212+r}, v208, v{196+r} quad_perm:[1,1,1,1] row_mask:0xf bank_mask:0xf")
    A("v_add_f32_dpp v209, v209, v209 quad_perm:[2,3,0,1] row_mask:0xf bank_mask:0xf")
    for r in range(4): A(f"v_fmac_f32_dpp v{212+r}, v208, v{200+r} quad_perm:[2,2,2,2] row_mask:0xf bank_mask:0xf")
    A("v_rcp_f32 v210, v209")
    for r in range(4): A(f"v_fmac_f32_dpp v{212+r}, v208, v{204+r} quad_perm:[3,3,3,3] row_mask:0xf bank_mask:0xf")
    pk("mul", 212, 212, 210, mod="op_sel_hi:[1,0]"); pk("mul", 214, 214, 210, mod="op_sel_hi:[1,0]")
    A("v_cvt_pk_bf16_f32 v212, v212, v213"); A("v_cvt_pk_bf16_f32 v213, v214, v215")
    A("ds_write_b64 v13, v[212:213]")
    A("s_waitcnt lgkmcnt(0)"); A("s_barrier")
    for ks in range(16): A(f"ds_read_b128 v[{128+4*ks}:{131+4*ks}], v14 offset:{64*ks}")
    for ks in range(16):
        A(f"s_waitcnt lgkmcnt({15-ks})"); mfma(ACC, 128+4*ks, 64+4*ks, ks == 0)
    A("s_mov_b64 exec, 0xffff")
    A(f"buffer_store_dwordx2 v[{ACC}:{ACC+1}], v16, {WS}, s84 offen sc1")
    stamp(12)
    flush()
    A("L_sfin:")
    fin()

    A("L_mlp:")
    st.update(save); del seq[NPRE:]
    seq.extend(dma_a(n) for n in range(NDE + NTAIL, 20))
    issue_to(pos[31] + 1 + WD)
    A("s_mul_i32 s85, s91, 10"); A("s_mul_i32 s86, s91, 10240")
    def mp():
        if st["issued"] < len(seq): pump(WD)
    A("v_mov_b32 v237, 0"); A("v_and_b32 v11, 31, v1"); A("s_lshl_b32 s78, s37, 5"); A("v_add_lshl_u32 v11, v11, s78, 1")
    A("v_lshrrev_b32 v7, 2, v1"); A("v_lshlrev_b32 v14, 6, v7"); A("v_and_b32 v7, 1, v8"); A("v_lshl_add_u32 v14, v7, 5, v14")
    A("v_and_b32 v7, 3, v1"); A("v_lshl_add_u32 v14, v7, 3, v14"); A("v_add_u32 v14, s86, v14"); A("v_xor_b32 v15, 32, v14")
    mp()
    traddr1280(16, 10240)
    for i in range(10):
        A(f"s_add_u32 s78, s85, {i}"); A("s_and_b32 s80, s78, 3"); A("s_lshl_b32 s80, s80, 5"); A(f"v_xor_b32 v{48+i}, s80, v16")
        A("s_lshr_b32 s78, s78, 2"); A("s_lshl_b32 s78, s78, 10"); A(f"v_add_u32 v{48+i}, s78, v{48+i}")
        if i in (3, 7): mp()
    for i in range(0, 32, 2): A(f"v_mov_b64 v[{160+i}:{161+i}], 0")
    mp()
    A("v_and_b32 v7, 1, v1")
    A(f"v_mul_u32_u24 v19, {YBS}, v7"); A("v_lshl_add_u32 v19, v8, 4, v19"); A("s_mul_i32 s78, s91, 320"); A(f"s_add_u32 s78, s78, {L_YB}"); A("v_add_u32 v19, s78, v19")
    A("v_lshlrev_b32 v22, 7, v7"); A("v_lshl_add_u32 v22, v8, 4, v22"); A("s_lshl_b32 s78, s91, 8"); A(f"s_add_u32 s78, s78, {L_PB}"); A("v_add_u32 v22, s78, v22")
    A("v_lshlrev_b32 v60, 6, v7"); A("v_lshl_add_u32 v60, v8, 4, v60"); A("s_lshl_b32 s78, s91, 7"); A(f"s_add_u32 s78, s78, {L_H1}"); A("v_add_u32 v60, s78, v60")
    A(f"v_lshlrev_b32 v61, 2, v1"); A(f"v_add_u32 v61, {L_PB}, v61")
    A("v_lshrrev_b32 v7, 5, v1"); A("v_lshlrev_b32 v62, 6, v7"); A("v_bfe_u32 v7, v1, 2, 2"); A("v_lshl_add_u32 v62, v7, 4, v62")
    A("v_bfe_u32 v7, v1, 4, 1"); A("v_lshl_add_u32 v62, v7, 3, v62"); A("v_and_b32 v7, 3, v1"); A("v_lshl_add_u32 v62, v7, 1, v62"); A("v_add_u32 v62, s78, v62")
    A("s_mul_i32 s86, s37, 5120"); A("s_mul_i32 s78, s91, 1280"); A("s_add_u32 s86, s86, s78"); A(f"s_add_u32 s86, s86, {WS_MP}")
    A("v_lshl_add_u32 v21, v8, 2, v9"); A("v_lshlrev_b32 v21, 4, v21")
    A(f"v_mov_b32 v38, {F(-2*0.7978845608028654*1.4426950408889634)}"); A(f"v_mov_b32 v39, {F(-2*0.7978845608028654*1.4426950408889634*0.044715)}")
    while st["issued"] < len(seq): pump(WD)
    A("global_load_short_d16_hi v237, v11, s[18:19]")
    stamp(9)
    flush()
    A("L_mlp5:")
    A("v_lshlrev_b32 v10, 2, v0")
    A("global_load_dword v230, v10, s[4:5]"); A("global_load_dword v231, v10, s[4:5] offset:1280")
    A("v_lshlrev_b32 v13, 4, v0"); A(f"v_add_u32 v13, {WS_AP}, v13")
    sofr = [None, 76, 77, 87, 88, 89, 57, 58]
    for p in range(1, 8): A(f"s_mov_b32 s{sofr[p]}, {p*5120}")
    ld2 = [(192 + 4*p, f"v13, {WS}, {f's{sofr[p]}' if p else '0'} offen", 4, (0, 2)) for p in range(8)]
    poll_init(ld2)
    A(f"v_add_u32 v10, {L_HB}, v10")
    A("v_lshrrev_b32 v18, 4, v0"); A("v_lshlrev_b32 v18, 6, v18"); A("v_bfe_u32 v7, v0, 1, 2"); A("v_lshl_add_u32 v18, v7, 4, v18")
    A("v_bfe_u32 v7, v0, 3, 1"); A("v_lshl_add_u32 v18, v7, 3, v18"); A("v_and_b32 v7, 1, v0"); A("v_lshl_add_u32 v18, v7, 2, v18"); A(f"v_add_u32 v18, {L_YB}, v18")
    A("s_lshl_b32 s78, s3, 4"); A(f"s_add_u32 s78, s78, {L_SB}"); A("v_lshl_add_u32 v17, v8, 2, s78"); A(f"v_mov_b32 v23, {L_SB}")
    A(f"v_mov_b32 v24, {F(1/640)}"); A(f"v_mov_b32 v26, {F(1+1e-5)}"); A(f"v_mov_b32 v27, {F(1e-10)}")
    A("s_waitcnt vmcnt(0)")
    poll_first(ld2)
    A("s_barrier")
    stamp(10)
    A("v_lshlrev_b32 v232, 16, v230"); A("v_lshlrev_b32 v233, 16, v231"); A("v_and_b32 v234, 0xffff0000, v230"); A("v_and_b32 v235, 0xffff0000, v231")
    A("s_cmp_eq_u32 s3, 0"); A("s_cbranch_scc1 L_notr")
    for ks in range(5):
        for ct in range(2):
            for u in range(2):
                r = 64 + 8*ks + 4*ct + 2*u
                A(f"ds_read_b64_tr_b16 v[{r}:{r+1}], v{14+ct} offset:{L_W1 + (2*ks+u)*1024}")
    for i in range(10):
        for u in range(2):
            r = 104 + 4*i + 2*u
            A(f"ds_read_b64_tr_b16 v[{r}:{r+1}], v{48+i} offset:{L_W2 + u*20480}")
    A("L_notr:")
    poll("2", ld2)
    stamp(11)
    for i in range(0, 16, 2): pk("add", 192+i, 192+i, 208+i)
    sum4(192)
    def unpack():
        A("v_lshlrev_b32 v192, 16, v196"); A("v_lshlrev_b32 v193, 16, v197"); A("v_and_b32 v194, 0xffff0000, v196"); A("v_and_b32 v195, 0xffff0000, v197")
    A("v_cvt_pk_bf16_f32 v196, v192, v194"); A("v_cvt_pk_bf16_f32 v197, v193, v195"); unpack()
    pk("add", 192, 192, 232); pk("add", 194, 194, 234)
    A("v_cvt_pk_bf16_f32 v196, v192, v194"); A("v_cvt_pk_bf16_f32 v197, v193, v195"); unpack()
    pk("mul", 200, 192, 192); pk("add", 198, 192, 194); pk("fma", 200, 194, 194, 200)
    A("ds_write_b32 v10, v196"); A("ds_write_b32 v10, v197 offset:1280")
    A("v_permlane32_swap_b32 v198, v200"); A("v_permlane32_swap_b32 v199, v201"); pk("add", 198, 198, 200)
    A("v_permlane16_swap_b32 v198, v199"); A("v_add_f32 v198, v198, v199")
    row_allred("v_add_f32", 198)
    A("ds_write_b32 v17, v198")
    A("s_waitcnt lgkmcnt(0)"); A("s_barrier")
    stamp(18)
    for k in range(5): A(f"ds_read_b128 v[{200+4*k}:{203+4*k}], v23 offset:{16*k}")
    A("s_waitcnt lgkmcnt(1)")
    sum4(200)
    A("s_waitcnt lgkmcnt(0)")
    pk("add", 200, 200, 216); pk("add", 202, 202, 218)
    pk("mul", 200, 200, 24, mod="op_sel_hi:[1,0]"); pk("mul", 202, 202, 24, mod="op_sel_hi:[1,0]")
    pk("fma", 202, 200, 200, 202, mod="neg_lo:[1,0,0] neg_hi:[1,0,0]")
    pk("add", 192, 192, 200, mod="neg_lo:[0,1] neg_hi:[0,1]"); pk("add", 194, 194, 200, mod="neg_lo:[0,1] neg_hi:[0,1]")
    A("v_max_f32 v202, 0, v202"); A("v_max_f32 v203, 0, v203")
    A("v_fma_f32 v202, v202, v26, v27"); A("v_fma_f32 v203, v203, v26, v27")
    A("v_rsq_f32 v202, v202"); A("v_rsq_f32 v203, v203")
    pk("mul", 192, 192, 202); pk("mul", 194, 194, 202)
    A("v_cvt_pk_bf16_f32 v196, v192, v194"); A("v_cvt_pk_bf16_f32 v197, v193, v195")
    A("ds_write_b32 v18, v196"); A(f"ds_write_b32 v18, v197 offset:{YBS}")
    A("s_waitcnt lgkmcnt(0)"); A("s_barrier")
    stamp(12)
    A("s_cmp_eq_u32 s3, 0"); A("s_cbranch_scc1 L_final ; nf")
    pend_fin = list(pend)
    for ks in range(5): A(f"ds_read_b128 v[{192+4*ks}:{195+4*ks}], v19 offset:{64*ks}")
    for ks in range(5):
        A(f"s_waitcnt lgkmcnt({4-ks})")
        for ct in range(2): mfma(28+4*ct, 64+8*ks+4*ct, 192+4*ks, ks == 0)
    A("s_mov_b32 exec_lo, 0x00030003"); A("s_mov_b32 exec_hi, 0x00030003")
    A("s_mov_b64 s[60:61], exec")
    A("ds_write_b128 v22, v[28:31]"); A("ds_write_b128 v22, v[32:35] offset:64")
    A("s_mov_b64 exec, -1")
    A("s_waitcnt lgkmcnt(0)"); A("s_barrier")
    stamp(19)
    A("ds_read2st64_b32 v[36:37], v61 offset0:0 offset1:1"); A("ds_read2st64_b32 v[40:41], v61 offset0:2 offset1:3")
    A("s_waitcnt lgkmcnt(0)")
    pk("add", 36, 36, 40); A("v_add_f32 v36, v36, v37")
    bf16r(36, 36); A("v_add_f32 v36, v36, v237"); bf16r(36, 36)
    A("v_mul_f32 v37, v36, v36"); A("v_fma_f32 v37, v37, v39, v38"); A("v_mul_f32 v37, v37, v36"); A("v_exp_f32 v37, v37")
    A("v_add_f32 v37, 1.0, v37"); A("v_rcp_f32 v37, v37"); A("v_mul_f32 v36, v36, v37")
    A("v_cvt_pk_bf16_f32 v36, v36, v36")
    A("ds_write_b16 v62, v36")
    for t in range(8):
        A(f"s_lshl_b64 exec, s[60:61], {2*t}")
        A(f"ds_read_b128 v[{160+4*t}:{163+4*t}], v60")
    A("s_mov_b64 exec, -1")
    for i in [0, 8, 1, 9, 2, 3, 4, 5, 6, 7]:
        t = i & 7
        if i < 8: A(f"s_waitcnt lgkmcnt({7-t})")
        mfma(28 + 4*(i >> 3), 104+4*i, 160+4*t, t == 0)
    A("s_mov_b32 exec_lo, 0x000f000f"); A("s_mov_b32 exec_hi, 0x000f000f")
    A(f"buffer_store_dwordx4 v[32:35], v21, {WS}, s86 offen offset:1024 sc1")
    A("s_mov_b64 exec, -1")
    A(f"buffer_store_dwordx4 v[28:31], v2, {WS}, s86 offen sc1")
    stamp(13)
    fin()

    A("L_final:")
    pend.extend(pend_fin)
    A("ds_read_u16_d16_hi v16, v15")
    ld3 = [(64 + 4*n, f"v{57 if n == 6 else 56}, {WS}, {f's{80+n}' if n else '0'} offen", 4, (0,)) for n in range(7)]
    poll_init(ld3)
    A("s_waitcnt lgkmcnt(0)")
    A("s_barrier")
    A("s_cmp_ge_u32 s37, 40"); A("s_cbranch_scc1 L_fend")
    poll("3", ld3, pre=False)
    stamp(14)
    for hh in (0, 2):
        pk("add", 80+hh, 80+hh, 84+hh); pk("add", 64+hh, 64+hh, 88+hh)
    for hh in (0, 2): pk("add", 68+hh, 68+hh, 80+hh)
    sum4(64)
    A("v_permlane32_swap_b32 v64, v66"); A("v_permlane32_swap_b32 v65, v67"); pk("add", 64, 64, 66)
    A("v_permlane16_swap_b32 v64, v65"); A("v_add_f32 v64, v64, v65")
    A("v_add_f32_dpp v64, v64, v64 row_ror:8 row_mask:0xf bank_mask:0xf")
    bf16r(64, 64); A("v_add_f32 v64, v64, v238"); bf16r(64, 64); A("v_add_f32 v64, v64, v16")
    A("v_cvt_pk_bf16_f32 v64, v64, v64")
    A("buffer_store_short v64, v12, s[52:55], 0 offen")
    stamp(15)
    flush()
    A("L_fend:")
    if diag: fin()
    A("L_end:")
    A("s_endpgm")

    body = fix(L)
    out = [HDR.rstrip("\n"),
           "; One launch, 256 workgroups (one per CU); hand-offs between workgroups go through d_ws.",
           f"; @launch grid=(256,1,1) block=(320,1,1) lds={LDS_BYTES}",
           '.amdgcn_target "amdgcn-amd-amdhsa--gfx950"', ".text", f".globl {NAME}_kernel", ".p2align 8",
           f".type {NAME}_kernel,@function", f"{NAME}_kernel:"] + body + [
           '.section .rodata,"a"', ".p2align 6", f".amdhsa_kernel {NAME}_kernel",
           "  .amdhsa_next_free_vgpr 256", "  .amdhsa_next_free_sgpr 102", "  .amdhsa_accum_offset 256",
           "  .amdhsa_group_segment_fixed_size 0", "  .amdhsa_kernarg_size 104", "  .amdhsa_user_sgpr_count 2",
           "  .amdhsa_user_sgpr_kernarg_segment_ptr 1", "  .amdhsa_system_sgpr_workgroup_id_x 1",
           "  .amdhsa_float_denorm_mode_32 3",
           ".end_amdhsa_kernel"]
    return "\n".join(out) + "\n"

if __name__ == "__main__":
    import argparse
    ap = argparse.ArgumentParser(); ap.add_argument("-o", default=f"cdna_kernels/{NAME}.s"); ap.add_argument("--diag", action="store_true")
    ap.add_argument("--kw", default="")
    a = ap.parse_args()
    open(a.o, "w").write(gen(diag=a.diag, **eval("dict(%s)" % a.kw)))
```

```python
import sys, struct
from hz import fix
NAME = "sequential_preLN__sliding_block_cached__mixer_channel_mlp__decode"
HDR = open("cdna_kernels/%s.s.ref" % NAME).read().split("; Override launch")[0]
def F(x): return "0x%08x" % struct.unpack("<I", struct.pack("<f", x))[0]

WS_FLAGS = 1024; WS_MP = 0x40000; WS_QP = 0x90000; WS_AP = 0x110000; WS_OP = 0x160000
APC = 40960
WS_STAMP = 0x200000
OOB = 0xF0000000
L_WB = 23552
L_W2 = L_WB; L_W1 = L_WB + 40960
L_RED = L_WB + 81920
L_Q = L_RED + 2048
L_ML = L_Q + 256
L_SB = L_ML + 64
L_OB = L_SB + 128
OBS = 1088
L_YB = L_OB + 2 * OBS
YBS = 1344
L_PB = L_YB + 2 * YBS
L_CB = L_PB + 1280
L_H1 = L_CB + 640
L_DUMMY = L_H1 + 512
LDS_BYTES = L_DUMMY + 1024
SPIN = 400000
LOG2E = 0x3FB8AA3B

def gen(diag=False, nt='nt', W=7, wnt='nt', prio=True, KQ=0, depth=0, PT0=10, T1=True, T2=False, tnt='', local=True, probe=None, h3=-1, exp=(), qdelay=None, PRE=None, QKP='kv', W0=2, NR=0, PR=17, RS=1.5, tall=True, tfree=False, NB=16, MB=True, EF=False, IB=True, PT1=None, only=None):
    L = []
    pend = []
    def A(s):
        for l in s.split("\n"):
            l = l.strip()
            if pend and l.startswith(("s_cbranch", "s_branch")) and not l.endswith("; nf"):
                A("s_waitcnt lgkmcnt(0)")
            L.append("    " + l if not l.endswith(":") else l)
            if pend and l.startswith("s_waitcnt") and "lgkmcnt(0)" in l:
                for r, i in pend: L.append(f"    v_writelane_b32 v255, s{r}, {i}")
                pend.clear()
    def stamp(i, clk=False):
        if diag and (only is None or i in only or i >= 59):
            if len(pend) >= 4: A("s_waitcnt lgkmcnt(0)")
            r = 92 + 2 * len(pend)
            A(f"{'s_memtime' if clk else 's_memrealtime'} s[{r}:{r+1}]"); pend.append((r, i))
    def flush():
        if pend: A("s_waitcnt lgkmcnt(0)")
    def bf16r(d, x):
        A(f"v_cvt_pk_bf16_f32 v{d}, v{x}, v{x}"); A(f"v_and_b32 v{d}, 0xffff0000, v{d}")
    def row_allred(op, v):
        for c in ("row_mirror", "row_half_mirror", "quad_perm:[2,3,0,1]", "quad_perm:[1,0,3,2]"):
            A(f"{op}_dpp v{v}, v{v}, v{v} {c} row_mask:0xf bank_mask:0xf")
    def swap_allred(op, v, t, which):
        A(f"v_mov_b32 v{t}, v{v}"); A(f"v_permlane{which}_swap_b32 v{v}, v{t}"); A(f"{op} v{v}, v{v}, v{t}")
    def srd(r, base, size):
        A(f"s_mov_b32 s{r}, s{base}"); A(f"s_mov_b32 s{r+1}, s{base+1}"); A(f"s_mov_b32 s{r+2}, {size}"); A(f"s_mov_b32 s{r+3}, 0x20000")
    def pk(op, d, a, b, c=None, mod=""):
        A(f"v_pk_{op}_f32 v[{d}:{d+1}], v[{a}:{a+1}], v[{b}:{b+1}]" + (f", v[{c}:{c+1}]" if c is not None else "") + (" " + mod if mod else ""))
    def mfma(d, a, b, first):
        A(f"v_mfma_f32_16x16x32_bf16 v[{d}:{d+3}], v[{a}:{a+3}], v[{b}:{b+3}], {'0' if first else f'v[{d}:{d+3}]'}")
    def sum4(b):
        for hh in (0, 2):
            pk("add", b+hh, b+hh, b+4+hh); pk("add", b+8+hh, b+8+hh, b+12+hh)
        for hh in (0, 2): pk("add", b+hh, b+hh, b+8+hh)
    def role_decode():
        A("s_sub_u32 s78, s31, 10"); A("s_lshr_b32 s80, s78, 1"); A("s_lshl_b32 s80, s80, 3"); A("s_add_u32 s80, s80, s30")
        A("s_and_b32 s78, s78, 1"); A("s_lshl_b32 s37, s80, 1"); A("s_add_u32 s37, s37, s78")
        A("s_cmp_lt_u32 s80, 27"); A("s_cselect_b32 s36, 2, 0")
        A("s_cmp_lt_u32 s31, 10"); A("s_cselect_b32 s36, 1, s36"); A("s_cselect_b32 s37, s31, s37")
    WS = "s[40:43]"
    def ldtext(r, a, n=4):
        return f"buffer_load_dwordx{n} v[{r}:{r+n-1}], {a} sc1"
    def poll_init(loads):
        for r, a, n, chk in loads:
            for c in chk: A(f"v_mov_b32 v{r+c}, -1")
    def poll_first(loads):
        for r, a, n, chk in loads: A(ldtext(r, a, n))
    def poll(tag, loads, work, res):
        n = len(loads)
        A(f"s_mov_b32 s90, {SPIN}")
        flush()
        A(f"L_p{tag}:")
        A("s_waitcnt vmcnt(0)")
        work()
        A(f"v_cmp_u_f32 vcc, v{res[0]}, v{res[1]}")
        if len(res) > 2:
            A(f"v_cmp_u_f32 s[60:61], v{res[2]}, v{res[3]}"); A("s_or_b64 vcc, vcc, s[60:61]"); A(f"s_cbranch_scc0 L_pd{tag}")
        else: A(f"s_cbranch_vccz L_pd{tag}")
        for i, (r, a, nd, chk) in enumerate(loads):
            if len(chk) == 1: A(f"v_cmp_eq_u32 s[{60+2*i}:{61+2*i}], -1, v{r+chk[0]}")
            else:
                A(f"v_max_u32 v{6+(i&1)}, v{r+chk[0]}, v{r+chk[1]}"); A(f"v_cmp_eq_u32 s[{60+2*i}:{61+2*i}], -1, v{6+(i&1)}")
        for i, (r, a, nd, chk) in enumerate(loads):
            A(f"s_mov_b64 exec, s[{60+2*i}:{61+2*i}]")
            A(ldtext(r, a, nd))
        A("s_mov_b64 exec, -1")
        A("s_or_b64 vcc, s[60:61], s[62:63]" if n > 1 else "s_or_b64 vcc, s[60:61], s[60:61]")
        for i in range(2, n): A(f"s_or_b64 vcc, vcc, s[{60+2*i}:{61+2*i}]")
        A(f"s_cbranch_scc0 L_pd{tag}")
        A("s_sub_u32 s90, s90, 1"); A(f"s_cbranch_scc0 L_p{tag}")
        A(f"L_pd{tag}:")
    def fin():
        if diag:
            A("s_mov_b64 exec, -1")
            stamp(59); stamp(61, True); A("s_waitcnt lgkmcnt(0)")
            A("s_getreg_b32 s92, hwreg(HW_REG_XCC_ID)"); A("v_writelane_b32 v255, s92, 62")
            A("s_cmp_eq_u32 s3, 0"); A("s_cselect_b32 s92, 3, 0"); A("s_add_u32 s92, s92, s36"); A("v_writelane_b32 v255, s92, 63")
            A("s_mul_i32 s78, s2, 5"); A("s_add_u32 s78, s78, s3"); A("s_lshl_b32 s78, s78, 8"); A(f"s_add_u32 s78, s78, {WS_STAMP}")
            A("v_lshlrev_b32 v7, 2, v1")
            A(f"buffer_store_dword v255, v7, {WS}, s78 offen")
            if probe is not None:
                fin.n = getattr(fin, "n", 0) + 1
                pi, pw = probe
                if pw < 2:
                    A("s_cmp_eq_u32 s3, 0"); A(f"s_cbranch_scc{1 if pw == 1 else 0} L_pe{fin.n}")
                A(f"v_readlane_b32 s78, v255, {pi}"); A("s_nop 4"); A("s_cmp_eq_u32 s78, 0"); A(f"s_cbranch_scc1 L_pe{fin.n}")
                A("s_add_u32 s78, s78, 3000")
                A(f"L_pw{fin.n}:"); A("s_sleep 2"); A("s_memrealtime s[92:93]"); A("s_waitcnt lgkmcnt(0)"); A("s_sub_u32 s92, s92, s78"); A("s_cmp_lt_i32 s92, 0"); A(f"s_cbranch_scc1 L_pw{fin.n}")
                A(f"L_pe{fin.n}:")
        A("s_endpgm")
    def traddr1280(d, blk):
        A("v_bfe_u32 v7, v1, 2, 3"); A(f"v_lshlrev_b32 v{d}, 7, v7"); A("v_lshrrev_b32 v7, 1, v7"); A(f"v_lshl_add_u32 v{d}, v7, 5, v{d}")
        A("v_lshrrev_b32 v7, 5, v1"); A(f"v_mul_u32_u24 v7, {blk}, v7"); A(f"v_add_u32 v{d}, v{d}, v7")
        A("v_and_b32 v7, 3, v1"); A(f"v_lshl_add_u32 v{d}, v7, 3, v{d}")

    K0, V0 = 64, 128
    ACC = 28
    XS, XO, WQ, AO = 228, 238, 64, 144

    L_X = 20480
    if diag: A("s_memrealtime s[100:101]")
    A("s_load_dwordx16 s[4:19], s[0:1], 0"); A("s_load_dwordx2 s[40:41], s[0:1], 96")
    A("s_lshr_b32 s31, s2, 3"); A("s_and_b32 s33, s31, 7")
    A("s_getpc_b64 s[52:53]"); A("L_pc:")
    A("s_cmp_eq_u32 s33, 7"); A("s_cselect_b32 s54, L_end-L_pc, 0"); A("s_mov_b32 s55, 0x20000"); A("v_lshlrev_b32 v22, 7, v0")
    A("buffer_load_dword v4, v22, s[52:55], 0 offen")
    A("v_lshrrev_b32 v7, 6, v0"); A("v_and_b32 v1, 63, v0"); A("s_cmp_ge_u32 s31, 32"); A("v_readfirstlane_b32 s3, v7")
    A("s_cbranch_scc1 L_end ; nf")
    A("s_and_b32 s30, s2, 7"); A("s_lshr_b32 s78, s31, 3"); A("s_lshl2_add_u32 s32, s30, s78")
    A("v_lshlrev_b32 v2, 4, v1"); A("v_lshrrev_b32 v8, 4, v1"); A("v_and_b32 v9, 15, v1")
    A("s_lshr_b32 s34, s33, 2"); A("s_and_b32 s35, s33, 3")
    A("s_cmp_eq_u32 s3, 0"); A("s_cbranch_scc0 L_s0 ; nf")
    A("s_mul_i32 s78, s33, 20"); A("v_mad_u32_u24 v7, v8, 5, s78")
    A("v_lshlrev_b32 v12, 15, v7"); A("v_lshl_add_u32 v12, v9, 4, v12"); A("s_lshl_b32 s78, s32, 8"); A("v_add_u32 v12, s78, v12")
    A("s_movk_i32 s79, 0x2000"); A(f"s_movk_i32 m0, {L_X}")
    A("s_waitcnt lgkmcnt(0)")
    A("global_load_lds_dwordx4 v2, s[4:5]"); A("global_load_lds_dwordx4 v2, s[4:5] offset:1024"); A("global_load_lds_dwordx4 v2, s[4:5] offset:1536")
    A("s_mov_b32 m0, 0")
    A("s_nop 0")
    A("L_wq:")
    A(f"global_load_lds_dwordx4 v12, s[10:11] {nt}")
    A("s_addk_i32 m0, 0x400"); A("v_add_u32 v12, s79, v12"); A(f"s_cmpk_lt_u32 m0, {L_X}"); A("s_cbranch_scc1 L_wq ; nf")
    A("s_branch L_aux ; nf")
    A("L_s0:")
    A("s_lshl_b32 s78, s34, 5"); A("s_add_u32 s78, s78, s32"); A("s_lshl_b32 s78, s78, 6"); A("s_lshl2_add_u32 s80, s35, s3"); A("s_add_u32 s78, s78, s80")
    A("s_add_u32 s78, s78, 47"); A("s_lshl_b32 s78, s78, 14"); A("s_addk_i32 s78, 0x1000")
    A("v_add_u32 v17, s78, v2")
    A("L_s1:")
    def common2():
        A("s_load_dwordx8 s[20:27], s[0:1], 64")
        if diag:
            A("v_mov_b32 v255, 0"); pend.append((100, 0)); stamp(60, True)
        role_decode()
        A("s_mov_b32 s42, 0x10000000"); A("s_mov_b32 s43, 0x20000")
    def ldKV(base, ptr, t):
        return lambda: A(f"global_load_dwordx4 v[{base+4*t}:{base+4*t+3}], v{17 + t//8}, {ptr} offset:{(t%8)*1024-4096} {nt}")
    def dma_a(n):
        def f():
            if n == 10:
                A("s_cmp_eq_u32 s36, 2"); A("s_cselect_b32 s46, 0, s46"); A(f"s_cselect_b32 s78, {40960 - 10240}, 0"); A("s_add_u32 s83, s83, s78")
            A(f"s_add_u32 m0, s83, {n*1024}")
            if n: A("s_add_u32 s82, s82, s87")
            A(f"buffer_load_dwordx4 v58, s[44:47], s82 offen {wnt} lds")
        return f
    kv = [ldKV(K0, "s[6:7]", t) for t in range(16)] + [ldKV(V0, "s[8:9]", t) for t in range(16)]
    seq = []; pos = []; free = set(); nr = 0
    for i, f in enumerate(kv):
        if PT0 == i:
            if tfree or not tall: free.add(len(seq))
            seq.append(lambda: A(f"buffer_load_dword v4, v56, s[48:51], 0 offen {tnt}"))
        if PT0 + 3 == i and not tall:
            free.add(len(seq)); seq.append(lambda: A(f"buffer_load_dword v5, v56, s[48:51], s79 offen {tnt}"))
        while nr < NR and PR + nr * RS <= i:
            free.add(len(seq)); seq.append(dma_a(nr)); nr += 1
        pos.append(len(seq)); seq.append(f)
    assert nr == NR
    if PT1:
        free.add(len(seq)); seq.append(lambda: A(f"buffer_load_dword v6, v57, s[52:55], 0 offen {tnt}"))
    PRE = min(W - 1, 16 - NR)
    seq.extend(dma_a(n) for n in range(NR, NR + PRE))
    st = dict(issued=0, waited=-1)
    def issue_to(n):
        inflight = lambda: sum(1 for i in range(n - W, st["issued"]) if i not in free)
        while st["issued"] < len(seq) and (st["issued"] < n or inflight() < W and n >= W):
            seq[st["issued"]](); st["issued"] += 1
    def wait_for(k):
        if k > st["waited"]:
            A(f"s_waitcnt vmcnt({st['issued'] - k - 1})"); st["waited"] = k
    def pump(lim=None):
        k = st["waited"] + 1
        while k in free: k += 1
        if lim is not None and k > lim: return
        wait_for(k); issue_to(k + 1 + W)
    A("s_waitcnt lgkmcnt(0)")
    assert W <= 8
    issue_to(W0)
    A("v_mov_b64 v[24:25], -1"); A("v_mov_b64 v[26:27], -1")
    A("s_cmp_eq_u32 s3, 2"); A("s_cbranch_scc0 L_s4 ; nf")
    A(f"v_add_u32 v13, {L_RED}, v2")
    A("ds_write_b128 v13, v[24:27]"); A("ds_write_b128 v13, v[24:27] offset:1024"); A("s_mov_b64 exec, 0x3ffff")
    A("ds_write_b128 v13, v[24:27] offset:2048")
    A("s_mov_b64 exec, -1"); A("s_waitcnt lgkmcnt(0)")
    A("L_s4:")
    A("s_load_dword s56, s[40:41], 0")
    common2()
    A(f"s_cmp_eq_u32 s3, {9 if 'noclear' in exp else 1}"); A("s_cbranch_scc0 L_s2 ; nf")
    def slots():
        A("s_lshl_b32 s39, s32, 3"); A("s_add_u32 s39, s39, s33")
        A("s_lshl_b32 s38, s39, 10"); A(f"s_add_u32 s38, s38, {WS_OP}")
    slots()
    A("s_mul_i32 s80, s30, 5120"); A("s_lshl_b32 s81, s37, 9"); A("s_add_u32 s80, s80, s81"); A(f"s_add_u32 s80, s80, {WS_AP}")
    A("s_mul_i32 s81, s37, 5120"); A(f"s_add_u32 s81, s81, {WS_MP}")
    A("s_cmp_eq_u32 s36, 2"); A(f"s_cselect_b32 s81, s81, {OOB}"); A("s_add_u32 s82, s81, 4096")
    A("s_cmp_eq_u32 s36, 1"); A("s_cselect_b32 s81, s80, s81"); A(f"s_cselect_b32 s83, {APC - 512}, 0"); A(f"s_cselect_b32 s80, {2*APC - 1024}, 0"); A("s_addk_i32 s80, 0x400")
    A("v_lshrrev_b32 v7, 5, v1"); A("v_mad_u32_u24 v14, v7, s83, v2")
    A("s_mov_b32 exec_hi, 0")
    A(f"buffer_store_dwordx4 v[24:27], v2, {WS}, s38 offen sc1")
    A("s_mov_b64 exec, -1")
    A(f"buffer_store_dwordx4 v[24:27], v2, {WS}, s82 offen sc1")
    for k in range(4):
        A(f"buffer_store_dwordx4 v[24:27], v14, {WS}, s81 offen sc1")
        if k < 3: A("s_add_u32 s81, s81, s80")
    keep = list(pend); pend.clear()
    A("L_s2:")
    A("s_barrier")
    issue_to(W)
    A("s_branch L_stream ; nf")

    A("L_aux:")
    A("s_barrier")
    if prio: A("s_setprio 3")
    A("v_bfe_u32 v11, v1, 3, 1"); A("v_mul_u32_u24 v11, 1280, v11"); A("v_lshl_add_u32 v11, v7, 3, v11")
    common2()
    stamp(1)
    A("v_lshrrev_b32 v40, 5, v1"); A("v_mul_u32_u24 v10, 1280, v40"); A("v_and_b32 v41, 31, v1"); A("v_mad_u32_u24 v10, v41, 40, v10")
    slots()
    A("v_and_b32 v7, 1, v1"); A("v_cmp_eq_u32 vcc, 1, v7"); A("v_bfe_u32 v7, v1, 1, 2")
    A("v_mov_b32 v28, 0x0c0c0100"); A("v_mov_b32 v29, 0x01000c0c"); A("v_cndmask_b32 v28, v28, v29, vcc")
    A("v_mov_b32 v29, 0x0c0c0302"); A("v_mov_b32 v30, 0x03020c0c"); A("v_cndmask_b32 v29, v29, v30, vcc")
    A("v_mov_b32 v30, 0x0c0c0c0c")
    for r in range(4):
        A(f"v_cmp_eq_u32 vcc, {r}, v7"); A(f"v_cndmask_b32 v{14+r}, v30, v28, vcc"); A(f"v_cndmask_b32 v{18+r}, v30, v29, vcc")
    A(f"v_mov_b32 v13, {L_ML}"); A(f"v_mov_b32 v23, {OOB}")
    A("s_waitcnt vmcnt(20)")
    for base, a in ((XS, 10), (XO, 11)):
        A(f"ds_read_b64 v[{base}:{base+1}], v{a} offset:{L_X}"); A(f"ds_read_b64 v[{base+2}:{base+3}], v{a} offset:{L_X+8}")
        A(f"ds_read_b64 v[{base+4}:{base+5}], v{a} offset:{L_X+16}"); A(f"ds_read_b64 v[{base+6}:{base+7}], v{a} offset:{L_X+24}")
        A(f"ds_read_b64 v[{base+8}:{base+9}], v{a} offset:{L_X+32}")
    stamp(2)
    A("s_waitcnt lgkmcnt(0)")
    A("s_load_dword s56, s[40:41], 0")
    X, mean, tmp = 192, 52, 56
    for i in range(10):
        A(f"v_lshlrev_b32 v{X+2*i}, 16, v{XS+i}"); A(f"v_and_b32 v{X+2*i+1}, 0xffff0000, v{XS+i}")
    pk("add", tmp, X, X+2); pk("add", tmp+2, X+4, X+6)
    for i in range(4, 10): pk("add", tmp+2*(i&1), tmp+2*(i&1), X+2*i)
    pk("add", tmp, tmp, tmp+2); A(f"v_add_f32 v{mean}, v{tmp}, v{tmp+1}")
    row_allred("v_add_f32", mean); swap_allred("v_add_f32", mean, tmp, 16)
    A(f"v_mul_f32 v{mean}, {F(1/640)}, v{mean}")
    for i in range(10): pk("add", X+2*i, X+2*i, mean, mod="op_sel_hi:[1,0] neg_lo:[0,1] neg_hi:[0,1]")
    for i in range(10):
        t = tmp + 2*(i&1)
        if i < 2: pk("mul", t, X+2*i, X+2*i)
        else: pk("fma", t, X+2*i, X+2*i, t)
    pk("add", tmp, tmp, tmp+2)
    va = mean + 2
    A(f"v_add_f32 v{va}, v{tmp}, v{tmp+1}")
    row_allred("v_add_f32", va); swap_allred("v_add_f32", va, tmp, 16)
    A(f"v_mul_f32 v{va}, {F(1/640)}, v{va}")
    bf16r(mean, mean); bf16r(va, va)
    A(f"v_add_f32 v{va}, {F(1e-5)}, v{va}"); bf16r(va, va)
    A(f"v_sqrt_f32 v{va}, v{va}"); bf16r(va, va)
    A(f"v_rcp_f32 v{va}, v{va}")
    A("v_mov_b32 v53, v52"); A("v_mov_b32 v55, v54")
    for i in range(10):
        A(f"v_lshlrev_b32 v{X+2*i}, 16, v{XO+i}"); A(f"v_and_b32 v{X+2*i+1}, 0xffff0000, v{XO+i}")
    A("v_permlane32_swap_b32 v52, v53"); A("v_permlane32_swap_b32 v54, v55")
    A("s_mov_b32 vcc_lo, 0xff00ff00"); A("s_mov_b32 vcc_hi, 0xff00ff00")
    A("v_cndmask_b32 v52, v52, v53, vcc"); A("v_cndmask_b32 v54, v54, v55, vcc")
    for i in range(10): pk("add", X+2*i, X+2*i, mean, mod="op_sel_hi:[1,0] neg_lo:[0,1] neg_hi:[0,1]")
    for i in range(10): A(f"v_cvt_pk_bf16_f32 v{XO+i}, v{X+2*i}, v{X+2*i+1}")
    for i in range(10):
        A(f"v_lshlrev_b32 v{X+2*i}, 16, v{XO+i}"); A(f"v_and_b32 v{X+2*i+1}, 0xffff0000, v{XO+i}")
    for i in range(10): pk("mul", X+2*i, X+2*i, va, mod="op_sel_hi:[1,0]")
    for i in range(10): A(f"v_cvt_pk_bf16_f32 v{XO+i}, v{X+2*i}, v{X+2*i+1}")
    stamp(3)
    for t in range(22):
        if t < 20:
            A(f"s_waitcnt vmcnt({19-t})"); A(f"ds_read_b128 v[{WQ+4*t}:{WQ+4*t+3}], v2 offset:{1024*t}")
            for r in range(4): A(f"v_perm_b32 v{AO+4*t+r}, v{XO+t//2}, v{XO+t//2}, v{14+4*(t&1)+r}")
        if t > 1:
            A(f"s_waitcnt lgkmcnt({min(2, 21-t)})"); mfma(ACC, AO+4*(t-2), WQ+4*(t-2), t == 2)
    A("s_add_u32 s56, s56, 0x01010101")
    A("s_lshl_b32 s39, s39, 11"); A(f"s_add_u32 s39, s39, {WS_QP}")
    A("v_mov_b32 v34, s56"); A("v_mov_b32 v35, s56"); A("v_mov_b32 v38, s56"); A("v_mov_b32 v39, s56")
    A("v_mov_b64 v[32:33], v[28:29]"); A("v_mov_b64 v[36:37], v[30:31]")
    if "noqst" not in exp:
        A(f"buffer_store_dwordx4 v[32:35], v2, {WS}, s39 offen {'' if 'qplain' in exp else 'sc1'}")
        A(f"buffer_store_dwordx4 v[36:39], v2, {WS}, s39 offen offset:1024 {'' if 'qplain' in exp else 'sc1'}")
    stamp(4)
    A("s_getreg_b32 s57, hwreg(HW_REG_XCC_ID, 0, 4)"); A("s_xor_b32 s57, s57, s56")
    A("s_lshl_b32 s78, s32, 14"); A("s_lshl_b32 s80, s34, 9"); A("s_add_u32 s78, s78, s80"); A(f"s_add_u32 s78, s78, {WS_QP}")
    A("v_lshlrev_b32 v42, 10, v40"); A("v_lshl_add_u32 v42, v41, 4, v42"); A("v_add_u32 v42, s78, v42")
    for k in range(1, 4): A(f"s_movk_i32 s{80+k}, {4096*k}")
    A("v_lshlrev_b32 v43, 4, v9"); A("v_and_b32 v7, 1, v8"); A("v_lshl_add_u32 v43, v7, 3, v43"); A("v_lshl_add_u32 v43, v40, 2, v43"); A(f"v_add_u32 v43, {L_Q}, v43")
    A("v_lshlrev_b32 v45, 4, v41"); A(f"v_add_u32 v45, {L_RED}, v45")
    A("s_lshl_b32 s78, s30, 3"); A("s_lshl_b64 s[76:77], 0xff, s78")
    A("s_cmp_eq_u32 s36, 2"); A("s_cselect_b64 s[58:59], -1, s[76:77]")
    if qdelay is None: A("s_waitcnt vmcnt(0)")
    elif qdelay: A(f"s_sleep {qdelay}")
    stamp(5)
    A(f"s_mov_b32 s90, {SPIN}")
    flush()
    if "noqld" in exp: A("s_branch L_qok")
    A("L_qpoll:")
    for jj in range(8):
        A(f"buffer_load_dwordx4 v[{64+4*jj}:{67+4*jj}], v42, {WS}, {f's{80+jj//2}' if jj//2 else '0'} offen offset:{2048*(jj&1)} sc1")
    A("s_waitcnt vmcnt(0)")
    A("v_xor_b32 v7, s56, v66")
    for i in range(1, 16): A(f"v_bitop3_b32 v7, v7, v{66 + 4*(i//2) + (i&1)}, s56 bitop3:0xf6")
    A("v_cmp_ne_u32 vcc, 0, v7")
    A("s_cbranch_vccz L_qok")
    A("s_sub_u32 s90, s90, 1"); A("s_cbranch_scc0 L_qpoll")
    A("L_qok:")
    if "noflag" in exp:
        A("s_mov_b64 s[76:77], 0")
    A("s_mov_b64 exec, s[58:59]" if EF else "s_mov_b64 exec, s[76:77]")
    A(f"buffer_load_dwordx4 v[48:51], v2, {WS}, 0 offen offset:{WS_FLAGS} sc1")
    A("s_mov_b64 exec, -1")
    for i in range(4): pk("add", 64+8*i, 64+8*i, 68+8*i)
    pk("add", 64, 64, 72); pk("add", 80, 80, 88); pk("add", 64, 64, 80)
    A("v_cvt_pk_bf16_f32 v64, v64, v65")
    A("ds_write_b32 v43, v64")
    stamp(6)
    def mlp5_setup():
        A("v_lshlrev_b32 v224, 2, v0")
        A(f"s_mul_i32 s78, s30, {APC}"); A(f"s_add_u32 s78, s78, {WS_AP}"); A("v_lshl_add_u32 v225, v0, 4, s78")
        A("v_lshrrev_b32 v226, 4, v0"); A("v_lshlrev_b32 v226, 6, v226"); A("v_bfe_u32 v7, v0, 1, 2"); A("v_lshl_add_u32 v226, v7, 4, v226")
        A("v_bfe_u32 v7, v0, 3, 1"); A("v_lshl_add_u32 v226, v7, 3, v226"); A("v_and_b32 v7, 1, v0"); A("v_lshl_add_u32 v226, v7, 2, v226"); A(f"v_add_u32 v226, {L_YB}, v226")
        A(f"v_mul_u32_u24 v227, {YBS}, v7"); A("v_lshl_add_u32 v227, v8, 4, v227"); A("s_lshl_b32 s78, s3, 8"); A("v_add_u32 v227, s78, v227")
        A("v_lshlrev_b32 v228, 7, v7"); A("v_lshl_add_u32 v228, v8, 4, v228"); A("v_add_u32 v228, s78, v228")
        A(f"v_add_u32 v227, {L_YB}, v227"); A(f"v_add_u32 v228, {L_PB}, v228")
        A("s_lshl_b32 s78, s3, 7"); A(f"s_add_u32 s78, s78, {L_CB}"); A("v_lshl_add_u32 v229, v8, 4, s78")
        A("v_and_b32 v7, 1, v8"); A("v_mul_u32_u24 v230, 48, v7"); A("v_lshrrev_b32 v7, 1, v8"); A("v_lshl_add_u32 v230, v7, 2, v230")
        A("s_lshl_b32 s78, s3, 3"); A(f"s_add_u32 s78, s78, {L_SB}"); A("v_add_u32 v230, s78, v230")
        A("v_lshrrev_b32 v7, 2, v1"); A("v_lshlrev_b32 v231, 6, v7"); A("v_and_b32 v7, 1, v8"); A("v_lshl_add_u32 v231, v7, 5, v231")
        A("v_and_b32 v7, 3, v1"); A("v_lshl_add_u32 v231, v7, 3, v231"); A("s_lshl_b32 s78, s3, 13"); A(f"s_add_u32 s78, s78, {L_W1}"); A("v_add_u32 v231, s78, v231"); A("v_xor_b32 v232, 32, v231")
    for r in (224, 225, 246, 56, 57): A(f"v_mov_b32 v{r}, 0")
    A("s_cmp_eq_u32 s36, 2"); A("s_cbranch_scc0 L_nofin")
    mlp5_setup()
    A("s_min_u32 s85, s37, 39")
    A("s_mul_i32 s78, s85, 52"); A("s_lshr_b32 s78, s78, 9")
    A("s_mul_i32 s80, s78, 10"); A("s_sub_u32 s80, s85, s80")
    A("s_mul_i32 s78, s78, 160")
    A("s_and_b32 s81, s80, 1"); A("s_lshl_b32 s82, s81, 6"); A("s_lshr_b32 s83, s80, 1"); A("s_lshl_b32 s83, s83, 2"); A("s_add_u32 s82, s82, s83")
    A("s_lshl_b32 s81, s81, 3"); A("s_add_u32 s81, s81, 128")
    A("v_bfe_u32 v7, v1, 1, 2"); A("v_lshlrev_b32 v12, 4, v7")
    A("v_bfe_u32 v7, v1, 1, 1"); A("v_lshlrev_b32 v15, 4, v7"); A("v_bfe_u32 v7, v1, 2, 1"); A("v_lshl_add_u32 v15, v7, 2, v15")
    A("s_cmp_lt_u32 s80, 8"); A("s_cselect_b32 s82, s82, s81"); A("s_cselect_b64 vcc, -1, 0"); A("s_add_u32 s78, s78, s82")
    A("v_cndmask_b32 v12, v15, v12, vcc"); A("v_add3_u32 v14, v12, v8, s78"); A("v_lshlrev_b32 v12, 1, v14")
    A("v_mov_b32 v17, 0"); A("v_mov_b32 v16, 0")
    A("global_load_short_d16_hi v17, v12, s[22:23]")
    A("v_and_b32 v7, 1, v1"); A(f"v_mul_u32_u24 v15, {YBS}, v7"); A("v_mul_u32_u24 v7, 1280, v7"); A("v_add_u32 v12, v12, v7")
    A("v_lshrrev_b32 v7, 5, v14"); A("v_lshl_add_u32 v15, v7, 6, v15"); A("v_bfe_u32 v7, v14, 2, 2"); A("v_lshl_add_u32 v15, v7, 4, v15")
    A("v_bfe_u32 v7, v14, 4, 1"); A("v_lshl_add_u32 v15, v7, 3, v15"); A("v_and_b32 v7, 3, v14"); A("v_lshl_add_u32 v15, v7, 1, v15"); A(f"v_add_u32 v15, {L_YB}, v15")
    A("v_bfe_u32 v7, v1, 3, 1"); A("v_cmp_eq_u32 vcc, 0, v7"); A("v_cndmask_b32 v12, v23, v12, vcc")
    A("v_lshrrev_b32 v7, 3, v1"); A("v_mul_u32_u24 v56, 5120, v7"); A("v_and_b32 v57, 7, v1"); A("v_lshl_add_u32 v56, v57, 4, v56")
    A("s_lshl_b32 s78, s85, 7"); A(f"s_add_u32 s78, s78, {WS_MP}"); A("v_add_u32 v56, s78, v56")
    A("v_cmp_gt_u32 vcc, 6, v7"); A("v_cndmask_b32 v57, v23, v56, vcc")
    for n in range(1, 7): A(f"s_mov_b32 s{80+n}, {n*40960}")
    A("L_nofin:")
    stamp(7)
    A("s_waitcnt vmcnt(0)")
    A("v_xor_b32 v7, s57, v48")
    for i in range(1, 4): A(f"v_bitop3_b32 v7, v7, v{48+i}, s57 bitop3:0xf6")
    A("v_cmp_ne_u32 vcc, 0, v7"); A("s_and_b64 vcc, vcc, s[76:77]")
    if not local: A("s_cmp_eq_u32 0, 0")
    A("s_cselect_b32 s76, 0, -1"); A("s_cselect_b32 s77, -1, 0")
    stamp(8)
    flush()
    A(f"s_mov_b32 s90, {SPIN*8}")
    A("L_mlw:")
    A("ds_read_b128 v[64:67], v13"); A("ds_read_b128 v[68:71], v13 offset:16")
    A("s_waitcnt lgkmcnt(0)")
    A("v_max3_u32 v7, v65, v67, v69"); A("v_max_u32 v7, v7, v71"); A("v_cmp_eq_u32 vcc, -1, v7")
    A("s_cbranch_vccz L_mlw2")
    A("s_sleep 1")
    A("s_sub_u32 s90, s90, 1"); A("s_cbranch_scc0 L_mlw")
    A("L_mlw2:")
    A("v_max3_f32 v36, v64, v66, v68"); A("v_max_f32 v36, v36, v70")
    for i in range(4): A(f"v_sub_f32 v{64+2*i}, v{64+2*i}, v36")
    for i in range(4): A(f"v_mul_f32 v{64+2*i}, {LOG2E:#x}, v{64+2*i}")
    for i in range(4): A(f"v_exp_f32 v{64+2*i}, v{64+2*i}")
    A("v_mul_f32 v37, v64, v65")
    for i in range(1, 4): A(f"v_fmac_f32 v37, v{64+2*i}, v{65+2*i}")
    A("s_mov_b32 exec_hi, 0")
    A("s_and_b32 exec_lo, s76, 0xff")
    A(f"buffer_store_dwordx4 v[36:39], v2, {WS}, s38 offen offset:512")
    A("s_and_b32 exec_lo, s77, 0xff")
    A(f"buffer_store_dwordx4 v[36:39], v2, {WS}, s38 offen offset:512 sc1")
    A("s_mov_b32 exec_lo, -1")
    stamp(9)
    A(f"s_mov_b32 s90, {SPIN*8}")
    flush()
    A("L_ow:")
    for k in range(4): A(f"ds_read_b128 v[{72+4*k}:{75+4*k}], v45 offset:{512*k}")
    for k in range(4):
        A(f"s_waitcnt lgkmcnt({3-k})")
        for hh in (0, 2):
            if k == 0: pk("mul", 32+hh, 72+hh, 64, mod="op_sel_hi:[1,0]")
            else: pk("fma", 32+hh, 72+4*k+hh, 64+2*k, 32+hh, mod="op_sel_hi:[1,0,1]")
    A("v_cmp_u_f32 vcc, v32, v34"); A("s_cbranch_vccz L_ow2")
    A("v_max3_u32 v7, v72, v76, v80"); A("v_max_u32 v7, v7, v84"); A("v_cmp_eq_u32 vcc, -1, v7"); A("s_cbranch_vccz L_ow2")
    A("s_sub_u32 s90, s90, 1"); A("s_cbranch_scc0 L_ow")
    A("L_ow2:")
    A("s_mov_b32 exec_lo, s76")
    A(f"buffer_store_dwordx4 v[32:35], v2, {WS}, s38 offen")
    A("s_mov_b32 exec_lo, s77")
    A(f"buffer_store_dwordx4 v[32:35], v2, {WS}, s38 offen sc1")
    A("s_mov_b64 exec, -1")
    if "notail" not in exp:
        A("s_cmp_eq_u32 s36, 2"); A("s_cbranch_scc1 L_fl ; nf")
    stamp(16)
    fin()
    A("L_fl:")
    if not EF:
        if MB: A("s_barrier")
        A(f"buffer_load_dwordx4 v[48:51], v2, {WS}, 0 offen offset:{WS_FLAGS} sc1")
        A("s_waitcnt vmcnt(0)")
    stamp(16)
    A(f"s_mov_b32 s90, {SPIN}")
    flush()
    A("L_fchk:")
    A("v_xor_b32 v7, s56, v48")
    for i in range(1, 4): A(f"v_bitop3_b32 v7, v7, v{48+i}, s56 bitop3:0xf6")
    A("v_cmp_lt_u32 vcc, 15, v7")
    A("s_cbranch_vccz L_fok")
    A(f"buffer_load_dwordx4 v[48:51], v2, {WS}, 0 offen offset:{WS_FLAGS} sc1")
    A("s_waitcnt vmcnt(0)")
    A("s_sub_u32 s90, s90, 1"); A("s_cbranch_scc0 L_fchk")
    A("L_fok:")
    if EF:
        A("s_barrier")
        A("s_barrier")
    A("s_branch L_mlp5")

    A("L_stream:")
    pend.extend(keep)
    stamp(1)
    A("s_sub_u32 s91, s3, 1"); A("v_add_u32 v18, 8192, v17")
    A("s_waitcnt lgkmcnt(0)")
    A("s_add_u32 s56, s56, 0x01010101"); A("s_getreg_b32 s57, hwreg(HW_REG_XCC_ID, 0, 4)"); A("s_xor_b32 s57, s57, s56")
    A("s_lshl_b32 s82, s30, 2"); A("s_add_u32 s82, s82, s91"); A(f"s_mul_i32 s82, s82, {128*1280}"); A("s_lshl_b32 s78, s37, 7"); A("s_add_u32 s82, s82, s78")
    A("s_lshl_b32 s78, s37, 2"); A("s_add_u32 s78, s78, s91"); A("s_mul_i32 s78, s78, 10240")
    A("s_lshl_b32 s83, s91, 14"); A("s_mul_i32 s80, s91, 10240"); A(f"s_add_u32 s88, s80, {L_W1}")
    A("s_cmp_eq_u32 s36, 1")
    A("s_cselect_b32 s44, s12, s20"); A("s_cselect_b32 s45, s13, s21"); A("s_cselect_b32 s46, 5242880, 0"); A("s_mov_b32 s47, 0x20000")
    A("s_cselect_b32 s82, s82, s78"); A("s_cselect_b32 s83, s83, s80"); A("s_cselect_b32 s87, 10240, 0")
    A("s_cmp_eq_u32 s36, 2"); A("s_cselect_b32 s46, 2211840, s46"); A("s_cselect_b32 s87, 128, s87"); A(f"s_addk_i32 s83, {L_WB}")
    srd(48, 12, 5242880); srd(52, 16, 2211840)
    A(f"v_mov_b32 v19, {OOB}")
    A("s_sub_u32 s78, s31, 18"); A("s_lshl2_add_u32 s78, s78, s91"); A("s_mul_i32 s78, s78, 46")
    A("v_add_u32 v32, s78, v1"); A("v_mul_u32_u24 v33, 6554, v32"); A("v_lshrrev_b32 v33, 22, v33")
    A("v_mul_u32_u24 v34, 640, v33"); A("v_sub_u32 v34, v32, v34")
    A("s_cmp_ge_u32 s31, 18"); A("s_cselect_b32 s80, 46, 0"); A("v_cmp_gt_u32 s[60:61], s80, v1")
    A("v_cmp_gt_u32 vcc, 4, v33"); A("s_and_b64 s[60:61], s[60:61], vcc")
    A("s_mul_i32 s80, s30, 655360")
    if tall:
        A("s_mul_i32 s80, s32, 163840"); A("s_lshl2_add_u32 s78, s33, s91"); A(f"s_mul_i32 s78, s78, {320*NB}"); A("s_add_u32 s80, s80, s78")
        if NB < 16: A(f"s_add_u32 s80, s80, {(16-NB)*10240}")
        A("v_lshl_add_u32 v56, v1, 7, s80"); A(f"v_cmp_gt_u32 vcc, {5*NB//2}, v1"); A("v_cndmask_b32 v56, v19, v56, vcc")
    else:
        A("v_lshl_add_u32 v56, v32, 7, s80"); A("v_cndmask_b32 v56, v19, v56, s[60:61]"); A("s_mov_b32 s79, 327680")
    A("v_lshl_add_u32 v36, v33, 3, s30"); A("v_cmp_gt_u32 vcc, 27, v36"); A("s_and_b64 vcc, vcc, s[60:61]")
    A("v_mul_u32_u24 v57, 3456, v34"); A("v_lshl_add_u32 v57, v36, 7, v57"); A("v_cndmask_b32 v57, v19, v57, vcc")
    if T2:
        A("v_mul_u32_u24 v252, 81920, v36"); A("v_lshl_add_u32 v252, v34, 7, v252"); A("v_cndmask_b32 v252, v19, v252, vcc")
    A("v_and_b32 v7, 1, v1"); A("v_lshlrev_b32 v7, 4, v7"); A("v_mov_b32 v32, 0xffff"); A("v_lshlrev_b32 v7, v7, v32")
    A("v_bfe_u32 v32, v1, 1, 2")
    for r in range(4):
        A(f"v_cmp_eq_u32 vcc, {r}, v32"); A(f"v_cndmask_b32 v{20+r}, 0, v7, vcc")
    A(f"v_lshlrev_b32 v10, 4, v9"); A(f"v_add_u32 v10, {L_Q}, v10")
    A("s_lshl_b32 s78, s91, 3"); A(f"s_add_u32 s78, s78, {L_ML}"); A("v_mov_b32 v11, s78")
    A("v_lshlrev_b32 v12, 5, v9"); A("v_lshl_add_u32 v12, v8, 4, v12"); A("s_lshl_b32 s78, s91, 9"); A(f"s_add_u32 s78, s78, {L_RED}"); A("v_add_u32 v12, s78, v12")
    A("v_lshrrev_b32 v58, 3, v1"); A("v_mul_u32_u24 v58, 1280, v58"); A("v_bfe_u32 v7, v1, 1, 2"); A("v_xor_b32 v7, v7, v8")
    A("v_lshl_add_u32 v58, v7, 5, v58"); A("v_and_b32 v59, 1, v1"); A("v_lshlrev_b32 v59, 4, v59"); A("v_add_u32 v58, v58, v59")
    A("v_and_b32 v7, 1, v7"); A("v_lshl_add_u32 v59, v7, 5, v59"); A("v_lshrrev_b32 v7, 2, v1"); A("v_mul_u32_u24 v7, 3456, v7"); A("v_add_u32 v59, v59, v7")
    pump(); stamp(2); pump()
    ld1 = [(192 + 4*s, f"v224, {WS}, 0 offen offset:{1024*s}", 4, (0,)) for s in range(4)]
    for r in (14, 224, 225, 229, 246): A(f"v_mov_b32 v{r}, 0")
    if "nosetup" in exp: A("s_branch L_su9")
    A("s_cmp_eq_u32 s36, 1"); A("s_cbranch_scc0 L_su2")
    A("s_lshl_b32 s78, s30, 2"); A("s_add_u32 s78, s78, s91"); A("s_lshl_b32 s78, s78, 13"); A(f"s_add_u32 s78, s78, {WS_OP}")
    A("v_lshrrev_b32 v32, 5, v1"); A("v_and_b32 v33, 31, v1"); A("v_lshl_add_u32 v225, v32, 12, s78"); A("v_lshl_add_u32 v224, v33, 4, v225")
    A("v_and_b32 v7, 3, v1"); A("v_lshl_add_u32 v225, v7, 10, v225")
    A(f"v_mul_u32_u24 v226, {OBS}, v32"); A("v_lshrrev_b32 v33, 3, v33"); A("v_lshl_add_u32 v226, v33, 6, v226")
    A("v_lshl_add_u32 v226, v7, 4, v226"); A("v_bfe_u32 v7, v1, 2, 1"); A("v_lshl_add_u32 v226, v7, 3, v226")
    A("s_lshl_b32 s78, s91, 8"); A(f"s_add_u32 s78, s78, {L_OB}"); A("v_add_u32 v226, s78, v226")
    A("v_and_b32 v227, 1, v1"); A(f"v_mul_u32_u24 v227, {OBS}, v227"); A("v_lshl_add_u32 v227, v8, 4, v227"); A("v_add_u32 v227, s78, v227")
    traddr1280(230, 1024)
    A("v_add_u32 v230, s83, v230")
    for ct in range(1, 4): A(f"v_xor_b32 v{230+ct}, {32*ct}, v230")
    A("v_lshlrev_b32 v229, 3, v1"); A(f"v_add_u32 v228, {L_YB}, v229"); A("s_lshl_b32 s78, s91, 9"); A("v_add_u32 v234, s78, v228")
    A("s_mul_i32 s80, s30, 5120"); A("s_lshl_b32 s81, s37, 9"); A("s_add_u32 s84, s80, s81"); A(f"s_mul_i32 s80, s91, {2*APC}")
    A("s_add_u32 s84, s84, s80"); A(f"s_add_u32 s84, s84, {WS_AP}"); A(f"s_add_u32 s85, s84, {APC}")
    A("s_branch L_su9")
    A("L_su2:")
    A("s_cmp_eq_u32 s36, 2"); A("s_cbranch_scc0 L_su9")
    mlp5_setup()
    A(f"s_mul_i32 s84, s91, {160*3456}"); A("s_lshl_b32 s78, s37, 6"); A("s_add_u32 s84, s84, s78"); A("s_mul_i32 s85, s91, 10")
    A("v_mov_b32 v13, 0"); A("v_and_b32 v14, 31, v1"); A("v_lshlrev_b32 v247, 2, v14"); A(f"v_add_u32 v247, {L_CB}, v247")
    A("s_lshl_b32 s78, s37, 5"); A("v_add_lshl_u32 v14, v14, s78, 1")
    traddr1280(16, 10240)
    for i in range(10):
        A(f"s_add_u32 s78, s85, {i}"); A("s_and_b32 s80, s78, 3"); A("s_lshl_b32 s80, s80, 5"); A(f"v_xor_b32 v{233+i}, s80, v16")
        A("s_lshr_b32 s78, s78, 2"); A("s_lshl_b32 s78, s78, 10"); A(f"v_add_u32 v{233+i}, s78, v{233+i}")
    for i in range(0, 32, 2): A(f"v_mov_b64 v[{192+i}:{193+i}], 0")
    A("v_and_b32 v7, 1, v1")
    A("v_lshlrev_b32 v243, 6, v7"); A("v_lshl_add_u32 v243, v8, 4, v243"); A("s_lshl_b32 s78, s91, 7"); A(f"s_add_u32 s78, s78, {L_H1}"); A("v_add_u32 v243, s78, v243")
    A(f"v_lshlrev_b32 v244, 2, v1"); A(f"v_add_u32 v244, {L_PB}, v244")
    A("v_lshrrev_b32 v7, 5, v1"); A("v_mul_u32_u24 v248, 48, v7"); A(f"v_add_u32 v248, {L_SB}, v248")
    A("v_lshlrev_b32 v245, 6, v7"); A("v_bfe_u32 v7, v1, 2, 2"); A("v_lshl_add_u32 v245, v7, 4, v245")
    A("v_bfe_u32 v7, v1, 4, 1"); A("v_lshl_add_u32 v245, v7, 3, v245"); A("v_and_b32 v7, 3, v1"); A("v_lshl_add_u32 v245, v7, 1, v245"); A("v_add_u32 v245, s78, v245")
    A("s_mul_i32 s86, s37, 5120"); A("s_mul_i32 s78, s91, 1280"); A("s_add_u32 s86, s86, s78"); A(f"s_add_u32 s86, s86, {WS_MP}")
    A("v_lshl_add_u32 v246, v8, 2, v9"); A("v_lshlrev_b32 v246, 4, v246")
    A(f"v_mov_b32 v24, {F(-2*0.7978845608028654*1.4426950408889634)}"); A(f"v_mov_b32 v25, {F(-2*0.7978845608028654*1.4426950408889634*0.044715)}")
    A(f"v_mov_b32 v26, {F(1+1e-5)}"); A(f"v_mov_b32 v27, {F(1e-10)}"); A(f"v_mov_b32 v250, {F(1/640)}")
    A("L_su9:")
    while st["waited"] < W0: pump()
    A(f"s_cmp_eq_u32 s3, {9 if 'noflag' in exp else 1}"); A("s_cbranch_scc0 L_s3")
    A("v_mov_b32 v44, s57")
    A("s_lshl_b32 s78, s30, 5"); A("s_add_u32 s78, s78, s31"); A("s_lshl_b32 s78, s78, 2")
    A("s_mov_b64 exec, 1")
    A(f"buffer_store_dword v44, v2, {WS}, s78 offen offset:{WS_FLAGS} sc1")
    A("s_mov_b64 exec, -1")
    A("L_s3:")
    while st["waited"] < pos[16 + KQ]:
        pump()
        if st["waited"] == pos[15]: stamp(3)
    stamp(4)
    Q = 60
    A(f"s_mov_b32 s90, {SPIN*8}")
    flush()
    A("L_qw:")
    A(f"ds_read_b128 v[{Q}:{Q+3}], v10")
    A("s_waitcnt lgkmcnt(0)")
    A(f"v_max3_u32 v7, v{Q}, v{Q+1}, v{Q+2}"); A(f"v_max_u32 v7, v7, v{Q+3}"); A("v_cmp_eq_u32 vcc, -1, v7")
    A("s_cbranch_vccz L_qw2")
    A("s_sleep 1")
    A("s_sub_u32 s90, s90, 1"); A("s_cbranch_scc0 L_qw")
    A("L_qw2:")
    stamp(5)
    LIM = pos[31 - W] if QKP == "kv" else pos[30]
    P = 32
    for half in range(2):
        for r in range(4):
            for t in range(8*half, 8*half+8):
                A(f"v_dot2_f32_bf16 v{P+t}, v{K0+4*t+r}, v{Q+r}, {'0' if r == 0 else f'v{P+t}'}")
            if r & 1: pump(lim=LIM)
    R = 48
    for t in range(8): A(f"v_add_f32_dpp v{R+t}, v{P+t}, v{P+t} row_mirror row_mask:0xf bank_mask:0x3")
    for t in range(8): A(f"v_add_f32_dpp v{R+t}, v{P+t+8}, v{P+t+8} row_mirror row_mask:0xf bank_mask:0xc")
    for t in range(4): A(f"v_add_f32_dpp v{P+t}, v{R+t}, v{R+t} row_half_mirror row_mask:0xf bank_mask:0x5")
    for t in range(4): A(f"v_add_f32_dpp v{P+t}, v{R+t+4}, v{R+t+4} row_half_mirror row_mask:0xf bank_mask:0xa")
    pump(lim=LIM)
    for t in range(4): A(f"v_add_f32_dpp v{R+t}, v{P+t}, v{P+t} quad_perm:[2,3,0,1] row_mask:0xf bank_mask:0xf")
    A("s_mov_b32 vcc_lo, 0xcccccccc"); A("s_mov_b32 vcc_hi, 0xcccccccc")
    for t in range(2): A(f"v_cndmask_b32 v{P+t}, v{R+t}, v{R+t+2}, vcc")
    for t in range(2): A(f"v_add_f32_dpp v{R+t}, v{P+t}, v{P+t} quad_perm:[1,0,3,2] row_mask:0xf bank_mask:0xf")
    A("s_mov_b32 vcc_lo, 0xaaaaaaaa"); A("s_mov_b32 vcc_hi, 0xaaaaaaaa")
    S = 40
    A(f"v_cndmask_b32 v{S}, v{R}, v{R+1}, vcc")
    bf16r(S, S); A(f"v_mul_f32 v{S}, {F(128**-0.5)}, v{S}"); bf16r(S, S)
    A(f"v_mov_b32 v42, v{S}")
    pump(lim=LIM)
    row_allred("v_max_f32", 42); swap_allred("v_max_f32", 42, 44, 16); swap_allred("v_max_f32", 42, 44, 32)
    pump(lim=LIM)
    A(f"v_sub_f32 v43, v{S}, v42"); A(f"v_mul_f32 v43, {LOG2E:#x}, v43"); A("v_exp_f32 v43, v43")
    A("v_cvt_pk_bf16_f32 v45, v43, v43")
    row_allred("v_add_f32", 43); swap_allred("v_add_f32", 43, 44, 16); swap_allred("v_add_f32", 43, 44, 32)
    A("ds_write_b64 v11, v[42:43]")
    stamp(6)
    pump(lim=LIM)
    done = 0
    for t in range(16):
        for r in range(4): A(f"v_and_b32_dpp v{K0+4*t+r}, v45, v{20+r} row_newbcast:{t} row_mask:0xf bank_mask:0xf")
        if t >= 1 and pos[16 + done] <= st["waited"]:
            mfma(ACC, K0+4*done, V0+4*done, done == 0); done += 1
        if t in (4, 9): pump(lim=LIM)
    stamp(7)
    for t in range(done, 16):
        while t and st["waited"] < pos[15 + t]: pump()
        wait_for(pos[16 + t]); mfma(ACC, K0+4*t, V0+4*t, t == 0)
        if t < 15: issue_to(pos[16 + t] + 1 + W)
    assert st["issued"] == len(seq)
    stamp(8)
    A("s_mov_b32 exec_hi, 0")
    A(f"ds_write_b128 v12, v[{ACC}:{ACC+3}]")
    A("s_mov_b64 exec, -1")
    flush()
    save = dict(st); NPRE = len(seq)
    if "notail" in exp: fin()
    A("s_cmp_eq_u32 s36, 2"); A("s_cbranch_scc1 L_mlp")
    A("s_cmp_eq_u32 s36, 0"); A("s_cbranch_scc1 L_idle")

    mlld = lambda: A(f"buffer_load_dwordx4 v[208:211], v225, {WS}, 0 offen offset:512 sc1")
    D0 = NPRE - PRE - 0
    assert NR == 0 and not PT1
    free.add(len(seq)); MLI = len(seq); seq.append(mlld)
    seq.extend(dma_a(n) for n in range(PRE, 16))
    blk = lambda n: D0 + n + (1 if n >= PRE else 0)
    trd = [0]
    def trs():
        while trd[0] < 4 and blk(4*trd[0] + 3) <= st["waited"]:
            ks = trd[0]
            for ct in range(4):
                for u in range(2): A(f"ds_read_b64_tr_b16 v[{64+16*ks+4*ct+2*u}:{65+16*ks+4*ct+2*u}], v{230+ct} offset:{(4*ks+2*u)*1024}")
            trd[0] += 1
    issue_to(pos[31] + 1 + W)
    while st["issued"] < len(seq):
        pump(); trs()
    stamp(9)
    assert st["waited"] >= MLI
    A(f"s_mov_b32 s90, {SPIN}")
    flush()
    A("L_p0:")
    A("v_cmp_ne_u32 vcc, s56, v210"); A("v_cmp_ne_u32 s[60:61], s56, v211"); A("s_or_b64 vcc, vcc, s[60:61]"); A("s_cbranch_scc0 L_pd0")
    mlld()
    A("s_waitcnt vmcnt(0)")
    A("s_sub_u32 s90, s90, 1"); A("s_cbranch_scc0 L_p0")
    A("L_pd0:")
    for r, a, nd, chk in ld1:
        seq.append(None); st["issued"] += 1; A(ldtext(r, a, nd))
    A("v_max_f32_dpp v210, v208, v208 quad_perm:[1,0,3,2] row_mask:0xf bank_mask:0xf")
    A("v_max_f32_dpp v210, v210, v210 quad_perm:[2,3,0,1] row_mask:0xf bank_mask:0xf")
    A("v_sub_f32 v208, v208, v210"); A(f"v_mul_f32 v208, {LOG2E:#x}, v208"); A("v_exp_f32 v208, v208")
    A("v_mul_f32 v209, v208, v209")
    A("v_add_f32_dpp v209, v209, v209 quad_perm:[1,0,3,2] row_mask:0xf bank_mask:0xf")
    A("v_add_f32_dpp v209, v209, v209 quad_perm:[2,3,0,1] row_mask:0xf bank_mask:0xf")
    A("v_rcp_f32 v209, v209"); A("v_mul_f32 v208, v208, v209")
    for sp in range(4): A(f"v_mov_b32_dpp v{216+2*sp}, v208 quad_perm:[{sp},{sp},{sp},{sp}] row_mask:0xf bank_mask:0xf")
    while trd[0] < 4:
        wait_for(blk(4*trd[0] + 3)); trs()
    stamp(10)
    def comb():
        for sp in range(4):
            for hh in (0, 2):
                if sp == 0: pk("mul", 212+hh, 192+hh, 216, mod="op_sel_hi:[1,0]")
                else: pk("fma", 212+hh, 192+4*sp+hh, 216+2*sp, 212+hh, mod="op_sel_hi:[1,0,1]")
    poll("1", ld1, comb, (212, 214))
    stamp(11)
    A("v_cvt_pk_bf16_f32 v212, v212, v213"); A("v_cvt_pk_bf16_f32 v213, v214, v215")
    A("ds_write_b64 v226, v[212:213]")
    for ks in range(4): A(f"ds_read_b128 v[{128+4*ks}:{131+4*ks}], v227 offset:{64*ks}")
    A("s_mov_b64 s[60:61], 0xffff")
    for ks in range(4):
        A(f"s_waitcnt lgkmcnt({3-ks})")
        for ct in range(4): mfma(144+4*ct, 128+4*ks, 64+16*ks+4*ct, ks == 0)
    for ct in range(4):
        A(f"s_lshl_b64 exec, s[60:61], {16*ct}"); A(f"ds_write_b64 v234, v[{144+4*ct}:{145+4*ct}]")
    A("s_mov_b64 exec, -1")
    A("s_waitcnt lgkmcnt(0)"); A("s_barrier")
    A("ds_read2st64_b64 v[160:163], v228 offset0:0 offset1:1"); A("ds_read2st64_b64 v[164:167], v228 offset0:2 offset1:3")
    A("s_waitcnt lgkmcnt(1)"); pk("add", 160, 160, 162)
    A("s_waitcnt lgkmcnt(0)"); pk("add", 164, 164, 166); pk("add", 160, 160, 164)
    A(f"buffer_store_dwordx2 v[160:161], v229, {WS}, s84 offen sc1")
    A(f"buffer_store_dwordx2 v[160:161], v229, {WS}, s85 offen sc1")
    stamp(12)
    fin()

    A("L_idle:")
    if IB: A("s_barrier")
    if T1 and not PT1: A(f"buffer_load_dword v6, v57, s[52:55], 0 offen {tnt}")
    if T2:
        A("s_mov_b32 s46, 2211840")
        A(f"buffer_load_dword v5, v252, s[44:47], 0 offen {tnt}")
    fin()

    A("L_mlp:")
    st.update(save); del seq[NPRE:]; free.discard(MLI)
    seq.extend(dma_a(n) for n in range(NR + PRE, 10))
    issue_to(pos[31] + 1 + W)
    while st["issued"] < len(seq): pump()
    if MB: A("s_barrier")
    for n in range(10):
        A(f"s_add_u32 m0, s88, {n*1024}")
        if n: A(f"s_add_u32 s84, s84, {16*3456}")
        A(f"buffer_load_dwordx4 v59, s[52:55], s84 offen {wnt} lds")
    A("global_load_short_d16_hi v13, v14, s[18:19]")
    if EF: A("s_barrier")
    stamp(9)
    flush()
    A("L_mlp5:")
    W1F, W2F, PL, HO, H1O = 64, 96, 136, 168, 192
    A("global_load_dword v188, v224, s[4:5]"); A("global_load_dword v189, v224, s[4:5] offset:1280")
    sofr = [None, 76, 77, 87, 88, 89, 57, 58]
    for p in range(1, 8): A(f"s_mov_b32 s{sofr[p]}, {p*5120}")
    ld2 = [(PL + 4*p, f"v225, {WS}, {f's{sofr[p]}' if p else '0'} offen", 4, (0, 2)) for p in range(8)]
    for r in range(4): A(f"v_mov_b32 v{HO+r}, 0x3f803f80")
    if EF:
        poll_first(ld2)
        A("s_waitcnt vmcnt(8)")
    else: A("s_waitcnt vmcnt(0)")
    A("s_barrier")
    stamp(10)
    if not EF: poll_first(ld2)
    for ks in range(4):
        for ct in range(2):
            for u in range(2):
                r = W1F + 8*ks + 4*ct + 2*u
                A(f"ds_read_b64_tr_b16 v[{r}:{r+1}], v{231+ct} offset:{(2*ks+u)*1024}")
    A("v_lshlrev_b32 v184, 16, v188"); A("v_lshlrev_b32 v185, 16, v189"); A("v_and_b32 v186, 0xffff0000, v188"); A("v_and_b32 v187, 0xffff0000, v189")
    A("s_waitcnt lgkmcnt(0)")
    for ks in range(4):
        for ct in range(2): mfma(28+4*ct, W1F+8*ks+4*ct, HO, ks == 0)
    A("s_mov_b32 exec_lo, 0x00010001"); A("s_mov_b32 exec_hi, 0x00010001")
    A("ds_write_b128 v229, v[28:31]"); A("ds_write_b128 v229, v[32:35] offset:64")
    A("s_mov_b64 exec, -1")
    A("s_waitcnt lgkmcnt(0)"); A("s_barrier")
    A("s_cmp_eq_u32 s3, 0"); A("s_cbranch_scc1 L_notr")
    A("ds_read2_b32 v[36:37], v247 offset0:0 offset1:32"); A("ds_read2_b32 v[38:39], v247 offset0:64 offset1:96"); A("ds_read_b32 v15, v247 offset:512")
    for i in range(10):
        for u in range(2):
            r = W2F + 4*i + 2*u
            A(f"ds_read_b64_tr_b16 v[{r}:{r+1}], v{233+i} offset:{L_W2 + u*20480}")
    A("s_waitcnt lgkmcnt(0)")
    pk("add", 36, 36, 38); A("v_add_f32 v15, v15, v36"); A("v_add_f32 v15, v15, v37")
    A("L_notr:")
    A("s_mov_b32 s50, 0x00030003"); A("s_mov_b32 s51, 0x00030003")
    SM = 40
    def sum2():
        for i in range(0, 16, 2): pk("add", SM+i, PL+i, PL+16+i)
        sum4(SM)
    poll("2", ld2, sum2, (SM, SM+2))
    stamp(11)
    a, b_, c = SM, SM+4, SM+6
    def unpack():
        A(f"v_lshlrev_b32 v{a}, 16, v{b_}"); A(f"v_lshlrev_b32 v{a+1}, 16, v{b_+1}"); A(f"v_and_b32 v{a+2}, 0xffff0000, v{b_}"); A(f"v_and_b32 v{a+3}, 0xffff0000, v{b_+1}")
    A(f"v_cvt_pk_bf16_f32 v{b_}, v{a}, v{a+2}"); A(f"v_cvt_pk_bf16_f32 v{b_+1}, v{a+1}, v{a+3}"); unpack()
    pk("add", a, a, 184); pk("add", a+2, a+2, 186)
    A(f"v_cvt_pk_bf16_f32 v{b_}, v{a}, v{a+2}"); A(f"v_cvt_pk_bf16_f32 v{b_+1}, v{a+1}, v{a+3}")
    A(f"ds_write_b32 v226, v{b_}"); A(f"ds_write_b32 v226, v{b_+1} offset:{YBS}")
    for ks in range(4): A(f"ds_read_b128 v[{HO+4*ks}:{HO+3+4*ks}], v227 offset:{64*ks}")
    unpack()
    pk("mul", c+2, a, a); pk("add", c, a, a+2); pk("fma", c+2, a+2, a+2, c+2)
    A(f"v_permlane32_swap_b32 v{c}, v{c+2}"); A(f"v_permlane32_swap_b32 v{c+1}, v{c+3}"); pk("add", c, c, c+2)
    A(f"v_permlane16_swap_b32 v{c}, v{c+1}"); A(f"v_add_f32 v{c}, v{c}, v{c+1}")
    red = [f"v_add_f32_dpp v{c}, v{c}, v{c} {m} row_mask:0xf bank_mask:0xf" for m in ("row_mirror", "row_half_mirror", "quad_perm:[2,3,0,1]", "quad_perm:[1,0,3,2]")]
    for ks in range(4):
        A(f"s_waitcnt lgkmcnt({3-ks})")
        for ct in range(2): mfma(28+4*ct, W1F+8*ks+4*ct, HO+4*ks, ks == 0)
        A(red[ks])
    A(f"ds_write_b32 v230, v{c}")
    A("s_mov_b64 exec, s[50:51]")
    A("ds_write_b128 v228, v[28:31]"); A("ds_write_b128 v228, v[32:35] offset:64")
    A("s_mov_b64 exec, -1")
    A("s_waitcnt lgkmcnt(0)"); A("s_barrier")
    stamp(12)
    A("s_cmp_eq_u32 s3, 0"); A("s_cbranch_scc1 L_final ; nf")
    pend_fin = list(pend)
    A("ds_read_b128 v[40:43], v248"); A("ds_read_b128 v[44:47], v248 offset:16"); A("ds_read_b64 v[48:49], v248 offset:32")
    A("ds_read2st64_b32 v[36:37], v244 offset0:0 offset1:1"); A("ds_read2st64_b32 v[38:39], v244 offset0:2 offset1:3"); A("ds_read_b32 v50, v244 offset:1024")
    A("s_waitcnt lgkmcnt(3)")
    pk("add", 40, 40, 42); pk("add", 44, 44, 46); pk("add", 40, 40, 48); pk("add", 40, 40, 44)
    pk("mul", 40, 40, 250, mod="op_sel_hi:[1,0]")
    A("v_fma_f32 v41, -v40, v40, v41"); A("v_max_f32 v41, 0, v41")
    A("v_fma_f32 v41, v41, v26, v27"); A("v_rsq_f32 v41, v41")
    A("s_waitcnt lgkmcnt(0)")
    pk("add", 36, 36, 38); A("v_fma_f32 v50, -v40, v15, v50"); A("v_add_f32 v36, v36, v37"); A("v_add_f32 v36, v36, v50")
    A("v_mul_f32 v36, v36, v41")
    bf16r(36, 36); A("v_add_f32 v36, v36, v13"); bf16r(36, 36)
    A("v_mul_f32 v37, v36, v36"); A("v_fma_f32 v37, v37, v25, v24"); A("v_mul_f32 v37, v37, v36"); A("v_exp_f32 v37, v37")
    A("v_add_f32 v37, 1.0, v37"); A("v_rcp_f32 v37, v37"); A("v_mul_f32 v36, v36, v37")
    A("v_cvt_pk_bf16_f32 v36, v36, v36")
    A("ds_write_b16 v245, v36")
    for t in range(8):
        A(f"s_lshl_b64 exec, s[50:51], {2*t}")
        A(f"ds_read_b128 v[{H1O+4*t}:{H1O+3+4*t}], v243")
    A("s_mov_b64 exec, -1")
    for i in [0, 8, 1, 9, 2, 3, 4, 5, 6, 7]:
        t = i & 7
        if i < 8: A(f"s_waitcnt lgkmcnt({7-t})")
        mfma(28 + 4*(i >> 3), W2F+4*i, H1O+4*t, t == 0)
    A("s_mov_b32 exec_lo, 0x000f000f"); A("s_mov_b32 exec_hi, 0x000f000f")
    A(f"buffer_store_dwordx4 v[32:35], v246, {WS}, s86 offen offset:1024 sc1")
    A("s_mov_b64 exec, -1")
    A(f"buffer_store_dwordx4 v[28:31], v2, {WS}, s86 offen sc1")
    if h3 is not None:
        if h3 < 0: A("s_waitcnt vmcnt(0)")
        A("s_barrier")
    stamp(13)
    fin()

    A("L_final:")
    pend.extend(pend_fin)
    A("s_cmp_ge_u32 s37, 40"); A("s_cbranch_scc1 L_epoch")
    A("ds_read_u16_d16_hi v16, v15")
    srd(44, 24, 2560)
    ld3 = [(96 + 4*n, f"v{57 if n == 6 else 56}, {WS}, {f's{80+n}' if n else '0'} offen", 4, (0,)) for n in range(7)]
    A("s_waitcnt lgkmcnt(0)")
    if h3 is not None:
        A("s_barrier")
        if h3 > 0: A(f"s_sleep {h3}")
    poll_first(ld3)
    def sum3():
        for k in range(3):
            for hh in (0, 2): pk("add", 64+4*k+hh, 96+8*k+hh, 100+8*k+hh)
        for hh in (0, 2):
            pk("add", 64+hh, 64+hh, 68+hh); pk("add", 72+hh, 72+hh, 120+hh)
        for hh in (0, 2): pk("add", 64+hh, 64+hh, 72+hh)
    poll("3", ld3, sum3, (64, 66))
    stamp(14)
    A("v_permlane32_swap_b32 v64, v66"); A("v_permlane32_swap_b32 v65, v67"); pk("add", 64, 64, 66)
    A("v_permlane16_swap_b32 v64, v65"); A("v_add_f32 v64, v64, v65")
    A("v_add_f32_dpp v64, v64, v64 row_ror:8 row_mask:0xf bank_mask:0xf")
    bf16r(64, 64); A("v_add_f32 v64, v64, v17"); bf16r(64, 64); A("v_add_f32 v64, v64, v16")
    A("v_cvt_pk_bf16_f32 v64, v64, v64")
    A("buffer_store_short v64, v12, s[44:47], 0 offen")
    stamp(15)
    fin()
    A("L_epoch:")
    A("s_cmp_eq_u32 s37, 40"); A("s_cbranch_scc0 L_fend")
    A("v_mov_b32 v34, s56"); A("s_mov_b64 exec, 1")
    A(f"buffer_store_dword v34, v2, {WS}, 0 offen")
    A("L_fend:")
    if diag: fin()
    A("L_end:")
    A("s_endpgm")

    body = fix(L)
    out = [HDR.rstrip("\n"),
           "; One launch, 256 workgroups (one per CU); hand-offs between workgroups go through d_ws.",
           f"; @launch grid=(256,1,1) block=(320,1,1) lds={LDS_BYTES}",
           '.amdgcn_target "amdgcn-amd-amdhsa--gfx950"', ".text", f".globl {NAME}_kernel", ".p2align 8",
           f".type {NAME}_kernel,@function", f"{NAME}_kernel:"] + body + [
           '.section .rodata,"a"', ".p2align 6", f".amdhsa_kernel {NAME}_kernel",
           "  .amdhsa_next_free_vgpr 256", "  .amdhsa_next_free_sgpr 102", "  .amdhsa_accum_offset 256",
           "  .amdhsa_group_segment_fixed_size 0", "  .amdhsa_kernarg_size 104", "  .amdhsa_user_sgpr_count 2",
           "  .amdhsa_user_sgpr_kernarg_segment_ptr 1", "  .amdhsa_system_sgpr_workgroup_id_x 1",
           "  .amdhsa_float_denorm_mode_32 3",
           ".end_amdhsa_kernel"]
    return "\n".join(out) + "\n"

if __name__ == "__main__":
    import argparse
    ap = argparse.ArgumentParser(); ap.add_argument("-o", default=f"cdna_kernels/{NAME}.s"); ap.add_argument("--diag", action="store_true")
    ap.add_argument("--kw", default="")
    a = ap.parse_args()
    open(a.o, "w").write(gen(diag=a.diag, **eval("dict(%s)" % a.kw)))
```

```python
import sys, struct
from hz import fix
NAME = "sequential_preLN__sliding_block_cached__mixer_channel_mlp__decode"
HDR = open("cdna_kernels/%s.s.ref" % NAME).read().split("; Override launch")[0]
def F(x): return "0x%08x" % struct.unpack("<I", struct.pack("<f", x))[0]

WS_FLAGS = 1024; WS_VOTE = 2048; WS_PRB = 0x4000; WS_MP = 0x10000; WS_AP = 0x80000; WS_QP = 0x100000; WS_OP = 0x180000
WS_STAMP = 0x200000
OOB = 0xF0000000
L_WB = 23552
L_W2 = L_WB; L_W1 = L_WB + 40960
L_RED = L_WB + 81920
L_Q = L_RED + 2048
L_ML = L_Q + 256
L_SB = L_ML + 64
L_OB = L_SB + 128
OBS = 1088
L_YB = L_OB + 2 * OBS
YBS = 1344
L_PB = L_YB + 2 * YBS
L_CW = L_PB + 2560
L_H1 = L_CW + 64
L_DUMMY = L_H1 + 512
LDS_BYTES = L_DUMMY + 1024
SPIN = 400000
LOG2E = 0x3FB8AA3B

def gen(diag=False, nt='nt', W=7, wnt='nt', prio=False, KQ=2, depth=0, PT0=10, T1=True, T2=False, tnt='', local=True, probe=None, h3=-1, exp=(), qdelay=None, PRE=None, QKP='kv', W0=3, NR=0, PR=17, RS=1.5, tall=True, tfree=False, NB=16, MB=True, EF=True, IB=True, WARM=0, WSL=0, CC=None, ROT=False, w1nt='nt', WO=4, NW=6, PW=20, WS_=2, TS=(30,28,54), W1W=None, WM=None, FASTP=True, CHK2=(0, 2), PT1=None, only=None):
    L = []
    pend = []
    def A(s):
        for l in s.split("\n"):
            l = l.strip()
            if pend and l.startswith(("s_cbranch", "s_branch")) and not l.endswith("; nf"):
                A("s_waitcnt lgkmcnt(0)")
            L.append("    " + l if not l.endswith(":") else l)
            if pend and l.startswith("s_waitcnt") and "lgkmcnt(0)" in l:
                for r, i in pend: L.append(f"    v_writelane_b32 v255, s{r}, {i}")
                pend.clear()
    def stamp(i, clk=False):
        if diag and (only is None or i in only or i >= 59):
            if len(pend) >= 4: A("s_waitcnt lgkmcnt(0)")
            r = 92 + 2 * len(pend)
            A(f"{'s_memtime' if clk else 's_memrealtime'} s[{r}:{r+1}]"); pend.append((r, i))
    def flush():
        if pend: A("s_waitcnt lgkmcnt(0)")
    def bf16r(d, x):
        A(f"v_cvt_pk_bf16_f32 v{d}, v{x}, v{x}"); A(f"v_and_b32 v{d}, 0xffff0000, v{d}")
    def row_allred(op, v):
        for c in ("row_mirror", "row_half_mirror", "quad_perm:[2,3,0,1]", "quad_perm:[1,0,3,2]"):
            A(f"{op}_dpp v{v}, v{v}, v{v} {c} row_mask:0xf bank_mask:0xf")
    def swap_allred(op, v, t, which):
        A(f"v_mov_b32 v{t}, v{v}"); A(f"v_permlane{which}_swap_b32 v{v}, v{t}"); A(f"{op} v{v}, v{v}, v{t}")
    def srd(r, base, size):
        A(f"s_mov_b32 s{r}, s{base}"); A(f"s_mov_b32 s{r+1}, s{base+1}"); A(f"s_mov_b32 s{r+2}, {size}"); A(f"s_mov_b32 s{r+3}, 0x20000")
    def pk(op, d, a, b, c=None, mod=""):
        A(f"v_pk_{op}_f32 v[{d}:{d+1}], v[{a}:{a+1}], v[{b}:{b+1}]" + (f", v[{c}:{c+1}]" if c is not None else "") + (" " + mod if mod else ""))
    def mfma(d, a, b, first):
        A(f"v_mfma_f32_16x16x32_bf16 v[{d}:{d+3}], v[{a}:{a+3}], v[{b}:{b+3}], {'0' if first else f'v[{d}:{d+3}]'}")
    def sum4(b):
        for hh in (0, 2):
            pk("add", b+hh, b+hh, b+4+hh); pk("add", b+8+hh, b+8+hh, b+12+hh)
        for hh in (0, 2): pk("add", b+hh, b+hh, b+8+hh)
    def role_decode():
        A("s_sub_u32 s78, s31, 10"); A("s_lshr_b32 s80, s78, 1"); A("s_lshl_b32 s80, s80, 3"); A("s_add_u32 s80, s80, s30")
        A("s_and_b32 s78, s78, 1"); A("s_lshl_b32 s37, s80, 1"); A("s_add_u32 s37, s37, s78")
        A("s_cmp_lt_u32 s80, 27"); A("s_cselect_b32 s36, 2, 0")
        A("s_cmp_lt_u32 s31, 10"); A("s_cselect_b32 s36, 1, s36"); A("s_cselect_b32 s37, s31, s37")
    WS = "s[40:43]"
    def ldtext(r, a, n=4):
        return f"buffer_load_dwordx{n} v[{r}:{r+n-1}], {a} sc1"
    def poll_init(loads):
        for r, a, n, chk in loads:
            for c in chk: A(f"v_mov_b32 v{r+c}, -1")
    def poll_first(loads):
        for r, a, n, chk in loads: A(ldtext(r, a, n))
    def poll(tag, loads, work, res):
        n = len(loads)
        def masks():
            for i, (r, a, nd, chk) in enumerate(loads):
                if len(chk) == 1: A(f"v_cmp_eq_u32 s[{60+2*i}:{61+2*i}], -1, v{r+chk[0]}")
                else:
                    A(f"v_max_u32 v{6+(i&1)}, v{r+chk[0]}, v{r+chk[1]}"); A(f"v_cmp_eq_u32 s[{60+2*i}:{61+2*i}], -1, v{6+(i&1)}")
        def issue():
            for i, (r, a, nd, chk) in enumerate(loads):
                A(f"s_mov_b64 exec, s[{60+2*i}:{61+2*i}]")
                A(ldtext(r, a, nd))
            A("s_mov_b64 exec, -1")
        A(f"s_mov_b32 s90, {SPIN}")
        flush()
        if not FASTP:
            A(f"L_p{tag}:")
            A("s_waitcnt vmcnt(0)")
            work()
            A(f"v_cmp_u_f32 vcc, v{res[0]}, v{res[1]}")
            A(f"s_cbranch_vccz L_pd{tag}")
            masks(); issue()
            A("s_or_b64 vcc, s[60:61], s[62:63]" if n > 1 else "s_or_b64 vcc, s[60:61], s[60:61]")
            for i in range(2, n): A(f"s_or_b64 vcc, vcc, s[{60+2*i}:{61+2*i}]")
            A(f"s_cbranch_scc0 L_pd{tag}")
            A("s_sub_u32 s90, s90, 1"); A(f"s_cbranch_scc0 L_p{tag}")
            A(f"L_pd{tag}:")
            return
        A("s_waitcnt vmcnt(0)")
        work()
        A(f"v_cmp_u_f32 vcc, v{res[0]}, v{res[1]}")
        A(f"s_cbranch_vccz L_pd{tag}")
        masks()
        A(f"L_p{tag}:")
        issue(); masks()
        A("s_sub_u32 s90, s90, 1")
        A("s_waitcnt vmcnt(0)")
        regs = [r + c for r, a, nd, chk in loads for c in chk]
        h = len(regs) // 2 if len(regs) >= 6 else len(regs)
        ra, rb = regs[:h], regs[h:]
        first = {6: True, 7: True}
        while ra or rb:
            for d, rs in ((7, ra), (6, rb)):
                if not rs: continue
                if first[d]: A(f"v_max3_u32 v{d}, v{rs[0]}, v{rs[1]}, v{rs[2]}"); del rs[:3]; first[d] = False
                elif len(rs) >= 2: A(f"v_max3_u32 v{d}, v{d}, v{rs[0]}, v{rs[1]}"); del rs[:2]
                else: A(f"v_max_u32 v{d}, v{d}, v{rs[0]}"); del rs[:1]
        if not first[6]: A("v_max_u32 v7, v7, v6")
        A("v_cmp_eq_u32 vcc, -1, v7")
        A(f"s_cbranch_scc1 L_pw{tag}")
        A(f"s_cbranch_vccnz L_p{tag}")
        A(f"L_pw{tag}:")
        work()
        A(f"L_pd{tag}:")
    def fin():
        if diag:
            A("s_mov_b64 exec, -1")
            stamp(59); stamp(61, True); A("s_waitcnt lgkmcnt(0)")
            A("s_getreg_b32 s92, hwreg(HW_REG_XCC_ID)"); A("v_writelane_b32 v255, s92, 62")
            A("s_cmp_eq_u32 s3, 0"); A("s_cselect_b32 s92, 3, 0"); A("s_add_u32 s92, s92, s36"); A("v_writelane_b32 v255, s92, 63")
            A("s_mul_i32 s78, s2, 5"); A("s_add_u32 s78, s78, s3"); A("s_lshl_b32 s78, s78, 8"); A(f"s_add_u32 s78, s78, {WS_STAMP}")
            A("v_lshlrev_b32 v7, 2, v1")
            A(f"buffer_store_dword v255, v7, {WS}, s78 offen")
            if probe is not None:
                fin.n = getattr(fin, "n", 0) + 1
                pi, pw, role = probe
                A("s_cmp_eq_u32 s3, 0"); A(f"s_cbranch_scc{1 if pw == 1 else 0} L_pe{fin.n}")
                if role is not None:
                    A(f"s_cmp_eq_u32 s36, {role}"); A(f"s_cbranch_scc0 L_pe{fin.n}")
                A("v_readlane_b32 s80, v255, 0")
                if pi == "xcc":
                    A("s_getreg_b32 s78, hwreg(HW_REG_XCC_ID, 0, 4)"); A("s_cmp_eq_u32 s78, s30"); A("s_cselect_b32 s78, 0, 400")
                elif pi == "vote":
                    A("v_readlane_b32 s78, v255, 57"); A("s_nop 4"); A("s_mul_i32 s78, s78, 10")
                else:
                    A(f"v_readlane_b32 s78, v255, {pi}"); A("s_nop 4"); A("s_cmp_eq_u32 s78, 0"); A(f"s_cbranch_scc1 L_pe{fin.n}")
                    A("s_sub_u32 s78, s78, s80")
                A("s_mul_i32 s78, s78, 10"); A("s_add_u32 s78, s78, s80"); A("s_add_u32 s78, s78, 2000")
                A(f"L_prw{fin.n}:"); A("s_sleep 2"); A("s_memrealtime s[92:93]"); A("s_waitcnt lgkmcnt(0)"); A("s_sub_u32 s92, s92, s78"); A("s_cmp_lt_i32 s92, 0"); A(f"s_cbranch_scc1 L_prw{fin.n}")
                A(f"L_pe{fin.n}:")
        A("s_endpgm")
    def traddr1280(d, blk):
        A("v_bfe_u32 v7, v1, 2, 3"); A(f"v_lshlrev_b32 v{d}, 7, v7"); A("v_lshrrev_b32 v7, 1, v7"); A(f"v_lshl_add_u32 v{d}, v7, 5, v{d}")
        A("v_lshrrev_b32 v7, 5, v1"); A(f"v_mul_u32_u24 v7, {blk}, v7"); A(f"v_add_u32 v{d}, v{d}, v7")
        A("v_and_b32 v7, 3, v1"); A(f"v_lshl_add_u32 v{d}, v7, 3, v{d}")

    K0, V0 = 64, 128
    ACC = 28
    XS, XO, WQ, AO = 228, 238, 64, 144

    L_X = 20480
    if diag: A("s_memrealtime s[100:101]")
    A("s_load_dwordx16 s[4:19], s[0:1], 0"); A("s_load_dwordx2 s[40:41], s[0:1], 96")
    A("s_lshr_b32 s31, s2, 3"); A("s_and_b32 s33, s31, 7")
    A("s_getpc_b64 s[52:53]"); A("L_pc:")
    A("s_cmp_eq_u32 s33, 7"); A("s_cselect_b32 s54, L_end-L_pc, 0"); A("s_mov_b32 s55, 0x20000"); A("v_lshlrev_b32 v22, 7, v0")
    A("buffer_load_dword v4, v22, s[52:55], 0 offen")
    A("v_lshrrev_b32 v7, 6, v0"); A("v_and_b32 v1, 63, v0"); A("s_cmp_ge_u32 s31, 32"); A("v_readfirstlane_b32 s3, v7")
    A("s_cbranch_scc1 L_end ; nf")
    A("s_and_b32 s30, s2, 7"); A("s_lshr_b32 s78, s31, 3"); A("s_lshl2_add_u32 s32, s30, s78")
    A("v_lshlrev_b32 v2, 4, v1"); A("v_lshrrev_b32 v8, 4, v1"); A("v_and_b32 v9, 15, v1")
    A("s_lshr_b32 s34, s33, 2"); A("s_and_b32 s35, s33, 3")
    A("s_cmp_eq_u32 s3, 0"); A("s_cbranch_scc0 L_s0 ; nf")
    A("s_mul_i32 s78, s33, 20"); A("v_mad_u32_u24 v7, v8, 5, s78")
    A("v_lshlrev_b32 v12, 15, v7"); A("v_lshl_add_u32 v12, v9, 4, v12"); A("s_lshl_b32 s78, s32, 8"); A("v_add_u32 v12, s78, v12")
    A("s_movk_i32 s79, 0x2000"); A(f"s_movk_i32 m0, {L_X}")
    A("s_waitcnt lgkmcnt(0)")
    A("global_load_lds_dwordx4 v2, s[4:5]"); A("global_load_lds_dwordx4 v2, s[4:5] offset:1024"); A("global_load_lds_dwordx4 v2, s[4:5] offset:1536")
    A("s_mov_b32 m0, 0")
    A("s_nop 0")
    A("L_wq:")
    A(f"global_load_lds_dwordx4 v12, s[10:11] {nt}")
    A("s_addk_i32 m0, 0x400"); A("v_add_u32 v12, s79, v12"); A(f"s_cmpk_lt_u32 m0, {L_X}"); A("s_cbranch_scc1 L_wq ; nf")
    A("s_branch L_aux ; nf")
    A("L_s0:")
    A("s_lshl_b32 s78, s34, 5"); A("s_add_u32 s78, s78, s32"); A("s_lshl_b32 s78, s78, 6"); A("s_lshl2_add_u32 s80, s35, s3"); A("s_add_u32 s78, s78, s80")
    A("s_add_u32 s78, s78, 47"); A("s_lshl_b32 s78, s78, 14"); A("s_addk_i32 s78, 0x1000")
    A("v_add_u32 v17, s78, v2")
    A("L_s1:")
    def common2():
        A("s_load_dwordx8 s[20:27], s[0:1], 64")
        if diag:
            A("v_mov_b32 v255, 0"); pend.append((100, 0)); stamp(60, True)
        role_decode()
        A("s_mov_b32 s42, 0x10000000"); A("s_mov_b32 s43, 0x20000")
    def ldKV(base, ptr, t):
        return lambda: A(f"global_load_dwordx4 v[{base+4*t}:{base+4*t+3}], v{17 + t//8}, {ptr} offset:{(t%8)*1024-4096} {nt}")
    def dma_a(n):
        def f():
            if n == 10:
                A("s_cmp_eq_u32 s36, 2"); A("s_cselect_b32 s46, 0, s46"); A(f"s_cselect_b32 s78, {40960 - 10240}, 0"); A("s_add_u32 s83, s83, s78")
            A(f"s_add_u32 m0, s83, {n*1024}")
            if n: A("s_add_u32 s82, s82, s87")
            A(f"buffer_load_dwordx4 v58, s[44:47], s82 offen {wnt} lds")
        return f
    kv = [ldKV(K0, "s[6:7]", t) for t in range(16)] + [ldKV(V0, "s[8:9]", t) for t in range(16)]
    def rider():
        A("s_mov_b32 m0, s76"); A("s_add_u32 s76, s76, s77")
        A(f"buffer_load_dwordx4 v58, s[44:47], s79 offen {wnt} lds"); A("s_addk_i32 s79, 10240")
    seq = []; pos = []; free = set(); nr = 0; nw_ = 0; didx = {}
    for i, f in enumerate(kv):
        if PT0 == i:
            if tfree or not tall: free.add(len(seq))
            seq.append(lambda: A(f"buffer_load_dword v4, v56, s[48:51], 0 offen {tnt}"))
        if PT0 + 3 == i and not tall:
            free.add(len(seq)); seq.append(lambda: A(f"buffer_load_dword v5, v56, s[48:51], s79 offen {tnt}"))
        while nr < NR and PR + nr * RS <= i:
            free.add(len(seq)); didx[nr] = len(seq); seq.append(dma_a(nr)); nr += 1
        while nw_ < NW and PW + nw_ * WS_ <= i:
            free.add(len(seq)); didx[16 - NW + nw_] = len(seq); seq.append(rider); nw_ += 1
        pos.append(len(seq)); seq.append(f)
    assert nr == NR and nw_ == NW
    if PT1:
        free.add(len(seq)); seq.append(lambda: A(f"buffer_load_dword v6, v57, s[52:55], 0 offen {tnt}"))
    PRE = min(W - 1, 16 - NR)
    for n in range(NR, NR + PRE):
        didx[n] = len(seq); seq.append(dma_a(n))
    st = dict(issued=0, waited=-1)
    Wc = [W]
    def issue_to(n):
        inflight = lambda: sum(1 for i in range(n - W, st["issued"]) if i not in free)
        while st["issued"] < len(seq) and (st["issued"] < n - W + Wc[0] or inflight() < Wc[0] and n >= W):
            seq[st["issued"]](); st["issued"] += 1
    def wait_for(k):
        if k > st["waited"]:
            A(f"s_waitcnt vmcnt({st['issued'] - k - 1})"); st["waited"] = k
    def pump(lim=None):
        k = st["waited"] + 1
        while k in free: k += 1
        if lim is not None and k > lim: return
        wait_for(k); issue_to(k + 1 + W)
    A("s_waitcnt lgkmcnt(0)")
    assert W <= 8
    issue_to(W0)
    A("v_mov_b64 v[24:25], -1"); A("v_mov_b64 v[26:27], -1")
    A("s_cmp_eq_u32 s3, 2"); A("s_cbranch_scc0 L_s4 ; nf")
    A(f"v_add_u32 v13, {L_RED}, v2")
    A("ds_write_b128 v13, v[24:27]"); A("ds_write_b128 v13, v[24:27] offset:1024"); A("s_mov_b64 exec, 0x3ffff")
    A("ds_write_b128 v13, v[24:27] offset:2048")
    A("s_mov_b64 exec, -1"); A("s_waitcnt lgkmcnt(0)")
    A("L_s4:")
    A("s_load_dword s56, s[40:41], 0")
    common2()
    A(f"s_cmp_eq_u32 s3, {9 if 'noclear' in exp else 1}"); A("s_cbranch_scc0 L_s2 ; nf")
    def slots():
        A("s_lshl_b32 s39, s32, 3"); A("s_add_u32 s39, s39, s33")
        A("s_lshl_b32 s38, s39, 10"); A(f"s_add_u32 s38, s38, {WS_OP}")
    slots()
    A("s_lshl_b32 s80, s30, 14"); A("s_lshl_b32 s81, s37, 9"); A("s_add_u32 s80, s80, s81"); A(f"s_add_u32 s80, s80, {WS_AP}")
    A("s_lshl_b32 s81, s37, 13"); A("s_and_b32 s82, s37, 1"); A("s_lshl_b32 s82, s82, 12"); A("s_sub_u32 s81, s81, s82"); A(f"s_add_u32 s81, s81, {WS_MP}")
    A("s_cmp_eq_u32 s36, 2"); A(f"s_cselect_b32 s81, s81, {OOB}"); A("s_add_u32 s82, s81, 2048")
    A("s_cmp_eq_u32 s36, 1"); A("s_cselect_b32 s81, s80, s81"); A(f"s_cselect_b32 s80, {131072 - 512}, 0"); A("s_addk_i32 s80, 0x200")
    A("v_lshrrev_b32 v7, 5, v1"); A("v_mul_u32_u24 v14, 7680, v7"); A("v_add_u32 v14, v14, v2")
    A("s_mov_b32 exec_hi, 0")
    A(f"buffer_store_dwordx4 v[24:27], v2, {WS}, s38 offen sc1")
    A("s_mov_b64 exec, -1")
    A(f"buffer_store_dwordx4 v[24:27], v14, {WS}, s82 offen sc1")
    for k in range(4):
        A(f"buffer_store_dwordx4 v[24:27], v14, {WS}, s81 offen sc1")
        if k < 3: A("s_add_u32 s81, s81, s80")
    keep = list(pend); pend.clear()
    A("L_s2:")
    A("s_barrier")
    issue_to(W)
    A("s_branch L_stream ; nf")

    A("L_aux:")
    A("s_barrier")
    if prio: A("s_setprio 3")
    A("v_bfe_u32 v11, v1, 3, 1"); A("v_mul_u32_u24 v11, 1280, v11"); A("v_lshl_add_u32 v11, v7, 3, v11")
    common2()
    stamp(1)
    A("v_lshrrev_b32 v40, 5, v1"); A("v_mul_u32_u24 v10, 1280, v40"); A("v_and_b32 v41, 31, v1"); A("v_mad_u32_u24 v10, v41, 40, v10")
    slots()
    A("v_and_b32 v7, 1, v1"); A("v_cmp_eq_u32 vcc, 1, v7"); A("v_bfe_u32 v7, v1, 1, 2")
    A("v_mov_b32 v28, 0x0c0c0100"); A("v_mov_b32 v29, 0x01000c0c"); A("v_cndmask_b32 v28, v28, v29, vcc")
    A("v_mov_b32 v29, 0x0c0c0302"); A("v_mov_b32 v30, 0x03020c0c"); A("v_cndmask_b32 v29, v29, v30, vcc")
    A("v_mov_b32 v30, 0x0c0c0c0c")
    for r in range(4):
        A(f"v_cmp_eq_u32 vcc, {r}, v7"); A(f"v_cndmask_b32 v{14+r}, v30, v28, vcc"); A(f"v_cndmask_b32 v{18+r}, v30, v29, vcc")
    A(f"v_mov_b32 v13, {L_ML}"); A(f"v_mov_b32 v23, {OOB}")
    A("s_waitcnt vmcnt(20)")
    for base, a in ((XS, 10), (XO, 11)):
        A(f"ds_read_b64 v[{base}:{base+1}], v{a} offset:{L_X}"); A(f"ds_read_b64 v[{base+2}:{base+3}], v{a} offset:{L_X+8}")
        A(f"ds_read_b64 v[{base+4}:{base+5}], v{a} offset:{L_X+16}"); A(f"ds_read_b64 v[{base+6}:{base+7}], v{a} offset:{L_X+24}")
        A(f"ds_read_b64 v[{base+8}:{base+9}], v{a} offset:{L_X+32}")
    stamp(2)
    A("s_waitcnt lgkmcnt(0)")
    A("s_load_dword s56, s[40:41], 0")
    if CC is None:
        A("s_sub_u32 s78, s31, 24"); A("s_lshl3_add_u32 s47, s30, s78"); A("s_and_b32 s47, s47, 63")
        A("s_lshl_b32 s78, s47, 7"); A("s_and_b32 s46, s31, 1"); A("s_lshl_b32 s80, s46, 13"); A("s_add_u32 s44, s78, s80"); A(f"s_add_u32 s44, s44, {WS_PRB}")
        A("s_xor_b32 s45, s44, 0x2000")
        A("s_cmp_ge_u32 s31, 24"); A("s_cbranch_scc0 L_v1 ; nf")
        A("s_load_dword s48, s[40:41], s44 glc"); A("s_load_dword s49, s[40:41], s45 glc")
        A("L_v1:")
    X, mean, tmp = 192, 52, 56
    for i in range(10):
        A(f"v_lshlrev_b32 v{X+2*i}, 16, v{XS+i}"); A(f"v_and_b32 v{X+2*i+1}, 0xffff0000, v{XS+i}")
    pk("add", tmp, X, X+2); pk("add", tmp+2, X+4, X+6)
    for i in range(4, 10): pk("add", tmp+2*(i&1), tmp+2*(i&1), X+2*i)
    pk("add", tmp, tmp, tmp+2); A(f"v_add_f32 v{mean}, v{tmp}, v{tmp+1}")
    row_allred("v_add_f32", mean); swap_allred("v_add_f32", mean, tmp, 16)
    A(f"v_mul_f32 v{mean}, {F(1/640)}, v{mean}")
    for i in range(10): pk("add", X+2*i, X+2*i, mean, mod="op_sel_hi:[1,0] neg_lo:[0,1] neg_hi:[0,1]")
    for i in range(10):
        t = tmp + 2*(i&1)
        if i < 2: pk("mul", t, X+2*i, X+2*i)
        else: pk("fma", t, X+2*i, X+2*i, t)
    pk("add", tmp, tmp, tmp+2)
    va = mean + 2
    A(f"v_add_f32 v{va}, v{tmp}, v{tmp+1}")
    row_allred("v_add_f32", va); swap_allred("v_add_f32", va, tmp, 16)
    A(f"v_mul_f32 v{va}, {F(1/640)}, v{va}")
    bf16r(mean, mean); bf16r(va, va)
    A(f"v_add_f32 v{va}, {F(1e-5)}, v{va}"); bf16r(va, va)
    A(f"v_sqrt_f32 v{va}, v{va}"); bf16r(va, va)
    A(f"v_rcp_f32 v{va}, v{va}")
    A("v_mov_b32 v53, v52"); A("v_mov_b32 v55, v54")
    for i in range(10):
        A(f"v_lshlrev_b32 v{X+2*i}, 16, v{XO+i}"); A(f"v_and_b32 v{X+2*i+1}, 0xffff0000, v{XO+i}")
    A("v_permlane32_swap_b32 v52, v53"); A("v_permlane32_swap_b32 v54, v55")
    A("s_mov_b32 vcc_lo, 0xff00ff00"); A("s_mov_b32 vcc_hi, 0xff00ff00")
    A("v_cndmask_b32 v52, v52, v53, vcc"); A("v_cndmask_b32 v54, v54, v55, vcc")
    for i in range(10): pk("add", X+2*i, X+2*i, mean, mod="op_sel_hi:[1,0] neg_lo:[0,1] neg_hi:[0,1]")
    for i in range(10): A(f"v_cvt_pk_bf16_f32 v{XO+i}, v{X+2*i}, v{X+2*i+1}")
    for i in range(10):
        A(f"v_lshlrev_b32 v{X+2*i}, 16, v{XO+i}"); A(f"v_and_b32 v{X+2*i+1}, 0xffff0000, v{XO+i}")
    for i in range(10): pk("mul", X+2*i, X+2*i, va, mod="op_sel_hi:[1,0]")
    for i in range(10): A(f"v_cvt_pk_bf16_f32 v{XO+i}, v{X+2*i}, v{X+2*i+1}")
    stamp(3)
    for t in range(22):
        if t < 20:
            A(f"s_waitcnt vmcnt({19-t})"); A(f"ds_read_b128 v[{WQ+4*t}:{WQ+4*t+3}], v2 offset:{1024*t}")
            for r in range(4): A(f"v_perm_b32 v{AO+4*t+r}, v{XO+t//2}, v{XO+t//2}, v{14+4*(t&1)+r}")
        if t > 1:
            A(f"s_waitcnt lgkmcnt({min(2, 21-t)})"); mfma(ACC, AO+4*(t-2), WQ+4*(t-2), t == 2)
    A("s_add_u32 s56, s56, 0x01010101")
    A("s_lshl_b32 s39, s39, 11"); A(f"s_add_u32 s39, s39, {WS_QP}")
    A("v_mov_b32 v34, s56"); A("v_mov_b32 v35, s56"); A("v_mov_b32 v38, s56"); A("v_mov_b32 v39, s56")
    A("v_mov_b64 v[32:33], v[28:29]"); A("v_mov_b64 v[36:37], v[30:31]")
    if "noqst" not in exp:
        A(f"buffer_store_dwordx4 v[32:35], v2, {WS}, s39 offen {'' if 'qplain' in exp else 'sc1'}")
        A(f"buffer_store_dwordx4 v[36:39], v2, {WS}, s39 offen offset:1024 {'' if 'qplain' in exp else 'sc1'}")
    stamp(4)
    A("s_getreg_b32 s57, hwreg(HW_REG_XCC_ID, 0, 4)"); A("s_xor_b32 s57, s57, s56")
    A("s_lshl_b32 s78, s32, 14"); A("s_lshl_b32 s80, s34, 9"); A("s_add_u32 s78, s78, s80"); A(f"s_add_u32 s78, s78, {WS_QP}")
    A("v_lshlrev_b32 v42, 10, v40"); A("v_lshl_add_u32 v42, v41, 4, v42"); A("v_add_u32 v42, s78, v42")
    for k in range(1, 4): A(f"s_movk_i32 s{80+k}, {4096*k}")
    A("v_lshlrev_b32 v43, 4, v9"); A("v_and_b32 v7, 1, v8"); A("v_lshl_add_u32 v43, v7, 3, v43"); A("v_lshl_add_u32 v43, v40, 2, v43"); A(f"v_add_u32 v43, {L_Q}, v43")
    A("v_lshlrev_b32 v45, 4, v41"); A(f"v_add_u32 v45, {L_RED}, v45")
    A("s_lshl_b32 s78, s30, 3"); A("s_lshl_b64 s[76:77], 0xff, s78")
    if CC is None:
        flush()
        A("s_cmp_ge_u32 s31, 24"); A("s_cbranch_scc0 L_v2")
        A("s_memtime s[60:61]"); A("s_waitcnt lgkmcnt(0)")
        A("s_load_dword s48, s[40:41], s44 glc"); A("s_waitcnt lgkmcnt(0)")
        A("s_memtime s[62:63]"); A("s_waitcnt lgkmcnt(0)")
        A("s_load_dword s49, s[40:41], s45 glc"); A("s_waitcnt lgkmcnt(0)")
        A("s_memtime s[64:65]"); A("s_waitcnt lgkmcnt(0)")
        A("s_sub_u32 s60, s62, s60"); A("s_sub_u32 s62, s64, s62"); A("s_cmp_gt_u32 s60, s62"); A("s_addc_u32 s46, s46, 0")
        A("s_getreg_b32 s78, hwreg(HW_REG_XCC_ID, 2, 1)"); A("s_xor_b32 s46, s46, s78"); A("s_and_b32 s46, s46, 1"); A("s_xor_b32 s46, s46, s56")
        A("v_mov_b32 v44, s46"); A("s_lshl_b32 s47, s47, 2"); A("s_mov_b64 exec, 1")
        A(f"buffer_store_dword v44, v2, {WS}, s47 offen offset:{WS_VOTE} sc1")
        A("s_mov_b64 exec, -1")
        A("L_v2:")
    if qdelay is None: A("s_waitcnt vmcnt(0)")
    elif qdelay: A(f"s_sleep {qdelay}")
    stamp(5)
    A(f"s_mov_b32 s90, {SPIN}")
    flush()
    if "noqld" in exp: A("s_branch L_qok")
    A("L_qpoll:")
    for jj in range(8):
        A(f"buffer_load_dwordx4 v[{64+4*jj}:{67+4*jj}], v42, {WS}, {f's{80+jj//2}' if jj//2 else '0'} offen offset:{2048*(jj&1)} sc1")
    A("s_waitcnt vmcnt(0)")
    A("v_xor_b32 v7, s56, v66")
    for i in range(1, 16): A(f"v_bitop3_b32 v7, v7, v{66 + 4*(i//2) + (i&1)}, s56 bitop3:0xf6")
    A("v_cmp_ne_u32 vcc, 0, v7")
    A("s_cbranch_vccz L_qok")
    A("s_sub_u32 s90, s90, 1"); A("s_cbranch_scc0 L_qpoll")
    A("L_qok:")
    if "noflag" in exp:
        A("s_mov_b64 s[76:77], 0")
    A("s_mov_b64 exec, s[76:77]")
    A(f"buffer_load_dwordx4 v[48:51], v2, {WS}, 0 offen offset:{WS_FLAGS} sc1")
    A("s_mov_b64 exec, -1")
    for i in range(4): pk("add", 64+8*i, 64+8*i, 68+8*i)
    pk("add", 64, 64, 72); pk("add", 80, 80, 88); pk("add", 64, 64, 80)
    A("v_cvt_pk_bf16_f32 v64, v64, v65")
    A("ds_write_b32 v43, v64")
    stamp(6)
    def apbase(d):
        A(f"s_and_b32 s{d}, s30, 3"); A(f"s_lshl_b32 s{d}, s{d}, 4"); A("s_lshr_b32 s80, s30, 2"); A(f"s_add_u32 s{d}, s{d}, s80"); A(f"s_lshl_b32 s{d}, s{d}, 13")
        A(f"s_add_u32 s{d}, s{d}, {WS_AP}")
        if CC: A(f"s_xor_b32 s{d}, s{d}, 0x2000")
    def mlp5_setup():
        A("v_lshlrev_b32 v224, 2, v0")
        A("global_load_dword v252, v224, s[4:5]"); A("global_load_dword v253, v224, s[4:5] offset:1280")
        apbase(78); A("v_lshl_add_u32 v225, v0, 4, s78")
        A("v_lshrrev_b32 v226, 4, v0"); A("v_lshlrev_b32 v226, 6, v226"); A("v_bfe_u32 v7, v0, 1, 2"); A("v_lshl_add_u32 v226, v7, 4, v226")
        A("v_bfe_u32 v7, v0, 3, 1"); A("v_lshl_add_u32 v226, v7, 3, v226"); A("v_and_b32 v7, 1, v0"); A("v_lshl_add_u32 v226, v7, 2, v226"); A(f"v_add_u32 v226, {L_YB}, v226")
        A(f"v_mul_u32_u24 v227, {YBS}, v7"); A("v_lshl_add_u32 v227, v8, 4, v227"); A("s_lshl_b32 s78, s3, 8"); A("v_add_u32 v227, s78, v227")
        A("v_lshlrev_b32 v228, 7, v9"); A("v_lshl_add_u32 v228, v8, 4, v228"); A("s_lshl_b32 s78, s3, 9"); A("v_add_u32 v228, s78, v228")
        A(f"v_add_u32 v227, {L_YB}, v227"); A(f"v_add_u32 v228, {L_PB}, v228")
        A("v_and_b32 v7, 1, v8"); A("v_mul_u32_u24 v230, 48, v7"); A("v_lshrrev_b32 v7, 1, v8"); A("v_lshl_add_u32 v230, v7, 2, v230")
        A("s_lshl_b32 s78, s3, 3"); A(f"s_add_u32 s78, s78, {L_SB}"); A("v_add_u32 v230, s78, v230")
        A("v_lshrrev_b32 v7, 2, v1"); A("v_lshlrev_b32 v231, 6, v7"); A("v_and_b32 v7, 1, v8"); A("v_lshl_add_u32 v231, v7, 5, v231")
        A("v_and_b32 v7, 3, v1"); A("v_lshl_add_u32 v231, v7, 3, v231"); A("s_lshl_b32 s78, s3, 13"); A(f"s_add_u32 s78, s78, {L_W1}"); A("v_add_u32 v231, s78, v231"); A("v_xor_b32 v232, 32, v231")
    for r in (224, 225, 246, 56, 57): A(f"v_mov_b32 v{r}, 0")
    A("s_cmp_eq_u32 s36, 2"); A("s_cbranch_scc0 L_nofin")
    mlp5_setup()
    A("s_lshr_b32 s78, s37, 4"); A("s_lshl_b32 s78, s78, 3"); A("s_and_b32 s80, s37, 7"); A("s_add_u32 s33, s78, s80")
    A("s_min_u32 s34, s33, 19"); A("s_lshr_b32 s35, s30, 2"); A("s_mul_i32 s85, s35, 20"); A("s_add_u32 s85, s85, s34")
    A("s_mul_i32 s78, s85, 52"); A("s_lshr_b32 s78, s78, 9")
    A("s_mul_i32 s80, s78, 10"); A("s_sub_u32 s80, s85, s80")
    A("s_mul_i32 s78, s78, 160")
    A("s_and_b32 s81, s80, 1"); A("s_lshl_b32 s82, s81, 6"); A("s_lshr_b32 s83, s80, 1"); A("s_lshl_b32 s83, s83, 2"); A("s_add_u32 s82, s82, s83")
    A("s_lshl_b32 s81, s81, 3"); A("s_add_u32 s81, s81, 128")
    A("v_bfe_u32 v7, v1, 1, 2"); A("v_lshlrev_b32 v12, 4, v7")
    A("v_bfe_u32 v7, v1, 1, 1"); A("v_lshlrev_b32 v15, 4, v7"); A("v_bfe_u32 v7, v1, 2, 1"); A("v_lshl_add_u32 v15, v7, 2, v15")
    A("s_cmp_lt_u32 s80, 8"); A("s_cselect_b32 s82, s82, s81"); A("s_cselect_b64 vcc, -1, 0"); A("s_add_u32 s78, s78, s82")
    A("v_cndmask_b32 v12, v15, v12, vcc"); A("v_add3_u32 v14, v12, v8, s78"); A("v_lshlrev_b32 v12, 1, v14")
    A("v_mov_b32 v17, 0"); A("v_mov_b32 v16, 0")
    A("global_load_short_d16_hi v17, v12, s[22:23]")
    A("v_and_b32 v7, 1, v1"); A(f"v_mul_u32_u24 v15, {YBS}, v7"); A("v_mul_u32_u24 v7, 1280, v7"); A("v_add_u32 v12, v12, v7")
    A("v_lshrrev_b32 v7, 5, v14"); A("v_lshl_add_u32 v15, v7, 6, v15"); A("v_bfe_u32 v7, v14, 2, 2"); A("v_lshl_add_u32 v15, v7, 4, v15")
    A("v_bfe_u32 v7, v14, 4, 1"); A("v_lshl_add_u32 v15, v7, 3, v15"); A("v_and_b32 v7, 3, v14"); A("v_lshl_add_u32 v15, v7, 1, v15"); A(f"v_add_u32 v15, {L_YB}, v15")
    A("v_bfe_u32 v7, v1, 3, 1"); A("v_cmp_eq_u32 vcc, 0, v7"); A("v_cndmask_b32 v12, v23, v12, vcc")
    A("v_lshlrev_b32 v56, 14, v8"); A("v_lshl_add_u32 v56, v7, 12, v56"); A("v_and_b32 v57, 7, v1"); A("v_lshl_add_u32 v56, v57, 4, v56")
    A("s_lshl_b32 s78, s34, 7"); A("s_lshl_b32 s80, s35, 13"); A("s_add_u32 s78, s78, s80"); A(f"s_add_u32 s78, s78, {WS_MP}")
    if CC: A("s_xor_b32 s78, s78, 0x2000")
    A("v_add_u32 v56, s78, v56")
    A("v_cmp_gt_u32 vcc, 3, v8"); A("v_cndmask_b32 v57, v23, v56, vcc")
    for n in range(1, 7): A(f"s_mov_b32 s{80+n}, {n*65536}")
    A("L_nofin:")
    stamp(7)
    A("s_waitcnt vmcnt(0)")
    A("v_xor_b32 v7, s57, v48")
    for i in range(1, 4): A(f"v_bitop3_b32 v7, v7, v{48+i}, s57 bitop3:0xf6")
    A("v_cmp_ne_u32 vcc, 0, v7"); A("s_and_b64 vcc, vcc, s[76:77]")
    if not local: A("s_cmp_eq_u32 0, 0")
    A("s_cselect_b32 s76, 0, -1"); A("s_cselect_b32 s77, -1, 0")
    stamp(8)
    flush()
    A(f"s_mov_b32 s90, {SPIN*8}")
    A("L_mlw:")
    A("ds_read_b128 v[64:67], v13"); A("ds_read_b128 v[68:71], v13 offset:16")
    A("s_waitcnt lgkmcnt(0)")
    A("v_max3_u32 v7, v65, v67, v69"); A("v_max_u32 v7, v7, v71"); A("v_cmp_eq_u32 vcc, -1, v7")
    A("s_cbranch_vccz L_mlw2")
    A("s_sleep 1")
    A("s_sub_u32 s90, s90, 1"); A("s_cbranch_scc0 L_mlw")
    A("L_mlw2:")
    A("v_max3_f32 v36, v64, v66, v68"); A("v_max_f32 v36, v36, v70")
    for i in range(4): A(f"v_sub_f32 v{64+2*i}, v{64+2*i}, v36")
    for i in range(4): A(f"v_mul_f32 v{64+2*i}, {LOG2E:#x}, v{64+2*i}")
    for i in range(4): A(f"v_exp_f32 v{64+2*i}, v{64+2*i}")
    A("v_mul_f32 v37, v64, v65")
    for i in range(1, 4): A(f"v_fmac_f32 v37, v{64+2*i}, v{65+2*i}")
    A("s_mov_b32 exec_hi, 0")
    A("s_and_b32 exec_lo, s76, 0xff")
    A(f"buffer_store_dwordx4 v[36:39], v2, {WS}, s38 offen offset:512")
    A("s_and_b32 exec_lo, s77, 0xff")
    A(f"buffer_store_dwordx4 v[36:39], v2, {WS}, s38 offen offset:512 sc1")
    A("s_mov_b64 exec, -1")
    A(f"s_cmp_ge_u32 s31, {WARM or 99}"); A("s_cselect_b32 s59, 2, s36")
    A("v_lshlrev_b32 v47, 2, v1")
    flld = lambda: (A(f"buffer_load_dwordx4 v[48:51], v2, {WS}, 0 offen offset:{WS_FLAGS} sc1"), A(f"buffer_load_dword v46, v47, {WS}, 0 offen offset:{WS_VOTE} sc1"))
    A("s_cmp_eq_u32 s59, 2"); A("s_cbranch_scc0 L_f0")
    flld()
    A("L_f0:")
    A("s_mov_b32 exec_hi, 0")
    stamp(9)
    A(f"s_mov_b32 s90, {SPIN*8}")
    flush()
    A("L_ow:")
    for k in range(4): A(f"ds_read_b128 v[{72+4*k}:{75+4*k}], v45 offset:{512*k}")
    for k in range(4):
        A(f"s_waitcnt lgkmcnt({3-k})")
        for hh in (0, 2):
            if k == 0: pk("mul", 32+hh, 72+hh, 64, mod="op_sel_hi:[1,0]")
            else: pk("fma", 32+hh, 72+4*k+hh, 64+2*k, 32+hh, mod="op_sel_hi:[1,0,1]")
    A("v_cmp_u_f32 vcc, v32, v34"); A("s_cbranch_vccz L_ow2")
    A("v_max3_u32 v7, v72, v76, v80"); A("v_max_u32 v7, v7, v84"); A("v_cmp_eq_u32 vcc, -1, v7"); A("s_cbranch_vccz L_ow2")
    A("s_sub_u32 s90, s90, 1"); A("s_cbranch_scc0 L_ow")
    A("L_ow2:")
    A("s_mov_b32 exec_lo, s76")
    A(f"buffer_store_dwordx4 v[32:35], v2, {WS}, s38 offen")
    A("s_mov_b32 exec_lo, s77")
    A(f"buffer_store_dwordx4 v[32:35], v2, {WS}, s38 offen sc1")
    A("s_mov_b64 exec, -1")
    stamp(16)
    if "notail" not in exp:
        A("s_cmp_eq_u32 s59, 2"); A("s_cbranch_scc1 L_fl")
    A("L_aend:")
    fin()
    A("L_fl:")
    A(f"s_mov_b32 s90, {SPIN}")
    A("s_waitcnt vmcnt(2)")
    A("L_fchk:")
    A("v_xor_b32 v7, s56, v48")
    for i in range(1, 4): A(f"v_bitop3_b32 v7, v7, v{48+i}, s56 bitop3:0xf6")
    if CC is None: A("v_bitop3_b32 v7, v7, v46, s56 bitop3:0xf6")
    A("v_cmp_lt_u32 vcc, 15, v7")
    A("s_cbranch_vccz L_fok")
    flld()
    A("s_waitcnt vmcnt(0)")
    A("s_sub_u32 s90, s90, 1"); A("s_cbranch_scc0 L_fchk")
    A("L_fok:")
    if CC is None:
        A("v_cmp_ne_u32 vcc, s56, v46"); A("s_bcnt1_i32_b64 s78, vcc"); A("s_cmp_gt_u32 s78, 32"); A("s_cselect_b32 s78, 0x2000, 0")
        A("v_mov_b32 v46, s78"); A(f"v_mov_b32 v47, {L_CW}"); A("ds_write_b32 v47, v46")
        A("v_xor_b32 v225, s78, v225"); A("v_xor_b32 v56, s78, v56"); A("v_xor_b32 v57, s78, v57")
        if diag: A("v_writelane_b32 v255, s78, 58"); A("s_bcnt1_i32_b64 s78, vcc"); A("v_writelane_b32 v255, s78, 57")
        A("s_waitcnt lgkmcnt(0)")
    A("s_cmp_eq_u32 s36, 2"); A("s_cbranch_scc0 L_aend")
    if not W1W: A("s_barrier")
    A("s_barrier")
    A("s_branch L_mlp5")

    A("L_stream:")
    pend.extend(keep)
    stamp(1)
    A("s_sub_u32 s91, s3, 1"); A("v_add_u32 v18, 8192, v17")
    A("s_waitcnt lgkmcnt(0)")
    A("s_add_u32 s56, s56, 0x01010101"); A("s_getreg_b32 s57, hwreg(HW_REG_XCC_ID, 0, 4)"); A("s_xor_b32 s57, s57, s56")
    A("s_lshl_b32 s82, s30, 2"); A("s_add_u32 s82, s82, s91"); A(f"s_mul_i32 s82, s82, {128*1280}"); A("s_lshl_b32 s78, s37, 7"); A("s_add_u32 s82, s82, s78")
    A("s_lshl_b32 s78, s37, 2"); A("s_add_u32 s78, s78, s91"); A("s_mul_i32 s78, s78, 10240")
    A("s_lshl_b32 s83, s91, 14"); A("s_mul_i32 s80, s91, 10240"); A(f"s_add_u32 s88, s80, {L_W1}")
    A("s_cmp_eq_u32 s36, 1")
    A("s_cselect_b32 s44, s12, s20"); A("s_cselect_b32 s45, s13, s21"); A("s_cselect_b32 s46, 5242880, 0"); A("s_mov_b32 s47, 0x20000")
    A("s_cselect_b32 s82, s82, s78"); A("s_cselect_b32 s83, s83, s80"); A("s_cselect_b32 s87, 10240, 0")
    A("s_cmp_eq_u32 s36, 2"); A("s_cselect_b32 s46, 2211840, s46"); A("s_cselect_b32 s87, 128, s87"); A(f"s_addk_i32 s83, {L_WB}")
    srd(48, 12, 5242880); srd(52, 16, 2211840)
    A(f"v_mov_b32 v19, {OOB}")
    if NW:
        assert tall
        A(f"s_add_u32 s76, s83, {(16-NW)*1024}"); A(f"s_add_u32 s79, s82, {(16-NW)*10240}"); A("s_cmp_eq_u32 s36, 1")
        A(f"s_cselect_b32 s76, s76, {L_DUMMY}"); A("s_cselect_b32 s77, 0x400, 0"); A(f"s_cselect_b32 s79, s79, {OOB}")
    A("s_sub_u32 s78, s31, 18"); A("s_lshl2_add_u32 s78, s78, s91"); A("s_mul_i32 s78, s78, 46")
    A("v_add_u32 v32, s78, v1"); A("v_mul_u32_u24 v33, 6554, v32"); A("v_lshrrev_b32 v33, 22, v33")
    A("v_mul_u32_u24 v34, 640, v33"); A("v_sub_u32 v34, v32, v34")
    A("s_cmp_ge_u32 s31, 18"); A("s_cselect_b32 s80, 46, 0"); A("v_cmp_gt_u32 s[60:61], s80, v1")
    A("v_cmp_gt_u32 vcc, 4, v33"); A("s_and_b64 s[60:61], s[60:61], vcc")
    A("s_mul_i32 s80, s30, 655360")
    if TS:
        a_, b2_, c_ = TS; assert 10*a_ + 8*b2_ + 14*c_ == 1280 and NB == 16
        A("s_cmp_ge_u32 s31, 10"); A(f"s_cselect_b32 s81, {b2_}, {a_}"); A(f"s_cselect_b32 s85, {(40*a_ - 40*b2_) & 0xffffffff}, 0")
        A("s_cmp_ge_u32 s31, 18"); A(f"s_cselect_b32 s81, {c_}, s81"); A(f"s_cselect_b32 s85, {(40*a_ + 32*b2_ - 72*c_) & 0xffffffff}, s85")
        A("s_lshl2_add_u32 s78, s31, s91"); A("s_mul_i32 s78, s78, s81"); A("s_add_u32 s78, s78, s85"); A("s_lshl_b32 s78, s78, 7"); A("s_add_u32 s80, s80, s78")
        A("v_lshl_add_u32 v56, v1, 7, s80"); A("v_cmp_gt_u32 vcc, s81, v1"); A("v_cndmask_b32 v56, v19, v56, vcc")
    elif tall:
        A("s_mul_i32 s80, s32, 163840"); A("s_lshl2_add_u32 s78, s33, s91"); A(f"s_mul_i32 s78, s78, {320*NB}"); A("s_add_u32 s80, s80, s78")
        if NB < 16: A(f"s_add_u32 s80, s80, {(16-NB)*10240}")
        A("v_lshl_add_u32 v56, v1, 7, s80"); A(f"v_cmp_gt_u32 vcc, {5*NB//2}, v1"); A("v_cndmask_b32 v56, v19, v56, vcc")
    else:
        A("v_lshl_add_u32 v56, v32, 7, s80"); A("v_cndmask_b32 v56, v19, v56, s[60:61]"); A("s_mov_b32 s79, 327680")
    A("v_lshl_add_u32 v36, v33, 3, s30"); A("v_cmp_gt_u32 vcc, 27, v36"); A("s_and_b64 vcc, vcc, s[60:61]")
    A("v_mul_u32_u24 v57, 3456, v34"); A("v_lshl_add_u32 v57, v36, 7, v57"); A("v_cndmask_b32 v57, v19, v57, vcc")
    if T2:
        A("v_mul_u32_u24 v252, 81920, v36"); A("v_lshl_add_u32 v252, v34, 7, v252"); A("v_cndmask_b32 v252, v19, v252, vcc")
    A("v_and_b32 v7, 1, v1"); A("v_lshlrev_b32 v7, 4, v7"); A("v_mov_b32 v32, 0xffff"); A("v_lshlrev_b32 v7, v7, v32")
    A("v_bfe_u32 v32, v1, 1, 2")
    for r in range(4):
        A(f"v_cmp_eq_u32 vcc, {r}, v32"); A(f"v_cndmask_b32 v{20+r}, 0, v7, vcc")
    A(f"v_lshlrev_b32 v10, 4, v9"); A(f"v_add_u32 v10, {L_Q}, v10")
    A("s_lshl_b32 s78, s91, 3"); A(f"s_add_u32 s78, s78, {L_ML}"); A("v_mov_b32 v11, s78")
    A("v_lshlrev_b32 v12, 5, v9"); A("v_lshl_add_u32 v12, v8, 4, v12"); A("s_lshl_b32 s78, s91, 9"); A(f"s_add_u32 s78, s78, {L_RED}"); A("v_add_u32 v12, s78, v12")
    A("v_lshrrev_b32 v58, 3, v1"); A("v_mul_u32_u24 v58, 1280, v58"); A("v_bfe_u32 v7, v1, 1, 2"); A("v_xor_b32 v7, v7, v8")
    A("v_lshl_add_u32 v58, v7, 5, v58"); A("v_and_b32 v59, 1, v1"); A("v_lshlrev_b32 v59, 4, v59"); A("v_add_u32 v58, v58, v59")
    A("v_and_b32 v7, 1, v7"); A("v_lshl_add_u32 v59, v7, 5, v59"); A("v_lshrrev_b32 v7, 2, v1"); A("v_mul_u32_u24 v7, 3456, v7"); A("v_add_u32 v59, v59, v7")
    pump(); stamp(2); pump()
    ld1 = [(192 + 4*s, f"v224, {WS}, 0 offen offset:{1024*s}", 4, (0,)) for s in range(4)]
    for r in (14, 224, 225, 229, 246): A(f"v_mov_b32 v{r}, 0")
    if "nosetup" in exp: A("s_branch L_su9")
    A("s_cmp_eq_u32 s36, 1"); A("s_cbranch_scc0 L_su2")
    A("s_lshl_b32 s78, s30, 2"); A("s_add_u32 s78, s78, s91"); A("s_lshl_b32 s78, s78, 13"); A(f"s_add_u32 s78, s78, {WS_OP}")
    A("v_lshrrev_b32 v32, 5, v1"); A("v_and_b32 v33, 31, v1"); A("v_lshl_add_u32 v225, v32, 12, s78"); A("v_lshl_add_u32 v224, v33, 4, v225")
    A("v_and_b32 v7, 3, v1"); A("v_lshl_add_u32 v225, v7, 10, v225")
    A(f"v_mul_u32_u24 v226, {OBS}, v32"); A("v_lshrrev_b32 v33, 3, v33"); A("v_lshl_add_u32 v226, v33, 6, v226")
    A("v_lshl_add_u32 v226, v7, 4, v226"); A("v_bfe_u32 v7, v1, 2, 1"); A("v_lshl_add_u32 v226, v7, 3, v226")
    A("s_lshl_b32 s78, s91, 8"); A(f"s_add_u32 s78, s78, {L_OB}"); A("v_add_u32 v226, s78, v226")
    A("v_and_b32 v227, 1, v1"); A(f"v_mul_u32_u24 v227, {OBS}, v227"); A("v_lshl_add_u32 v227, v8, 4, v227"); A("v_add_u32 v227, s78, v227")
    traddr1280(230, 1024)
    A("v_add_u32 v230, s83, v230")
    for ct in range(1, 4): A(f"v_xor_b32 v{230+ct}, {32*ct}, v230")
    A("v_lshlrev_b32 v229, 3, v1"); A(f"v_add_u32 v228, {L_YB}, v229"); A("s_lshl_b32 s78, s91, 9"); A("v_add_u32 v234, s78, v228")
    A("s_lshl_b32 s80, s30, 14"); A("s_lshl_b32 s81, s37, 9"); A("s_add_u32 s84, s80, s81"); A("s_lshl_b32 s80, s91, 17")
    A("s_add_u32 s84, s84, s80"); A(f"s_add_u32 s84, s84, {WS_AP}"); A("s_add_u32 s85, s84, 8192")
    A("s_branch L_su9")
    A("L_su2:")
    A("s_cmp_eq_u32 s36, 2"); A("s_cbranch_scc0 L_su9")
    mlp5_setup()
    A(f"s_mul_i32 s84, s91, {160*3456}"); A("s_lshl_b32 s78, s37, 6"); A("s_add_u32 s84, s84, s78"); A("s_mul_i32 s85, s91, 10")
    A("v_mov_b32 v13, 0"); A("v_and_b32 v14, 31, v1"); A("v_lshlrev_b32 v247, 2, v14"); A(f"v_add_u32 v247, {L_PB + 256}, v247")
    A("s_lshl_b32 s78, s37, 5"); A("v_add_lshl_u32 v14, v14, s78, 1")
    A("global_load_short_d16_hi v13, v14, s[18:19]")
    traddr1280(16, 10240)
    for i in range(10):
        A(f"s_add_u32 s78, s85, {i}"); A("s_and_b32 s80, s78, 3"); A("s_lshl_b32 s80, s80, 5"); A(f"v_xor_b32 v{233+i}, s80, v16")
        A("s_lshr_b32 s78, s78, 2"); A("s_lshl_b32 s78, s78, 10"); A(f"v_add_u32 v{233+i}, s78, v{233+i}")
    for i in range(0, 32, 2): A(f"v_mov_b64 v[{192+i}:{193+i}], 0")
    A("v_and_b32 v7, 1, v1")
    A("v_lshlrev_b32 v243, 6, v7"); A("v_lshl_add_u32 v243, v8, 4, v243"); A("s_lshl_b32 s78, s91, 7"); A(f"s_add_u32 s78, s78, {L_H1}"); A("v_add_u32 v243, s78, v243")
    A(f"v_lshlrev_b32 v244, 2, v1"); A(f"v_add_u32 v244, {L_PB}, v244")
    A("v_lshrrev_b32 v7, 5, v1"); A("v_mul_u32_u24 v248, 48, v7"); A(f"v_add_u32 v248, {L_SB}, v248")
    A("v_lshlrev_b32 v245, 6, v7"); A("v_bfe_u32 v7, v1, 2, 2"); A("v_lshl_add_u32 v245, v7, 4, v245")
    A("v_bfe_u32 v7, v1, 4, 1"); A("v_lshl_add_u32 v245, v7, 3, v245"); A("v_and_b32 v7, 3, v1"); A("v_lshl_add_u32 v245, v7, 1, v245"); A("v_add_u32 v245, s78, v245")
    A("s_lshl_b32 s86, s37, 13"); A("s_and_b32 s78, s37, 1"); A("s_lshl_b32 s78, s78, 12"); A("s_sub_u32 s86, s86, s78")
    A("s_lshr_b32 s78, s91, 1"); A("s_lshl_b32 s78, s78, 13"); A("s_add_u32 s86, s86, s78")
    A("s_and_b32 s78, s91, 1"); A("s_mul_i32 s78, s78, 1280"); A("s_add_u32 s86, s86, s78"); A(f"s_add_u32 s86, s86, {WS_MP}")
    if CC: A("s_xor_b32 s86, s86, 0x2000")
    A("v_lshl_add_u32 v246, v8, 2, v9"); A("v_lshlrev_b32 v246, 4, v246")
    A(f"v_mov_b32 v24, {F(-2*0.7978845608028654*1.4426950408889634)}"); A(f"v_mov_b32 v25, {F(-2*0.7978845608028654*1.4426950408889634*0.044715)}")
    A(f"v_mov_b32 v26, {F(1+1e-5)}"); A(f"v_mov_b32 v27, {F(1e-10)}"); A(f"v_mov_b32 v250, {F(1/640)}"); A(f"v_mov_b32 v249, {L_CW}")
    A("L_su9:")
    while st["waited"] < W0: pump()
    A(f"s_cmp_eq_u32 s3, {9 if 'noflag' in exp else 1}"); A("s_cbranch_scc0 L_s3")
    A("v_mov_b32 v44, s57")
    A("s_lshl_b32 s78, s30, 5"); A("s_add_u32 s78, s78, s31"); A("s_lshl_b32 s78, s78, 2")
    A("s_mov_b64 exec, 1")
    A(f"buffer_store_dword v44, v2, {WS}, s78 offen offset:{WS_FLAGS} sc1")
    A("s_mov_b64 exec, -1")
    A("L_s3:")
    while st["waited"] < pos[16 + KQ]:
        pump()
        if st["waited"] == pos[15]: stamp(3)
    stamp(4)
    Q = 60
    A(f"s_mov_b32 s90, {SPIN*8}")
    flush()
    A("L_qw:")
    A(f"ds_read_b128 v[{Q}:{Q+3}], v10")
    A("s_waitcnt lgkmcnt(0)")
    A(f"v_max3_u32 v7, v{Q}, v{Q+1}, v{Q+2}"); A(f"v_max_u32 v7, v7, v{Q+3}"); A("v_cmp_eq_u32 vcc, -1, v7")
    A("s_cbranch_vccz L_qw2")
    A("s_sleep 1")
    A("s_sub_u32 s90, s90, 1"); A("s_cbranch_scc0 L_qw")
    A("L_qw2:")
    stamp(5)
    LIM = pos[31 - W] if QKP == "kv" else pos[30]
    P = 32
    for half in range(2):
        for r in range(4):
            for t in range(8*half, 8*half+8):
                A(f"v_dot2_f32_bf16 v{P+t}, v{K0+4*t+r}, v{Q+r}, {'0' if r == 0 else f'v{P+t}'}")
            if r & 1: pump(lim=LIM)
    R = 48
    for t in range(8): A(f"v_add_f32_dpp v{R+t}, v{P+t}, v{P+t} row_mirror row_mask:0xf bank_mask:0x3")
    for t in range(8): A(f"v_add_f32_dpp v{R+t}, v{P+t+8}, v{P+t+8} row_mirror row_mask:0xf bank_mask:0xc")
    for t in range(4): A(f"v_add_f32_dpp v{P+t}, v{R+t}, v{R+t} row_half_mirror row_mask:0xf bank_mask:0x5")
    for t in range(4): A(f"v_add_f32_dpp v{P+t}, v{R+t+4}, v{R+t+4} row_half_mirror row_mask:0xf bank_mask:0xa")
    pump(lim=LIM)
    for t in range(4): A(f"v_add_f32_dpp v{R+t}, v{P+t}, v{P+t} quad_perm:[2,3,0,1] row_mask:0xf bank_mask:0xf")
    A("s_mov_b32 vcc_lo, 0xcccccccc"); A("s_mov_b32 vcc_hi, 0xcccccccc")
    for t in range(2): A(f"v_cndmask_b32 v{P+t}, v{R+t}, v{R+t+2}, vcc")
    for t in range(2): A(f"v_add_f32_dpp v{R+t}, v{P+t}, v{P+t} quad_perm:[1,0,3,2] row_mask:0xf bank_mask:0xf")
    A("s_mov_b32 vcc_lo, 0xaaaaaaaa"); A("s_mov_b32 vcc_hi, 0xaaaaaaaa")
    S = 40
    A(f"v_cndmask_b32 v{S}, v{R}, v{R+1}, vcc")
    bf16r(S, S); A(f"v_mul_f32 v{S}, {F(128**-0.5)}, v{S}"); bf16r(S, S)
    A(f"v_mov_b32 v42, v{S}")
    pump(lim=LIM)
    row_allred("v_max_f32", 42); swap_allred("v_max_f32", 42, 44, 16); swap_allred("v_max_f32", 42, 44, 32)
    pump(lim=LIM)
    A(f"v_sub_f32 v43, v{S}, v42"); A(f"v_mul_f32 v43, {LOG2E:#x}, v43"); A("v_exp_f32 v43, v43")
    A("v_cvt_pk_bf16_f32 v45, v43, v43")
    row_allred("v_add_f32", 43); swap_allred("v_add_f32", 43, 44, 16); swap_allred("v_add_f32", 43, 44, 32)
    A("ds_write_b64 v11, v[42:43]")
    stamp(6)
    pump(lim=LIM)
    done = 0
    for t in range(16):
        for r in range(4): A(f"v_and_b32_dpp v{K0+4*t+r}, v45, v{20+r} row_newbcast:{t} row_mask:0xf bank_mask:0xf")
        if t >= 1 and pos[16 + done] <= st["waited"]:
            mfma(ACC, K0+4*done, V0+4*done, done == 0); done += 1
        if t in (4, 9): pump(lim=LIM)
    stamp(7)
    for t in range(done, 16):
        while t and st["waited"] < pos[15 + t]: pump()
        wait_for(pos[16 + t]); mfma(ACC, K0+4*t, V0+4*t, t == 0)
        if t < 15: issue_to(pos[16 + t] + 1 + W)
    assert st["issued"] == len(seq)
    stamp(8)
    A("s_mov_b32 exec_hi, 0")
    A(f"ds_write_b128 v12, v[{ACC}:{ACC+3}]")
    A("s_mov_b64 exec, -1")
    flush()
    save = dict(st); NPRE = len(seq)
    if "notail" in exp: fin()
    A("s_cmp_eq_u32 s36, 2"); A("s_cbranch_scc1 L_mlp")
    A("s_cmp_eq_u32 s36, 0"); A("s_cbranch_scc1 L_idle")

    mlld = lambda: A(f"buffer_load_dwordx4 v[208:211], v225, {WS}, 0 offen offset:512 sc1")
    free.add(len(seq)); MLI = len(seq); seq.append(mlld)
    for n in range(NR + PRE, 16 - NW):
        didx[n] = len(seq); seq.append(dma_a(n))
    blk = lambda n: didx[n]
    trd = [0]
    need = lambda ks: max(blk(4*ks + b) for b in range(4))
    kord = sorted(range(4), key=need)
    def trs():
        while trd[0] < 4 and need(kord[trd[0]]) <= st["waited"]:
            ks = kord[trd[0]]
            for ct in range(4):
                for u in range(2): A(f"ds_read_b64_tr_b16 v[{64+16*ks+4*ct+2*u}:{65+16*ks+4*ct+2*u}], v{230+ct} offset:{(4*ks+2*u)*1024}")
            trd[0] += 1
    Wc[0] = WO or W
    issue_to(pos[31] + 1 + W)
    trs()
    while st["issued"] < len(seq):
        pump(); trs()
    stamp(9)
    wait_for(MLI)
    A(f"s_mov_b32 s90, {SPIN}")
    flush()
    A("L_p0:")
    A("v_cmp_ne_u32 vcc, s56, v210"); A("v_cmp_ne_u32 s[60:61], s56, v211"); A("s_or_b64 vcc, vcc, s[60:61]"); A("s_cbranch_scc0 L_pd0")
    mlld()
    A("s_waitcnt vmcnt(0)")
    A("s_sub_u32 s90, s90, 1"); A("s_cbranch_scc0 L_p0")
    A("L_pd0:")
    for r, a, nd, chk in ld1:
        seq.append(None); st["issued"] += 1; A(ldtext(r, a, nd))
    A("v_max_f32_dpp v210, v208, v208 quad_perm:[1,0,3,2] row_mask:0xf bank_mask:0xf")
    A("v_max_f32_dpp v210, v210, v210 quad_perm:[2,3,0,1] row_mask:0xf bank_mask:0xf")
    A("v_sub_f32 v208, v208, v210"); A(f"v_mul_f32 v208, {LOG2E:#x}, v208"); A("v_exp_f32 v208, v208")
    A("v_mul_f32 v209, v208, v209")
    A("v_add_f32_dpp v209, v209, v209 quad_perm:[1,0,3,2] row_mask:0xf bank_mask:0xf")
    A("v_add_f32_dpp v209, v209, v209 quad_perm:[2,3,0,1] row_mask:0xf bank_mask:0xf")
    A("v_rcp_f32 v209, v209"); A("v_mul_f32 v208, v208, v209")
    for sp in range(4): A(f"v_mov_b32_dpp v{216+2*sp}, v208 quad_perm:[{sp},{sp},{sp},{sp}] row_mask:0xf bank_mask:0xf")
    while trd[0] < 4:
        wait_for(need(kord[trd[0]])); trs()
    stamp(10)
    def comb():
        for sp in range(4):
            for hh in (0, 2):
                if sp == 0: pk("mul", 212+hh, 192+hh, 216, mod="op_sel_hi:[1,0]")
                else: pk("fma", 212+hh, 192+4*sp+hh, 216+2*sp, 212+hh, mod="op_sel_hi:[1,0,1]")
    poll("1", ld1, comb, (212, 214))
    stamp(11)
    A("v_cvt_pk_bf16_f32 v212, v212, v213"); A("v_cvt_pk_bf16_f32 v213, v214, v215")
    A("ds_write_b64 v226, v[212:213]")
    for ks in range(4): A(f"ds_read_b128 v[{128+4*ks}:{131+4*ks}], v227 offset:{64*ks}")
    A("s_mov_b64 s[60:61], 0xffff")
    for ks in range(4):
        A(f"s_waitcnt lgkmcnt({3-ks})")
        for ct in range(4): mfma(144+4*ct, 128+4*ks, 64+16*ks+4*ct, ks == 0)
    for ct in range(4):
        A(f"s_lshl_b64 exec, s[60:61], {16*ct}"); A(f"ds_write_b64 v234, v[{144+4*ct}:{145+4*ct}]")
    A("s_mov_b64 exec, -1")
    A("s_waitcnt lgkmcnt(0)"); A("s_barrier")
    A("ds_read2st64_b64 v[160:163], v228 offset0:0 offset1:1"); A("ds_read2st64_b64 v[164:167], v228 offset0:2 offset1:3")
    A("s_waitcnt lgkmcnt(1)"); pk("add", 160, 160, 162)
    A("s_waitcnt lgkmcnt(0)"); pk("add", 164, 164, 166); pk("add", 160, 160, 164)
    A(f"buffer_store_dwordx2 v[160:161], v229, {WS}, s84 offen sc1")
    A(f"buffer_store_dwordx2 v[160:161], v229, {WS}, s85 offen sc1")
    stamp(12)
    fin()

    A("L_idle:")
    if IB: A("s_barrier")
    if T1 and not PT1: A(f"buffer_load_dword v6, v57, s[52:55], 0 offen {tnt}")
    if T2:
        A("s_mov_b32 s46, 2211840")
        A(f"buffer_load_dword v5, v252, s[44:47], 0 offen {tnt}")
    if not IB: A("s_barrier")
    if WARM:
        nwv = (32 - WARM) * 4; per = 320 // nwv
        A(f"s_cmp_ge_u32 s31, {WARM}"); A("s_cbranch_scc0 L_widone")
        assert nwv in (8, 16)
        apbase(78)
        A(f"s_sub_u32 s81, s31, {WARM}"); A("s_lshl2_add_u32 s81, s81, s91")
        if nwv == 16:
            A("s_and_b32 s80, s81, 1"); A("s_mul_i32 s80, s80, 2560"); A("s_add_u32 s78, s78, s80"); A("s_lshr_b32 s81, s81, 1")
        A("s_lshl_b32 s81, s81, 14"); A("s_add_u32 s78, s78, s81")
        if CC is None:
            A(f"v_mov_b32 v7, {L_CW}"); A("ds_read_b32 v7, v7"); A("s_waitcnt lgkmcnt(0)"); A("v_readfirstlane_b32 s80, v7"); A("s_xor_b32 s78, s78, s80")
        A("v_lshlrev_b32 v7, 7, v1"); A(f"v_cmp_gt_u32 vcc, {per}, v1"); A("s_movk_i32 s90, 200")
        A("L_wi:")
        A("s_mov_b64 exec, vcc")
        A(f"buffer_load_dword v5, v7, {WS}, s78 offen sc1")
        A("s_waitcnt vmcnt(0)")
        if WSL: A(f"s_sleep {WSL}")
        A("v_cmp_eq_u32 vcc, -1, v5")
        A("s_cbranch_vccz L_widone")
        A("s_sub_u32 s90, s90, 1"); A("s_cbranch_scc0 L_wi")
        A("L_widone:")
    fin()

    A("L_mlp:")
    st.update(save); del seq[NPRE:]; free.discard(MLI); Wc[0] = WM or W
    seq.extend(dma_a(n) for n in range(NR + PRE, 10))
    issue_to(pos[31] + 1 + W)
    while st["issued"] < len(seq): pump()
    stamp(23)
    if not W1W: A("s_barrier")
    stamp(24)
    wgt = [1] * len(seq)
    for n in range(10):
        if W1W:
            while sum(wgt[st["waited"] + 1:]) + 2 > W1W: wait_for(st["waited"] + 1)
            seq.append(None); wgt.append(2); st["issued"] += 1
        A(f"s_add_u32 m0, s88, {n*1024}")
        if n: A(f"s_add_u32 s84, s84, {16*3456}")
        A(f"buffer_load_dwordx4 v59, s[52:55], s84 offen {w1nt} lds")
    stamp(9)
    W1F, W2F, PL, HO, H1O = 64, 96, 136, 168, 192
    flush()
    A("s_waitcnt vmcnt(10)"); A("s_barrier")
    if CC is None: A("ds_read_b32 v15, v249")
    for i in range(10):
        for u in range(2):
            r = W2F + 4*i + 2*u
            A(f"ds_read_b64_tr_b16 v[{r}:{r+1}], v{233+i} offset:{L_W2 + u*20480}")
    if CC is None:
        A("s_waitcnt lgkmcnt(15)")
        A("v_readfirstlane_b32 s78, v15"); A("v_xor_b32 v225, v15, v225"); A("s_xor_b32 s86, s86, s78")
    A("L_mlp5:")
    sofr = [None, 76, 77, 87, 88, 89, 57, 58]
    for p in range(1, 8): A(f"s_mov_b32 s{sofr[p]}, {p*16384}")
    ld2 = [(PL + 4*p, f"v225, {WS}, {f's{sofr[p]}' if p else '0'} offen", 4, CHK2) for p in range(8)]
    for r in range(16): A(f"v_mov_b32 v{HO+r}, 0x3f803f80")
    A("s_mov_b32 s50, 0x00030003"); A("s_mov_b32 s51, 0x00030003"); A("s_mov_b32 s48, 0x00070007"); A("s_mov_b32 s49, 0x00070007")
    A("v_lshlrev_b32 v184, 16, v252"); A("v_lshlrev_b32 v185, 16, v253"); A("v_and_b32 v186, 0xffff0000, v252"); A("v_and_b32 v187, 0xffff0000, v253")
    if EF:
        poll_first(ld2); A("s_waitcnt vmcnt(8)")
    else: A("s_waitcnt vmcnt(0)")
    A("s_barrier")
    stamp(10)
    if not EF: poll_first(ld2)
    stamp(20)
    for ks in range(4):
        for ct in range(2):
            for u in range(2):
                r = W1F + 8*ks + 4*ct + 2*u
                A(f"ds_read_b64_tr_b16 v[{r}:{r+1}], v{231+ct} offset:{(2*ks+u)*1024}")
    stamp(22)
    SM = 40
    def sum2():
        for i in range(0, 16, 2): pk("add", SM+i, PL+i, PL+16+i)
        sum4(SM)
    poll("2", ld2, sum2, (SM, SM+2))
    stamp(11)
    a, b_, c = SM, SM+4, SM+6
    def unpack():
        A(f"v_lshlrev_b32 v{a}, 16, v{b_}"); A(f"v_lshlrev_b32 v{a+1}, 16, v{b_+1}"); A(f"v_and_b32 v{a+2}, 0xffff0000, v{b_}"); A(f"v_and_b32 v{a+3}, 0xffff0000, v{b_+1}")
    A(f"v_cvt_pk_bf16_f32 v{b_}, v{a}, v{a+2}"); A(f"v_cvt_pk_bf16_f32 v{b_+1}, v{a+1}, v{a+3}"); unpack()
    pk("add", a, a, 184); pk("add", a+2, a+2, 186)
    A(f"v_cvt_pk_bf16_f32 v{b_}, v{a}, v{a+2}"); A(f"v_cvt_pk_bf16_f32 v{b_+1}, v{a+1}, v{a+3}")
    A(f"ds_write_b32 v226, v{b_}"); A(f"ds_write_b32 v226, v{b_+1} offset:{YBS}")
    A("s_mov_b64 exec, s[50:51]")
    for ks in range(4): A(f"ds_read_b128 v[{HO+4*ks}:{HO+3+4*ks}], v227 offset:{64*ks}")
    A("s_mov_b64 exec, -1")
    unpack()
    pk("mul", c+2, a, a); pk("add", c, a, a+2); pk("fma", c+2, a+2, a+2, c+2)
    A(f"v_permlane32_swap_b32 v{c}, v{c+2}"); A(f"v_permlane32_swap_b32 v{c+1}, v{c+3}"); pk("add", c, c, c+2)
    A(f"v_permlane16_swap_b32 v{c}, v{c+1}"); A(f"v_add_f32 v{c}, v{c}, v{c+1}")
    red = [f"v_add_f32_dpp v{c}, v{c}, v{c} {m} row_mask:0xf bank_mask:0xf" for m in ("row_mirror", "row_half_mirror", "quad_perm:[2,3,0,1]", "quad_perm:[1,0,3,2]")]
    for ks in range(4):
        A(f"s_waitcnt lgkmcnt({3-ks})")
        for ct in range(2): mfma(28+4*ct, W1F+8*ks+4*ct, HO+4*ks, ks == 0)
        A(red[ks])
    A(f"ds_write_b32 v230, v{c}")
    A("s_mov_b64 exec, s[48:49]")
    A("ds_write_b128 v228, v[28:31]"); A("ds_write_b128 v228, v[32:35] offset:64")
    A("s_mov_b64 exec, -1")
    A("s_waitcnt lgkmcnt(0)"); A("s_barrier")
    stamp(12)
    A("s_cmp_eq_u32 s3, 0"); A("s_cbranch_scc1 L_final ; nf")
    pend_fin = list(pend)
    A("ds_read_b128 v[40:43], v248"); A("ds_read_b128 v[44:47], v248 offset:16"); A("ds_read_b64 v[48:49], v248 offset:32")
    A("ds_read2st64_b32 v[52:53], v247 offset0:0 offset1:2"); A("ds_read2st64_b32 v[54:55], v247 offset0:4 offset1:6"); A("ds_read_b32 v15, v247 offset:2048")
    A("ds_read2st64_b32 v[36:37], v244 offset0:0 offset1:2"); A("ds_read2st64_b32 v[38:39], v244 offset0:4 offset1:6"); A("ds_read_b32 v50, v244 offset:2048")
    A("s_waitcnt lgkmcnt(6)")
    pk("add", 40, 40, 42); pk("add", 44, 44, 46); pk("add", 40, 40, 48); pk("add", 40, 40, 44)
    pk("mul", 40, 40, 250, mod="op_sel_hi:[1,0]")
    A("v_fma_f32 v41, -v40, v40, v41"); A("v_max_f32 v41, 0, v41")
    A("v_fma_f32 v41, v41, v26, v27"); A("v_rsq_f32 v41, v41")
    A("s_waitcnt lgkmcnt(3)")
    pk("add", 52, 52, 54); A("v_add_f32 v15, v15, v52"); A("v_add_f32 v15, v15, v53")
    A("s_waitcnt lgkmcnt(0)")
    pk("add", 36, 36, 38); A("v_fma_f32 v50, -v40, v15, v50"); A("v_add_f32 v36, v36, v37"); A("v_add_f32 v36, v36, v50")
    A("v_mul_f32 v36, v36, v41")
    bf16r(36, 36); A("v_add_f32 v36, v36, v13"); bf16r(36, 36)
    A("v_mul_f32 v37, v36, v36"); A("v_fma_f32 v37, v37, v25, v24"); A("v_mul_f32 v37, v37, v36"); A("v_exp_f32 v37, v37")
    A("v_add_f32 v37, 1.0, v37"); A("v_rcp_f32 v37, v37"); A("v_mul_f32 v36, v36, v37")
    A("v_cvt_pk_bf16_f32 v36, v36, v36")
    A("ds_write_b16 v245, v36")
    for t in range(8):
        A(f"s_lshl_b64 exec, s[50:51], {2*t}")
        A(f"ds_read_b128 v[{H1O+4*t}:{H1O+3+4*t}], v243")
    A("s_mov_b64 exec, -1")
    for i in [0, 8, 1, 9, 2, 3, 4, 5, 6, 7]:
        t = i & 7
        if i < 8: A(f"s_waitcnt lgkmcnt({7-t})")
        mfma(28 + 4*(i >> 3), W2F+4*i, H1O+4*t, t == 0)
    A("s_mov_b32 exec_lo, 0x000f000f"); A("s_mov_b32 exec_hi, 0x000f000f")
    A(f"buffer_store_dwordx4 v[32:35], v246, {WS}, s86 offen offset:1024 sc1")
    A("s_mov_b64 exec, -1")
    A(f"buffer_store_dwordx4 v[28:31], v2, {WS}, s86 offen sc1")
    stamp(18)
    if h3 is not None:
        if h3 < 0: A("s_waitcnt vmcnt(0)")
        A("s_barrier")
    stamp(13)
    fin()

    A("L_final:")
    pend.extend(pend_fin)
    A("s_cmp_ge_u32 s33, 20"); A("s_cbranch_scc1 L_epoch")
    A("ds_read_u16_d16_hi v16, v15")
    srd(44, 24, 2560)
    ld3 = [(96 + 4*n, f"v{57 if n == 6 else 56}, {WS}, {f's{80+n}' if n else '0'} offen", 4, (0,)) for n in range(7)]
    A("s_waitcnt lgkmcnt(0)")
    if h3 is not None:
        A("s_barrier")
        if h3 > 0: A(f"s_sleep {h3}")
    poll_first(ld3)
    def sum3():
        for k in range(3):
            for hh in (0, 2): pk("add", 64+4*k+hh, 96+8*k+hh, 100+8*k+hh)
        for hh in (0, 2):
            pk("add", 64+hh, 64+hh, 68+hh); pk("add", 72+hh, 72+hh, 120+hh)
        for hh in (0, 2): pk("add", 64+hh, 64+hh, 72+hh)
    poll("3", ld3, sum3, (64, 66))
    stamp(14)
    A("v_permlane32_swap_b32 v64, v66"); A("v_permlane32_swap_b32 v65, v67"); pk("add", 64, 64, 66)
    A("v_permlane16_swap_b32 v64, v65"); A("v_add_f32 v64, v64, v65")
    A("v_add_f32_dpp v64, v64, v64 row_ror:8 row_mask:0xf bank_mask:0xf")
    bf16r(64, 64); A("v_add_f32 v64, v64, v17"); bf16r(64, 64); A("v_add_f32 v64, v64, v16")
    A("v_cvt_pk_bf16_f32 v64, v64, v64")
    A("buffer_store_short v64, v12, s[44:47], 0 offen")
    stamp(15)
    fin()
    A("L_epoch:")
    A("s_cmp_eq_u32 s37, 53"); A("s_cbranch_scc0 L_fend")
    A("v_mov_b32 v34, s56"); A("s_mov_b64 exec, 1")
    A(f"buffer_store_dword v34, v2, {WS}, 0 offen")
    A("L_fend:")
    if diag: fin()
    A("L_end:")
    A("s_endpgm")

    body = fix(L)
    out = [HDR.rstrip("\n"),
           "; One launch, 256 workgroups (one per CU); hand-offs between workgroups go through d_ws.",
           f"; @launch grid=(256,1,1) block=(320,1,1) lds={LDS_BYTES}",
           '.amdgcn_target "amdgcn-amd-amdhsa--gfx950"', ".text", f".globl {NAME}_kernel", ".p2align 8",
           f".type {NAME}_kernel,@function", f"{NAME}_kernel:"] + body + [
           '.section .rodata,"a"', ".p2align 6", f".amdhsa_kernel {NAME}_kernel",
           "  .amdhsa_next_free_vgpr 256", "  .amdhsa_next_free_sgpr 102", "  .amdhsa_accum_offset 256",
           "  .amdhsa_group_segment_fixed_size 0", "  .amdhsa_kernarg_size 104", "  .amdhsa_user_sgpr_count 2",
           "  .amdhsa_user_sgpr_kernarg_segment_ptr 1", "  .amdhsa_system_sgpr_workgroup_id_x 1",
           "  .amdhsa_float_denorm_mode_32 3",
           ".end_amdhsa_kernel"]
    return "\n".join(out) + "\n"

if __name__ == "__main__":
    import argparse
    ap = argparse.ArgumentParser(); ap.add_argument("-o", default=f"cdna_kernels/{NAME}.s"); ap.add_argument("--diag", action="store_true")
    ap.add_argument("--kw", default="")
    a = ap.parse_args()
    open(a.o, "w").write(gen(diag=a.diag, **eval("dict(%s)" % a.kw)))
```

```python
import sys, struct
from hz import fix
NAME = "sequential_preLN__sliding_block_cached__mixer_channel_mlp__decode"
HDR = open("cdna_kernels/%s.s.ref" % NAME).read().split("; Override launch")[0]
def F(x): return "0x%08x" % struct.unpack("<I", struct.pack("<f", x))[0]

WS_FLAGS = 1024; WS_VOTE = 2048; WS_PRB = 0x4000; WS_MP = 0x10000; WS_AP = 0x80000; WS_QP = 0x100000; WS_OP = 0x180000
WS_STAMP = 0x200000
OOB = 0xF0000000
L_WB = 23552
L_W2 = L_WB; L_W1 = L_WB + 40960
L_RED = L_WB + 81920
L_Q = L_RED + 2048
L_ML = L_Q + 256
L_SB = L_ML + 96
L_OB = L_SB + 96
L_OF = L_OB + 4096
L_YB = L_OF + 8704
YBS = 1344
L_PB = L_YB + 2 * YBS
L_CW = L_PB + 2560
L_H1 = L_CW + 64
L_DUMMY = L_H1 + 512
LDS_BYTES = L_DUMMY + 1024
SPIN = 400000
LOG2E = 0x3FB8AA3B

def gen(diag=False, nt='nt', W=7, wnt='nt', prio=False, KQ=2, depth=0, PT0=12, T1=True, T2=False, tnt='', local=True, probe=None, h3=-1, exp=(), qdelay=None, PRE=None, QKP='kv', W0=2, NR=0, PR=17, RS=1.5, tall=True, tfree=False, NB=16, MB=True, EF=True, IB=True, WARM=0, WSL=0, CC=None, ROT=False, w1nt='nt', WO=16, RC=False, NW=6, PW=20, WS_=2, TS=(30,21,58), W1W=None, WK=None, KW=12, KS=1, MIX='iw', QL=True, UNR=2, MLS=False, OMS=False, GW=False, PFO=False, TRF=True, WB=None, osc='', MPRE=None, WM=None, FASTP=True, CHK2=(0,), PT1=None, only=None):
    L = []
    pend = []
    def A(s):
        for l in s.split("\n"):
            l = l.strip()
            if pend and l.startswith(("s_cbranch", "s_branch")) and not l.endswith("; nf"):
                A("s_waitcnt lgkmcnt(0)")
            L.append("    " + l if not l.endswith(":") else l)
            if pend and l.startswith("s_waitcnt") and "lgkmcnt(0)" in l:
                for r, i in pend: L.append(f"    v_writelane_b32 v255, s{r}, {i}")
                pend.clear()
    def stamp(i, clk=False):
        if diag and (only is None or i in only or i >= 59):
            if len(pend) >= 4: A("s_waitcnt lgkmcnt(0)")
            r = 92 + 2 * len(pend)
            A(f"{'s_memtime' if clk else 's_memrealtime'} s[{r}:{r+1}]"); pend.append((r, i))
    def flush():
        if pend: A("s_waitcnt lgkmcnt(0)")
    def bf16r(d, x):
        A(f"v_cvt_pk_bf16_f32 v{d}, v{x}, v{x}"); A(f"v_and_b32 v{d}, 0xffff0000, v{d}")
    def row_allred(op, v):
        for c in ("row_mirror", "row_half_mirror", "quad_perm:[2,3,0,1]", "quad_perm:[1,0,3,2]"):
            A(f"{op}_dpp v{v}, v{v}, v{v} {c} row_mask:0xf bank_mask:0xf")
    def swap_allred(op, v, t, which):
        A(f"v_mov_b32 v{t}, v{v}"); A(f"v_permlane{which}_swap_b32 v{v}, v{t}"); A(f"{op} v{v}, v{v}, v{t}")
    def srd(r, base, size):
        A(f"s_mov_b32 s{r}, s{base}"); A(f"s_mov_b32 s{r+1}, s{base+1}"); A(f"s_mov_b32 s{r+2}, {size}"); A(f"s_mov_b32 s{r+3}, 0x20000")
    def pk(op, d, a, b, c=None, mod=""):
        A(f"v_pk_{op}_f32 v[{d}:{d+1}], v[{a}:{a+1}], v[{b}:{b+1}]" + (f", v[{c}:{c+1}]" if c is not None else "") + (" " + mod if mod else ""))
    def mfma(d, a, b, first):
        A(f"v_mfma_f32_16x16x32_bf16 v[{d}:{d+3}], v[{a}:{a+3}], v[{b}:{b+3}], {'0' if first else f'v[{d}:{d+3}]'}")
    def sum4(b):
        for hh in (0, 2):
            pk("add", b+hh, b+hh, b+4+hh); pk("add", b+8+hh, b+8+hh, b+12+hh)
        for hh in (0, 2): pk("add", b+hh, b+hh, b+8+hh)
    def role_decode():
        A("s_sub_u32 s78, s31, 10"); A("s_lshr_b32 s80, s78, 1"); A("s_lshl_b32 s80, s80, 3"); A("s_add_u32 s80, s80, s30")
        A("s_and_b32 s78, s78, 1"); A("s_lshl_b32 s37, s80, 1"); A("s_add_u32 s37, s37, s78")
        A("s_cmp_lt_u32 s80, 27"); A("s_cselect_b32 s36, 2, 0")
        A("s_cmp_lt_u32 s31, 10"); A("s_cselect_b32 s36, 1, s36"); A("s_cselect_b32 s37, s31, s37")
    WS = "s[40:43]"
    def ldtext(r, a, n=4):
        return f"buffer_load_dwordx{n} v[{r}:{r+n-1}], {a} sc1"
    def poll_init(loads):
        for r, a, n, chk in loads:
            for c in chk: A(f"v_mov_b32 v{r+c}, -1")
    def poll_first(loads):
        for r, a, n, chk in loads: A(ldtext(r, a, n))
    def poll(tag, loads, work, res, direct=False):
        n = len(loads)
        def masks():
            for i, (r, a, nd, chk) in enumerate(loads):
                if len(chk) == 1: A(f"v_cmp_eq_u32 s[{60+2*i}:{61+2*i}], -1, v{r+chk[0]}")
                else:
                    A(f"v_max_u32 v{6+(i&1)}, v{r+chk[0]}, v{r+chk[1]}"); A(f"v_cmp_eq_u32 s[{60+2*i}:{61+2*i}], -1, v{6+(i&1)}")
        def issue():
            for i, (r, a, nd, chk) in enumerate(loads):
                A(f"s_mov_b64 exec, s[{60+2*i}:{61+2*i}]")
                A(ldtext(r, a, nd))
            A("s_mov_b64 exec, -1")
        A(f"s_mov_b32 s90, {SPIN}")
        flush()
        if not FASTP:
            A(f"L_p{tag}:")
            A("s_waitcnt vmcnt(0)")
            work()
            A(f"v_cmp_u_f32 vcc, v{res[0]}, v{res[1]}")
            A(f"s_cbranch_vccz L_pd{tag}")
            masks(); issue()
            A("s_or_b64 vcc, s[60:61], s[62:63]" if n > 1 else "s_or_b64 vcc, s[60:61], s[60:61]")
            for i in range(2, n): A(f"s_or_b64 vcc, vcc, s[{60+2*i}:{61+2*i}]")
            A(f"s_cbranch_scc0 L_pd{tag}")
            A("s_sub_u32 s90, s90, 1"); A(f"s_cbranch_scc0 L_p{tag}")
            A(f"L_pd{tag}:")
            return
        if direct:
            for i in range(n): A(f"s_mov_b64 s[{60+2*i}:{61+2*i}], -1")
            A("s_cmp_eq_u32 0, 1"); A(f"s_branch L_pe{tag}x")
        else:
            A("s_waitcnt vmcnt(0)")
            work()
            A(f"v_cmp_u_f32 vcc, v{res[0]}, v{res[1]}")
            A(f"s_cbranch_vccz L_pd{tag}")
            masks()
        A(f"L_p{tag}:")
        issue(); masks()
        A("s_sub_u32 s90, s90, 1")
        if direct: A(f"L_pe{tag}x:")
        A("s_waitcnt vmcnt(0)")
        regs = [r + c for r, a, nd, chk in loads for c in chk]
        h = len(regs) // 2 if len(regs) >= 6 else len(regs)
        ra, rb = regs[:h], regs[h:]
        first = {6: True, 7: True}
        while ra or rb:
            for d, rs in ((7, ra), (6, rb)):
                if not rs: continue
                if first[d]: A(f"v_max3_u32 v{d}, v{rs[0]}, v{rs[1]}, v{rs[2]}"); del rs[:3]; first[d] = False
                elif len(rs) >= 2: A(f"v_max3_u32 v{d}, v{d}, v{rs[0]}, v{rs[1]}"); del rs[:2]
                else: A(f"v_max_u32 v{d}, v{d}, v{rs[0]}"); del rs[:1]
        if not first[6]: A("v_max_u32 v7, v7, v6")
        A("v_cmp_eq_u32 vcc, -1, v7")
        A(f"s_cbranch_scc1 L_pw{tag}")
        A(f"s_cbranch_vccnz L_p{tag}")
        A(f"L_pw{tag}:")
        work()
        A(f"L_pd{tag}:")
    def fin():
        if diag:
            A("s_mov_b64 exec, -1")
            stamp(59); stamp(61, True); A("s_waitcnt lgkmcnt(0)")
            A("s_getreg_b32 s92, hwreg(HW_REG_XCC_ID)"); A("v_writelane_b32 v255, s92, 62")
            A("s_cmp_eq_u32 s3, 0"); A("s_cselect_b32 s92, 3, 0"); A("s_add_u32 s92, s92, s36"); A("v_writelane_b32 v255, s92, 63")
            A("s_mul_i32 s78, s2, 5"); A("s_add_u32 s78, s78, s3"); A("s_lshl_b32 s78, s78, 8"); A(f"s_add_u32 s78, s78, {WS_STAMP}")
            A("v_lshlrev_b32 v7, 2, v1")
            A(f"buffer_store_dword v255, v7, {WS}, s78 offen")
            if probe is not None:
                fin.n = getattr(fin, "n", 0) + 1
                pi, pw, role = probe
                A("s_cmp_eq_u32 s3, 0"); A(f"s_cbranch_scc{1 if pw == 1 else 0} L_pe{fin.n}")
                if role is not None:
                    A(f"s_cmp_eq_u32 s36, {role}"); A(f"s_cbranch_scc0 L_pe{fin.n}")
                A("v_readlane_b32 s80, v255, 0")
                if pi == "xcc":
                    A("s_getreg_b32 s78, hwreg(HW_REG_XCC_ID, 0, 4)"); A("s_cmp_eq_u32 s78, s30"); A("s_cselect_b32 s78, 0, 400")
                elif pi == "vote":
                    A("v_readlane_b32 s78, v255, 57"); A("s_nop 4"); A("s_mul_i32 s78, s78, 10")
                else:
                    A(f"v_readlane_b32 s78, v255, {pi}"); A("s_nop 4"); A("s_cmp_eq_u32 s78, 0"); A(f"s_cbranch_scc1 L_pe{fin.n}")
                    A("s_sub_u32 s78, s78, s80")
                A("s_mul_i32 s78, s78, 10"); A("s_add_u32 s78, s78, s80"); A("s_add_u32 s78, s78, 2000")
                A(f"L_prw{fin.n}:"); A("s_sleep 2"); A("s_memrealtime s[92:93]"); A("s_waitcnt lgkmcnt(0)"); A("s_sub_u32 s92, s92, s78"); A("s_cmp_lt_i32 s92, 0"); A(f"s_cbranch_scc1 L_prw{fin.n}")
                A(f"L_pe{fin.n}:")
        A("s_endpgm")
    def traddr1280(d, blk):
        A("v_bfe_u32 v7, v1, 2, 3"); A(f"v_lshlrev_b32 v{d}, 7, v7"); A("v_lshrrev_b32 v7, 1, v7"); A(f"v_lshl_add_u32 v{d}, v7, 5, v{d}")
        A("v_lshrrev_b32 v7, 5, v1"); A(f"v_mul_u32_u24 v7, {blk}, v7"); A(f"v_add_u32 v{d}, v{d}, v7")
        A("v_and_b32 v7, 3, v1"); A(f"v_lshl_add_u32 v{d}, v7, 3, v{d}")

    K0, V0 = 64, 128
    ACC = 28
    XS, XO, WQ, AO = 228, 238, 64, 144

    L_X = 20480
    if diag: A("s_memrealtime s[100:101]")
    A("s_load_dwordx16 s[4:19], s[0:1], 0"); A("s_load_dwordx2 s[40:41], s[0:1], 96")
    A("s_lshr_b32 s31, s2, 3"); A("s_and_b32 s33, s31, 7")
    A("s_getpc_b64 s[52:53]"); A("L_pc:")
    A("s_cmp_eq_u32 s33, 7"); A("s_cselect_b32 s54, L_end-L_pc, 0"); A("s_mov_b32 s55, 0x20000"); A("v_lshlrev_b32 v22, 7, v0")
    A("buffer_load_dword v4, v22, s[52:55], 0 offen")
    A("v_lshrrev_b32 v7, 6, v0"); A("v_and_b32 v1, 63, v0"); A("s_cmp_ge_u32 s31, 32"); A("v_readfirstlane_b32 s3, v7")
    A("s_cbranch_scc1 L_end ; nf")
    A("s_and_b32 s30, s2, 7"); A("s_lshr_b32 s78, s31, 3"); A("s_lshl2_add_u32 s32, s30, s78")
    A("v_lshlrev_b32 v2, 4, v1"); A("v_lshrrev_b32 v8, 4, v1"); A("v_and_b32 v9, 15, v1")
    A("s_lshr_b32 s34, s33, 2"); A("s_and_b32 s35, s33, 3")
    A("s_cmp_eq_u32 s3, 0"); A("s_cbranch_scc0 L_s0 ; nf")
    A("s_mul_i32 s78, s33, 20"); A("v_mad_u32_u24 v7, v8, 5, s78")
    A("v_lshlrev_b32 v12, 15, v7"); A("v_lshl_add_u32 v12, v9, 4, v12"); A("s_lshl_b32 s78, s32, 8"); A("v_add_u32 v12, s78, v12")
    A("s_movk_i32 s79, 0x2000"); A(f"s_movk_i32 m0, {L_X}")
    A("s_waitcnt lgkmcnt(0)")
    A("global_load_lds_dwordx4 v2, s[4:5]"); A("global_load_lds_dwordx4 v2, s[4:5] offset:1024"); A("global_load_lds_dwordx4 v2, s[4:5] offset:1536")
    A("s_mov_b32 m0, 0")
    A("s_nop 0")
    A("L_wq:")
    for _ in range(UNR):
        A(f"global_load_lds_dwordx4 v12, s[10:11] {nt}")
        A("s_addk_i32 m0, 0x400"); A("v_add_u32 v12, s79, v12")
    A(f"s_cmpk_lt_u32 m0, {L_X}"); A("s_cbranch_scc1 L_wq ; nf")
    A("s_branch L_aux ; nf")
    A("L_s0:")
    A("s_lshl_b32 s78, s34, 5"); A("s_add_u32 s78, s78, s32"); A("s_lshl_b32 s78, s78, 6"); A("s_lshl2_add_u32 s80, s35, s3"); A("s_add_u32 s78, s78, s80")
    A("s_add_u32 s78, s78, 47"); A("s_lshl_b32 s78, s78, 14"); A("s_addk_i32 s78, 0x1000")
    if 'w' in MIX:
        A("s_and_b32 s80, s3, 1"); A("s_lshl_b32 s80, s80, 13"); A("s_add_u32 s78, s78, s80")
    A("v_add_u32 v17, s78, v2"); A("v_xor_b32 v18, 0x2000, v17")
    A("L_s1:")
    def common2():
        A("s_load_dwordx8 s[20:27], s[0:1], 64")
        if diag:
            A("v_mov_b32 v255, 0"); pend.append((100, 0)); stamp(60, True)
        role_decode()
        A("s_mov_b32 s42, 0x10000000"); A("s_mov_b32 s43, 0x20000")
    def ldKV(base, ptr, t):
        hi, lo = (t & 1, t >> 1) if 'i' in MIX else (t // 8, t % 8)
        return lambda: A(f"global_load_dwordx4 v[{base+4*t}:{base+4*t+3}], v{17 + hi}, {ptr} offset:{lo*1024-4096} {nt}")
    redo = [False]
    def dma_a(n):
        def f():
            if n == MPRE and not redo[0]:
                A("s_cmp_eq_u32 s36, 2"); A("s_cselect_b32 s46, 0, s46")
            if n == 10:
                A("s_cmp_eq_u32 s36, 2"); A("s_cselect_b32 s46, 0, s46"); A(f"s_cselect_b32 s78, {40960 - 10240}, 0"); A("s_add_u32 s83, s83, s78")
            A(f"s_add_u32 m0, s83, {n*1024}")
            if n: A("s_add_u32 s82, s82, s87")
            A(f"buffer_load_dwordx4 v58, s[44:47], s82 offen {wnt} lds")
        return f
    kv = [ldKV(K0, "s[6:7]", t) for t in range(16)] + [ldKV(V0, "s[8:9]", t) for t in range(16)]
    def rider():
        A("s_mov_b32 m0, s76"); A("s_add_u32 s76, s76, s77")
        A(f"buffer_load_dwordx4 v58, s[44:47], s79 offen {wnt} lds"); A("s_addk_i32 s79, 10240")
    seq = []; pos = []; free = set(); nr = 0; nw_ = 0; didx = {}
    for i, f in enumerate(kv):
        if PT0 == i:
            if tfree or not tall: free.add(len(seq))
            seq.append(lambda: A(f"buffer_load_dword v4, v56, s[48:51], 0 offen {tnt}"))
        if PT0 + 3 == i and not tall:
            free.add(len(seq)); seq.append(lambda: A(f"buffer_load_dword v5, v56, s[48:51], s79 offen {tnt}"))
        while nr < NR and PR + nr * RS <= i:
            free.add(len(seq)); didx[nr] = len(seq); seq.append(dma_a(nr)); nr += 1
        while nw_ < NW and PW + nw_ * WS_ <= i:
            free.add(len(seq)); didx[16 - NW + nw_] = len(seq); seq.append(rider); nw_ += 1
        pos.append(len(seq)); seq.append(f)
    assert nr == NR and nw_ == NW
    if PT1:
        free.add(len(seq)); seq.append(lambda: A(f"buffer_load_dword v6, v57, s[52:55], 0 offen {tnt}"))
    PRE = min(W - 1, 16 - NR - NW)
    for n in range(NR, NR + PRE):
        didx[n] = len(seq); seq.append(dma_a(n))
    st = dict(issued=0, waited=-1)
    Wc = [WK or W]
    def issue_to(n):
        inflight = lambda: sum(1 for i in range(n - W, st["issued"]) if i not in free)
        while st["issued"] < len(seq) and (st["issued"] < n - W + Wc[0] or inflight() < Wc[0] and n >= W):
            seq[st["issued"]](); st["issued"] += 1
    def wait_for(k):
        if k > st["waited"]:
            A(f"s_waitcnt vmcnt({st['issued'] - k - 1})"); st["waited"] = k
    def pump(lim=None):
        k = st["waited"] + 1
        while k in free: k += 1
        if lim is not None and k > lim: return
        if WK and KW <= k <= pos[31] and Wc[0] != W and (k - KW) % KS == 0: Wc[0] += 1 if Wc[0] < W else -1
        wait_for(k); issue_to(k + 1 + W)
    A("s_waitcnt lgkmcnt(0)")
    assert W <= 8
    for _ in range(W0):
        seq[st["issued"]](); st["issued"] += 1
    A("v_mov_b64 v[24:25], -1"); A("v_mov_b64 v[26:27], -1")
    A("s_cmp_eq_u32 s3, 2"); A("s_cbranch_scc0 L_s4 ; nf")
    A(f"v_add_u32 v13, {L_Q}, v2"); A("s_mov_b64 exec, 0x3fffff")
    A("ds_write_b128 v13, v[24:27]")
    A("s_mov_b64 exec, -1"); A("s_waitcnt lgkmcnt(0)")
    A("L_s4:")
    A("s_load_dword s56, s[40:41], 0")
    common2()
    A(f"s_cmp_eq_u32 s3, {9 if 'noclear' in exp else 1}"); A("s_cbranch_scc0 L_s2 ; nf")
    def slots():
        A("s_lshl_b32 s39, s32, 3"); A("s_add_u32 s39, s39, s33")
        A("s_lshl_b32 s38, s39, 10"); A(f"s_add_u32 s38, s38, {WS_OP}")
    slots()
    A("s_lshl_b32 s80, s30, 14"); A("s_lshl_b32 s81, s37, 9"); A("s_add_u32 s80, s80, s81"); A(f"s_add_u32 s80, s80, {WS_AP}")
    A("s_lshl_b32 s81, s37, 13"); A("s_and_b32 s82, s37, 1"); A("s_lshl_b32 s82, s82, 12"); A("s_sub_u32 s81, s81, s82"); A(f"s_add_u32 s81, s81, {WS_MP}")
    A("s_cmp_eq_u32 s36, 2"); A(f"s_cselect_b32 s81, s81, {OOB}"); A("s_add_u32 s82, s81, 2048")
    A("s_cmp_eq_u32 s36, 1"); A("s_cselect_b32 s81, s80, s81"); A(f"s_cselect_b32 s80, {131072 - 512}, 0"); A("s_addk_i32 s80, 0x200")
    A("v_lshrrev_b32 v7, 5, v1"); A("v_mul_u32_u24 v14, 7680, v7"); A("v_add_u32 v14, v14, v2")
    A("s_mov_b64 exec, 0xffff")
    A(f"buffer_store_dwordx4 v[24:27], v2, {WS}, s38 offen sc1")
    A("s_mov_b64 exec, -1")
    A(f"buffer_store_dwordx4 v[24:27], v14, {WS}, s82 offen sc1")
    for k in range(4):
        A(f"buffer_store_dwordx4 v[24:27], v14, {WS}, s81 offen sc1")
        if k < 3: A("s_add_u32 s81, s81, s80")
    keep = list(pend); pend.clear()
    A("L_s2:")
    A("s_barrier")
    issue_to(W)
    A("s_branch L_stream ; nf")

    A("L_aux:")
    A("s_barrier")
    if prio: A("s_setprio 3")
    A("v_bfe_u32 v11, v1, 3, 1"); A("v_mul_u32_u24 v11, 1280, v11"); A("v_lshl_add_u32 v11, v7, 3, v11")
    common2()
    stamp(1)
    A("v_lshrrev_b32 v40, 5, v1"); A("v_mul_u32_u24 v10, 1280, v40"); A("v_and_b32 v41, 31, v1"); A("v_mad_u32_u24 v10, v41, 40, v10")
    slots()
    A("v_and_b32 v7, 1, v1"); A("v_cmp_eq_u32 vcc, 1, v7"); A("v_bfe_u32 v7, v1, 1, 2")
    A("v_mov_b32 v28, 0x0c0c0100"); A("v_mov_b32 v29, 0x01000c0c"); A("v_cndmask_b32 v28, v28, v29, vcc")
    A("v_mov_b32 v29, 0x0c0c0302"); A("v_mov_b32 v30, 0x03020c0c"); A("v_cndmask_b32 v29, v29, v30, vcc")
    A("v_mov_b32 v30, 0x0c0c0c0c")
    for r in range(4):
        A(f"v_cmp_eq_u32 vcc, {r}, v7"); A(f"v_cndmask_b32 v{14+r}, v30, v28, vcc"); A(f"v_cndmask_b32 v{18+r}, v30, v29, vcc")
    A(f"v_mov_b32 v13, {L_ML}"); A(f"v_mov_b32 v23, {OOB}")
    A("s_waitcnt vmcnt(20)")
    for base, a in ((XS, 10), (XO, 11)):
        A(f"ds_read_b64 v[{base}:{base+1}], v{a} offset:{L_X}"); A(f"ds_read_b64 v[{base+2}:{base+3}], v{a} offset:{L_X+8}")
        A(f"ds_read_b64 v[{base+4}:{base+5}], v{a} offset:{L_X+16}"); A(f"ds_read_b64 v[{base+6}:{base+7}], v{a} offset:{L_X+24}")
        A(f"ds_read_b64 v[{base+8}:{base+9}], v{a} offset:{L_X+32}")
    stamp(2)
    A("s_waitcnt lgkmcnt(0)")
    A("s_load_dword s56, s[40:41], 0")
    if CC is None:
        A("s_sub_u32 s78, s31, 24"); A("s_lshl3_add_u32 s47, s30, s78"); A("s_and_b32 s47, s47, 63")
        A("s_lshl_b32 s78, s47, 7"); A("s_and_b32 s46, s31, 1"); A("s_lshl_b32 s80, s46, 13"); A("s_add_u32 s44, s78, s80"); A(f"s_add_u32 s44, s44, {WS_PRB}")
        A("s_xor_b32 s45, s44, 0x2000")
        A("s_cmp_ge_u32 s31, 24"); A("s_cbranch_scc0 L_v1 ; nf")
        A("s_load_dword s48, s[40:41], s44 glc"); A("s_load_dword s49, s[40:41], s45 glc")
        A("L_v1:")
    X, mean, tmp = 192, 52, 56
    for i in range(10):
        A(f"v_lshlrev_b32 v{X+2*i}, 16, v{XS+i}"); A(f"v_and_b32 v{X+2*i+1}, 0xffff0000, v{XS+i}")
    pk("add", tmp, X, X+2); pk("add", tmp+2, X+4, X+6)
    for i in range(4, 10): pk("add", tmp+2*(i&1), tmp+2*(i&1), X+2*i)
    pk("add", tmp, tmp, tmp+2); A(f"v_add_f32 v{mean}, v{tmp}, v{tmp+1}")
    row_allred("v_add_f32", mean); swap_allred("v_add_f32", mean, tmp, 16)
    A(f"v_mul_f32 v{mean}, {F(1/640)}, v{mean}")
    for i in range(10): pk("add", X+2*i, X+2*i, mean, mod="op_sel_hi:[1,0] neg_lo:[0,1] neg_hi:[0,1]")
    for i in range(10):
        t = tmp + 2*(i&1)
        if i < 2: pk("mul", t, X+2*i, X+2*i)
        else: pk("fma", t, X+2*i, X+2*i, t)
    pk("add", tmp, tmp, tmp+2)
    va = mean + 2
    A(f"v_add_f32 v{va}, v{tmp}, v{tmp+1}")
    row_allred("v_add_f32", va); swap_allred("v_add_f32", va, tmp, 16)
    A(f"v_mul_f32 v{va}, {F(1/640)}, v{va}")
    bf16r(mean, mean); bf16r(va, va)
    A(f"v_add_f32 v{va}, {F(1e-5)}, v{va}"); bf16r(va, va)
    A(f"v_sqrt_f32 v{va}, v{va}"); bf16r(va, va)
    A(f"v_rcp_f32 v{va}, v{va}")
    A("v_mov_b32 v53, v52"); A("v_mov_b32 v55, v54")
    for i in range(10):
        A(f"v_lshlrev_b32 v{X+2*i}, 16, v{XO+i}"); A(f"v_and_b32 v{X+2*i+1}, 0xffff0000, v{XO+i}")
    A("v_permlane32_swap_b32 v52, v53"); A("v_permlane32_swap_b32 v54, v55")
    A("s_mov_b32 vcc_lo, 0xff00ff00"); A("s_mov_b32 vcc_hi, 0xff00ff00")
    A("v_cndmask_b32 v52, v52, v53, vcc"); A("v_cndmask_b32 v54, v54, v55, vcc")
    for i in range(10): pk("add", X+2*i, X+2*i, mean, mod="op_sel_hi:[1,0] neg_lo:[0,1] neg_hi:[0,1]")
    for i in range(10): A(f"v_cvt_pk_bf16_f32 v{XO+i}, v{X+2*i}, v{X+2*i+1}")
    for i in range(10):
        A(f"v_lshlrev_b32 v{X+2*i}, 16, v{XO+i}"); A(f"v_and_b32 v{X+2*i+1}, 0xffff0000, v{XO+i}")
    for i in range(10): pk("mul", X+2*i, X+2*i, va, mod="op_sel_hi:[1,0]")
    for i in range(10): A(f"v_cvt_pk_bf16_f32 v{XO+i}, v{X+2*i}, v{X+2*i+1}")
    stamp(3)
    for t in range(22):
        if t < 20:
            A(f"s_waitcnt vmcnt({19-t})"); A(f"ds_read_b128 v[{WQ+4*t}:{WQ+4*t+3}], v2 offset:{1024*t}")
            for r in range(4): A(f"v_perm_b32 v{AO+4*t+r}, v{XO+t//2}, v{XO+t//2}, v{14+4*(t&1)+r}")
        if t > 1:
            A(f"s_waitcnt lgkmcnt({min(2, 21-t)})"); mfma(ACC, AO+4*(t-2), WQ+4*(t-2), t == 2)
    A("s_add_u32 s56, s56, 0x01010101")
    A("s_lshl_b32 s39, s39, 11"); A(f"s_add_u32 s39, s39, {WS_QP}")
    A("v_mov_b32 v34, s56"); A("v_mov_b32 v35, s56"); A("v_mov_b32 v38, s56"); A("v_mov_b32 v39, s56")
    A("v_mov_b64 v[32:33], v[28:29]"); A("v_mov_b64 v[36:37], v[30:31]")
    def qstore(fl):
        A(f"buffer_store_dwordx4 v[32:35], v2, {WS}, s39 offen {fl}")
        A(f"buffer_store_dwordx4 v[36:39], v2, {WS}, s39 offen offset:1024 {fl}")
    if QL:
        A("s_getreg_b32 s57, hwreg(HW_REG_XCC_ID, 0, 4)"); A("s_xor_b32 s57, s57, s56"); A("v_mov_b32 v35, s57"); A("v_mov_b32 v39, s57")
        qstore("")
    else: qstore("sc1")
    stamp(4)
    A("s_getreg_b32 s57, hwreg(HW_REG_XCC_ID, 0, 4)"); A("s_xor_b32 s57, s57, s56")
    A("s_lshl_b32 s78, s32, 14"); A("s_lshl_b32 s80, s34, 9"); A("s_add_u32 s78, s78, s80"); A(f"s_add_u32 s78, s78, {WS_QP}")
    A("v_lshlrev_b32 v42, 10, v40"); A("v_lshl_add_u32 v42, v41, 4, v42"); A("v_add_u32 v42, s78, v42")
    for k in range(1, 4): A(f"s_movk_i32 s{80+k}, {4096*k}")
    A("v_lshlrev_b32 v43, 4, v9"); A("v_and_b32 v7, 1, v8"); A("v_lshl_add_u32 v43, v7, 3, v43"); A("v_lshl_add_u32 v43, v40, 2, v43"); A(f"v_add_u32 v43, {L_Q}, v43")
    A("s_lshl_b32 s78, s30, 3"); A("s_lshl_b64 s[76:77], 0xff, s78")
    if CC is None:
        flush()
        A("s_cmp_ge_u32 s31, 24"); A("s_cbranch_scc0 L_v2")
        A("s_memtime s[60:61]"); A("s_waitcnt lgkmcnt(0)")
        A("s_load_dword s48, s[40:41], s44 glc"); A("s_waitcnt lgkmcnt(0)")
        A("s_memtime s[62:63]"); A("s_waitcnt lgkmcnt(0)")
        A("s_load_dword s49, s[40:41], s45 glc"); A("s_waitcnt lgkmcnt(0)")
        A("s_memtime s[64:65]"); A("s_waitcnt lgkmcnt(0)")
        A("s_sub_u32 s60, s62, s60"); A("s_sub_u32 s62, s64, s62"); A("s_cmp_gt_u32 s60, s62"); A("s_addc_u32 s46, s46, 0")
        A("s_getreg_b32 s78, hwreg(HW_REG_XCC_ID, 2, 1)"); A("s_xor_b32 s46, s46, s78"); A("s_and_b32 s46, s46, 1"); A("s_xor_b32 s46, s46, s56")
        A("v_mov_b32 v44, s46"); A("s_lshl_b32 s47, s47, 2"); A("s_mov_b64 exec, 1")
        if qdelay is None: A("s_waitcnt vmcnt(0)")
        A(f"buffer_store_dword v44, v2, {WS}, s47 offen offset:{WS_VOTE} sc1")
        A("s_mov_b64 exec, -1")
        A("s_branch L_v3")
        A("L_v2:")
    if qdelay is None: A("s_waitcnt vmcnt(0)")
    elif qdelay: A(f"s_sleep {qdelay}")
    A("L_v3:")
    stamp(5)
    A(f"s_mov_b32 s90, {SPIN}")
    flush()
    if QL: A("s_mov_b32 s58, 0")
    A("L_qpoll:")
    for jj in range(8):
        A(f"buffer_load_dwordx4 v[{64+4*jj}:{67+4*jj}], v42, {WS}, {f's{80+jj//2}' if jj//2 else '0'} offen offset:{2048*(jj&1)} sc1")
    A("s_waitcnt vmcnt(0)")
    if QL:
        A("v_xor_b32 v7, s56, v66"); A("v_xor_b32 v6, s57, v67")
        for i in range(1, 8):
            A(f"v_bitop3_b32 v7, v7, v{66 + 4*i}, s56 bitop3:0xf6"); A(f"v_bitop3_b32 v6, v6, v{67 + 4*i}, s57 bitop3:0xf6")
        A("v_or_b32 v5, v6, v7"); A("v_cmp_ne_u32 vcc, 0, v5")
        A("s_cbranch_vccz L_qok")
        A("s_cmp_eq_u32 s58, 0"); A("s_cbranch_scc0 L_q2")
        qstore("sc1"); A("s_mov_b32 s58, 1")
        A("L_q2:")
        A("v_lshrrev_b32 v6, 4, v6"); A("v_or_b32 v5, v6, v7"); A("v_cmp_ne_u32 vcc, 0, v5")
    else:
        A("v_xor_b32 v7, s56, v66")
        for i in range(1, 16): A(f"v_bitop3_b32 v7, v7, v{66 + 4*(i//2) + (i&1)}, s56 bitop3:0xf6")
        A("v_cmp_ne_u32 vcc, 0, v7")
    A("s_cbranch_vccz L_qok")
    A("s_sub_u32 s90, s90, 1"); A("s_cbranch_scc0 L_qpoll")
    A("L_qok:")
    if QL: A("v_mov_b32 v39, s56")
    if diag: A("v_writelane_b32 v255, s90, 56")
    if "noflag" in exp:
        A("s_mov_b64 s[76:77], 0")
    A("s_mov_b64 exec, s[76:77]")
    A(f"buffer_load_dwordx4 v[48:51], v2, {WS}, 0 offen offset:{WS_FLAGS} sc1")
    if PFO:
        A("s_mov_b64 exec, 7"); A(f"buffer_load_dword v5, v22, {WS}, s38 offen sc1")
    A("s_mov_b64 exec, -1")
    for i in range(4): pk("add", 64+8*i, 64+8*i, 68+8*i)
    pk("add", 64, 64, 72); pk("add", 80, 80, 88); pk("add", 64, 64, 80)
    A("v_cvt_pk_bf16_f32 v64, v64, v65")
    A("ds_write_b32 v43, v64")
    stamp(6)
    def apbase(d):
        A(f"s_and_b32 s{d}, s30, 3"); A(f"s_lshl_b32 s{d}, s{d}, 4"); A("s_lshr_b32 s80, s30, 2"); A(f"s_add_u32 s{d}, s{d}, s80"); A(f"s_lshl_b32 s{d}, s{d}, 13")
        A(f"s_add_u32 s{d}, s{d}, {WS_AP}")
        if CC: A(f"s_xor_b32 s{d}, s{d}, 0x2000")
    def mlp5_setup():
        A("v_lshlrev_b32 v224, 2, v0")
        A("global_load_dword v252, v224, s[4:5]"); A("global_load_dword v253, v224, s[4:5] offset:1280")
        apbase(78); A("v_lshl_add_u32 v225, v0, 4, s78")
        A("v_lshrrev_b32 v226, 4, v0"); A("v_lshlrev_b32 v226, 6, v226"); A("v_bfe_u32 v7, v0, 1, 2"); A("v_lshl_add_u32 v226, v7, 4, v226")
        A("v_bfe_u32 v7, v0, 3, 1"); A("v_lshl_add_u32 v226, v7, 3, v226"); A("v_and_b32 v7, 1, v0"); A("v_lshl_add_u32 v226, v7, 2, v226"); A(f"v_add_u32 v226, {L_YB}, v226")
        A(f"v_mul_u32_u24 v227, {YBS}, v7"); A("v_lshl_add_u32 v227, v8, 4, v227"); A("s_lshl_b32 s78, s3, 8"); A("v_add_u32 v227, s78, v227")
        A("v_lshlrev_b32 v228, 7, v9"); A("v_lshl_add_u32 v228, v8, 4, v228"); A("s_lshl_b32 s78, s3, 9"); A("v_add_u32 v228, s78, v228")
        A(f"v_add_u32 v227, {L_YB}, v227"); A(f"v_add_u32 v228, {L_PB}, v228")
        A("v_and_b32 v7, 1, v8"); A("v_mul_u32_u24 v230, 48, v7"); A("v_lshrrev_b32 v7, 1, v8"); A("v_lshl_add_u32 v230, v7, 2, v230")
        A("s_lshl_b32 s78, s3, 3"); A(f"s_add_u32 s78, s78, {L_SB}"); A("v_add_u32 v230, s78, v230")
        A("v_lshrrev_b32 v7, 2, v1"); A("v_lshlrev_b32 v231, 6, v7"); A("v_and_b32 v7, 1, v8"); A("v_lshl_add_u32 v231, v7, 5, v231")
        A("v_and_b32 v7, 3, v1"); A("v_lshl_add_u32 v231, v7, 3, v231"); A("s_lshl_b32 s78, s3, 13"); A(f"s_add_u32 s78, s78, {L_W1}"); A("v_add_u32 v231, s78, v231"); A("v_xor_b32 v232, 32, v231")
    for r in (224, 225, 246, 56, 57): A(f"v_mov_b32 v{r}, 0")
    A("s_cmp_eq_u32 s36, 2"); A("s_cbranch_scc0 L_nofin")
    mlp5_setup()
    A("s_lshr_b32 s78, s37, 4"); A("s_lshl_b32 s78, s78, 3"); A("s_and_b32 s80, s37, 7"); A("s_add_u32 s33, s78, s80")
    A("s_min_u32 s34, s33, 19"); A("s_lshr_b32 s35, s30, 2"); A("s_mul_i32 s85, s35, 20"); A("s_add_u32 s85, s85, s34")
    A("s_mul_i32 s78, s85, 52"); A("s_lshr_b32 s78, s78, 9")
    A("s_mul_i32 s80, s78, 10"); A("s_sub_u32 s80, s85, s80")
    A("s_mul_i32 s78, s78, 160")
    A("s_and_b32 s81, s80, 1"); A("s_lshl_b32 s82, s81, 6"); A("s_lshr_b32 s83, s80, 1"); A("s_lshl_b32 s83, s83, 2"); A("s_add_u32 s82, s82, s83")
    A("s_lshl_b32 s81, s81, 3"); A("s_add_u32 s81, s81, 128")
    A("v_bfe_u32 v7, v1, 1, 2"); A("v_lshlrev_b32 v12, 4, v7")
    A("v_bfe_u32 v7, v1, 1, 1"); A("v_lshlrev_b32 v15, 4, v7"); A("v_bfe_u32 v7, v1, 2, 1"); A("v_lshl_add_u32 v15, v7, 2, v15")
    A("s_cmp_lt_u32 s80, 8"); A("s_cselect_b32 s82, s82, s81"); A("s_cselect_b64 vcc, -1, 0"); A("s_add_u32 s78, s78, s82")
    A("v_cndmask_b32 v12, v15, v12, vcc"); A("v_add3_u32 v14, v12, v8, s78"); A("v_lshlrev_b32 v12, 1, v14")
    A("v_mov_b32 v17, 0"); A("v_mov_b32 v16, 0")
    A("global_load_short_d16_hi v17, v12, s[22:23]")
    A("v_and_b32 v7, 1, v1"); A(f"v_mul_u32_u24 v15, {YBS}, v7"); A("v_mul_u32_u24 v7, 1280, v7"); A("v_add_u32 v12, v12, v7")
    A("v_lshrrev_b32 v7, 5, v14"); A("v_lshl_add_u32 v15, v7, 6, v15"); A("v_bfe_u32 v7, v14, 2, 2"); A("v_lshl_add_u32 v15, v7, 4, v15")
    A("v_bfe_u32 v7, v14, 4, 1"); A("v_lshl_add_u32 v15, v7, 3, v15"); A("v_and_b32 v7, 3, v14"); A("v_lshl_add_u32 v15, v7, 1, v15"); A(f"v_add_u32 v15, {L_YB}, v15")
    A("v_bfe_u32 v7, v1, 3, 1"); A("v_cmp_eq_u32 vcc, 0, v7"); A("v_cndmask_b32 v12, v23, v12, vcc")
    A("v_lshlrev_b32 v56, 14, v8"); A("v_lshl_add_u32 v56, v7, 12, v56"); A("v_and_b32 v57, 7, v1"); A("v_lshl_add_u32 v56, v57, 4, v56")
    A("s_lshl_b32 s78, s34, 7"); A("s_lshl_b32 s80, s35, 13"); A("s_add_u32 s78, s78, s80"); A(f"s_add_u32 s78, s78, {WS_MP}")
    if CC: A("s_xor_b32 s78, s78, 0x2000")
    A("v_add_u32 v56, s78, v56")
    A("v_cmp_gt_u32 vcc, 3, v8"); A("v_cndmask_b32 v57, v23, v56, vcc")
    for n in range(1, 7): A(f"s_mov_b32 s{80+n}, {n*65536}")
    A("L_nofin:")
    stamp(7)
    A(f"s_mov_b32 s90, {SPIN}")
    flush()
    A("L_gchk:")
    A("s_waitcnt vmcnt(0)")
    A("v_xor_b32 v7, s57, v48")
    for i in range(1, 4): A(f"v_bitop3_b32 v7, v7, v{48+i}, s57 bitop3:0xf6")
    if True:
        A("s_cmp_eq_u32 s36, 1"); A("s_cbranch_scc0 L_gok")
        A("v_cmp_lt_u32 vcc, 15, v7"); A("s_and_b64 vcc, vcc, s[76:77]"); A("s_cbranch_scc0 L_gok")
        A("s_mov_b64 exec, s[76:77]")
        A(f"buffer_load_dwordx4 v[48:51], v2, {WS}, 0 offen offset:{WS_FLAGS} sc1")
        A("s_mov_b64 exec, -1")
        A("s_sub_u32 s90, s90, 1"); A("s_cbranch_scc0 L_gchk")
        A("L_gok:")
    A("v_cmp_ne_u32 vcc, 0, v7"); A("s_and_b64 vcc, vcc, s[76:77]")
    if not local: A("s_cmp_eq_u32 0, 0")
    A("s_cselect_b32 s76, 0, -1")
    if OMS:
        A("s_cmp_eq_u32 s36, 2"); A("s_cselect_b32 s76, 0, s76")
    A("s_not_b32 s77, s76")
    stamp(8)
    flush()
    A(f"s_mov_b32 s90, {SPIN*8}")
    A("L_mlw:")
    A("ds_read_b128 v[64:67], v13"); A("ds_read_b128 v[68:71], v13 offset:16")
    A("s_waitcnt lgkmcnt(0)")
    A("v_max3_u32 v7, v65, v67, v69"); A("v_max_u32 v7, v7, v71"); A("v_cmp_eq_u32 vcc, -1, v7")
    A("s_cbranch_vccz L_mlw2")
    A("s_sleep 1")
    A("s_sub_u32 s90, s90, 1"); A("s_cbranch_scc0 L_mlw")
    A("L_mlw2:")
    A("v_max3_f32 v36, v64, v66, v68"); A("v_max_f32 v36, v36, v70")
    for i in range(4): A(f"v_sub_f32 v{64+2*i}, v{64+2*i}, v36")
    for i in range(4): A(f"v_mul_f32 v{64+2*i}, {LOG2E:#x}, v{64+2*i}")
    for i in range(4): A(f"v_exp_f32 v{64+2*i}, v{64+2*i}")
    A("v_mul_f32 v37, v64, v65")
    for i in range(1, 4): A(f"v_fmac_f32 v37, v{64+2*i}, v{65+2*i}")
    A("v_mov_b32 v45, s76"); A("ds_write_b32 v13, v45 offset:64")
    A("ds_write_b128 v13, v[64:67] offset:32"); A("ds_write_b128 v13, v[68:71] offset:48")
    A("s_mov_b32 exec_hi, 0")
    if MLS: A("s_mov_b32 exec_lo, 0xff")
    else:
        A("s_and_b32 exec_lo, s76, 0xff")
        A(f"buffer_store_dwordx4 v[36:39], v2, {WS}, s38 offen offset:256")
        A("s_and_b32 exec_lo, s77, 0xff")
    A(f"buffer_store_dwordx4 v[36:39], v2, {WS}, s38 offen offset:256 sc1")
    A("s_mov_b64 exec, -1")
    A(f"s_cmp_ge_u32 s31, {WARM or 99}"); A("s_cselect_b32 s59, 2, s36")
    A("v_lshlrev_b32 v47, 2, v1")
    flld = lambda: (A(f"buffer_load_dwordx4 v[48:51], v2, {WS}, 0 offen offset:{WS_FLAGS} sc1"), A(f"buffer_load_dword v46, v47, {WS}, 0 offen offset:{WS_VOTE} sc1"))
    A("s_cmp_eq_u32 s59, 2"); A("s_cbranch_scc0 L_f0")
    flld()
    A("L_f0:")
    stamp(9)
    if "notail" not in exp:
        A("s_cmp_eq_u32 s59, 2"); A("s_cbranch_scc1 L_fl")
    A("L_aend:")
    fin()
    A("L_fl:")
    A(f"s_mov_b32 s90, {SPIN}")
    A("s_waitcnt vmcnt(0)")
    A("L_fchk:")
    A("v_xor_b32 v7, s56, v48")
    for i in range(1, 4): A(f"v_bitop3_b32 v7, v7, v{48+i}, s56 bitop3:0xf6")
    if CC is None: A("v_bitop3_b32 v7, v7, v46, s56 bitop3:0xf6")
    A("v_cmp_lt_u32 vcc, 15, v7")
    A("s_cbranch_vccz L_fok")
    flld()
    A("s_waitcnt vmcnt(0)")
    A("s_sub_u32 s90, s90, 1"); A("s_cbranch_scc0 L_fchk")
    A("L_fok:")
    if CC is None:
        A("v_cmp_ne_u32 vcc, s56, v46"); A("s_bcnt1_i32_b64 s78, vcc"); A("s_cmp_gt_u32 s78, 32"); A("s_cselect_b32 s78, 0x2000, 0")
        A("v_mov_b32 v46, s78"); A(f"v_mov_b32 v47, {L_CW}"); A("ds_write_b32 v47, v46")
        A("v_xor_b32 v225, s78, v225"); A("v_xor_b32 v56, s78, v56"); A("v_xor_b32 v57, s78, v57")
        if diag: A("v_writelane_b32 v255, s78, 58"); A("s_bcnt1_i32_b64 s78, vcc"); A("v_writelane_b32 v255, s78, 57")
        A("s_waitcnt lgkmcnt(0)")
    A("s_cmp_eq_u32 s36, 2"); A("s_cbranch_scc0 L_aend")
    if not W1W: A("s_barrier")
    A("s_barrier")
    A("s_branch L_mlp5")

    A("L_stream:")
    pend.extend(keep)
    stamp(1)
    A("s_sub_u32 s91, s3, 1")
    A("s_waitcnt lgkmcnt(0)")
    A("s_add_u32 s56, s56, 0x01010101"); A("s_getreg_b32 s57, hwreg(HW_REG_XCC_ID, 0, 4)"); A("s_xor_b32 s57, s57, s56")
    A("s_lshl_b32 s82, s30, 2"); A("s_add_u32 s82, s82, s91"); A(f"s_mul_i32 s82, s82, {128*1280}"); A("s_lshl_b32 s78, s37, 7"); A("s_add_u32 s82, s82, s78")
    A("s_lshl_b32 s78, s37, 2"); A("s_add_u32 s78, s78, s91"); A("s_mul_i32 s78, s78, 10240")
    A("s_lshl_b32 s83, s91, 14"); A("s_mul_i32 s80, s91, 10240"); A(f"s_add_u32 s88, s80, {L_W1}")
    A("s_cmp_eq_u32 s36, 1")
    A("s_cselect_b32 s44, s12, s20"); A("s_cselect_b32 s45, s13, s21"); A("s_cselect_b32 s46, 5242880, 0"); A("s_mov_b32 s47, 0x20000")
    A("s_cselect_b32 s82, s82, s78"); A("s_cselect_b32 s83, s83, s80"); A("s_cselect_b32 s87, 10240, 0")
    A("s_cmp_eq_u32 s36, 2"); A("s_cselect_b32 s46, 2211840, s46"); A("s_cselect_b32 s87, 128, s87"); A(f"s_addk_i32 s83, {L_WB}")
    srd(48, 12, 5242880); srd(52, 16, 2211840)
    A(f"v_mov_b32 v19, {OOB}")
    if NW:
        assert tall
        A(f"s_add_u32 s76, s83, {(16-NW)*1024}"); A(f"s_add_u32 s79, s82, {(16-NW)*10240}"); A("s_cmp_eq_u32 s36, 1")
        A(f"s_cselect_b32 s76, s76, {L_DUMMY}"); A("s_cselect_b32 s77, 0x400, 0"); A(f"s_cselect_b32 s79, s79, {OOB}")
    A("s_sub_u32 s78, s31, 18"); A("s_lshl2_add_u32 s78, s78, s91"); A("s_mul_i32 s78, s78, 46")
    A("v_add_u32 v32, s78, v1"); A("v_mul_u32_u24 v33, 6554, v32"); A("v_lshrrev_b32 v33, 22, v33")
    A("v_mul_u32_u24 v34, 640, v33"); A("v_sub_u32 v34, v32, v34")
    A("s_cmp_ge_u32 s31, 18"); A("s_cselect_b32 s80, 46, 0"); A("v_cmp_gt_u32 s[60:61], s80, v1")
    A("v_cmp_gt_u32 vcc, 4, v33"); A("s_and_b64 s[60:61], s[60:61], vcc")
    A("s_mul_i32 s80, s30, 655360")
    if TS:
        a_, b2_, c_ = TS; assert 10*a_ + 8*b2_ + 14*c_ == 1280 and NB == 16
        A("s_cmp_ge_u32 s31, 10"); A(f"s_cselect_b32 s81, {b2_}, {a_}"); A(f"s_cselect_b32 s85, {(40*a_ - 40*b2_) & 0xffffffff}, 0")
        A("s_cmp_ge_u32 s31, 18"); A(f"s_cselect_b32 s81, {c_}, s81"); A(f"s_cselect_b32 s85, {(40*a_ + 32*b2_ - 72*c_) & 0xffffffff}, s85")
        A("s_lshl2_add_u32 s78, s31, s91"); A("s_mul_i32 s78, s78, s81"); A("s_add_u32 s78, s78, s85"); A("s_lshl_b32 s78, s78, 7"); A("s_add_u32 s80, s80, s78")
        A("v_lshl_add_u32 v56, v1, 7, s80"); A("v_cmp_gt_u32 vcc, s81, v1"); A("v_cndmask_b32 v56, v19, v56, vcc")
    elif tall:
        A("s_mul_i32 s80, s32, 163840"); A("s_lshl2_add_u32 s78, s33, s91"); A(f"s_mul_i32 s78, s78, {320*NB}"); A("s_add_u32 s80, s80, s78")
        if NB < 16: A(f"s_add_u32 s80, s80, {(16-NB)*10240}")
        A("v_lshl_add_u32 v56, v1, 7, s80"); A(f"v_cmp_gt_u32 vcc, {5*NB//2}, v1"); A("v_cndmask_b32 v56, v19, v56, vcc")
    else:
        A("v_lshl_add_u32 v56, v32, 7, s80"); A("v_cndmask_b32 v56, v19, v56, s[60:61]"); A("s_mov_b32 s79, 327680")
    A("v_lshl_add_u32 v36, v33, 3, s30"); A("v_cmp_gt_u32 vcc, 27, v36"); A("s_and_b64 vcc, vcc, s[60:61]")
    A("v_mul_u32_u24 v57, 3456, v34"); A("v_lshl_add_u32 v57, v36, 7, v57"); A("v_cndmask_b32 v57, v19, v57, vcc")
    if T2:
        A("v_mul_u32_u24 v252, 81920, v36"); A("v_lshl_add_u32 v252, v34, 7, v252"); A("v_cndmask_b32 v252, v19, v252, vcc")
    A("v_and_b32 v7, 1, v1"); A("v_lshlrev_b32 v7, 4, v7"); A("v_mov_b32 v32, 0xffff"); A("v_lshlrev_b32 v7, v7, v32")
    A("v_bfe_u32 v32, v1, 1, 2")
    for r in range(4):
        A(f"v_cmp_eq_u32 vcc, {r}, v32"); A(f"v_cndmask_b32 v{20+r}, 0, v7, vcc")
    A(f"v_lshlrev_b32 v10, 4, v9"); A(f"v_add_u32 v10, {L_Q}, v10")
    A("s_lshl_b32 s78, s91, 3"); A(f"s_add_u32 s78, s78, {L_ML}"); A("v_mov_b32 v11, s78")
    A(f"v_add_u32 v3, {L_RED}, v2"); A("s_lshl_b32 s78, s91, 9"); A("v_add_u32 v12, s78, v3")
    A(f"v_mov_b32 v254, {L_ML}"); A("v_lshlrev_b32 v251, 3, v1")
    slots()
    A("v_lshrrev_b32 v58, 3, v1"); A("v_mul_u32_u24 v58, 1280, v58"); A("v_bfe_u32 v7, v1, 1, 2"); A("v_xor_b32 v7, v7, v8")
    A("v_lshl_add_u32 v58, v7, 5, v58"); A("v_and_b32 v59, 1, v1"); A("v_lshlrev_b32 v59, 4, v59"); A("v_add_u32 v58, v58, v59")
    A("v_and_b32 v7, 1, v7"); A("v_lshl_add_u32 v59, v7, 5, v59"); A("v_lshrrev_b32 v7, 2, v1"); A("v_mul_u32_u24 v7, 3456, v7"); A("v_add_u32 v59, v59, v7")
    pump(); stamp(2); pump()
    ld1 = [(220, f"v224, {WS}, 0 offen", 4, (0,)), (236, f"v224, {WS}, s89 offen", 4, (0,))]
    for r in (14, 224, 225, 229, 246): A(f"v_mov_b32 v{r}, 0")
    if "nosetup" in exp: A("s_branch L_su9")
    A("s_cmp_eq_u32 s36, 1"); A("s_cbranch_scc0 L_su2")
    A("s_lshl_b32 s78, s30, 2"); A("s_add_u32 s78, s78, s91"); A("s_lshl_b32 s78, s78, 13"); A(f"s_add_u32 s78, s78, {WS_OP}")
    A("v_lshl_add_u32 v224, v8, 10, s78"); A("v_lshl_add_u32 v224, v9, 4, v224"); A("s_movk_i32 s89, 0x1000")
    A("s_mul_i32 s80, s91, 2176"); A(f"s_add_u32 s80, s80, {L_OF}")
    A("v_mul_u32_u24 v226, 544, v8"); A("v_lshl_add_u32 v226, v9, 4, v226"); A("v_add_u32 v226, s80, v226")
    A("v_and_b32 v7, 7, v1"); A("v_mul_u32_u24 v227, 272, v7"); A("v_and_b32 v7, 1, v8"); A("v_lshl_add_u32 v227, v7, 7, v227"); A("v_lshlrev_b32 v234, 9, v7")
    A("v_lshrrev_b32 v7, 5, v1"); A("v_lshl_add_u32 v227, v7, 4, v227"); A("v_add_u32 v227, s80, v227")
    A("v_and_b32 v7, 7, v1"); A("v_lshl_add_u32 v225, v7, 10, s78")
    traddr1280(230, 2048)
    A("v_add_u32 v230, s83, v230")
    for ct in range(1, 4): A(f"v_xor_b32 v{230+ct}, {32*ct}, v230")
    A("v_lshlrev_b32 v229, 3, v1"); A(f"v_add_u32 v228, {L_OB}, v229")
    A("v_lshl_add_u32 v234, v9, 3, v234"); A("s_lshl_b32 s78, s91, 10"); A(f"s_add_u32 s78, s78, {L_OB}"); A("v_add_u32 v234, s78, v234")
    A("s_lshl_b32 s80, s30, 14"); A("s_lshl_b32 s81, s37, 9"); A("s_add_u32 s84, s80, s81"); A("s_lshl_b32 s80, s91, 17")
    A("s_add_u32 s84, s84, s80"); A(f"s_add_u32 s84, s84, {WS_AP}"); A("s_add_u32 s85, s84, 8192")
    A("s_branch L_su9")
    A("L_su2:")
    A("s_cmp_eq_u32 s36, 2"); A("s_cbranch_scc0 L_su9")
    mlp5_setup()
    A(f"s_mul_i32 s84, s91, {160*3456}"); A("s_lshl_b32 s78, s37, 6"); A("s_add_u32 s84, s84, s78"); A("s_mul_i32 s85, s91, 10")
    A("v_mov_b32 v13, 0"); A("v_and_b32 v14, 31, v1"); A("v_lshlrev_b32 v247, 2, v14"); A(f"v_add_u32 v247, {L_PB + 256}, v247")
    A("s_lshl_b32 s78, s37, 5"); A("v_add_lshl_u32 v14, v14, s78, 1")
    A("global_load_short_d16_hi v13, v14, s[18:19]")
    traddr1280(16, 10240)
    for i in range(10):
        A(f"s_add_u32 s78, s85, {i}"); A("s_and_b32 s80, s78, 3"); A("s_lshl_b32 s80, s80, 5"); A(f"v_xor_b32 v{233+i}, s80, v16")
        A("s_lshr_b32 s78, s78, 2"); A("s_lshl_b32 s78, s78, 10"); A(f"v_add_u32 v{233+i}, s78, v{233+i}")
    for i in range(0, 32, 2): A(f"v_mov_b64 v[{192+i}:{193+i}], 0")
    A("v_and_b32 v7, 1, v1")
    A("v_lshlrev_b32 v243, 6, v7"); A("v_lshl_add_u32 v243, v8, 4, v243"); A("s_lshl_b32 s78, s91, 7"); A(f"s_add_u32 s78, s78, {L_H1}"); A("v_add_u32 v243, s78, v243")
    A(f"v_lshlrev_b32 v244, 2, v1"); A(f"v_add_u32 v244, {L_PB}, v244")
    A("v_lshrrev_b32 v7, 5, v1"); A("v_mul_u32_u24 v248, 48, v7"); A(f"v_add_u32 v248, {L_SB}, v248")
    A("v_lshlrev_b32 v245, 6, v7"); A("v_bfe_u32 v7, v1, 2, 2"); A("v_lshl_add_u32 v245, v7, 4, v245")
    A("v_bfe_u32 v7, v1, 4, 1"); A("v_lshl_add_u32 v245, v7, 3, v245"); A("v_and_b32 v7, 3, v1"); A("v_lshl_add_u32 v245, v7, 1, v245"); A("v_add_u32 v245, s78, v245")
    A("s_lshl_b32 s86, s37, 13"); A("s_and_b32 s78, s37, 1"); A("s_lshl_b32 s78, s78, 12"); A("s_sub_u32 s86, s86, s78")
    A("s_lshr_b32 s78, s91, 1"); A("s_lshl_b32 s78, s78, 13"); A("s_add_u32 s86, s86, s78")
    A("s_and_b32 s78, s91, 1"); A("s_mul_i32 s78, s78, 1280"); A("s_add_u32 s86, s86, s78"); A(f"s_add_u32 s86, s86, {WS_MP}")
    if CC: A("s_xor_b32 s86, s86, 0x2000")
    A("v_lshl_add_u32 v246, v8, 2, v9"); A("v_lshlrev_b32 v246, 4, v246")
    A(f"v_mov_b32 v24, {F(-2*0.7978845608028654*1.4426950408889634)}"); A(f"v_mov_b32 v25, {F(-2*0.7978845608028654*1.4426950408889634*0.044715)}")
    A(f"v_mov_b32 v26, {F(1+1e-5)}"); A(f"v_mov_b32 v27, {F(1e-10)}"); A(f"v_mov_b32 v250, {F(1/640)}"); A(f"v_mov_b32 v249, {L_CW}")
    A("L_su9:")
    while st["waited"] < W0: pump()
    A(f"s_cmp_eq_u32 s3, {9 if 'noflag' in exp else 1}"); A("s_cbranch_scc0 L_s3")
    A("v_mov_b32 v44, s57")
    A("s_lshl_b32 s78, s30, 5"); A("s_add_u32 s78, s78, s31"); A("s_lshl_b32 s78, s78, 2")
    A("s_mov_b64 exec, 1")
    A(f"buffer_store_dword v44, v2, {WS}, s78 offen offset:{WS_FLAGS} sc1")
    if RC:
        A("s_mov_b64 exec, 0xffffff"); A("v_mov_b64 v[44:45], -1"); A("v_mov_b64 v[46:47], -1")
        A(f"buffer_store_dwordx4 v[44:47], v2, {WS}, s38 offen")
    A("s_mov_b64 exec, -1")
    A("L_s3:")
    while st["waited"] < pos[16 + KQ]:
        pump()
        if st["waited"] == pos[15]: stamp(3)
    stamp(4)
    Q = 60
    A(f"s_mov_b32 s90, {SPIN*8}")
    flush()
    A("L_qw:")
    A(f"ds_read_b128 v[{Q}:{Q+3}], v10")
    A("s_waitcnt lgkmcnt(0)")
    A(f"v_max3_u32 v7, v{Q}, v{Q+1}, v{Q+2}"); A(f"v_max_u32 v7, v7, v{Q+3}"); A("v_cmp_eq_u32 vcc, -1, v7")
    A("s_cbranch_vccz L_qw2")
    A("s_sleep 1")
    A("s_sub_u32 s90, s90, 1"); A("s_cbranch_scc0 L_qw")
    A("L_qw2:")
    stamp(5)
    LIM = pos[31 - W] if QKP == "kv" else pos[30]
    P = 32
    for half in range(2):
        for r in range(4):
            for t in range(8*half, 8*half+8):
                A(f"v_dot2_f32_bf16 v{P+t}, v{K0+4*t+r}, v{Q+r}, {'0' if r == 0 else f'v{P+t}'}")
            if r & 1: pump(lim=LIM)
    R = 48
    for t in range(8): A(f"v_add_f32_dpp v{R+t}, v{P+t}, v{P+t} row_mirror row_mask:0xf bank_mask:0x3")
    for t in range(8): A(f"v_add_f32_dpp v{R+t}, v{P+t+8}, v{P+t+8} row_mirror row_mask:0xf bank_mask:0xc")
    for t in range(4): A(f"v_add_f32_dpp v{P+t}, v{R+t}, v{R+t} row_half_mirror row_mask:0xf bank_mask:0x5")
    for t in range(4): A(f"v_add_f32_dpp v{P+t}, v{R+t+4}, v{R+t+4} row_half_mirror row_mask:0xf bank_mask:0xa")
    pump(lim=LIM)
    for t in range(4): A(f"v_add_f32_dpp v{R+t}, v{P+t}, v{P+t} quad_perm:[2,3,0,1] row_mask:0xf bank_mask:0xf")
    A("s_mov_b32 vcc_lo, 0xcccccccc"); A("s_mov_b32 vcc_hi, 0xcccccccc")
    for t in range(2): A(f"v_cndmask_b32 v{P+t}, v{R+t}, v{R+t+2}, vcc")
    for t in range(2): A(f"v_add_f32_dpp v{R+t}, v{P+t}, v{P+t} quad_perm:[1,0,3,2] row_mask:0xf bank_mask:0xf")
    A("s_mov_b32 vcc_lo, 0xaaaaaaaa"); A("s_mov_b32 vcc_hi, 0xaaaaaaaa")
    S = 40
    A(f"v_cndmask_b32 v{S}, v{R}, v{R+1}, vcc")
    bf16r(S, S); A(f"v_mul_f32 v{S}, {F(128**-0.5)}, v{S}"); bf16r(S, S)
    A(f"v_mov_b32 v42, v{S}")
    pump(lim=LIM)
    row_allred("v_max_f32", 42); swap_allred("v_max_f32", 42, 44, 16); swap_allred("v_max_f32", 42, 44, 32)
    pump(lim=LIM)
    A(f"v_sub_f32 v43, v{S}, v42"); A(f"v_mul_f32 v43, {LOG2E:#x}, v43"); A("v_exp_f32 v43, v43")
    A("v_cvt_pk_bf16_f32 v45, v43, v43")
    row_allred("v_add_f32", 43); swap_allred("v_add_f32", 43, 44, 16); swap_allred("v_add_f32", 43, 44, 32)
    A("ds_write_b64 v11, v[42:43]")
    stamp(6)
    pump(lim=LIM)
    done = 0
    for t in range(16):
        for r in range(4): A(f"v_and_b32_dpp v{K0+4*t+r}, v45, v{20+r} row_newbcast:{t} row_mask:0xf bank_mask:0xf")
        if t >= 1 and pos[16 + done] <= st["waited"]:
            mfma(ACC, K0+4*done, V0+4*done, done == 0); done += 1
        if t in (4, 9): pump(lim=LIM)
    stamp(7)
    for t in range(done, 16):
        while t and st["waited"] < pos[15 + t]: pump()
        wait_for(pos[16 + t]); mfma(ACC, K0+4*t, V0+4*t, t == 0)
        if t < 15: issue_to(pos[16 + t] + 1 + W)
    assert st["issued"] == len(seq)
    stamp(8)
    A("s_mov_b32 exec_hi, 0"); A("v_mov_b32 v61, 1")
    A(f"ds_write_b128 v12, v[{ACC}:{ACC+3}]")
    A("s_mov_b32 exec_lo, 1")
    A("ds_add_rtn_u32 v60, v254, v61 offset:68")
    A("s_mov_b32 exec_lo, -1")
    for k in range(4): A(f"ds_read_b128 v[{32+4*k}:{35+4*k}], v3 offset:{512*k}")
    A(f"s_mov_b32 s90, {SPIN*8}")
    keepp = list(pend); pend.clear()
    A("L_fw:")
    A("ds_read_b128 v[52:55], v254 offset:48"); A("ds_read_b128 v[48:51], v254 offset:32"); A("ds_read_b32 v62, v254 offset:64")
    pend.extend(keepp)
    A("s_waitcnt lgkmcnt(0)")
    A("v_readfirstlane_b32 s78, v60"); A("v_readfirstlane_b32 s80, v55"); A("v_readfirstlane_b32 s81, v62")
    for k in range(4):
        for hh in (0, 2):
            if k == 0: pk("mul", 28+hh, 32+hh, 48, mod="op_sel_hi:[1,0]")
            else: pk("fma", 28+hh, 32+4*k+hh, 48+2*k, 28+hh, mod="op_sel_hi:[1,0,1]")
    A("s_cmp_eq_u32 s80, -1"); A("s_cbranch_scc1 L_fw3")
    A("L_fw4:")
    A("s_cmp_eq_u32 s78, 2"); A("s_cbranch_scc0 L_fw2")
    A("v_cvt_pk_bf16_f32 v28, v28, v29"); A("v_cvt_pk_bf16_f32 v29, v30, v31")
    A("s_mov_b32 exec_lo, s81")
    A(f"buffer_store_dwordx2 v[28:29], v251, {WS}, s38 offen")
    A("s_not_b32 exec_lo, s81")
    A(f"buffer_store_dwordx2 v[28:29], v251, {WS}, s38 offen sc1")
    stamp(16)
    flush()
    A("L_fw2:")
    A("s_mov_b64 exec, -1")
    save = dict(st); NPRE = len(seq)
    if "notail" in exp: fin()
    A("s_cmp_eq_u32 s36, 2"); A("s_cbranch_scc1 L_mlp")
    A("s_cmp_eq_u32 s36, 0"); A("s_cbranch_scc1 L_idle")

    mlld = lambda: A(f"buffer_load_dwordx4 v[208:211], v225, {WS}, 0 offen offset:256 sc1")
    for n in range(NR + PRE, 16 - NW):
        didx[n] = len(seq); seq.append(dma_a(n))
    blk = lambda n: didx[n]
    trd = [0]
    need = lambda ks: max(blk(4*ks + b) for b in range(4))
    kord = sorted(range(4), key=need)
    def trs():
        while trd[0] < 4 and need(kord[trd[0]]) <= st["waited"]:
            ks = kord[trd[0]]
            for ct in range(4):
                for u in range(2): A(f"ds_read_b64_tr_b16 v[{64+16*ks+4*ct+2*u}:{65+16*ks+4*ct+2*u}], v{230+ct} offset:{(4*ks+u)*1024}")
            trd[0] += 1
    Wc[0] = WO or W
    issue_to(pos[31] + 1 + W)
    trs()
    while st["issued"] < len(seq):
        pump(); trs()
    stamp(9)
    def round1():
        A("s_mov_b64 exec, s[60:61]"); mlld()
        for i, (r, a, nd, chk) in enumerate(ld1):
            A(f"s_mov_b64 exec, s[{62+2*i}:{63+2*i}]"); A(ldtext(r, a, nd))
        A("s_mov_b64 exec, -1")
    A("s_mov_b64 s[60:61], 0x00ff00ff"); A("s_mov_b64 s[62:63], -1"); A("s_mov_b64 s[64:65], -1")
    A("v_mov_b32 v210, s56"); A("v_mov_b32 v211, s56")
    round1(); st["issued"] += 3
    while trd[0] < 4:
        wait_for(need(kord[trd[0]])); trs()
    stamp(10)
    A(f"s_mov_b32 s90, {SPIN}")
    if diag: flush()
    A("L_p1:")
    A("s_waitcnt vmcnt(0)")
    A("ds_write_b128 v226, v[220:223]"); A("ds_write_b128 v226, v[236:239] offset:272")
    A("v_cmp_eq_u32 s[62:63], -1, v220"); A("v_cmp_eq_u32 s[64:65], -1, v236"); A("v_cmp_ne_u32 s[60:61], s56, v210"); A("v_cmp_ne_u32 vcc, s56, v211")
    A("s_or_b64 s[66:67], s[62:63], s[64:65]"); A("s_or_b64 s[60:61], s[60:61], vcc"); A("s_or_b64 vcc, s[60:61], s[66:67]")
    A("s_cbranch_scc0 L_pd1")
    A("s_waitcnt lgkmcnt(0)")
    round1()
    A("s_sub_u32 s90, s90, 1"); A("s_cbranch_scc0 L_p1")
    A("s_waitcnt vmcnt(0)")
    A("L_pd1:")
    for ks in range(4): A(f"ds_read_b128 v[{192+4*ks}:{195+4*ks}], v227 offset:{32*ks}")
    stamp(11)
    fac = ["v_max_f32_dpp v210, v208, v208 quad_perm:[1,0,3,2] row_mask:0xf bank_mask:0xf",
           "v_max_f32_dpp v210, v210, v210 quad_perm:[2,3,0,1] row_mask:0xf bank_mask:0xf",
           "v_sub_f32 v208, v208, v210\nv_mul_f32 v208, %#x, v208" % LOG2E, "v_exp_f32 v208, v208", "v_mul_f32 v209, v208, v209",
           "v_add_f32_dpp v209, v209, v209 quad_perm:[1,0,3,2] row_mask:0xf bank_mask:0xf",
           "v_add_f32_dpp v209, v209, v209 quad_perm:[2,3,0,1] row_mask:0xf bank_mask:0xf",
           "v_rcp_f32 v209, v209", "v_mul_f32 v208, v208, v209", ""]
    for gh in range(2):
        for pr in range(2):
            fac.append("\n".join(f"v_mov_b32_dpp v{216+2*pr+b}, v208 row_newbcast:{4*b + 2*gh + pr} row_mask:{1 << gh:#x} bank_mask:0xf" for b in range(2)))
    n = 0
    for f_ in fac[:4]: A(f_)
    del fac[:4]
    for ct in range(4):
        for ks in range(4):
            if ct == 0: A(f"s_waitcnt lgkmcnt({3-ks})")
            mfma(144+4*ct, 192+4*ks, 64+16*ks+4*ct, ks == 0)
            if n < len(fac) and fac[n]: A(fac[n])
            n += 1
    A("s_mov_b32 exec_hi, 0")
    for ct in range(4):
        pk("mul", 144+4*ct, 144+4*ct, 216); pk("fma", 144+4*ct, 146+4*ct, 218, 144+4*ct)
        if ct & 1: A(f"ds_write2_b64 v234, v[{140+4*ct}:{141+4*ct}], v[{144+4*ct}:{145+4*ct}] offset0:{16*(ct-1)} offset1:{16*ct}")
    A("s_mov_b64 exec, -1")
    A("s_waitcnt lgkmcnt(0)"); A("s_barrier")
    for k in range(4): A(f"ds_read2st64_b64 v[{160+4*k}:{163+4*k}], v228 offset0:{2*k} offset1:{2*k+1}")
    for k in range(4):
        A(f"s_waitcnt lgkmcnt({3-k})"); pk("add", 160+4*k, 160+4*k, 162+4*k)
        if k & 1: pk("add", 156+4*k, 156+4*k, 160+4*k)
    pk("add", 160, 160, 168)
    A(f"buffer_store_dwordx2 v[160:161], v229, {WS}, s84 offen sc1")
    A(f"buffer_store_dwordx2 v[160:161], v229, {WS}, s85 offen sc1")
    stamp(12)
    if WB == "wo":
        A("s_cmp_eq_u32 s31, 0"); A("s_cbranch_scc0 L_nwb"); A("s_cmp_eq_u32 s3, 1"); A("s_cbranch_scc0 L_nwb")
        A("s_waitcnt vmcnt(0)")
        A("buffer_wbl2 sc1")
        A("L_nwb:")
    fin()

    A("L_fw3:")
    A("s_cmp_eq_u32 s78, 2"); A("s_cselect_b32 s80, 1, s36"); A("s_cmp_eq_u32 s80, 1"); A("s_cbranch_scc0 L_fw2")
    A("s_sub_u32 s90, s90, 1"); A("s_cbranch_scc0 L_fw")
    A("s_branch L_fw4")

    A("L_idle:")
    if IB: A("s_barrier")
    if T1 and not PT1: A(f"buffer_load_dword v6, v57, s[52:55], 0 offen {tnt}")
    if T2:
        A("s_mov_b32 s46, 2211840")
        A(f"buffer_load_dword v5, v252, s[44:47], 0 offen {tnt}")
    if not IB: A("s_barrier")
    if WB == "idle":
        A("s_cmp_eq_u32 s31, 31"); A("s_cbranch_scc0 L_nwb"); A("s_cmp_eq_u32 s3, 1"); A("s_cbranch_scc0 L_nwb")
        A("buffer_wbl2 sc1")
        A("L_nwb:")
    if WARM:
        nwv = (32 - WARM) * 4; per = 320 // nwv
        A(f"s_cmp_ge_u32 s31, {WARM}"); A("s_cbranch_scc0 L_widone")
        assert nwv in (8, 16)
        apbase(78)
        A(f"s_sub_u32 s81, s31, {WARM}"); A("s_lshl2_add_u32 s81, s81, s91")
        if nwv == 16:
            A("s_and_b32 s80, s81, 1"); A("s_mul_i32 s80, s80, 2560"); A("s_add_u32 s78, s78, s80"); A("s_lshr_b32 s81, s81, 1")
        A("s_lshl_b32 s81, s81, 14"); A("s_add_u32 s78, s78, s81")
        if CC is None:
            A(f"v_mov_b32 v7, {L_CW}"); A("ds_read_b32 v7, v7"); A("s_waitcnt lgkmcnt(0)"); A("v_readfirstlane_b32 s80, v7"); A("s_xor_b32 s78, s78, s80")
        A("v_lshlrev_b32 v7, 7, v1"); A(f"v_cmp_gt_u32 vcc, {per}, v1"); A("s_movk_i32 s90, 200")
        A("L_wi:")
        A("s_mov_b64 exec, vcc")
        A(f"buffer_load_dword v5, v7, {WS}, s78 offen sc1")
        A("s_waitcnt vmcnt(0)")
        if WSL: A(f"s_sleep {WSL}")
        A("v_cmp_eq_u32 vcc, -1, v5")
        A("s_cbranch_vccz L_widone")
        A("s_sub_u32 s90, s90, 1"); A("s_cbranch_scc0 L_wi")
        A("L_widone:")
    fin()

    A("L_mlp:")
    st.update(save); del seq[NPRE:]; Wc[0] = WM or W
    if MPRE is None:
        seq.extend(dma_a(n) for n in range(NR + PRE, 10))
        issue_to(pos[31] + 1 + W)
        while st["issued"] < len(seq): pump()
    stamp(23)
    if not W1W: A("s_barrier")
    if MPRE is not None:
        redo[0] = True
        A("s_mov_b32 s46, 2211840"); A(f"s_sub_u32 s82, s82, {128*(NR + PRE - MPRE) - (128 if MPRE == 0 else 0)}")
        assert NR + PRE <= 10
        for n in range(MPRE, 10): dma_a(n)()
    stamp(24)
    wgt = [1] * len(seq)
    for n in range(10):
        if W1W:
            while sum(wgt[st["waited"] + 1:]) + 2 > W1W: wait_for(st["waited"] + 1)
            seq.append(None); wgt.append(2); st["issued"] += 1
        A(f"s_add_u32 m0, s88, {n*1024}")
        if n: A(f"s_add_u32 s84, s84, {16*3456}")
        A(f"buffer_load_dwordx4 v59, s[52:55], s84 offen {w1nt} lds")
    stamp(9)
    W1F, W2F, PL, HO, H1O = 64, 96, 136, 168, 192
    flush()
    A("s_waitcnt vmcnt(10)"); A("s_barrier")
    if CC is None: A("ds_read_b32 v15, v249")
    for i in range(10):
        for u in range(2):
            r = W2F + 4*i + 2*u
            A(f"ds_read_b64_tr_b16 v[{r}:{r+1}], v{233+i} offset:{L_W2 + u*20480}")
    if CC is None:
        A("s_waitcnt lgkmcnt(15)")
        A("v_readfirstlane_b32 s78, v15"); A("v_xor_b32 v225, v15, v225"); A("s_xor_b32 s86, s86, s78")
    A("L_mlp5:")
    sofr = [None, 76, 77, 87, 88, 89, 57, 58]
    for p in range(1, 8): A(f"s_mov_b32 s{sofr[p]}, {p*16384}")
    ld2 = [(PL + 4*p, f"v225, {WS}, {f's{sofr[p]}' if p else '0'} offen", 4, CHK2) for p in range(8)]
    for r in range(16): A(f"v_mov_b32 v{HO+r}, 0x3f803f80")
    A("s_mov_b32 s50, 0x00030003"); A("s_mov_b32 s51, 0x00030003"); A("s_mov_b32 s48, 0x00070007"); A("s_mov_b32 s49, 0x00070007")
    A("v_lshlrev_b32 v184, 16, v252"); A("v_lshlrev_b32 v185, 16, v253"); A("v_and_b32 v186, 0xffff0000, v252"); A("v_and_b32 v187, 0xffff0000, v253")
    if EF:
        poll_first(ld2); A("s_waitcnt vmcnt(8)")
    else: A("s_waitcnt vmcnt(0)")
    A("s_barrier")
    stamp(10)
    if not EF: poll_first(ld2)
    stamp(20)
    for ks in range(4):
        for ct in range(2):
            for u in range(2):
                r = W1F + 8*ks + 4*ct + 2*u
                A(f"ds_read_b64_tr_b16 v[{r}:{r+1}], v{231+ct} offset:{(2*ks+u)*1024}")
    stamp(22)
    SM = 40
    def sum2():
        for i in range(0, 16, 2): pk("add", SM+i, PL+i, PL+16+i)
        sum4(SM)
    poll("2", ld2, sum2, (SM, SM+2))
    stamp(11)
    a, b_, c = SM, SM+4, SM+6
    def unpack():
        A(f"v_lshlrev_b32 v{a}, 16, v{b_}"); A(f"v_lshlrev_b32 v{a+1}, 16, v{b_+1}"); A(f"v_and_b32 v{a+2}, 0xffff0000, v{b_}"); A(f"v_and_b32 v{a+3}, 0xffff0000, v{b_+1}")
    A(f"v_cvt_pk_bf16_f32 v{b_}, v{a}, v{a+2}"); A(f"v_cvt_pk_bf16_f32 v{b_+1}, v{a+1}, v{a+3}"); unpack()
    pk("add", a, a, 184); pk("add", a+2, a+2, 186)
    A(f"v_cvt_pk_bf16_f32 v{b_}, v{a}, v{a+2}"); A(f"v_cvt_pk_bf16_f32 v{b_+1}, v{a+1}, v{a+3}")
    A(f"ds_write_b32 v226, v{b_}"); A(f"ds_write_b32 v226, v{b_+1} offset:{YBS}")
    A("s_mov_b64 exec, s[50:51]")
    for ks in range(4): A(f"ds_read_b128 v[{HO+4*ks}:{HO+3+4*ks}], v227 offset:{64*ks}")
    A("s_mov_b64 exec, -1")
    unpack()
    pk("mul", c+2, a, a); pk("add", c, a, a+2); pk("fma", c+2, a+2, a+2, c+2)
    A(f"v_permlane32_swap_b32 v{c}, v{c+2}"); A(f"v_permlane32_swap_b32 v{c+1}, v{c+3}"); pk("add", c, c, c+2)
    A(f"v_permlane16_swap_b32 v{c}, v{c+1}"); A(f"v_add_f32 v{c}, v{c}, v{c+1}")
    red = [f"v_add_f32_dpp v{c}, v{c}, v{c} {m} row_mask:0xf bank_mask:0xf" for m in ("row_mirror", "row_half_mirror", "quad_perm:[2,3,0,1]", "quad_perm:[1,0,3,2]")]
    for ks in range(4):
        A(f"s_waitcnt lgkmcnt({3-ks})")
        for ct in range(2): mfma(28+4*ct, W1F+8*ks+4*ct, HO+4*ks, ks == 0)
        A(red[ks])
    A(f"ds_write_b32 v230, v{c}")
    A("s_mov_b64 exec, s[48:49]")
    A("ds_write_b128 v228, v[28:31]"); A("ds_write_b128 v228, v[32:35] offset:64")
    A("s_mov_b64 exec, -1")
    A("s_waitcnt lgkmcnt(0)"); A("s_barrier")
    stamp(12)
    A("s_cmp_eq_u32 s3, 0"); A("s_cbranch_scc1 L_final ; nf")
    pend_fin = list(pend)
    A("ds_read_b128 v[40:43], v248"); A("ds_read_b128 v[44:47], v248 offset:16"); A("ds_read_b64 v[48:49], v248 offset:32")
    A("ds_read2st64_b32 v[52:53], v247 offset0:0 offset1:2"); A("ds_read2st64_b32 v[54:55], v247 offset0:4 offset1:6"); A("ds_read_b32 v15, v247 offset:2048")
    A("ds_read2st64_b32 v[36:37], v244 offset0:0 offset1:2"); A("ds_read2st64_b32 v[38:39], v244 offset0:4 offset1:6"); A("ds_read_b32 v50, v244 offset:2048")
    A("s_waitcnt lgkmcnt(6)")
    pk("add", 40, 40, 42); pk("add", 44, 44, 46); pk("add", 40, 40, 48); pk("add", 40, 40, 44)
    pk("mul", 40, 40, 250, mod="op_sel_hi:[1,0]")
    A("v_fma_f32 v41, -v40, v40, v41"); A("v_max_f32 v41, 0, v41")
    A("v_fma_f32 v41, v41, v26, v27"); A("v_rsq_f32 v41, v41")
    A("s_waitcnt lgkmcnt(3)")
    pk("add", 52, 52, 54); A("v_add_f32 v15, v15, v52"); A("v_add_f32 v15, v15, v53")
    A("s_waitcnt lgkmcnt(0)")
    pk("add", 36, 36, 38); A("v_fma_f32 v50, -v40, v15, v50"); A("v_add_f32 v36, v36, v37"); A("v_add_f32 v36, v36, v50")
    A("v_mul_f32 v36, v36, v41")
    bf16r(36, 36); A("v_add_f32 v36, v36, v13"); bf16r(36, 36)
    A("v_mul_f32 v37, v36, v36"); A("v_fma_f32 v37, v37, v25, v24"); A("v_mul_f32 v37, v37, v36"); A("v_exp_f32 v37, v37")
    A("v_add_f32 v37, 1.0, v37"); A("v_rcp_f32 v37, v37"); A("v_mul_f32 v36, v36, v37")
    A("v_cvt_pk_bf16_f32 v36, v36, v36")
    A("ds_write_b16 v245, v36")
    for t in range(8):
        A(f"s_lshl_b64 exec, s[50:51], {2*t}")
        A(f"ds_read_b128 v[{H1O+4*t}:{H1O+3+4*t}], v243")
    A("s_mov_b64 exec, -1")
    for i in [0, 8, 1, 9, 2, 3, 4, 5, 6, 7]:
        t = i & 7
        if i < 8: A(f"s_waitcnt lgkmcnt({7-t})")
        mfma(28 + 4*(i >> 3), W2F+4*i, H1O+4*t, t == 0)
    A("s_mov_b32 exec_lo, 0x000f000f"); A("s_mov_b32 exec_hi, 0x000f000f")
    A(f"buffer_store_dwordx4 v[32:35], v246, {WS}, s86 offen offset:1024 sc1")
    A("s_mov_b64 exec, -1")
    A(f"buffer_store_dwordx4 v[28:31], v2, {WS}, s86 offen sc1")
    stamp(18)
    if h3 is not None:
        if h3 < 0: A("s_waitcnt vmcnt(0)")
        A("s_barrier")
    stamp(13)
    fin()

    A("L_final:")
    pend.extend(pend_fin)
    A("s_cmp_ge_u32 s33, 20"); A("s_cbranch_scc1 L_epoch")
    A("ds_read_u16_d16_hi v16, v15")
    srd(44, 24, 2560)
    ld3 = [(96 + 4*n, f"v{57 if n == 6 else 56}, {WS}, {f's{80+n}' if n else '0'} offen", 4, (0,)) for n in range(7)]
    A("s_waitcnt lgkmcnt(0)")
    if h3 is not None:
        A("s_barrier")
        if h3 > 0: A(f"s_sleep {h3}")
    poll_first(ld3)
    def sum3():
        for k in range(3):
            for hh in (0, 2): pk("add", 64+4*k+hh, 96+8*k+hh, 100+8*k+hh)
        for hh in (0, 2):
            pk("add", 64+hh, 64+hh, 68+hh); pk("add", 72+hh, 72+hh, 120+hh)
        for hh in (0, 2): pk("add", 64+hh, 64+hh, 72+hh)
    poll("3", ld3, sum3, (64, 66))
    stamp(14)
    A("v_permlane32_swap_b32 v64, v66"); A("v_permlane32_swap_b32 v65, v67"); pk("add", 64, 64, 66)
    A("v_permlane16_swap_b32 v64, v65"); A("v_add_f32 v64, v64, v65")
    A("v_add_f32_dpp v64, v64, v64 row_ror:8 row_mask:0xf bank_mask:0xf")
    bf16r(64, 64); A("v_add_f32 v64, v64, v17"); bf16r(64, 64); A("v_add_f32 v64, v64, v16")
    A("v_cvt_pk_bf16_f32 v64, v64, v64")
    A(f"buffer_store_short v64, v12, s[44:47], 0 offen {osc}")
    stamp(15)
    fin()
    A("L_epoch:")
    A("s_cmp_eq_u32 s37, 53"); A("s_cbranch_scc0 L_fend")
    A("v_mov_b32 v34, s56"); A("s_mov_b64 exec, 1")
    A(f"buffer_store_dword v34, v2, {WS}, 0 offen {osc}")
    A("L_fend:")
    if diag: fin()
    A("L_end:")
    A("s_endpgm")

    body = fix(L)
    out = [HDR.rstrip("\n"),
           "; One launch, 256 workgroups (one per CU); hand-offs between workgroups go through d_ws.",
           f"; @launch grid=(256,1,1) block=(320,1,1) lds={LDS_BYTES}",
           '.amdgcn_target "amdgcn-amd-amdhsa--gfx950"', ".text", f".globl {NAME}_kernel", ".p2align 8",
           f".type {NAME}_kernel,@function", f"{NAME}_kernel:"] + body + [
           '.section .rodata,"a"', ".p2align 6", f".amdhsa_kernel {NAME}_kernel",
           "  .amdhsa_next_free_vgpr 256", "  .amdhsa_next_free_sgpr 102", "  .amdhsa_accum_offset 256",
           "  .amdhsa_group_segment_fixed_size 0", "  .amdhsa_kernarg_size 104", "  .amdhsa_user_sgpr_count 2",
           "  .amdhsa_user_sgpr_kernarg_segment_ptr 1", "  .amdhsa_system_sgpr_workgroup_id_x 1",
           "  .amdhsa_float_denorm_mode_32 3",
           ".end_amdhsa_kernel"]
    return "\n".join(out) + "\n"

if __name__ == "__main__":
    import argparse
    ap = argparse.ArgumentParser(); ap.add_argument("-o", default=f"cdna_kernels/{NAME}.s"); ap.add_argument("--diag", action="store_true")
    ap.add_argument("--kw", default="")
    a = ap.parse_args()
    open(a.o, "w").write(gen(diag=a.diag, **eval("dict(%s)" % a.kw)))
```

```python
import sys, struct
from hz import fix
NAME = "sequential_preLN__sliding_block_cached__mixer_channel_mlp__decode"
HDR = open("cdna_kernels/%s.s.ref" % NAME).read().split("; Override launch")[0]
def F(x): return "0x%08x" % struct.unpack("<I", struct.pack("<f", x))[0]

WS_FLAGS = 1024; WS_VOTE = 2048; WS_PRB = 0x4000; WS_MP = 0x10000; WS_AP = 0x80000; WS_QP = 0x100000; WS_OP = 0x180000
WS_STAMP = 0x200000
OOB = 0xF0000000
L_WB = 23552
L_W2 = L_WB; L_W1 = L_WB + 40960
L_RED = L_WB + 81920
L_Q = L_RED + 2048
L_ML = L_Q + 256
L_SB = L_ML + 96
L_OB = L_SB + 96
L_OF = L_OB + 4096
L_YB = L_OF + 8704
YBS = 1344
L_PB = L_YB + 2 * YBS
L_CW = L_PB + 2560
L_H1 = L_CW + 64
L_DUMMY = L_H1 + 512
LDS_BYTES = L_DUMMY + 1024
SPIN = 400000
LOG2E = 0x3FB8AA3B

def gen(diag=False, nt='nt', W=7, wnt='nt', prio=False, KQ=2, depth=0, PT0=12, T1=True, T2=False, tnt='', local=True, probe=None, h3=-1, exp=(), qdelay=None, PRE=None, QKP='kv', W0=2, NR=0, PR=17, RS=1.5, tall=True, tfree=False, NB=16, MB=True, EF=True, IB=True, WARM=0, WSL=0, CC=None, ROT=False, w1nt='nt', WO=16, RC=0, WBAR=0, P1G=True, XP=0, probe2=None, CLP=0, cfl='sc1', TIGHT=2, PFOUT=False, H8=True, MW=True, PF1=True, MPW=True, NW=5, PW=20, WS_=2.4, TS=(0,19,52), W1W=None, WK=None, KW=12, KS=1, MIX='iw', PERM='t0 s0 s1 w0 w1 t1 t2 t3', QL=True, UNR=2, MLS=False, OMS=False, GW=False, PFO=2, TRF=True, WB=None, osc='', MPRE=None, WM=None, FASTP=True, CHK2=(0,), PT1=None, only=None):
    L = []
    pend = []
    def A(s):
        for l in s.split("\n"):
            l = l.strip()
            if pend and l.startswith(("s_cbranch", "s_branch")) and not l.endswith("; nf"):
                A("s_waitcnt lgkmcnt(0)")
            L.append("    " + l if not l.endswith(":") else l)
            if pend and l.startswith("s_waitcnt") and "lgkmcnt(0)" in l:
                for r, i in pend: L.append(f"    v_writelane_b32 v255, s{r}, {i}")
                pend.clear()
    def stamp(i, clk=False):
        if diag and (only is None or i in only or i >= 59):
            if len(pend) >= 4: A("s_waitcnt lgkmcnt(0)")
            r = 92 + 2 * len(pend)
            A(f"{'s_memtime' if clk else 's_memrealtime'} s[{r}:{r+1}]"); pend.append((r, i))
    def flush():
        if pend: A("s_waitcnt lgkmcnt(0)")
    def bf16r(d, x):
        A(f"v_cvt_pk_bf16_f32 v{d}, v{x}, v{x}"); A(f"v_and_b32 v{d}, 0xffff0000, v{d}")
    def row_allred(op, v):
        for c in ("row_mirror", "row_half_mirror", "quad_perm:[2,3,0,1]", "quad_perm:[1,0,3,2]"):
            A(f"{op}_dpp v{v}, v{v}, v{v} {c} row_mask:0xf bank_mask:0xf")
    def swap_allred(op, v, t, which):
        A(f"v_mov_b32 v{t}, v{v}"); A(f"v_permlane{which}_swap_b32 v{v}, v{t}"); A(f"{op} v{v}, v{v}, v{t}")
    def srd(r, base, size):
        A(f"s_mov_b32 s{r}, s{base}"); A(f"s_mov_b32 s{r+1}, s{base+1}"); A(f"s_mov_b32 s{r+2}, {size}"); A(f"s_mov_b32 s{r+3}, 0x20000")
    def pk(op, d, a, b, c=None, mod=""):
        A(f"v_pk_{op}_f32 v[{d}:{d+1}], v[{a}:{a+1}], v[{b}:{b+1}]" + (f", v[{c}:{c+1}]" if c is not None else "") + (" " + mod if mod else ""))
    def mfma(d, a, b, first):
        A(f"v_mfma_f32_16x16x32_bf16 v[{d}:{d+3}], v[{a}:{a+3}], v[{b}:{b+3}], {'0' if first else f'v[{d}:{d+3}]'}")
    def sum4(b):
        for hh in (0, 2):
            pk("add", b+hh, b+hh, b+4+hh); pk("add", b+8+hh, b+8+hh, b+12+hh)
        for hh in (0, 2): pk("add", b+hh, b+hh, b+8+hh)
    def role_decode():
        A("s_sub_u32 s78, s31, 10"); A("s_lshr_b32 s80, s78, 1"); A("s_lshl_b32 s80, s80, 3"); A("s_add_u32 s80, s80, s30")
        A("s_and_b32 s78, s78, 1"); A("s_lshl_b32 s37, s80, 1"); A("s_add_u32 s37, s37, s78")
        A("s_cmp_lt_u32 s80, 27"); A("s_cselect_b32 s36, 2, 0")
        A("s_cmp_lt_u32 s31, 10"); A("s_cselect_b32 s36, 1, s36"); A("s_cselect_b32 s37, s31, s37")
    WS = "s[40:43]"
    def ldtext(r, a, n=4):
        return f"buffer_load_dwordx{n} v[{r}:{r+n-1}], {a} sc1"
    def poll_init(loads):
        for r, a, n, chk in loads:
            for c in chk: A(f"v_mov_b32 v{r+c}, -1")
    def poll_first(loads):
        for r, ld in loads: ld()
    def poll(tag, loads, work, km, chk=None, clr=None):
        n = len(loads)
        M = lambda i: f"s[{60+2*i}:{61+2*i}]"
        chk = chk or (lambda d, r: A(f"v_cmp_ne_u32_sdwa {d}, v{r}, s56 src0_sel:BYTE_0 src1_sel:BYTE_0"))
        clr = clr or (lambda r: A(f"v_and_b32 v{r}, v{km}, v{r}"))
        A(f"s_mov_b32 s90, {SPIN}")
        flush()
        A(f"L_p{tag}:")
        A("s_waitcnt vmcnt(0)")
        for i, (r, ld) in enumerate(loads): chk(M(i), r)
        for i in range(0, n - 1, 2): A(f"s_or_b64 s[{92+i}:{93+i}], {M(i)}, {M(i+1)}")
        G = lambda k: f"s[{92+2*k}:{93+2*k}]" if 2*k + 1 < n else M(2*k)
        A(f"s_or_b64 vcc, {G(0)}, {G(1)}")
        if n > 6:
            A(f"s_or_b64 s[100:101], {G(2)}, {G(3)}"); A("s_or_b64 vcc, vcc, s[100:101]")
        else: A(f"s_or_b64 vcc, vcc, {G(2)}")
        A(f"s_cbranch_scc0 L_pa{tag}")
        for k in range(4):
            if 2*k + 1 < n:
                A(f"s_cmp_eq_u64 {G(k)}, 0"); A(f"s_cbranch_scc1 L_k{tag}_{2*k+1}")
            for i in range(2*k, min(n, 2*k + 2)):
                A(f"s_cmp_eq_u64 {M(i)}, 0"); A(f"s_cbranch_scc1 L_k{tag}_{i}")
                loads[i][1]()
                A(f"L_k{tag}_{i}:")
        A("s_mov_b32 s59, 0")
        for i in reversed(range(n)):
            A(f"s_cmp_lg_u64 {M(i)}, 0"); A("s_addc_u32 s59, s59, s59")
        A("s_sub_u32 s90, s90, 1"); A(f"s_cbranch_scc1 L_u{tag}_0")
        A("s_bcnt1_i32_b32 s78, s59"); A("s_cmp_eq_u32 s78, 1"); A(f"s_cbranch_scc0 L_p{tag}")
        for i in range(n - 1):
            A(f"s_bitcmp0_b32 s59, {i}"); A(f"s_cbranch_scc0 L_e{tag}_{i}")
        A("s_cmp_eq_u32 0, 1")
        for i in reversed(range(n)):
            r, ld = loads[i]
            A(f"L_e{tag}_{i}:")
            for k, (r2, _) in enumerate(loads):
                if k != i: clr(r2)
            A(f"s_branch L_u{tag}_{i}")
            A(f"L_t{tag}_{i}:")
            ld()
            A("s_sub_u32 s90, s90, 1")
            A(f"L_u{tag}_{i}:")
            A("s_waitcnt vmcnt(0)")
            chk("vcc", r)
            part = tag == "1" or tag == "3" and i == 6
            if not part: clr(r)
            A(f"s_cbranch_scc1 L_pw{tag}")
            A(f"s_cbranch_vccnz L_t{tag}_{i}")
            if part: clr(r)
            A(f"s_branch L_pw{tag}")
        A(f"L_pa{tag}:")
        for r, ld in loads: clr(r)
        A(f"L_pw{tag}:")
        work()
    def fin():
        if diag:
            A("s_mov_b64 exec, -1")
            stamp(59); stamp(61, True); A("s_waitcnt lgkmcnt(0)")
            A("s_getreg_b32 s92, hwreg(HW_REG_XCC_ID)"); A("v_writelane_b32 v255, s92, 62")
            A("s_cmp_eq_u32 s3, 0"); A("s_cselect_b32 s92, 3, 0"); A("s_add_u32 s92, s92, s36"); A("v_writelane_b32 v255, s92, 63")
            A("s_mul_i32 s78, s2, 5"); A("s_add_u32 s78, s78, s3"); A("s_lshl_b32 s78, s78, 8"); A(f"s_add_u32 s78, s78, {WS_STAMP}")
            A("v_lshlrev_b32 v7, 2, v1")
            A(f"buffer_store_dword v255, v7, {WS}, s78 offen")
            if probe is not None:
                fin.n = getattr(fin, "n", 0) + 1
                pi, pw, role = probe
                A("s_cmp_eq_u32 s3, 0"); A(f"s_cbranch_scc{1 if pw == 1 else 0} L_pe{fin.n}")
                if role is not None:
                    A(f"s_cmp_eq_u32 s36, {role}"); A(f"s_cbranch_scc0 L_pe{fin.n}")
                A("v_readlane_b32 s80, v255, 0")
                if pi == "xcc":
                    A("s_getreg_b32 s78, hwreg(HW_REG_XCC_ID, 0, 4)"); A("s_cmp_eq_u32 s78, s30"); A("s_cselect_b32 s78, 0, 400")
                elif pi == "vote":
                    A("v_readlane_b32 s78, v255, 57"); A("s_nop 4"); A("s_mul_i32 s78, s78, 10")
                else:
                    A(f"v_readlane_b32 s78, v255, {pi}"); A("s_nop 4"); A("s_cmp_eq_u32 s78, 0"); A(f"s_cbranch_scc1 L_pe{fin.n}")
                    A("s_sub_u32 s78, s78, s80")
                A("s_mul_i32 s78, s78, 10"); A("s_add_u32 s78, s78, s80"); A("s_add_u32 s78, s78, 2000")
                A(f"L_prw{fin.n}:"); A("s_sleep 2"); A("s_memrealtime s[92:93]"); A("s_waitcnt lgkmcnt(0)"); A("s_sub_u32 s92, s92, s78"); A("s_cmp_lt_i32 s92, 0"); A(f"s_cbranch_scc1 L_prw{fin.n}")
                A(f"L_pe{fin.n}:")
        A("s_endpgm")
    def traddr1280(d, blk):
        A("v_bfe_u32 v7, v1, 2, 3"); A(f"v_lshlrev_b32 v{d}, 7, v7"); A("v_lshrrev_b32 v7, 1, v7"); A(f"v_lshl_add_u32 v{d}, v7, 5, v{d}")
        A("v_lshrrev_b32 v7, 5, v1"); A(f"v_mul_u32_u24 v7, {blk}, v7"); A(f"v_add_u32 v{d}, v{d}, v7")
        A("v_and_b32 v7, 3, v1"); A(f"v_lshl_add_u32 v{d}, v7, 3, v{d}")

    K0, V0 = 64, 128
    ACC = 28
    XS, XO, WQ, AO = 228, 238, 64, 144

    L_X = 20480
    if probe2:
        slot, off, stride = probe2
        A("s_memrealtime s[60:61]"); A(f"s_load_dwordx2 s[4:5], s[0:1], {slot*8}"); A("v_readfirstlane_b32 s3, v0"); A("s_waitcnt lgkmcnt(0)")
        A("s_mov_b32 s99, 0")
        A("s_cmp_eq_u32 s2, 255"); A("s_cbranch_scc0 L_q2w"); A("s_cmp_eq_u32 s3, 64"); A("s_cbranch_scc0 L_q2w")
        A("s_sleep 100")
        A("s_memrealtime s[62:63]"); A("s_waitcnt lgkmcnt(0)")
        for i in range(16):
            A(f"s_mov_b32 s6, {off + i*stride}"); A("s_load_dword s7, s[4:5], s6"); A("s_waitcnt lgkmcnt(0)")
        A("s_memrealtime s[64:65]"); A("s_waitcnt lgkmcnt(0)")
        A("s_sub_u32 s99, s64, s62"); A("s_mul_i32 s99, s99, 10"); A("s_add_u32 s99, s99, s60"); A("s_add_u32 s99, s99, 4000")
        A("L_q2w:")
        A("s_add_u32 s60, s60, 1500")
        A("L_q2x:"); A("s_sleep 2"); A("s_memrealtime s[62:63]"); A("s_waitcnt lgkmcnt(0)"); A("s_sub_u32 s62, s62, s60"); A("s_cmp_lt_i32 s62, 0"); A("s_cbranch_scc1 L_q2x")
    if diag: A("s_memrealtime s[100:101]")
    A("s_load_dwordx16 s[4:19], s[0:1], 0"); A("s_load_dwordx2 s[40:41], s[0:1], 96")
    A("s_lshr_b32 s31, s2, 3"); A("s_and_b32 s33, s31, 7")
    A("s_getpc_b64 s[52:53]"); A("L_pc:")
    A(f"s_cmp_eq_u32 {'s31, 17' if PF1 else 's33, 7'}"); A("s_cselect_b32 s54, L_end-L_pc, 0"); A("s_mov_b32 s55, 0x20000"); A("v_lshlrev_b32 v22, 7, v0")
    A("buffer_load_dword v4, v22, s[52:55], 0 offen")
    A("v_lshrrev_b32 v7, 6, v0"); A("v_and_b32 v1, 63, v0"); A("s_cmp_ge_u32 s31, 32"); A("v_readfirstlane_b32 s3, v7")
    A("s_cbranch_scc1 L_end ; nf")
    A("s_and_b32 s30, s2, 7"); A("s_lshr_b32 s78, s31, 3"); A("s_lshl3_add_u32 s32, s78, s30" if H8 else "s_lshl2_add_u32 s32, s30, s78")
    A("v_lshlrev_b32 v2, 4, v1"); A("v_lshrrev_b32 v8, 4, v1"); A("v_and_b32 v9, 15, v1")
    A("s_lshr_b32 s34, s33, 2"); A("s_and_b32 s35, s33, 3")
    A("s_cmp_eq_u32 s3, 0"); A("s_cbranch_scc0 L_s0 ; nf")
    A("s_mul_i32 s78, s33, 20"); A("v_mad_u32_u24 v7, v8, 5, s78")
    A("v_lshlrev_b32 v12, 15, v7"); A("v_lshl_add_u32 v12, v9, 4, v12"); A("s_lshl_b32 s78, s32, 8"); A("v_add_u32 v12, s78, v12")
    A("s_movk_i32 s79, 0x2000"); A(f"s_movk_i32 m0, {L_X}")
    A("s_waitcnt lgkmcnt(0)")
    A("global_load_lds_dwordx4 v2, s[4:5]"); A("global_load_lds_dwordx4 v2, s[4:5] offset:1024"); A("global_load_lds_dwordx4 v2, s[4:5] offset:1536")
    A("s_mov_b32 m0, 0")
    A("s_nop 0")
    A("L_wq:")
    for _ in range(UNR):
        A(f"global_load_lds_dwordx4 v12, s[10:11] {nt}")
        A("s_addk_i32 m0, 0x400"); A("v_add_u32 v12, s79, v12")
    A(f"s_cmpk_lt_u32 m0, {L_X}"); A("s_cbranch_scc1 L_wq ; nf")
    A("s_branch L_aux ; nf")
    A("L_s0:")
    if PERM:
        pb = {n: 10 + i for i, n in enumerate(PERM.split())}
        assert pb["w1"] == pb["w0"] + 1
        A("s_lshl_b32 s78, s34, 5"); A("s_add_u32 s78, s78, s32"); A("s_lshl_b32 s78, s78, 20"); A(f"s_lshl_b32 s80, s3, {pb['w0']}"); A("s_add_u32 s78, s78, s80")
        if pb["s1"] == pb["s0"] + 1:
            A(f"s_lshl_b32 s80, s35, {pb['s0']}"); A("s_add_u32 s78, s78, s80")
        else:
            A("s_and_b32 s80, s35, 1"); A(f"s_lshl_b32 s80, s80, {pb['s0']}"); A("s_add_u32 s78, s78, s80")
            A("s_lshr_b32 s80, s35, 1"); A(f"s_lshl_b32 s80, s80, {pb['s1']}"); A("s_add_u32 s78, s78, s80")
        A(f"s_add_u32 s78, s78, {3072*256 + 4096 - (1 << pb['w0'])}")
        A("v_add_u32 v17, s78, v2")
    else:
        A("s_lshl_b32 s78, s34, 5"); A("s_add_u32 s78, s78, s32"); A("s_lshl_b32 s78, s78, 6"); A("s_lshl2_add_u32 s80, s35, s3"); A("s_add_u32 s78, s78, s80")
        A("s_add_u32 s78, s78, 47"); A("s_lshl_b32 s78, s78, 14"); A("s_addk_i32 s78, 0x1000")
        if 'w' in MIX:
            A("s_and_b32 s80, s3, 1"); A("s_lshl_b32 s80, s80, 13"); A("s_add_u32 s78, s78, s80")
        A("v_add_u32 v17, s78, v2"); A("v_xor_b32 v18, 0x2000, v17")
    A("L_s1:")
    def common2():
        A("s_load_dwordx8 s[20:27], s[0:1], 64")
        if diag:
            A("v_mov_b32 v255, 0"); pend.append((100, 0)); stamp(60, True)
        role_decode()
        A("s_mov_b32 s42, 0x10000000"); A("s_mov_b32 s43, 0x20000")
    cur18 = [None]
    def ldKV(base, ptr, t):
        if PERM:
            off = sum(((t >> k) & 1) << pb[f"t{k}"] for k in range(4))
            def f():
                hi = off & ~8191
                if hi and cur18[0] != hi:
                    A(f"v_add_u32 v18, {hi}, v17"); cur18[0] = hi
                A(f"global_load_dwordx4 v[{base+4*t}:{base+4*t+3}], v{18 if hi else 17}, {ptr} offset:{(off & 8191) - 4096} {nt}")
            return f
        hi, lo = (t & 1, t >> 1) if 'i' in MIX else (t // 8, t % 8)
        return lambda: A(f"global_load_dwordx4 v[{base+4*t}:{base+4*t+3}], v{17 + hi}, {ptr} offset:{lo*1024-4096} {nt}")
    redo = [False]
    def dma_a(n):
        def f():
            if n == MPRE and not redo[0]:
                A("s_cmp_eq_u32 s36, 2"); A("s_cselect_b32 s46, 0, s46")
            if n == 10:
                A("s_cmp_eq_u32 s36, 2"); A("s_cselect_b32 s46, 0, s46"); A(f"s_cselect_b32 s78, {40960 - 10240}, 0"); A("s_add_u32 s83, s83, s78")
            A(f"s_add_u32 m0, s83, {n*1024}")
            if n: A("s_add_u32 s82, s82, s87")
            A(f"buffer_load_dwordx4 v58, s[44:47], s82 offen {wnt} lds")
        return f
    kv = [ldKV(K0, "s[6:7]", t) for t in range(16)] + [ldKV(V0, "s[8:9]", t) for t in range(16)]
    def rider():
        A("s_mov_b32 m0, s76"); A("s_add_u32 s76, s76, s77")
        A(f"buffer_load_dwordx4 v58, s[44:47], s79 offen {wnt} lds"); A("s_addk_i32 s79, 10240")
    seq = []; pos = []; free = set(); nr = 0; nw_ = 0; didx = {}
    for i, f in enumerate(kv):
        if PT0 == i:
            if tfree or not tall: free.add(len(seq))
            seq.append(lambda: A(f"buffer_load_dword v4, v56, s[48:51], 0 offen {tnt}"))
        if PT0 + 3 == i and not tall:
            free.add(len(seq)); seq.append(lambda: A(f"buffer_load_dword v5, v56, s[48:51], s79 offen {tnt}"))
        while nr < NR and PR + nr * RS <= i:
            free.add(len(seq)); didx[nr] = len(seq); seq.append(dma_a(nr)); nr += 1
        while nw_ < NW and PW + nw_ * WS_ <= i:
            free.add(len(seq)); didx[16 - NW + nw_] = len(seq); seq.append(rider); nw_ += 1
        pos.append(len(seq)); seq.append(f)
    assert nr == NR and nw_ == NW
    if PT1:
        free.add(len(seq)); seq.append(lambda: A(f"buffer_load_dword v6, v57, s[52:55], 0 offen {tnt}"))
    PRE = min(W - 1 + XP, 16 - NR - NW)
    for n in range(NR, NR + PRE):
        k = NR + PRE - 1 - n
        if k < 2 * (PRE - (W - 1)) and k % 2 == 1: free.add(len(seq))
        didx[n] = len(seq); seq.append(dma_a(n))
    st = dict(issued=0, waited=-1)
    Wc = [WK or W]
    def issue_to(n):
        inflight = lambda: sum(1 for i in range(n - W, st["issued"]) if i not in free)
        while st["issued"] < len(seq) and (st["issued"] < n - W + Wc[0] or inflight() < Wc[0] and n >= W):
            seq[st["issued"]](); st["issued"] += 1
    def wait_for(k):
        if k > st["waited"]:
            A(f"s_waitcnt vmcnt({st['issued'] - k - 1})"); st["waited"] = k
    def pump(lim=None):
        k = st["waited"] + 1
        while k in free: k += 1
        if lim is not None and k > lim: return
        if WK and KW <= k <= pos[31] and Wc[0] != W and (k - KW) % KS == 0: Wc[0] += 1 if Wc[0] < W else -1
        wait_for(k); issue_to(k + 1 + W)
    A("s_waitcnt lgkmcnt(0)")
    assert W <= 8
    for _ in range(W0):
        seq[st["issued"]](); st["issued"] += 1
    A("s_cmp_eq_u32 s3, 2"); A("s_cbranch_scc0 L_s4 ; nf")
    A("v_mov_b64 v[24:25], -1"); A("v_mov_b64 v[26:27], -1")
    A(f"v_add_u32 v13, {L_Q}, v2"); A("s_mov_b64 exec, 0x3fffff")
    A("ds_write_b128 v13, v[24:27]")
    A("s_mov_b64 exec, -1"); A("s_waitcnt lgkmcnt(0)")
    A("L_s4:")
    A("s_load_dword s56, s[40:41], 0")
    common2()
    def slots():
        A("s_lshl_b32 s39, s30, 5"); A("s_add_u32 s39, s39, s31")
        A("s_lshl_b32 s38, s39, 10"); A(f"s_add_u32 s38, s38, {WS_OP}")
    keep = list(pend); pend.clear()
    A("s_barrier")
    issue_to(W)
    A("s_branch L_stream ; nf")

    A("L_aux:")
    A("s_barrier")
    if prio: A("s_setprio 3")
    A("v_bfe_u32 v11, v1, 3, 1"); A("v_mul_u32_u24 v11, 1280, v11"); A("v_lshl_add_u32 v11, v7, 3, v11")
    common2()
    stamp(1)
    A("v_lshrrev_b32 v40, 5, v1"); A("v_mul_u32_u24 v10, 1280, v40"); A("v_and_b32 v41, 31, v1"); A("v_mad_u32_u24 v10, v41, 40, v10")
    slots()
    A("v_and_b32 v7, 1, v1"); A("v_cmp_eq_u32 vcc, 1, v7"); A("v_bfe_u32 v7, v1, 1, 2")
    A("v_mov_b32 v28, 0x0c0c0100"); A("v_mov_b32 v29, 0x01000c0c"); A("v_cndmask_b32 v28, v28, v29, vcc")
    A("v_mov_b32 v29, 0x0c0c0302"); A("v_mov_b32 v30, 0x03020c0c"); A("v_cndmask_b32 v29, v29, v30, vcc")
    A("v_mov_b32 v30, 0x0c0c0c0c")
    for r in range(4):
        A(f"v_cmp_eq_u32 vcc, {r}, v7"); A(f"v_cndmask_b32 v{14+r}, v30, v28, vcc"); A(f"v_cndmask_b32 v{18+r}, v30, v29, vcc")
    A(f"v_mov_b32 v13, {L_ML}"); A(f"v_mov_b32 v23, {OOB}")
    A("s_waitcnt vmcnt(20)")
    for base, a in ((XS, 10), (XO, 11)):
        A(f"ds_read_b64 v[{base}:{base+1}], v{a} offset:{L_X}"); A(f"ds_read_b64 v[{base+2}:{base+3}], v{a} offset:{L_X+8}")
        A(f"ds_read_b64 v[{base+4}:{base+5}], v{a} offset:{L_X+16}"); A(f"ds_read_b64 v[{base+6}:{base+7}], v{a} offset:{L_X+24}")
        A(f"ds_read_b64 v[{base+8}:{base+9}], v{a} offset:{L_X+32}")
    stamp(2)
    A("s_waitcnt lgkmcnt(0)")
    A("s_load_dword s56, s[40:41], 0")
    if CC is None:
        A("s_sub_u32 s78, s31, 24"); A("s_lshl3_add_u32 s47, s30, s78"); A("s_and_b32 s47, s47, 63")
        A("s_lshl_b32 s78, s47, 7"); A("s_and_b32 s46, s31, 1"); A("s_lshl_b32 s80, s46, 13"); A("s_add_u32 s44, s78, s80"); A(f"s_add_u32 s44, s44, {WS_PRB}")
        A("s_xor_b32 s45, s44, 0x2000")
        A("s_cmp_ge_u32 s31, 24"); A("s_cbranch_scc0 L_v1 ; nf")
        A("s_load_dword s48, s[40:41], s44 glc"); A("s_load_dword s49, s[40:41], s45 glc")
        A("L_v1:")
    X, mean, tmp = 192, 52, 56
    for i in range(10):
        A(f"v_lshlrev_b32 v{X+2*i}, 16, v{XS+i}"); A(f"v_and_b32 v{X+2*i+1}, 0xffff0000, v{XS+i}")
    pk("add", tmp, X, X+2); pk("add", tmp+2, X+4, X+6)
    for i in range(4, 10): pk("add", tmp+2*(i&1), tmp+2*(i&1), X+2*i)
    pk("add", tmp, tmp, tmp+2); A(f"v_add_f32 v{mean}, v{tmp}, v{tmp+1}")
    row_allred("v_add_f32", mean); swap_allred("v_add_f32", mean, tmp, 16)
    A(f"v_mul_f32 v{mean}, {F(1/640)}, v{mean}")
    for i in range(10): pk("add", X+2*i, X+2*i, mean, mod="op_sel_hi:[1,0] neg_lo:[0,1] neg_hi:[0,1]")
    for i in range(10):
        t = tmp + 2*(i&1)
        if i < 2: pk("mul", t, X+2*i, X+2*i)
        else: pk("fma", t, X+2*i, X+2*i, t)
    pk("add", tmp, tmp, tmp+2)
    va = mean + 2
    A(f"v_add_f32 v{va}, v{tmp}, v{tmp+1}")
    row_allred("v_add_f32", va); swap_allred("v_add_f32", va, tmp, 16)
    A(f"v_mul_f32 v{va}, {F(1/640)}, v{va}")
    bf16r(mean, mean); bf16r(va, va)
    A(f"v_add_f32 v{va}, {F(1e-5)}, v{va}"); bf16r(va, va)
    A(f"v_sqrt_f32 v{va}, v{va}"); bf16r(va, va)
    A(f"v_rcp_f32 v{va}, v{va}")
    A("v_mov_b32 v53, v52"); A("v_mov_b32 v55, v54")
    for i in range(10):
        A(f"v_lshlrev_b32 v{X+2*i}, 16, v{XO+i}"); A(f"v_and_b32 v{X+2*i+1}, 0xffff0000, v{XO+i}")
    A("v_permlane32_swap_b32 v52, v53"); A("v_permlane32_swap_b32 v54, v55")
    A("s_mov_b32 vcc_lo, 0xff00ff00"); A("s_mov_b32 vcc_hi, 0xff00ff00")
    A("v_cndmask_b32 v52, v52, v53, vcc"); A("v_cndmask_b32 v54, v54, v55, vcc")
    for i in range(10): pk("add", X+2*i, X+2*i, mean, mod="op_sel_hi:[1,0] neg_lo:[0,1] neg_hi:[0,1]")
    for i in range(10): A(f"v_cvt_pk_bf16_f32 v{XO+i}, v{X+2*i}, v{X+2*i+1}")
    for i in range(10):
        A(f"v_lshlrev_b32 v{X+2*i}, 16, v{XO+i}"); A(f"v_and_b32 v{X+2*i+1}, 0xffff0000, v{XO+i}")
    for i in range(10): pk("mul", X+2*i, X+2*i, va, mod="op_sel_hi:[1,0]")
    for i in range(10): A(f"v_cvt_pk_bf16_f32 v{XO+i}, v{X+2*i}, v{X+2*i+1}")
    stamp(3)
    for t in range(22):
        if t < 20:
            A(f"s_waitcnt vmcnt({19-t})"); A(f"ds_read_b128 v[{WQ+4*t}:{WQ+4*t+3}], v2 offset:{1024*t}")
            for r in range(4): A(f"v_perm_b32 v{AO+4*t+r}, v{XO+t//2}, v{XO+t//2}, v{14+4*(t&1)+r}")
        if t > 1:
            A(f"s_waitcnt lgkmcnt({min(2, 21-t)})"); mfma(ACC, AO+4*(t-2), WQ+4*(t-2), t == 2)
    A("s_add_u32 s56, s56, 0x01010101")
    A("s_lshl_b32 s39, s39, 11"); A(f"s_add_u32 s39, s39, {WS_QP}")
    A("v_mov_b32 v34, s56"); A("v_mov_b32 v35, s56"); A("v_mov_b32 v38, s56"); A("v_mov_b32 v39, s56")
    A("v_mov_b64 v[32:33], v[28:29]"); A("v_mov_b64 v[36:37], v[30:31]")
    def qstore(fl):
        A(f"buffer_store_dwordx4 v[32:35], v2, {WS}, s39 offen {fl}")
        A(f"buffer_store_dwordx4 v[36:39], v2, {WS}, s39 offen offset:1024 {fl}")
    if QL:
        A("s_getreg_b32 s57, hwreg(HW_REG_XCC_ID, 0, 4)"); A("s_xor_b32 s57, s57, s56"); A("v_mov_b32 v35, s57"); A("v_mov_b32 v39, s57")
        qstore("")
    else: qstore("sc1")
    stamp(4)
    def recl():
        A("s_not_b32 s78, s56")
        for r in range(4): A(f"v_mov_b32 v{24+r}, s78")
        A("s_mov_b32 exec_hi, 0xff")
        A(f"buffer_store_dwordx4 v[24:27], v2, {WS}, s38 offen")
        A("s_mov_b32 exec_hi, -1")
    if RC == 1: recl()
    A("s_andn2_b32 s78, s39, 0x3fff"); A("s_lshl_b32 s80, s34, 9"); A("s_add_u32 s78, s78, s80")
    A("v_lshlrev_b32 v42, 10, v40"); A("v_lshl_add_u32 v42, v41, 4, v42"); A("v_add_u32 v42, s78, v42")
    for k in range(1, 4): A(f"s_movk_i32 s{80+k}, {4096*k}")
    A("v_lshlrev_b32 v43, 4, v9"); A("v_and_b32 v7, 1, v8"); A("v_lshl_add_u32 v43, v7, 3, v43"); A("v_lshl_add_u32 v43, v40, 2, v43"); A(f"v_add_u32 v43, {L_Q}, v43")
    assert QL
    A("s_lshl_b32 s77, s30, 16"); A(f"s_add_u32 s77, s77, {WS_QP}"); A("v_lshlrev_b32 v47, 11, v1")
    if CC is None:
        flush()
        A("s_cmp_ge_u32 s31, 24"); A("s_cbranch_scc0 L_v2")
        A("s_memtime s[60:61]"); A("s_waitcnt lgkmcnt(0)")
        A("s_load_dword s48, s[40:41], s44 glc"); A("s_waitcnt lgkmcnt(0)")
        A("s_memtime s[62:63]"); A("s_waitcnt lgkmcnt(0)")
        A("s_load_dword s49, s[40:41], s45 glc"); A("s_waitcnt lgkmcnt(0)")
        A("s_memtime s[64:65]"); A("s_waitcnt lgkmcnt(0)")
        A("s_sub_u32 s60, s62, s60"); A("s_sub_u32 s62, s64, s62"); A("s_cmp_gt_u32 s60, s62"); A("s_addc_u32 s46, s46, 0")
        A("s_getreg_b32 s78, hwreg(HW_REG_XCC_ID, 2, 1)"); A("s_xor_b32 s46, s46, s78"); A("s_and_b32 s46, s46, 1"); A("s_xor_b32 s46, s46, s56")
        A("v_mov_b32 v44, s46"); A("s_and_b32 s47, s47, 7"); A("s_lshl_b32 s78, s30, 5"); A("s_add_u32 s47, s47, s78"); A("s_lshl_b32 s47, s47, 2"); A("s_mov_b64 exec, 1")
        if qdelay is None: A("s_waitcnt vmcnt(0)")
        A(f"buffer_store_dword v44, v2, {WS}, s47 offen offset:{WS_VOTE} sc1")
        A("s_mov_b64 exec, -1")
        A("s_branch L_v3")
        A("L_v2:")
    if qdelay is None: A("s_waitcnt vmcnt(0)")
    elif qdelay: A(f"s_sleep {qdelay}")
    A("L_v3:")
    stamp(5)
    A(f"s_mov_b32 s90, {SPIN}")
    flush()
    if QL: A("s_mov_b32 s58, 0")
    A("L_qpoll:")
    if "halfq" in exp: A("s_mov_b32 exec_hi, 0")
    if "noqld" in exp: A("s_mov_b64 exec, 1")
    for jj in range(8):
        A(f"buffer_load_dwordx4 v[{64+4*jj}:{67+4*jj}], v42, {WS}, {f's{80+jj//2}' if jj//2 else '0'} offen offset:{2048*(jj&1)} sc1")
    A("s_waitcnt vmcnt(0)")
    if QL:
        A("v_xor_b32 v7, s56, v66"); A("v_xor_b32 v6, s57, v67")
        for i in range(1, 8):
            A(f"v_bitop3_b32 v7, v7, v{66 + 4*i}, s56 bitop3:0xf6"); A(f"v_bitop3_b32 v6, v6, v{67 + 4*i}, s57 bitop3:0xf6")
        A("v_or_b32 v5, v6, v7"); A("v_cmp_ne_u32 vcc, 0, v5")
        A("s_cbranch_vccz L_qok")
        A("s_cmp_eq_u32 s58, 0"); A("s_cbranch_scc0 L_q2")
        qstore("sc1"); A("s_mov_b32 s58, 1")
        A("L_q2:")
        A("v_lshrrev_b32 v6, 4, v6"); A("v_or_b32 v5, v6, v7"); A("v_cmp_ne_u32 vcc, 0, v5")
    else:
        A("v_xor_b32 v7, s56, v66")
        for i in range(1, 16): A(f"v_bitop3_b32 v7, v7, v{66 + 4*(i//2) + (i&1)}, s56 bitop3:0xf6")
        A("v_cmp_ne_u32 vcc, 0, v7")
    A("s_cbranch_vccz L_qok")
    A("s_sub_u32 s90, s90, 1"); A("s_cbranch_scc0 L_qpoll")
    A("L_qok:")
    if "halfq" in exp or "noqld" in exp: A("s_mov_b64 exec, -1")
    if QL: A("v_mov_b32 v39, s56")
    if diag: A("v_writelane_b32 v255, s90, 56")
    A("v_mov_b32 v48, s57"); A("s_mov_b64 exec, 0x3ff")
    A(f"buffer_load_dword v48, v47, {WS}, s77 offen offset:12 sc1")
    if PFO == 1:
        A("s_mov_b64 exec, 31"); A(f"buffer_load_dword v5, v22, {WS}, s38 offen sc1")
    A("s_mov_b64 exec, -1")
    if PFO == 2:
        A("s_sub_u32 s78, s31, 10"); A("s_cmp_lt_u32 s78, 8"); A("s_cbranch_scc0 L_pfo")
        A("s_lshl_b32 s78, s78, 12"); A("s_lshl_b32 s80, s30, 15"); A("s_add_u32 s78, s78, s80"); A(f"s_add_u32 s78, s78, {WS_OP}")
        A("s_mov_b64 exec, 0x1f1f1f1f"); A(f"buffer_load_dword v5, v22, {WS}, s78 offen sc1"); A("s_mov_b64 exec, -1")
        A("L_pfo:")
    if RC == 2: recl()
    for i in range(4): pk("add", 64+8*i, 64+8*i, 68+8*i)
    pk("add", 64, 64, 72); pk("add", 80, 80, 88); pk("add", 64, 64, 80)
    A("v_cvt_pk_bf16_f32 v64, v64, v65")
    A("ds_write_b32 v43, v64")
    stamp(6)
    def apbase(d):
        A(f"s_and_b32 s{d}, s30, 3"); A(f"s_lshl_b32 s{d}, s{d}, 4"); A("s_lshr_b32 s80, s30, 2"); A(f"s_add_u32 s{d}, s{d}, s80"); A(f"s_lshl_b32 s{d}, s{d}, 13")
        A(f"s_add_u32 s{d}, s{d}, {WS_AP}")
        if CC: A(f"s_xor_b32 s{d}, s{d}, 0x2000")
    def mlp5_setup():
        A("v_lshlrev_b32 v224, 2, v0")
        A("global_load_dword v252, v224, s[4:5]"); A("global_load_dword v253, v224, s[4:5] offset:1280")
        apbase(78); A("v_lshl_add_u32 v225, v0, 4, s78")
        A("v_lshrrev_b32 v226, 4, v0"); A("v_lshlrev_b32 v226, 6, v226"); A("v_bfe_u32 v7, v0, 1, 2"); A("v_lshl_add_u32 v226, v7, 4, v226")
        A("v_bfe_u32 v7, v0, 3, 1"); A("v_lshl_add_u32 v226, v7, 3, v226"); A("v_and_b32 v7, 1, v0"); A("v_lshl_add_u32 v226, v7, 2, v226"); A(f"v_add_u32 v226, {L_YB}, v226")
        A(f"v_mul_u32_u24 v227, {YBS}, v7"); A("v_lshl_add_u32 v227, v8, 4, v227"); A("s_lshl_b32 s78, s3, 8"); A("v_add_u32 v227, s78, v227")
        A("v_lshlrev_b32 v228, 7, v9"); A("v_lshl_add_u32 v228, v8, 4, v228"); A("s_lshl_b32 s78, s3, 9"); A("v_add_u32 v228, s78, v228")
        A(f"v_add_u32 v227, {L_YB}, v227"); A(f"v_add_u32 v228, {L_PB}, v228")
        A("v_and_b32 v7, 1, v8"); A("v_mul_u32_u24 v230, 48, v7"); A("v_lshrrev_b32 v7, 1, v8"); A("v_lshl_add_u32 v230, v7, 2, v230")
        A("s_lshl_b32 s78, s3, 3"); A(f"s_add_u32 s78, s78, {L_SB}"); A("v_add_u32 v230, s78, v230")
        A("v_lshrrev_b32 v7, 2, v1"); A("v_lshlrev_b32 v231, 6, v7"); A("v_and_b32 v7, 1, v8"); A("v_lshl_add_u32 v231, v7, 5, v231")
        A("v_and_b32 v7, 3, v1"); A("v_lshl_add_u32 v231, v7, 3, v231"); A("s_lshl_b32 s78, s3, 13"); A(f"s_add_u32 s78, s78, {L_W1}"); A("v_add_u32 v231, s78, v231"); A("v_xor_b32 v232, 32, v231")
    for r in (224, 225, 246, 56, 57): A(f"v_mov_b32 v{r}, 0")
    A("s_cmp_eq_u32 s36, 2"); A("s_cbranch_scc0 L_nofin")
    mlp5_setup()
    A("s_lshr_b32 s78, s37, 4"); A("s_lshl_b32 s78, s78, 3"); A("s_and_b32 s80, s37, 7"); A("s_add_u32 s33, s78, s80")
    A("s_min_u32 s34, s33, 19"); A("s_lshr_b32 s35, s30, 2"); A("s_mul_i32 s85, s35, 20"); A("s_add_u32 s85, s85, s34")
    A("s_mul_i32 s78, s85, 52"); A("s_lshr_b32 s78, s78, 9")
    A("s_mul_i32 s80, s78, 10"); A("s_sub_u32 s80, s85, s80")
    A("s_mul_i32 s78, s78, 160")
    A("s_and_b32 s81, s80, 1"); A("s_lshl_b32 s82, s81, 6"); A("s_lshr_b32 s83, s80, 1"); A("s_lshl_b32 s83, s83, 2"); A("s_add_u32 s82, s82, s83")
    A("s_lshl_b32 s81, s81, 3"); A("s_add_u32 s81, s81, 128")
    A("v_bfe_u32 v7, v1, 1, 2"); A("v_lshlrev_b32 v12, 4, v7")
    A("v_bfe_u32 v7, v1, 1, 1"); A("v_lshlrev_b32 v15, 4, v7"); A("v_bfe_u32 v7, v1, 2, 1"); A("v_lshl_add_u32 v15, v7, 2, v15")
    A("s_cmp_lt_u32 s80, 8"); A("s_cselect_b32 s82, s82, s81"); A("s_cselect_b64 vcc, -1, 0"); A("s_add_u32 s78, s78, s82")
    A("v_cndmask_b32 v12, v15, v12, vcc"); A("v_add3_u32 v14, v12, v8, s78"); A("v_lshlrev_b32 v12, 1, v14")
    A("v_mov_b32 v17, 0"); A("v_mov_b32 v16, 0")
    A("global_load_short_d16_hi v17, v12, s[22:23]")
    A("v_and_b32 v7, 1, v1"); A(f"v_mul_u32_u24 v15, {YBS}, v7"); A("v_mul_u32_u24 v7, 1280, v7"); A("v_add_u32 v12, v12, v7")
    if PFOUT: A("global_load_ushort v5, v12, s[24:25]")
    A("v_lshrrev_b32 v7, 5, v14"); A("v_lshl_add_u32 v15, v7, 6, v15"); A("v_bfe_u32 v7, v14, 2, 2"); A("v_lshl_add_u32 v15, v7, 4, v15")
    A("v_bfe_u32 v7, v14, 4, 1"); A("v_lshl_add_u32 v15, v7, 3, v15"); A("v_and_b32 v7, 3, v14"); A("v_lshl_add_u32 v15, v7, 1, v15"); A(f"v_add_u32 v15, {L_YB}, v15")
    A("v_bfe_u32 v7, v1, 3, 1"); A("v_cmp_eq_u32 vcc, 0, v7"); A("v_cndmask_b32 v12, v23, v12, vcc")
    A("v_lshlrev_b32 v56, 14, v8"); A("v_lshl_add_u32 v56, v7, 12, v56"); A("v_and_b32 v57, 7, v1"); A("v_lshl_add_u32 v56, v57, 4, v56")
    A("s_lshl_b32 s78, s34, 7"); A("s_lshl_b32 s80, s35, 13"); A("s_add_u32 s78, s78, s80"); A(f"s_add_u32 s78, s78, {WS_MP}")
    if CC: A("s_xor_b32 s78, s78, 0x2000")
    A("v_add_u32 v56, s78, v56")
    for n in range(1, 7): A(f"s_mov_b32 s{80+n}, {n*65536}")
    A("L_nofin:")
    stamp(7)
    A("s_waitcnt vmcnt(0)")
    A("v_cmp_ne_u32 vcc, s57, v48"); A("s_cmp_lg_u64 vcc, 0")
    if not local: A("s_cmp_eq_u32 0, 0")
    A("s_cselect_b32 s76, 0, -1")
    if OMS:
        A("s_cmp_eq_u32 s36, 2"); A("s_cselect_b32 s76, 0, s76")
    A("s_not_b32 s77, s76")
    if diag: A("v_writelane_b32 v255, s77, 55")
    stamp(8)
    flush()
    A(f"s_mov_b32 s90, {SPIN*8}")
    A("L_mlw:")
    A("ds_read_b128 v[64:67], v13"); A("ds_read_b128 v[68:71], v13 offset:16")
    A("s_waitcnt lgkmcnt(0)")
    A("v_max3_u32 v7, v65, v67, v69"); A("v_max_u32 v7, v7, v71"); A("v_cmp_eq_u32 vcc, -1, v7")
    A("s_cbranch_vccz L_mlw2")
    A("s_sleep 1")
    A("s_sub_u32 s90, s90, 1"); A("s_cbranch_scc0 L_mlw")
    A("L_mlw2:")
    A("v_max3_f32 v36, v64, v66, v68"); A("v_max_f32 v36, v36, v70")
    for i in range(4): A(f"v_sub_f32 v{64+2*i}, v{64+2*i}, v36")
    for i in range(4): A(f"v_mul_f32 v{64+2*i}, {LOG2E:#x}, v{64+2*i}")
    for i in range(4): A(f"v_exp_f32 v{64+2*i}, v{64+2*i}")
    A("v_mul_f32 v37, v64, v65")
    for i in range(1, 4): A(f"v_fmac_f32 v37, v{64+2*i}, v{65+2*i}")
    A("v_mov_b32 v45, s76"); A("ds_write_b32 v13, v45 offset:64")
    A("ds_write_b128 v13, v[64:67] offset:32"); A("ds_write_b128 v13, v[68:71] offset:48")
    A("s_mov_b32 exec_hi, 0")
    if MLS: A("s_mov_b32 exec_lo, 0xff")
    else:
        A("s_and_b32 exec_lo, s76, 0xff")
        A(f"buffer_store_dwordx4 v[36:39], v2, {WS}, s38 offen offset:512")
        A("s_and_b32 exec_lo, s77, 0xff")
    A(f"buffer_store_dwordx4 v[36:39], v2, {WS}, s38 offen offset:512 sc1")
    A("s_mov_b64 exec, -1")
    A(f"s_cmp_ge_u32 s31, {WARM or 99}"); A("s_cselect_b32 s59, 2, s36")
    A("v_lshrrev_b32 v47, 3, v1"); A("v_lshlrev_b32 v47, 7, v47"); A("v_and_b32 v7, 7, v1"); A("v_lshl_add_u32 v47, v7, 2, v47")
    flld = lambda: A(f"buffer_load_dword v46, v47, {WS}, 0 offen offset:{WS_VOTE} sc1")
    A("s_cmp_eq_u32 s59, 2"); A("s_cbranch_scc0 L_f0")
    flld()
    A("L_f0:")
    stamp(9)
    if "notail" not in exp:
        A("s_cmp_eq_u32 s59, 2"); A("s_cbranch_scc1 L_fl")
    A("L_aend:")
    fin()
    A("L_fl:")
    A(f"s_mov_b32 s90, {SPIN}")
    A("s_waitcnt vmcnt(0)")
    A("L_fchk:")
    assert CC is None
    A("v_xor_b32 v7, s56, v46"); A("v_cmp_lt_u32 vcc, 1, v7")
    A("s_cbranch_vccz L_fok")
    flld()
    A("s_waitcnt vmcnt(0)")
    A("s_sub_u32 s90, s90, 1"); A("s_cbranch_scc0 L_fchk")
    A("L_fok:")
    if CC is None:
        A("v_cmp_ne_u32 vcc, s56, v46"); A("s_bcnt1_i32_b64 s78, vcc"); A("s_cmp_gt_u32 s78, 32"); A("s_cselect_b32 s78, 0x2000, 0")
        A("v_mov_b32 v46, s78"); A(f"v_mov_b32 v47, {L_CW}"); A("ds_write_b32 v47, v46")
        A("v_xor_b32 v225, s78, v225"); A("v_xor_b32 v56, s78, v56")
        if diag: A("v_writelane_b32 v255, s78, 58"); A("s_bcnt1_i32_b64 s78, vcc"); A("v_writelane_b32 v255, s78, 57")
        A("s_waitcnt lgkmcnt(0)")
    A("s_cmp_eq_u32 s36, 2"); A("s_cbranch_scc0 L_aend")
    if MW:
        A("v_readfirstlane_b32 s60, v225")
        A("s_sub_u32 s78, s31, 10"); A("s_mul_i32 s78, s78, 54"); A("v_add_u32 v7, s78, v1")
        A("v_mul_u32_u24 v6, 1639, v7"); A("v_lshrrev_b32 v6, 16, v6"); A("v_mul_u32_u24 v6, 88, v6"); A("v_add_lshl_u32 v6, v6, v7, 7")
        A("v_cmp_gt_u32 vcc, 320, v7"); A("v_cndmask_b32 v6, v23, v6, vcc")
        A("s_mov_b32 exec_hi, 0x3fffff")
        A(f"buffer_load_dword v4, v6, {WS}, s60 offen sc1")
        A("s_mov_b64 exec, -1")
    if MPW:
        A("s_lshl_b32 s63, s37, 13"); A("s_and_b32 s64, s37, 1"); A("s_lshl_b32 s64, s64, 12"); A("s_sub_u32 s63, s63, s64"); A(f"s_add_u32 s63, s63, {WS_MP}")
        A("v_mul_u32_u24 v7, 7680, v40"); A("v_add_u32 v7, v7, v2"); A("s_not_b32 s64, s56")
        for r in range(4): A(f"v_mov_b32 v{24+r}, s64")
    if not W1W: A("s_barrier")
    if MPW:
        for k in range(5): A(f"buffer_store_dwordx4 v[24:27], v7, {WS}, s63 offen offset:{512*k} sc1")
    A("s_barrier")
    A("s_branch L_mlp5")

    A("L_stream:")
    pend.extend(keep)
    stamp(1)
    A("s_sub_u32 s91, s3, 1")
    A("s_waitcnt lgkmcnt(0)")
    A("s_add_u32 s56, s56, 0x01010101")
    A("s_lshl3_add_u32 s82, s91, s30" if H8 else "s_lshl2_add_u32 s82, s30, s91"); A(f"s_mul_i32 s82, s82, {128*1280}"); A("s_lshl_b32 s78, s37, 7"); A("s_add_u32 s82, s82, s78")
    A("s_lshl_b32 s78, s37, 2"); A("s_add_u32 s78, s78, s91"); A("s_mul_i32 s78, s78, 10240")
    A("s_lshl_b32 s83, s91, 14"); A("s_mul_i32 s80, s91, 10240"); A(f"s_add_u32 s88, s80, {L_W1}")
    A("s_cmp_eq_u32 s36, 1")
    A("s_cselect_b32 s44, s12, s20"); A("s_cselect_b32 s45, s13, s21"); A("s_cselect_b32 s46, 5242880, 0"); A("s_mov_b32 s47, 0x20000")
    A("s_cselect_b32 s82, s82, s78"); A("s_cselect_b32 s83, s83, s80"); A("s_cselect_b32 s87, 10240, 0")
    A("s_cmp_eq_u32 s36, 2"); A("s_cselect_b32 s46, 2211840, s46"); A("s_cselect_b32 s87, 128, s87"); A(f"s_addk_i32 s83, {L_WB}")
    if "nopre" in exp: A("s_mov_b32 s46, 0")
    srd(48, 12, 5242880); srd(52, 16, 2211840)
    A(f"v_mov_b32 v19, {OOB}")
    if NW:
        assert tall
        A(f"s_add_u32 s76, s83, {(16-NW)*1024}"); A(f"s_add_u32 s79, s82, {(16-NW)*10240}"); A("s_cmp_eq_u32 s36, 1")
        A(f"s_cselect_b32 s76, s76, {L_DUMMY}"); A("s_cselect_b32 s77, 0x400, 0"); A(f"s_cselect_b32 s79, s79, {OOB}")
    A("s_sub_u32 s78, s31, 18"); A("s_lshl2_add_u32 s78, s78, s91"); A("s_mul_i32 s78, s78, 46")
    A("v_add_u32 v32, s78, v1"); A("v_mul_u32_u24 v33, 6554, v32"); A("v_lshrrev_b32 v33, 22, v33")
    A("v_mul_u32_u24 v34, 640, v33"); A("v_sub_u32 v34, v32, v34")
    A("s_cmp_ge_u32 s31, 18"); A("s_cselect_b32 s80, 46, 0"); A("v_cmp_gt_u32 s[60:61], s80, v1")
    A("v_cmp_gt_u32 vcc, 4, v33"); A("s_and_b64 s[60:61], s[60:61], vcc")
    A(f"s_mul_i32 s80, s30, {163840 if H8 else 655360}")
    assert TS or not H8
    if TS:
        a_, b2_, c_ = TS; NL = 10*a_ + 8*b2_ + 14*c_
        assert NL % 80 == 0 and NL <= 1280 and NB == 16
        A("s_cmp_ge_u32 s31, 10"); A(f"s_cselect_b32 s81, {b2_}, {a_}"); A(f"s_cselect_b32 s85, {(40*a_ - 40*b2_) & 0xffffffff}, 0")
        A("s_cmp_ge_u32 s31, 18"); A(f"s_cselect_b32 s81, {c_}, s81"); A(f"s_cselect_b32 s85, {(40*a_ + 32*b2_ - 72*c_) & 0xffffffff}, s85")
        A("s_lshl2_add_u32 s78, s31, s91"); A("s_mul_i32 s78, s78, s81"); A("s_add_u32 s78, s78, s85")
        A("v_add_u32 v56, s78, v1")
        if NL < 1280 or H8:
            mg = -(-(1 << 22) // NL); assert all((x * mg) >> 22 == x // NL for x in range(4 * NL))
            A(f"v_mul_u32_u24 v35, {mg}, v56"); A("v_lshrrev_b32 v35, 22, v35"); A(f"v_mul_u32_u24 v35, {(10240 if H8 else 1280) - NL}, v35"); A("v_add_u32 v56, v56, v35")
        A("v_lshl_add_u32 v56, v56, 7, s80"); A("v_cmp_gt_u32 vcc, s81, v1"); A("v_cndmask_b32 v56, v19, v56, vcc")
    elif tall:
        A("s_mul_i32 s80, s32, 163840"); A("s_lshl2_add_u32 s78, s33, s91"); A(f"s_mul_i32 s78, s78, {320*NB}"); A("s_add_u32 s80, s80, s78")
        if NB < 16: A(f"s_add_u32 s80, s80, {(16-NB)*10240}")
        A("v_lshl_add_u32 v56, v1, 7, s80"); A(f"v_cmp_gt_u32 vcc, {5*NB//2}, v1"); A("v_cndmask_b32 v56, v19, v56, vcc")
    else:
        A("v_lshl_add_u32 v56, v32, 7, s80"); A("v_cndmask_b32 v56, v19, v56, s[60:61]"); A("s_mov_b32 s79, 327680")
    A("v_lshl_add_u32 v36, v33, 3, s30"); A("v_cmp_gt_u32 vcc, 27, v36"); A("s_and_b64 vcc, vcc, s[60:61]")
    A("v_mul_u32_u24 v57, 3456, v34"); A("v_lshl_add_u32 v57, v36, 7, v57"); A("v_cndmask_b32 v57, v19, v57, vcc")
    if T2:
        A("v_mul_u32_u24 v252, 81920, v36"); A("v_lshl_add_u32 v252, v34, 7, v252"); A("v_cndmask_b32 v252, v19, v252, vcc")
    A("v_and_b32 v7, 1, v1"); A("v_lshlrev_b32 v7, 4, v7"); A("v_mov_b32 v32, 0xffff"); A("v_lshlrev_b32 v7, v7, v32")
    A("v_bfe_u32 v32, v1, 1, 2")
    for r in range(4):
        A(f"v_cmp_eq_u32 vcc, {r}, v32"); A(f"v_cndmask_b32 v{20+r}, 0, v7, vcc")
    A(f"v_lshlrev_b32 v10, 4, v9"); A(f"v_add_u32 v10, {L_Q}, v10")
    A("s_lshl_b32 s78, s91, 3"); A(f"s_add_u32 s78, s78, {L_ML}"); A("v_mov_b32 v11, s78")
    A(f"v_add_u32 v3, {L_RED}, v2"); A("s_lshl_b32 s78, s91, 9"); A("v_add_u32 v12, s78, v3")
    A(f"v_mov_b32 v254, {L_ML}")
    slots()
    A("v_lshrrev_b32 v58, 3, v1"); A("v_mul_u32_u24 v58, 1280, v58"); A("v_bfe_u32 v7, v1, 1, 2"); A("v_xor_b32 v7, v7, v8")
    A("v_lshl_add_u32 v58, v7, 5, v58"); A("v_and_b32 v59, 1, v1"); A("v_lshlrev_b32 v59, 4, v59"); A("v_add_u32 v58, v58, v59")
    A("v_and_b32 v7, 1, v7"); A("v_lshl_add_u32 v59, v7, 5, v59"); A("v_lshrrev_b32 v7, 2, v1"); A("v_mul_u32_u24 v7, 3456, v7"); A("v_add_u32 v59, v59, v7")
    pump(); stamp(2); pump()
    ld1 = [(176 + 4*sp, f"v224, {WS}, 0 offen offset:{1024*sp}") for sp in range(4)]
    for r in (14, 224, 225, 229, 246): A(f"v_mov_b32 v{r}, 0")
    if "nosetup" in exp: A("s_branch L_su9")
    A("s_cmp_eq_u32 s36, 1"); A("s_cbranch_scc0 L_su2")
    A("s_lshl_b32 s78, s30, 2"); A("s_add_u32 s78, s78, s91"); A("s_lshl_b32 s78, s78, 13"); A(f"s_add_u32 s78, s78, {WS_OP}")
    A("v_lshrrev_b32 v32, 5, v1"); A("v_and_b32 v33, 31, v1"); A("v_lshl_add_u32 v224, v32, 12, s78"); A("v_lshl_add_u32 v224, v33, 4, v224")
    A("s_mul_i32 s80, s91, 2176"); A(f"s_add_u32 s80, s80, {L_OF}")
    A("v_mul_u32_u24 v226, 272, v32"); A("v_lshl_add_u32 v226, v33, 3, v226"); A("v_add_u32 v226, s80, v226")
    A("v_and_b32 v7, 1, v1"); A("v_add_u32 v235, -1, v7"); A("v_and_b32 v235, 0xff, v235")
    A("v_and_b32 v7, 7, v1"); A("v_mul_u32_u24 v227, 272, v7"); A("v_and_b32 v7, 1, v8"); A("v_lshl_add_u32 v227, v7, 7, v227"); A("v_lshlrev_b32 v234, 9, v7")
    A("v_lshrrev_b32 v7, 5, v1"); A("v_lshl_add_u32 v227, v7, 4, v227"); A("v_add_u32 v227, s80, v227")
    A("v_and_b32 v7, 7, v1"); A("v_lshl_add_u32 v225, v7, 10, s78")
    traddr1280(230, 2048)
    A("v_add_u32 v230, s83, v230")
    for ct in range(1, 4): A(f"v_xor_b32 v{230+ct}, {32*ct}, v230")
    A("v_lshlrev_b32 v229, 3, v1"); A(f"v_add_u32 v228, {L_OB}, v229")
    A("v_lshl_add_u32 v234, v9, 3, v234"); A("s_lshl_b32 s78, s91, 10"); A(f"s_add_u32 s78, s78, {L_OB}"); A("v_add_u32 v234, s78, v234")
    A("s_lshl_b32 s80, s30, 14"); A("s_lshl_b32 s81, s37, 9"); A("s_add_u32 s84, s80, s81"); A("s_lshl_b32 s80, s91, 17")
    A("s_add_u32 s84, s84, s80"); A(f"s_add_u32 s84, s84, {WS_AP}"); A("s_add_u32 s85, s84, 8192")
    A("s_branch L_su9")
    A("L_su2:")
    A("s_cmp_eq_u32 s36, 2"); A("s_cbranch_scc0 L_su9")
    mlp5_setup()
    A(f"s_mul_i32 s84, s91, {160*3456}"); A("s_lshl_b32 s78, s37, 6"); A("s_add_u32 s84, s84, s78"); A("s_mul_i32 s85, s91, 10")
    A("v_mov_b32 v13, 0"); A("v_and_b32 v14, 31, v1"); A("v_lshlrev_b32 v247, 2, v14"); A(f"v_add_u32 v247, {L_PB + 256}, v247")
    A("s_lshl_b32 s78, s37, 5"); A("v_add_lshl_u32 v14, v14, s78, 1")
    A("global_load_short_d16_hi v13, v14, s[18:19]")
    traddr1280(16, 10240)
    for i in range(10):
        A(f"s_add_u32 s78, s85, {i}"); A("s_and_b32 s80, s78, 3"); A("s_lshl_b32 s80, s80, 5"); A(f"v_xor_b32 v{233+i}, s80, v16")
        A("s_lshr_b32 s78, s78, 2"); A("s_lshl_b32 s78, s78, 10"); A(f"v_add_u32 v{233+i}, s78, v{233+i}")
    for i in range(0, 32, 2): A(f"v_mov_b64 v[{192+i}:{193+i}], 0")
    A("v_and_b32 v7, 1, v1")
    A("v_lshlrev_b32 v243, 6, v7"); A("v_lshl_add_u32 v243, v8, 4, v243"); A("s_lshl_b32 s78, s91, 7"); A(f"s_add_u32 s78, s78, {L_H1}"); A("v_add_u32 v243, s78, v243")
    A(f"v_lshlrev_b32 v244, 2, v1"); A(f"v_add_u32 v244, {L_PB}, v244")
    A("v_lshrrev_b32 v7, 5, v1"); A("v_mul_u32_u24 v248, 48, v7"); A(f"v_add_u32 v248, {L_SB}, v248")
    A("v_lshlrev_b32 v245, 6, v7"); A("v_bfe_u32 v7, v1, 2, 2"); A("v_lshl_add_u32 v245, v7, 4, v245")
    A("v_bfe_u32 v7, v1, 4, 1"); A("v_lshl_add_u32 v245, v7, 3, v245"); A("v_and_b32 v7, 3, v1"); A("v_lshl_add_u32 v245, v7, 1, v245"); A("v_add_u32 v245, s78, v245")
    A("s_lshl_b32 s86, s37, 13"); A("s_and_b32 s78, s37, 1"); A("s_lshl_b32 s78, s78, 12"); A("s_sub_u32 s86, s86, s78")
    A("s_lshr_b32 s78, s91, 1"); A("s_lshl_b32 s78, s78, 13"); A("s_add_u32 s86, s86, s78")
    A("s_and_b32 s78, s91, 1"); A("s_mul_i32 s78, s78, 1280"); A("s_add_u32 s86, s86, s78"); A(f"s_add_u32 s86, s86, {WS_MP}")
    if CC: A("s_xor_b32 s86, s86, 0x2000")
    A("v_lshl_add_u32 v246, v8, 2, v9"); A("v_lshlrev_b32 v246, 4, v246")
    A(f"v_mov_b32 v24, {F(-2*0.7978845608028654*1.4426950408889634)}"); A(f"v_mov_b32 v25, {F(-2*0.7978845608028654*1.4426950408889634*0.044715)}")
    A(f"v_mov_b32 v26, {F(1+1e-5)}"); A(f"v_mov_b32 v27, {F(1e-10)}"); A(f"v_mov_b32 v250, {F(1/640)}"); A(f"v_mov_b32 v249, {L_CW}")
    A("L_su9:")
    while st["waited"] < pos[16 + KQ]:
        pump()
        if st["waited"] == pos[15]: stamp(3)
    stamp(4)
    Q = 60
    A(f"s_mov_b32 s90, {SPIN*8}")
    flush()
    if "noqw" in exp: A("s_branch L_qw2")
    A("L_qw:")
    A(f"ds_read_b128 v[{Q}:{Q+3}], v10")
    A("s_waitcnt lgkmcnt(0)")
    A(f"v_max3_u32 v7, v{Q}, v{Q+1}, v{Q+2}"); A(f"v_max_u32 v7, v7, v{Q+3}"); A("v_cmp_eq_u32 vcc, -1, v7")
    A("s_cbranch_vccz L_qw2")
    A("s_sleep 1")
    A("s_sub_u32 s90, s90, 1"); A("s_cbranch_scc0 L_qw")
    A("L_qw2:")
    L_mark = len(L)
    stamp(5)
    LIM = pos[31 - W] if QKP == "kv" else pos[30]
    P = 32
    for half in range(2):
        for r in range(4):
            for t in range(8*half, 8*half+8):
                A(f"v_dot2_f32_bf16 v{P+t}, v{K0+4*t+r}, v{Q+r}, {'0' if r == 0 else f'v{P+t}'}")
            if r & 1: pump(lim=LIM)
    R = 48
    for t in range(8): A(f"v_add_f32_dpp v{R+t}, v{P+t}, v{P+t} row_mirror row_mask:0xf bank_mask:0x3")
    for t in range(8): A(f"v_add_f32_dpp v{R+t}, v{P+t+8}, v{P+t+8} row_mirror row_mask:0xf bank_mask:0xc")
    for t in range(4): A(f"v_add_f32_dpp v{P+t}, v{R+t}, v{R+t} row_half_mirror row_mask:0xf bank_mask:0x5")
    for t in range(4): A(f"v_add_f32_dpp v{P+t}, v{R+t+4}, v{R+t+4} row_half_mirror row_mask:0xf bank_mask:0xa")
    pump(lim=LIM)
    for t in range(4): A(f"v_add_f32_dpp v{R+t}, v{P+t}, v{P+t} quad_perm:[2,3,0,1] row_mask:0xf bank_mask:0xf")
    A("s_mov_b32 vcc_lo, 0xcccccccc"); A("s_mov_b32 vcc_hi, 0xcccccccc")
    for t in range(2): A(f"v_cndmask_b32 v{P+t}, v{R+t}, v{R+t+2}, vcc")
    for t in range(2): A(f"v_add_f32_dpp v{R+t}, v{P+t}, v{P+t} quad_perm:[1,0,3,2] row_mask:0xf bank_mask:0xf")
    A("s_mov_b32 vcc_lo, 0xaaaaaaaa"); A("s_mov_b32 vcc_hi, 0xaaaaaaaa")
    S = 40
    A(f"v_cndmask_b32 v{S}, v{R}, v{R+1}, vcc")
    bf16r(S, S); A(f"v_mul_f32 v{S}, {F(128**-0.5)}, v{S}"); bf16r(S, S)
    A(f"v_mov_b32 v42, v{S}")
    pump(lim=LIM)
    row_allred("v_max_f32", 42); swap_allred("v_max_f32", 42, 44, 16); swap_allred("v_max_f32", 42, 44, 32)
    pump(lim=LIM)
    A(f"v_sub_f32 v43, v{S}, v42"); A(f"v_mul_f32 v43, {LOG2E:#x}, v43"); A("v_exp_f32 v43, v43")
    A("v_cvt_pk_bf16_f32 v45, v43, v43")
    row_allred("v_add_f32", 43); swap_allred("v_add_f32", 43, 44, 16); swap_allred("v_add_f32", 43, 44, 32)
    A("ds_write_b64 v11, v[42:43]")
    stamp(6)
    pump(lim=LIM)
    done = 0
    for t in range(16):
        for r in range(4): A(f"v_and_b32_dpp v{K0+4*t+r}, v45, v{20+r} row_newbcast:{t} row_mask:0xf bank_mask:0xf")
        if t >= 1 and pos[16 + done] <= st["waited"]:
            mfma(ACC, K0+4*done, V0+4*done, done == 0); done += 1
        if t in (4, 9): pump(lim=LIM)
    if "noqk" in exp:
        L[L_mark:] = [l for l in L[L_mark:] if not l.strip().startswith(("v_dot2", "v_add_f32_dpp", "v_and_b32_dpp", "v_max_f32_dpp", "v_permlane"))]
    stamp(7)
    for t in range(done, 16):
        while t and st["waited"] < pos[15 + t]: pump()
        wait_for(pos[16 + t]); mfma(ACC, K0+4*t, V0+4*t, t == 0)
        if t < 15: issue_to(pos[16 + t] + 1 + W)
    assert st["issued"] == len(seq)
    stamp(8)
    A("s_mov_b32 exec_hi, 0"); A("v_mov_b32 v61, 1"); A("v_mov_b32 v6, s56"); A("v_mov_b32 v7, s56")
    A(f"ds_write_b128 v12, v[{ACC}:{ACC+3}]")
    A("s_mov_b32 exec_lo, 1")
    A("ds_add_rtn_u32 v60, v254, v61 offset:68")
    A("s_mov_b32 exec_lo, -1")
    for k in range(4): A(f"ds_read_b128 v[{32+4*k}:{35+4*k}], v3 offset:{512*k}")
    A(f"s_mov_b32 s90, {SPIN*8}")
    keepp = list(pend); pend.clear()
    A("L_fw:")
    A("ds_read_b128 v[52:55], v254 offset:48"); A("ds_read_b128 v[48:51], v254 offset:32"); A("ds_read_b32 v62, v254 offset:64")
    pend.extend(keepp)
    A("s_waitcnt lgkmcnt(0)")
    A("v_readfirstlane_b32 s78, v60"); A("v_readfirstlane_b32 s80, v55"); A("v_readfirstlane_b32 s81, v62")
    for k in range(4):
        for hh in (0, 2):
            if k == 0: pk("mul", 28+hh, 32+hh, 48, mod="op_sel_hi:[1,0]")
            else: pk("fma", 28+hh, 32+4*k+hh, 48+2*k, 28+hh, mod="op_sel_hi:[1,0,1]")
    A("s_cmp_eq_u32 s80, -1"); A("s_cbranch_scc1 L_fw3")
    A("L_fw4:")
    A("s_cmp_eq_u32 s78, 2"); A("s_cbranch_scc0 L_fw2")
    A("v_cvt_pk_bf16_f32 v4, v28, v29"); A("v_cvt_pk_bf16_f32 v5, v30, v31")
    A("s_mov_b32 exec_lo, s81")
    A(f"buffer_store_dwordx4 v[4:7], v2, {WS}, s38 offen")
    A("s_not_b32 exec_lo, s81")
    A(f"buffer_store_dwordx4 v[4:7], v2, {WS}, s38 offen sc1")
    stamp(16)
    flush()
    A("L_fw2:")
    A("s_mov_b64 exec, -1")
    save = dict(st); NPRE = len(seq)
    if "notail" in exp: fin()
    A("s_cmp_eq_u32 s36, 2"); A("s_cbranch_scc1 L_mlp")
    A("s_cmp_eq_u32 s36, 0"); A("s_cbranch_scc1 L_idle")

    mlld = lambda: A(f"buffer_load_dwordx4 v[208:211], v225, {WS}, 0 offen offset:512 sc1")
    for n in range(NR + PRE, 16 - NW):
        didx[n] = len(seq); seq.append(dma_a(n))
    blk = lambda n: didx[n]
    trd = [0]
    need = lambda ks: max(blk(4*ks + b) for b in range(4))
    kord = sorted(range(4), key=need)
    def trs():
        while trd[0] < 4 and need(kord[trd[0]]) <= st["waited"]:
            ks = kord[trd[0]]
            for ct in range(4):
                for u in range(2): A(f"ds_read_b64_tr_b16 v[{64+16*ks+4*ct+2*u}:{65+16*ks+4*ct+2*u}], v{230+ct} offset:{(4*ks+u)*1024}")
            trd[0] += 1
    Wc[0] = WO or W
    issue_to(pos[31] + 1 + W)
    trs()
    while st["issued"] < len(seq):
        pump(); trs()
    stamp(9)
    if P1G:
        def mlm():
            A("s_mov_b64 exec, 0x00ff00ff"); mlld(); A("s_mov_b64 exec, -1")
        l1 = [(r, lambda r=r, a=a: A(ldtext(r, a))) for r, a in ld1] + [(208, mlm)]
        A("v_mov_b32 v210, s56")
        poll_first(l1); st["issued"] += 5
        while trd[0] < 4:
            wait_for(need(kord[trd[0]])); trs()
        stamp(10)
        poll("1", l1, lambda: None, None, chk=lambda d, r: A(f"v_cmp_ne_u32 {d}, s56, v{r+2}"),
             clr=lambda r: r == 208 or A(f"ds_write_b64 v226, v[{r}:{r+1}] offset:{136*(r-176)}"))
    else:
        def round1(sk):
            for i, (r, a) in enumerate(ld1):
                if sk:
                    A(f"s_cmp_eq_u64 s[{62+2*i}:{63+2*i}], 0"); A(f"s_cbranch_scc1 L_r1_{i}")
                A(ldtext(r, a))
                if sk: A(f"L_r1_{i}:")
            A("s_mov_b64 exec, s[60:61]")
            if sk: A("s_cbranch_execz L_r1_4")
            mlld()
            if sk: A("L_r1_4:")
            A("s_mov_b64 exec, -1")
        A("s_mov_b64 s[60:61], 0x00ff00ff")
        A("v_mov_b32 v210, s56"); A("v_mov_b32 v211, s56")
        if WBAR == 1: A("s_barrier")
        if WBAR < 2:
            round1(False); st["issued"] += 5
        while trd[0] < 4:
            wait_for(need(kord[trd[0]])); trs()
        if WBAR == 2:
            A("s_barrier"); round1(False)
        stamp(10)
        A(f"s_mov_b32 s90, {SPIN}")
        if diag: flush()
        A("L_p1:")
        A("s_waitcnt vmcnt(0)")
        A("ds_write2_b64 v226, v[176:177], v[180:181] offset0:0 offset1:68"); A("ds_write2_b64 v226, v[184:185], v[188:189] offset0:136 offset1:204")
        for i in range(4): A(f"v_cmp_ne_u32 s[{62+2*i}:{63+2*i}], s56, v{178+4*i}")
        A("v_cmp_ne_u32 s[60:61], s56, v210"); A("v_cmp_ne_u32 vcc, s56, v211")
        A("s_or_b64 s[70:71], s[62:63], s[64:65]"); A("s_or_b64 s[72:73], s[66:67], s[68:69]"); A("s_or_b64 s[70:71], s[70:71], s[72:73]")
        A("s_or_b64 s[60:61], s[60:61], vcc"); A("s_or_b64 vcc, s[60:61], s[70:71]")
        A("s_cbranch_scc0 L_pd1")
        A("s_waitcnt lgkmcnt(0)")
        round1(True)
        A("s_sub_u32 s90, s90, 1"); A("s_cbranch_scc0 L_p1")
        A("s_waitcnt vmcnt(0)")
        A("L_pd1:")
    if diag: A("v_writelane_b32 v255, s90, 54")
    for ks in range(4): A(f"ds_read_b128 v[{192+4*ks}:{195+4*ks}], v227 offset:{32*ks}")
    stamp(11)
    fac = ["v_max_f32_dpp v210, v208, v208 quad_perm:[1,0,3,2] row_mask:0xf bank_mask:0xf",
           "v_max_f32_dpp v210, v210, v210 quad_perm:[2,3,0,1] row_mask:0xf bank_mask:0xf",
           "v_sub_f32 v208, v208, v210\nv_mul_f32 v208, %#x, v208" % LOG2E, "v_exp_f32 v208, v208", "v_mul_f32 v209, v208, v209",
           "v_add_f32_dpp v209, v209, v209 quad_perm:[1,0,3,2] row_mask:0xf bank_mask:0xf",
           "v_add_f32_dpp v209, v209, v209 quad_perm:[2,3,0,1] row_mask:0xf bank_mask:0xf",
           "v_rcp_f32 v209, v209", "v_mul_f32 v208, v208, v209", ""]
    for gh in range(2):
        for pr in range(2):
            fac.append("\n".join(f"v_mov_b32_dpp v{216+2*pr+b}, v208 row_newbcast:{4*b + 2*gh + pr} row_mask:{1 << gh:#x} bank_mask:0xf" for b in range(2)))
    n = 0
    for f_ in fac[:4]: A(f_)
    del fac[:4]
    for ct in range(4):
        for ks in range(4):
            if ct == 0: A(f"s_waitcnt lgkmcnt({3-ks})")
            mfma(144+4*ct, 192+4*ks, 64+16*ks+4*ct, ks == 0)
            if n < len(fac) and fac[n]: A(fac[n])
            n += 1
    A("s_mov_b32 exec_hi, 0")
    for ct in range(4):
        pk("mul", 144+4*ct, 144+4*ct, 216); pk("fma", 144+4*ct, 146+4*ct, 218, 144+4*ct)
        if ct & 1: A(f"ds_write2_b64 v234, v[{140+4*ct}:{141+4*ct}], v[{144+4*ct}:{145+4*ct}] offset0:{16*(ct-1)} offset1:{16*ct}")
    A("s_mov_b64 exec, -1")
    A("s_waitcnt lgkmcnt(0)"); A("s_barrier")
    for k in range(4): A(f"ds_read2st64_b64 v[{160+4*k}:{163+4*k}], v228 offset0:{2*k} offset1:{2*k+1}")
    for k in range(4):
        A(f"s_waitcnt lgkmcnt({3-k})"); pk("add", 160+4*k, 160+4*k, 162+4*k)
        if k & 1: pk("add", 156+4*k, 156+4*k, 160+4*k)
    pk("add", 160, 160, 168)
    A("v_bfi_b32 v160, v235, s56, v160")
    A(f"buffer_store_dwordx2 v[160:161], v229, {WS}, s84 offen sc1")
    A(f"buffer_store_dwordx2 v[160:161], v229, {WS}, s85 offen sc1")
    stamp(12)
    if WB == "wo":
        A("s_cmp_eq_u32 s31, 0"); A("s_cbranch_scc0 L_nwb"); A("s_cmp_eq_u32 s3, 1"); A("s_cbranch_scc0 L_nwb")
        A("s_waitcnt vmcnt(0)")
        A("buffer_wbl2 sc1")
        A("L_nwb:")
    fin()

    A("L_fw3:")
    A("s_cmp_eq_u32 s78, 2"); A("s_cbranch_scc0 L_fw2")
    A("s_sub_u32 s90, s90, 1"); A("s_cbranch_scc0 L_fw")
    A("s_branch L_fw4")

    A("L_idle:")
    if IB: A("s_barrier")
    if T1 and not PT1: A(f"buffer_load_dword v6, v57, s[52:55], 0 offen {tnt}")
    if T2:
        A("s_mov_b32 s46, 2211840")
        A(f"buffer_load_dword v5, v252, s[44:47], 0 offen {tnt}")
    if probe2:
        A("s_cmp_eq_u32 s99, 0"); A("s_cbranch_scc1 L_q2z")
        A("L_q2y:"); A("s_sleep 2"); A("s_memrealtime s[62:63]"); A("s_waitcnt lgkmcnt(0)"); A("s_sub_u32 s62, s62, s99"); A("s_cmp_lt_i32 s62, 0"); A("s_cbranch_scc1 L_q2y")
        A("L_q2z:")
    if not IB: A("s_barrier")
    if WB == "idle":
        A("s_cmp_eq_u32 s31, 31"); A("s_cbranch_scc0 L_nwb"); A("s_cmp_eq_u32 s3, 1"); A("s_cbranch_scc0 L_nwb")
        A("buffer_wbl2 sc1")
        A("L_nwb:")
    if WARM:
        nwv = (32 - WARM) * 4; per = 320 // nwv
        A(f"s_cmp_ge_u32 s31, {WARM}"); A("s_cbranch_scc0 L_widone")
        assert nwv in (8, 16)
        apbase(78)
        A(f"s_sub_u32 s81, s31, {WARM}"); A("s_lshl2_add_u32 s81, s81, s91")
        if nwv == 16:
            A("s_and_b32 s80, s81, 1"); A("s_mul_i32 s80, s80, 2560"); A("s_add_u32 s78, s78, s80"); A("s_lshr_b32 s81, s81, 1")
        A("s_lshl_b32 s81, s81, 14"); A("s_add_u32 s78, s78, s81")
        if CC is None:
            A(f"v_mov_b32 v7, {L_CW}"); A("ds_read_b32 v7, v7"); A("s_waitcnt lgkmcnt(0)"); A("v_readfirstlane_b32 s80, v7"); A("s_xor_b32 s78, s78, s80")
        A("v_lshlrev_b32 v7, 7, v1"); A(f"v_cmp_gt_u32 vcc, {per}, v1"); A("s_movk_i32 s90, 200")
        A("L_wi:")
        A("s_mov_b64 exec, vcc")
        A(f"buffer_load_dword v5, v7, {WS}, s78 offen sc1")
        A("s_waitcnt vmcnt(0)")
        if WSL: A(f"s_sleep {WSL}")
        A("v_cmp_eq_u32 vcc, -1, v5")
        A("s_cbranch_vccz L_widone")
        A("s_sub_u32 s90, s90, 1"); A("s_cbranch_scc0 L_wi")
        A("L_widone:")
    fin()

    A("L_mlp:")
    st.update(save); del seq[NPRE:]; Wc[0] = WM or W
    if MPRE is None:
        seq.extend(dma_a(n) for n in range(NR + PRE, 10))
        issue_to(pos[31] + 1 + W)
        while st["issued"] < len(seq): pump()
    stamp(23)
    if not W1W: A("s_barrier")
    if MPRE is not None:
        redo[0] = True
        A("s_mov_b32 s46, 2211840"); A(f"s_sub_u32 s82, s82, {128*(NR + PRE - MPRE) - (128 if MPRE == 0 else 0)}")
        assert NR + PRE <= 10
        for n in range(MPRE, 10): dma_a(n)()
    stamp(24)
    wgt = [1] * len(seq)
    for n in range(10):
        if W1W:
            while sum(wgt[st["waited"] + 1:]) + 2 > W1W: wait_for(st["waited"] + 1)
            seq.append(None); wgt.append(2); st["issued"] += 1
        A(f"s_add_u32 m0, s88, {n*1024}")
        if n: A(f"s_add_u32 s84, s84, {16*3456}")
        A(f"buffer_load_dwordx4 v59, s[52:55], s84 offen {w1nt} lds")
    stamp(9)
    W1F, W2F, PL, HO, H1O = 64, 96, 136, 168, 192
    flush()
    A("s_waitcnt vmcnt(10)"); A("s_barrier")
    if CC is None: A("ds_read_b32 v15, v249")
    for i in range(10):
        for u in range(2):
            r = W2F + 4*i + 2*u
            A(f"ds_read_b64_tr_b16 v[{r}:{r+1}], v{233+i} offset:{L_W2 + u*20480}")
    if CC is None:
        A("s_waitcnt lgkmcnt(15)")
        A("v_readfirstlane_b32 s78, v15"); A("v_xor_b32 v225, v15, v225"); A("s_xor_b32 s86, s86, s78")
    A("L_mlp5:")
    sofr = [None, 76, 77, 87, 88, 89, 57, 58]
    for p in range(1, 8): A(f"s_mov_b32 s{sofr[p]}, {p*16384}")
    ld2 = [(PL + 4*p, lambda p=p: A(ldtext(PL + 4*p, f"v225, {WS}, {f's{sofr[p]}' if p else '0'} offen"))) for p in range(8)]
    A("v_mov_b32 v18, 0xffffff00"); A("v_mov_b32 v19, 0xff")
    for r in range(16): A(f"v_mov_b32 v{HO+r}, 0x3f803f80")
    A("s_mov_b32 s50, 0x00030003"); A("s_mov_b32 s51, 0x00030003"); A("s_mov_b32 s48, 0x00070007"); A("s_mov_b32 s49, 0x00070007")
    A("v_lshlrev_b32 v184, 16, v252"); A("v_lshlrev_b32 v185, 16, v253"); A("v_and_b32 v186, 0xffff0000, v252"); A("v_and_b32 v187, 0xffff0000, v253")
    if EF:
        poll_first(ld2); A("s_waitcnt vmcnt(8)")
    else: A("s_waitcnt vmcnt(0)")
    A("s_barrier")
    stamp(10)
    if not EF: poll_first(ld2)
    stamp(20)
    for ks in range(4):
        for ct in range(2):
            for u in range(2):
                r = W1F + 8*ks + 4*ct + 2*u
                A(f"ds_read_b64_tr_b16 v[{r}:{r+1}], v{231+ct} offset:{(2*ks+u)*1024}")
    stamp(22)
    SM = 40
    def sum2():
        for i in range(0, 16, 2): pk("add", SM+i, PL+i, PL+16+i)
        sum4(SM)
    poll("2", ld2, sum2, 18)
    stamp(11)
    a, b_, c = SM, SM+4, SM+6
    def unpack():
        A(f"v_lshlrev_b32 v{a}, 16, v{b_}"); A(f"v_lshlrev_b32 v{a+1}, 16, v{b_+1}"); A(f"v_and_b32 v{a+2}, 0xffff0000, v{b_}"); A(f"v_and_b32 v{a+3}, 0xffff0000, v{b_+1}")
    A(f"v_cvt_pk_bf16_f32 v{b_}, v{a}, v{a+2}"); A(f"v_cvt_pk_bf16_f32 v{b_+1}, v{a+1}, v{a+3}"); unpack()
    pk("add", a, a, 184); pk("add", a+2, a+2, 186)
    A(f"v_cvt_pk_bf16_f32 v{b_}, v{a}, v{a+2}"); A(f"v_cvt_pk_bf16_f32 v{b_+1}, v{a+1}, v{a+3}")
    A(f"ds_write_b32 v226, v{b_}"); A(f"ds_write_b32 v226, v{b_+1} offset:{YBS}")
    A("s_mov_b64 exec, s[50:51]")
    for ks in range(4): A(f"ds_read_b128 v[{HO+4*ks}:{HO+3+4*ks}], v227 offset:{64*ks}")
    A("s_mov_b64 exec, -1")
    unpack()
    pk("mul", c+2, a, a); pk("add", c, a, a+2); pk("fma", c+2, a+2, a+2, c+2)
    A(f"v_permlane32_swap_b32 v{c}, v{c+2}"); A(f"v_permlane32_swap_b32 v{c+1}, v{c+3}"); pk("add", c, c, c+2)
    A(f"v_permlane16_swap_b32 v{c}, v{c+1}"); A(f"v_add_f32 v{c}, v{c}, v{c+1}")
    red = [f"v_add_f32_dpp v{c}, v{c}, v{c} {m} row_mask:0xf bank_mask:0xf" for m in ("row_mirror", "row_half_mirror", "quad_perm:[2,3,0,1]", "quad_perm:[1,0,3,2]")]
    for ks in range(4):
        A(f"s_waitcnt lgkmcnt({3-ks})")
        for ct in range(2): mfma(28+4*ct, W1F+8*ks+4*ct, HO+4*ks, ks == 0)
        A(red[ks])
    A(f"ds_write_b32 v230, v{c}")
    A("s_mov_b64 exec, s[48:49]")
    A("ds_write_b128 v228, v[28:31]"); A("ds_write_b128 v228, v[32:35] offset:64")
    A("s_mov_b64 exec, -1")
    A("s_waitcnt lgkmcnt(0)")
    stamp(26)
    A("s_barrier")
    stamp(12)
    A("s_cmp_eq_u32 s3, 0"); A("s_cbranch_scc1 L_final ; nf")
    pend_fin = list(pend)
    A("ds_read_b128 v[40:43], v248"); A("ds_read_b128 v[44:47], v248 offset:16"); A("ds_read_b64 v[48:49], v248 offset:32")
    A("ds_read2st64_b32 v[52:53], v247 offset0:0 offset1:2"); A("ds_read2st64_b32 v[54:55], v247 offset0:4 offset1:6"); A("ds_read_b32 v15, v247 offset:2048")
    A("ds_read2st64_b32 v[36:37], v244 offset0:0 offset1:2"); A("ds_read2st64_b32 v[38:39], v244 offset0:4 offset1:6"); A("ds_read_b32 v50, v244 offset:2048")
    A("s_waitcnt lgkmcnt(6)")
    pk("add", 40, 40, 42); pk("add", 44, 44, 46); pk("add", 40, 40, 48); pk("add", 40, 40, 44)
    pk("mul", 40, 40, 250, mod="op_sel_hi:[1,0]")
    A("v_fma_f32 v41, -v40, v40, v41"); A("v_max_f32 v41, 0, v41")
    A("v_fma_f32 v41, v41, v26, v27"); A("v_rsq_f32 v41, v41")
    A("s_waitcnt lgkmcnt(3)")
    pk("add", 52, 52, 54); A("v_add_f32 v15, v15, v52"); A("v_add_f32 v15, v15, v53")
    A("s_waitcnt lgkmcnt(0)")
    pk("add", 36, 36, 38); A("v_fma_f32 v50, -v40, v15, v50"); A("v_add_f32 v36, v36, v37"); A("v_add_f32 v36, v36, v50")
    A("v_mul_f32 v36, v36, v41")
    bf16r(36, 36); A("v_add_f32 v36, v36, v13"); bf16r(36, 36)
    A("v_mul_f32 v37, v36, v36"); A("v_fma_f32 v37, v37, v25, v24"); A("v_mul_f32 v37, v37, v36"); A("v_exp_f32 v37, v37")
    A("v_add_f32 v37, 1.0, v37"); A("v_rcp_f32 v37, v37"); A("v_mul_f32 v36, v36, v37")
    A("v_cvt_pk_bf16_f32 v36, v36, v36")
    A("ds_write_b16 v245, v36")
    for t in range(8):
        A(f"s_lshl_b64 exec, s[50:51], {2*t}")
        A(f"ds_read_b128 v[{H1O+4*t}:{H1O+3+4*t}], v243")
    A("s_mov_b64 exec, -1")
    for i in [0, 8, 1, 9, 2, 3, 4, 5, 6, 7]:
        t = i & 7
        if i < 8: A(f"s_waitcnt lgkmcnt({7-t})")
        mfma(28 + 4*(i >> 3), W2F+4*i, H1O+4*t, t == 0)
    A("v_bfi_b32 v32, v19, s56, v32")
    A("s_mov_b32 exec_lo, 0x000f000f"); A("s_mov_b32 exec_hi, 0x000f000f")
    A(f"buffer_store_dwordx4 v[32:35], v246, {WS}, s86 offen offset:1024 sc1")
    A("s_mov_b64 exec, -1")
    A("v_bfi_b32 v28, v19, s56, v28")
    A(f"buffer_store_dwordx4 v[28:31], v2, {WS}, s86 offen sc1")
    stamp(18)
    if h3 is not None:
        if h3 < 0: A("s_waitcnt vmcnt(0)")
        A("s_barrier")
    stamp(13)
    fin()

    A("L_final:")
    pend.extend(pend_fin)
    A("s_cmp_ge_u32 s33, 20"); A("s_cbranch_scc1 L_epoch")
    A("ds_read_u16_d16_hi v16, v15")
    srd(44, 24, 2560)
    def l3(n):
        def f():
            if n == 6: A("s_mov_b32 exec_hi, 0xffff")
            A(ldtext(96 + 4*n, f"v56, {WS}, {f's{80+n}' if n else '0'} offen"))
            if n == 6: A("s_mov_b32 exec_hi, -1")
        return f
    ld3 = [(96 + 4*n, l3(n)) for n in range(7)]
    A("v_and_b32 v120, s56, v19"); A("v_mov_b32 v121, 0"); A("v_mov_b64 v[122:123], 0")
    A("s_waitcnt lgkmcnt(0)")
    if h3 is not None:
        A("s_barrier")
        if h3 > 0: A(f"s_sleep {h3}")
    poll_first(ld3)
    def sum3():
        for k in range(3):
            for hh in (0, 2): pk("add", 64+4*k+hh, 96+8*k+hh, 100+8*k+hh)
        for hh in (0, 2):
            pk("add", 64+hh, 64+hh, 68+hh); pk("add", 72+hh, 72+hh, 120+hh)
        for hh in (0, 2): pk("add", 64+hh, 64+hh, 72+hh)
    poll("3", ld3, sum3, 18)
    stamp(14)
    A("v_permlane32_swap_b32 v64, v66"); A("v_permlane32_swap_b32 v65, v67"); pk("add", 64, 64, 66)
    A("v_permlane16_swap_b32 v64, v65"); A("v_add_f32 v64, v64, v65")
    A("v_add_f32_dpp v64, v64, v64 row_ror:8 row_mask:0xf bank_mask:0xf")
    bf16r(64, 64); A("v_add_f32 v64, v64, v17"); bf16r(64, 64); A("v_add_f32 v64, v64, v16")
    A("v_cvt_pk_bf16_f32 v64, v64, v64")
    A(f"buffer_store_short v64, v12, s[44:47], 0 offen {osc}")
    stamp(15)
    fin()
    A("L_epoch:")
    A("s_cmp_eq_u32 s37, 53"); A("s_cbranch_scc0 L_fend")
    A("v_mov_b32 v34, s56"); A("s_mov_b64 exec, 1")
    A(f"buffer_store_dword v34, v2, {WS}, 0 offen {osc}")
    A("L_fend:")
    if diag: fin()
    A("L_end:")
    A("s_endpgm")

    body = fix(L)
    out = [HDR.rstrip("\n"),
           "; One launch, 256 workgroups (one per CU); hand-offs between workgroups go through d_ws.",
           f"; @launch grid=(256,1,1) block=(320,1,1) lds={LDS_BYTES}",
           '.amdgcn_target "amdgcn-amd-amdhsa--gfx950"', ".text", f".globl {NAME}_kernel", ".p2align 8",
           f".type {NAME}_kernel,@function", f"{NAME}_kernel:"] + body + [
           '.section .rodata,"a"', ".p2align 6", f".amdhsa_kernel {NAME}_kernel",
           "  .amdhsa_next_free_vgpr 256", "  .amdhsa_next_free_sgpr 102", "  .amdhsa_accum_offset 256",
           "  .amdhsa_group_segment_fixed_size 0", "  .amdhsa_kernarg_size 104", "  .amdhsa_user_sgpr_count 2",
           "  .amdhsa_user_sgpr_kernarg_segment_ptr 1", "  .amdhsa_system_sgpr_workgroup_id_x 1",
           "  .amdhsa_float_denorm_mode_32 3",
           ".end_amdhsa_kernel"]
    return "\n".join(out) + "\n"

if __name__ == "__main__":
    import argparse
    ap = argparse.ArgumentParser(); ap.add_argument("-o", default=f"cdna_kernels/{NAME}.s"); ap.add_argument("--diag", action="store_true")
    ap.add_argument("--kw", default="")
    a = ap.parse_args()
    open(a.o, "w").write(gen(diag=a.diag, **eval("dict(%s)" % a.kw)))
```

```python
import sys, struct
from hz import fix
NAME = "sequential_preLN__sliding_block_cached__mixer_channel_mlp__decode"
HDR = open("cdna_kernels/%s.s.ref" % NAME).read().split("; Override launch")[0]
def F(x): return "0x%08x" % struct.unpack("<I", struct.pack("<f", x))[0]

WS_FLAGS = 1024; WS_VOTE = 2048; WS_PRB = 0x4000; WS_MP = 0x10000; WS_AP = 0x80000; WS_QP = 0x100000; WS_OP = 0x180000
WS_STAMP = 0x200000
OOB = 0xF0000000
L_WB = 23552
L_W2 = L_WB; L_W1 = L_WB + 40960
L_RED = L_WB + 81920
L_Q = L_RED + 2048
L_ML = L_Q + 256
L_SB = L_ML + 96
L_OB = L_SB + 96
L_OF = L_OB + 4096
L_YB = L_OF + 8704
YBS = 1344
L_PB = L_YB + 2 * YBS
L_CW = L_PB + 2560
L_H1 = L_CW + 64
L_DUMMY = L_H1 + 512
LDS_BYTES = L_DUMMY + 1024
SPIN = 400000
LOG2E = 0x3FB8AA3B

def gen(diag=False, nt='nt', W=7, wnt='nt', prio=False, KQ=2, depth=0, PT0=12, T1=True, T2=False, tnt='', local=True, probe=None, h3=-1, exp=(), qdelay=None, PRE=None, QKP='kv', W0=2, NR=0, PR=17, RS=1.5, tall=True, tfree=False, NB=16, MB=True, EF=True, IB=True, WARM=0, WSL=0, CC=None, ROT=False, w1nt='nt', WO=16, RC=0, WBAR=0, P1G=True, XP=0, probe2=None, probe3=None, CLP=0, cfl='sc1', TIGHT=2, PFOUT=False, H8=True, MW=True, PF1=True, MPW=True, NW=5, PW=20, WS_=2.4, TS=(0,19,52), W1W=None, WK=None, KW=12, KS=1, MIX='iw', PERM='t0 s0 s1 w0 w1 t1 t2 t3', QL=True, UNR=2, MLS=False, OMS=False, GW=False, PFO=2, TRF=True, WB=None, osc='', MPRE=None, WM=None, FASTP=True, CHK2=(0,), PT1=None, only=None):
    L = []
    pend = []
    def A(s):
        for l in s.split("\n"):
            l = l.strip()
            if pend and l.startswith(("s_cbranch", "s_branch")) and not l.endswith("; nf"):
                A("s_waitcnt lgkmcnt(0)")
            L.append("    " + l if not l.endswith(":") else l)
            if pend and l.startswith("s_waitcnt") and "lgkmcnt(0)" in l:
                for r, i in pend: L.append(f"    v_writelane_b32 v255, s{r}, {i}")
                pend.clear()
    def stamp(i, clk=False):
        if diag and (only is None or i in only or i >= 59):
            if len(pend) >= 4: A("s_waitcnt lgkmcnt(0)")
            r = 92 + 2 * len(pend)
            A(f"{'s_memtime' if clk else 's_memrealtime'} s[{r}:{r+1}]"); pend.append((r, i))
    def flush():
        if pend: A("s_waitcnt lgkmcnt(0)")
    def bf16r(d, x):
        A(f"v_cvt_pk_bf16_f32 v{d}, v{x}, v{x}"); A(f"v_and_b32 v{d}, 0xffff0000, v{d}")
    def row_allred(op, v):
        for c in ("row_mirror", "row_half_mirror", "quad_perm:[2,3,0,1]", "quad_perm:[1,0,3,2]"):
            A(f"{op}_dpp v{v}, v{v}, v{v} {c} row_mask:0xf bank_mask:0xf")
    def swap_allred(op, v, t, which):
        A(f"v_mov_b32 v{t}, v{v}"); A(f"v_permlane{which}_swap_b32 v{v}, v{t}"); A(f"{op} v{v}, v{v}, v{t}")
    def srd(r, base, size):
        A(f"s_mov_b32 s{r}, s{base}"); A(f"s_mov_b32 s{r+1}, s{base+1}"); A(f"s_mov_b32 s{r+2}, {size}"); A(f"s_mov_b32 s{r+3}, 0x20000")
    def pk(op, d, a, b, c=None, mod=""):
        A(f"v_pk_{op}_f32 v[{d}:{d+1}], v[{a}:{a+1}], v[{b}:{b+1}]" + (f", v[{c}:{c+1}]" if c is not None else "") + (" " + mod if mod else ""))
    def mfma(d, a, b, first):
        A(f"v_mfma_f32_16x16x32_bf16 v[{d}:{d+3}], v[{a}:{a+3}], v[{b}:{b+3}], {'0' if first else f'v[{d}:{d+3}]'}")
    def sum4(b):
        for hh in (0, 2):
            pk("add", b+hh, b+hh, b+4+hh); pk("add", b+8+hh, b+8+hh, b+12+hh)
        for hh in (0, 2): pk("add", b+hh, b+hh, b+8+hh)
    def role_decode():
        A("s_sub_u32 s78, s31, 10"); A("s_lshr_b32 s80, s78, 1"); A("s_lshl_b32 s80, s80, 3"); A("s_add_u32 s80, s80, s30")
        A("s_and_b32 s78, s78, 1"); A("s_lshl_b32 s37, s80, 1"); A("s_add_u32 s37, s37, s78")
        A("s_cmp_lt_u32 s80, 27"); A("s_cselect_b32 s36, 2, 0")
        A("s_cmp_lt_u32 s31, 10"); A("s_cselect_b32 s36, 1, s36"); A("s_cselect_b32 s37, s31, s37")
    WS = "s[40:43]"
    def ldtext(r, a, n=4):
        return f"buffer_load_dwordx{n} v[{r}:{r+n-1}], {a} sc1"
    def poll_init(loads):
        for r, a, n, chk in loads:
            for c in chk: A(f"v_mov_b32 v{r+c}, -1")
    def poll_first(loads):
        for r, ld in loads: ld()
    def poll(tag, loads, work, km, chk=None, clr=None):
        n = len(loads)
        M = lambda i: f"s[{60+2*i}:{61+2*i}]"
        chk = chk or (lambda d, r: A(f"v_cmp_ne_u32_sdwa {d}, v{r}, s56 src0_sel:BYTE_0 src1_sel:BYTE_0"))
        clr = clr or (lambda r: A(f"v_and_b32 v{r}, v{km}, v{r}"))
        A(f"s_mov_b32 s90, {SPIN}")
        flush()
        A(f"L_p{tag}:")
        A("s_waitcnt vmcnt(0)")
        for i, (r, ld) in enumerate(loads): chk(M(i), r)
        for i in range(0, n - 1, 2): A(f"s_or_b64 s[{92+i}:{93+i}], {M(i)}, {M(i+1)}")
        G = lambda k: f"s[{92+2*k}:{93+2*k}]" if 2*k + 1 < n else M(2*k)
        A(f"s_or_b64 vcc, {G(0)}, {G(1)}")
        if n > 6:
            A(f"s_or_b64 s[100:101], {G(2)}, {G(3)}"); A("s_or_b64 vcc, vcc, s[100:101]")
        else: A(f"s_or_b64 vcc, vcc, {G(2)}")
        A(f"s_cbranch_scc0 L_pa{tag}")
        for k in range(4):
            if 2*k + 1 < n:
                A(f"s_cmp_eq_u64 {G(k)}, 0"); A(f"s_cbranch_scc1 L_k{tag}_{2*k+1}")
            for i in range(2*k, min(n, 2*k + 2)):
                A(f"s_cmp_eq_u64 {M(i)}, 0"); A(f"s_cbranch_scc1 L_k{tag}_{i}")
                loads[i][1]()
                A(f"L_k{tag}_{i}:")
        A("s_mov_b32 s59, 0")
        for i in reversed(range(n)):
            A(f"s_cmp_lg_u64 {M(i)}, 0"); A("s_addc_u32 s59, s59, s59")
        A("s_sub_u32 s90, s90, 1"); A(f"s_cbranch_scc1 L_u{tag}_0")
        A("s_bcnt1_i32_b32 s78, s59"); A("s_cmp_eq_u32 s78, 1"); A(f"s_cbranch_scc0 L_p{tag}")
        for i in range(n - 1):
            A(f"s_bitcmp0_b32 s59, {i}"); A(f"s_cbranch_scc0 L_e{tag}_{i}")
        A("s_cmp_eq_u32 0, 1")
        for i in reversed(range(n)):
            r, ld = loads[i]
            A(f"L_e{tag}_{i}:")
            for k, (r2, _) in enumerate(loads):
                if k != i: clr(r2)
            A(f"s_branch L_u{tag}_{i}")
            A(f"L_t{tag}_{i}:")
            ld()
            A("s_sub_u32 s90, s90, 1")
            A(f"L_u{tag}_{i}:")
            A("s_waitcnt vmcnt(0)")
            chk("vcc", r)
            part = tag == "1" or tag == "3" and i == 6
            if not part: clr(r)
            A(f"s_cbranch_scc1 L_pw{tag}")
            A(f"s_cbranch_vccnz L_t{tag}_{i}")
            if part: clr(r)
            A(f"s_branch L_pw{tag}")
        A(f"L_pa{tag}:")
        for r, ld in loads: clr(r)
        A(f"L_pw{tag}:")
        work()
    def fin():
        if diag:
            A("s_mov_b64 exec, -1")
            stamp(59); stamp(61, True); A("s_waitcnt lgkmcnt(0)")
            A("s_getreg_b32 s92, hwreg(HW_REG_XCC_ID)"); A("v_writelane_b32 v255, s92, 62")
            A("s_cmp_eq_u32 s3, 0"); A("s_cselect_b32 s92, 3, 0"); A("s_add_u32 s92, s92, s36"); A("v_writelane_b32 v255, s92, 63")
            A("s_mul_i32 s78, s2, 5"); A("s_add_u32 s78, s78, s3"); A("s_lshl_b32 s78, s78, 8"); A(f"s_add_u32 s78, s78, {WS_STAMP}")
            A("v_lshlrev_b32 v7, 2, v1")
            A(f"buffer_store_dword v255, v7, {WS}, s78 offen")
            if probe is not None:
                fin.n = getattr(fin, "n", 0) + 1
                pi, pw, role = probe
                A("s_cmp_eq_u32 s3, 0"); A(f"s_cbranch_scc{1 if pw == 1 else 0} L_pe{fin.n}")
                if role is not None:
                    A(f"s_cmp_eq_u32 s36, {role}"); A(f"s_cbranch_scc0 L_pe{fin.n}")
                A("v_readlane_b32 s80, v255, 0")
                if pi == "xcc":
                    A("s_getreg_b32 s78, hwreg(HW_REG_XCC_ID, 0, 4)"); A("s_cmp_eq_u32 s78, s30"); A("s_cselect_b32 s78, 0, 400")
                elif pi == "vote":
                    A("v_readlane_b32 s78, v255, 57"); A("s_nop 4"); A("s_mul_i32 s78, s78, 10")
                else:
                    A(f"v_readlane_b32 s78, v255, {pi}"); A("s_nop 4"); A("s_cmp_eq_u32 s78, 0"); A(f"s_cbranch_scc1 L_pe{fin.n}")
                    A("s_sub_u32 s78, s78, s80")
                A("s_mul_i32 s78, s78, 10"); A("s_add_u32 s78, s78, s80"); A("s_add_u32 s78, s78, 2000")
                A(f"L_prw{fin.n}:"); A("s_sleep 2"); A("s_memrealtime s[92:93]"); A("s_waitcnt lgkmcnt(0)"); A("s_sub_u32 s92, s92, s78"); A("s_cmp_lt_i32 s92, 0"); A(f"s_cbranch_scc1 L_prw{fin.n}")
                A(f"L_pe{fin.n}:")
        A("s_endpgm")
    def traddr1280(d, blk):
        A("v_bfe_u32 v7, v1, 2, 3"); A(f"v_lshlrev_b32 v{d}, 7, v7"); A("v_lshrrev_b32 v7, 1, v7"); A(f"v_lshl_add_u32 v{d}, v7, 5, v{d}")
        A("v_lshrrev_b32 v7, 5, v1"); A(f"v_mul_u32_u24 v7, {blk}, v7"); A(f"v_add_u32 v{d}, v{d}, v7")
        A("v_and_b32 v7, 3, v1"); A(f"v_lshl_add_u32 v{d}, v7, 3, v{d}")

    K0, V0 = 64, 128
    ACC = 28
    XS, XO, WQ, AO = 228, 238, 64, 144

    L_X = 20480
    if probe2:
        slot, off, stride = probe2
        A("s_memrealtime s[60:61]"); A(f"s_load_dwordx2 s[4:5], s[0:1], {slot*8}"); A("v_readfirstlane_b32 s3, v0"); A("s_waitcnt lgkmcnt(0)")
        A("s_mov_b32 s99, 0")
        A("s_cmp_eq_u32 s2, 255"); A("s_cbranch_scc0 L_q2w"); A("s_cmp_eq_u32 s3, 64"); A("s_cbranch_scc0 L_q2w")
        A("s_sleep 100")
        A("s_memrealtime s[62:63]"); A("s_waitcnt lgkmcnt(0)")
        for i in range(16):
            A(f"s_mov_b32 s6, {off + i*stride}"); A("s_load_dword s7, s[4:5], s6"); A("s_waitcnt lgkmcnt(0)")
        A("s_memrealtime s[64:65]"); A("s_waitcnt lgkmcnt(0)")
        A("s_sub_u32 s99, s64, s62"); A("s_mul_i32 s99, s99, 10"); A("s_add_u32 s99, s99, s60"); A("s_add_u32 s99, s99, 4000")
        A("L_q2w:")
        A("s_add_u32 s60, s60, 1500")
        A("L_q2x:"); A("s_sleep 2"); A("s_memrealtime s[62:63]"); A("s_waitcnt lgkmcnt(0)"); A("s_sub_u32 s62, s62, s60"); A("s_cmp_lt_i32 s62, 0"); A("s_cbranch_scc1 L_q2x")
    if diag: A("s_memrealtime s[100:101]")
    A("s_load_dwordx16 s[4:19], s[0:1], 0"); A("s_load_dwordx2 s[40:41], s[0:1], 96")
    A("s_lshr_b32 s31, s2, 3"); A("s_and_b32 s33, s31, 7")
    A("s_getpc_b64 s[52:53]"); A("L_pc:")
    A(f"s_cmp_eq_u32 {'s31, 17' if PF1 else 's33, 7'}"); A("s_cselect_b32 s54, L_end-L_pc, 0"); A("s_mov_b32 s55, 0x20000"); A("v_lshlrev_b32 v22, 7, v0")
    A("buffer_load_dword v4, v22, s[52:55], 0 offen")
    A("v_lshrrev_b32 v7, 6, v0"); A("v_and_b32 v1, 63, v0"); A("s_cmp_ge_u32 s31, 32"); A("v_readfirstlane_b32 s3, v7")
    A("s_cbranch_scc1 L_end ; nf")
    A("s_and_b32 s30, s2, 7"); A("s_lshr_b32 s78, s31, 3"); A("s_lshl3_add_u32 s32, s78, s30" if H8 else "s_lshl2_add_u32 s32, s30, s78")
    A("v_lshlrev_b32 v2, 4, v1"); A("v_lshrrev_b32 v8, 4, v1"); A("v_and_b32 v9, 15, v1")
    A("s_lshr_b32 s34, s33, 2"); A("s_and_b32 s35, s33, 3")
    A("s_cmp_eq_u32 s3, 0"); A("s_cbranch_scc0 L_s0 ; nf")
    A("s_mul_i32 s78, s33, 20"); A("v_mad_u32_u24 v7, v8, 5, s78")
    A("v_lshlrev_b32 v12, 15, v7"); A("v_lshl_add_u32 v12, v9, 4, v12"); A("s_lshl_b32 s78, s32, 8"); A("v_add_u32 v12, s78, v12")
    A("s_movk_i32 s79, 0x2000"); A(f"s_movk_i32 m0, {L_X}")
    A("s_waitcnt lgkmcnt(0)")
    A("global_load_lds_dwordx4 v2, s[4:5]"); A("global_load_lds_dwordx4 v2, s[4:5] offset:1024"); A("global_load_lds_dwordx4 v2, s[4:5] offset:1536")
    A("s_mov_b32 m0, 0")
    A("s_nop 0")
    A("L_wq:")
    for _ in range(UNR):
        A(f"global_load_lds_dwordx4 v12, s[10:11] {nt}")
        A("s_addk_i32 m0, 0x400"); A("v_add_u32 v12, s79, v12")
    A(f"s_cmpk_lt_u32 m0, {L_X}"); A("s_cbranch_scc1 L_wq ; nf")
    A("s_branch L_aux ; nf")
    A("L_s0:")
    if PERM:
        pb = {n: 10 + i for i, n in enumerate(PERM.split())}
        assert pb["w1"] == pb["w0"] + 1
        A("s_lshl_b32 s78, s34, 5"); A("s_add_u32 s78, s78, s32"); A("s_lshl_b32 s78, s78, 20"); A(f"s_lshl_b32 s80, s3, {pb['w0']}"); A("s_add_u32 s78, s78, s80")
        if pb["s1"] == pb["s0"] + 1:
            A(f"s_lshl_b32 s80, s35, {pb['s0']}"); A("s_add_u32 s78, s78, s80")
        else:
            A("s_and_b32 s80, s35, 1"); A(f"s_lshl_b32 s80, s80, {pb['s0']}"); A("s_add_u32 s78, s78, s80")
            A("s_lshr_b32 s80, s35, 1"); A(f"s_lshl_b32 s80, s80, {pb['s1']}"); A("s_add_u32 s78, s78, s80")
        A(f"s_add_u32 s78, s78, {3072*256 + 4096 - (1 << pb['w0'])}")
        A("v_add_u32 v17, s78, v2")
    else:
        A("s_lshl_b32 s78, s34, 5"); A("s_add_u32 s78, s78, s32"); A("s_lshl_b32 s78, s78, 6"); A("s_lshl2_add_u32 s80, s35, s3"); A("s_add_u32 s78, s78, s80")
        A("s_add_u32 s78, s78, 47"); A("s_lshl_b32 s78, s78, 14"); A("s_addk_i32 s78, 0x1000")
        if 'w' in MIX:
            A("s_and_b32 s80, s3, 1"); A("s_lshl_b32 s80, s80, 13"); A("s_add_u32 s78, s78, s80")
        A("v_add_u32 v17, s78, v2"); A("v_xor_b32 v18, 0x2000, v17")
    A("L_s1:")
    def common2():
        A("s_load_dwordx8 s[20:27], s[0:1], 64")
        if diag:
            A("v_mov_b32 v255, 0"); pend.append((100, 0)); stamp(60, True)
        role_decode()
        A("s_mov_b32 s42, 0x10000000"); A("s_mov_b32 s43, 0x20000")
    cur18 = [None]
    def ldKV(base, ptr, t):
        if PERM:
            off = sum(((t >> k) & 1) << pb[f"t{k}"] for k in range(4))
            def f():
                hi = off & ~8191
                if hi and cur18[0] != hi:
                    A(f"v_add_u32 v18, {hi}, v17"); cur18[0] = hi
                A(f"global_load_dwordx4 v[{base+4*t}:{base+4*t+3}], v{18 if hi else 17}, {ptr} offset:{(off & 8191) - 4096} {nt}")
            return f
        hi, lo = (t & 1, t >> 1) if 'i' in MIX else (t // 8, t % 8)
        return lambda: A(f"global_load_dwordx4 v[{base+4*t}:{base+4*t+3}], v{17 + hi}, {ptr} offset:{lo*1024-4096} {nt}")
    redo = [False]
    def dma_a(n):
        def f():
            if n == MPRE and not redo[0]:
                A("s_cmp_eq_u32 s36, 2"); A("s_cselect_b32 s46, 0, s46")
            if n == 10:
                A("s_cmp_eq_u32 s36, 2"); A("s_cselect_b32 s46, 0, s46"); A(f"s_cselect_b32 s78, {40960 - 10240}, 0"); A("s_add_u32 s83, s83, s78")
            A(f"s_add_u32 m0, s83, {n*1024}")
            if n: A("s_add_u32 s82, s82, s87")
            A(f"buffer_load_dwordx4 v58, s[44:47], s82 offen {wnt} lds")
        return f
    kv = [ldKV(K0, "s[6:7]", t) for t in range(16)] + [ldKV(V0, "s[8:9]", t) for t in range(16)]
    def rider():
        A("s_mov_b32 m0, s76"); A("s_add_u32 s76, s76, s77")
        A(f"buffer_load_dwordx4 v58, s[44:47], s79 offen {wnt} lds"); A("s_addk_i32 s79, 10240")
    seq = []; pos = []; free = set(); nr = 0; nw_ = 0; didx = {}
    for i, f in enumerate(kv):
        if PT0 == i:
            if tfree or not tall: free.add(len(seq))
            seq.append(lambda: A(f"buffer_load_dword v4, v56, s[48:51], 0 offen {tnt}"))
        if PT0 + 3 == i and not tall:
            free.add(len(seq)); seq.append(lambda: A(f"buffer_load_dword v5, v56, s[48:51], s79 offen {tnt}"))
        while nr < NR and PR + nr * RS <= i:
            free.add(len(seq)); didx[nr] = len(seq); seq.append(dma_a(nr)); nr += 1
        while nw_ < NW and PW + nw_ * WS_ <= i:
            free.add(len(seq)); didx[16 - NW + nw_] = len(seq); seq.append(rider); nw_ += 1
        pos.append(len(seq)); seq.append(f)
    assert nr == NR and nw_ == NW
    if PT1:
        free.add(len(seq)); seq.append(lambda: A(f"buffer_load_dword v6, v57, s[52:55], 0 offen {tnt}"))
    PRE = min(W - 1 + XP, 16 - NR - NW)
    for n in range(NR, NR + PRE):
        k = NR + PRE - 1 - n
        if k < 2 * (PRE - (W - 1)) and k % 2 == 1: free.add(len(seq))
        didx[n] = len(seq); seq.append(dma_a(n))
    st = dict(issued=0, waited=-1)
    Wc = [WK or W]
    def issue_to(n):
        inflight = lambda: sum(1 for i in range(n - W, st["issued"]) if i not in free)
        while st["issued"] < len(seq) and (st["issued"] < n - W + Wc[0] or inflight() < Wc[0] and n >= W):
            seq[st["issued"]](); st["issued"] += 1
    def wait_for(k):
        if k > st["waited"]:
            A(f"s_waitcnt vmcnt({st['issued'] - k - 1})"); st["waited"] = k
    def pump(lim=None):
        k = st["waited"] + 1
        while k in free: k += 1
        if lim is not None and k > lim: return
        if WK and KW <= k <= pos[31] and Wc[0] != W and (k - KW) % KS == 0: Wc[0] += 1 if Wc[0] < W else -1
        wait_for(k); issue_to(k + 1 + W)
    A("s_waitcnt lgkmcnt(0)")
    assert W <= 8
    for _ in range(W0):
        seq[st["issued"]](); st["issued"] += 1
    A("s_cmp_eq_u32 s3, 2"); A("s_cbranch_scc0 L_s4 ; nf")
    A("v_mov_b64 v[24:25], -1"); A("v_mov_b64 v[26:27], -1")
    A(f"v_add_u32 v13, {L_Q}, v2"); A("s_mov_b64 exec, 0x3fffff")
    A("ds_write_b128 v13, v[24:27]")
    A("s_mov_b64 exec, -1"); A("s_waitcnt lgkmcnt(0)")
    A("L_s4:")
    A("s_load_dword s56, s[40:41], 0")
    common2()
    def slots():
        A("s_lshl_b32 s39, s30, 5"); A("s_add_u32 s39, s39, s31")
        A("s_lshl_b32 s38, s39, 10"); A(f"s_add_u32 s38, s38, {WS_OP}")
    keep = list(pend); pend.clear()
    A("s_barrier")
    issue_to(W)
    A("s_branch L_stream ; nf")

    A("L_aux:")
    A("s_barrier")
    if prio: A("s_setprio 3")
    A("v_bfe_u32 v11, v1, 3, 1"); A("v_mul_u32_u24 v11, 1280, v11"); A("v_lshl_add_u32 v11, v7, 3, v11")
    common2()
    stamp(1)
    A("v_lshrrev_b32 v40, 5, v1"); A("v_mul_u32_u24 v10, 1280, v40"); A("v_and_b32 v41, 31, v1"); A("v_mad_u32_u24 v10, v41, 40, v10")
    slots()
    A("v_and_b32 v7, 1, v1"); A("v_cmp_eq_u32 vcc, 1, v7"); A("v_bfe_u32 v7, v1, 1, 2")
    A("v_mov_b32 v28, 0x0c0c0100"); A("v_mov_b32 v29, 0x01000c0c"); A("v_cndmask_b32 v28, v28, v29, vcc")
    A("v_mov_b32 v29, 0x0c0c0302"); A("v_mov_b32 v30, 0x03020c0c"); A("v_cndmask_b32 v29, v29, v30, vcc")
    A("v_mov_b32 v30, 0x0c0c0c0c")
    for r in range(4):
        A(f"v_cmp_eq_u32 vcc, {r}, v7"); A(f"v_cndmask_b32 v{14+r}, v30, v28, vcc"); A(f"v_cndmask_b32 v{18+r}, v30, v29, vcc")
    A(f"v_mov_b32 v13, {L_ML}"); A(f"v_mov_b32 v23, {OOB}")
    A("s_waitcnt vmcnt(20)")
    for base, a in ((XS, 10), (XO, 11)):
        A(f"ds_read_b64 v[{base}:{base+1}], v{a} offset:{L_X}"); A(f"ds_read_b64 v[{base+2}:{base+3}], v{a} offset:{L_X+8}")
        A(f"ds_read_b64 v[{base+4}:{base+5}], v{a} offset:{L_X+16}"); A(f"ds_read_b64 v[{base+6}:{base+7}], v{a} offset:{L_X+24}")
        A(f"ds_read_b64 v[{base+8}:{base+9}], v{a} offset:{L_X+32}")
    stamp(2)
    A("s_waitcnt lgkmcnt(0)")
    A("s_load_dword s56, s[40:41], 0")
    if CC is None:
        A("s_sub_u32 s78, s31, 24"); A("s_lshl3_add_u32 s47, s30, s78"); A("s_and_b32 s47, s47, 63")
        A("s_lshl_b32 s78, s47, 7"); A("s_and_b32 s46, s31, 1"); A("s_lshl_b32 s80, s46, 13"); A("s_add_u32 s44, s78, s80"); A(f"s_add_u32 s44, s44, {WS_PRB}")
        A("s_xor_b32 s45, s44, 0x2000")
        A("s_cmp_ge_u32 s31, 24"); A("s_cbranch_scc0 L_v1 ; nf")
        A("s_load_dword s48, s[40:41], s44 glc"); A("s_load_dword s49, s[40:41], s45 glc")
        A("L_v1:")
    X, mean, tmp = 192, 52, 56
    for i in range(10):
        A(f"v_lshlrev_b32 v{X+2*i}, 16, v{XS+i}"); A(f"v_and_b32 v{X+2*i+1}, 0xffff0000, v{XS+i}")
    pk("add", tmp, X, X+2); pk("add", tmp+2, X+4, X+6)
    for i in range(4, 10): pk("add", tmp+2*(i&1), tmp+2*(i&1), X+2*i)
    pk("add", tmp, tmp, tmp+2); A(f"v_add_f32 v{mean}, v{tmp}, v{tmp+1}")
    row_allred("v_add_f32", mean); swap_allred("v_add_f32", mean, tmp, 16)
    A(f"v_mul_f32 v{mean}, {F(1/640)}, v{mean}")
    for i in range(10): pk("add", X+2*i, X+2*i, mean, mod="op_sel_hi:[1,0] neg_lo:[0,1] neg_hi:[0,1]")
    for i in range(10):
        t = tmp + 2*(i&1)
        if i < 2: pk("mul", t, X+2*i, X+2*i)
        else: pk("fma", t, X+2*i, X+2*i, t)
    pk("add", tmp, tmp, tmp+2)
    va = mean + 2
    A(f"v_add_f32 v{va}, v{tmp}, v{tmp+1}")
    row_allred("v_add_f32", va); swap_allred("v_add_f32", va, tmp, 16)
    A(f"v_mul_f32 v{va}, {F(1/640)}, v{va}")
    bf16r(mean, mean); bf16r(va, va)
    A(f"v_add_f32 v{va}, {F(1e-5)}, v{va}"); bf16r(va, va)
    A(f"v_sqrt_f32 v{va}, v{va}"); bf16r(va, va)
    A(f"v_rcp_f32 v{va}, v{va}")
    A("v_mov_b32 v53, v52"); A("v_mov_b32 v55, v54")
    for i in range(10):
        A(f"v_lshlrev_b32 v{X+2*i}, 16, v{XO+i}"); A(f"v_and_b32 v{X+2*i+1}, 0xffff0000, v{XO+i}")
    A("v_permlane32_swap_b32 v52, v53"); A("v_permlane32_swap_b32 v54, v55")
    A("s_mov_b32 vcc_lo, 0xff00ff00"); A("s_mov_b32 vcc_hi, 0xff00ff00")
    A("v_cndmask_b32 v52, v52, v53, vcc"); A("v_cndmask_b32 v54, v54, v55, vcc")
    for i in range(10): pk("add", X+2*i, X+2*i, mean, mod="op_sel_hi:[1,0] neg_lo:[0,1] neg_hi:[0,1]")
    for i in range(10): A(f"v_cvt_pk_bf16_f32 v{XO+i}, v{X+2*i}, v{X+2*i+1}")
    for i in range(10):
        A(f"v_lshlrev_b32 v{X+2*i}, 16, v{XO+i}"); A(f"v_and_b32 v{X+2*i+1}, 0xffff0000, v{XO+i}")
    for i in range(10): pk("mul", X+2*i, X+2*i, va, mod="op_sel_hi:[1,0]")
    for i in range(10): A(f"v_cvt_pk_bf16_f32 v{XO+i}, v{X+2*i}, v{X+2*i+1}")
    stamp(3)
    for t in range(22):
        if t < 20:
            A(f"s_waitcnt vmcnt({19-t})"); A(f"ds_read_b128 v[{WQ+4*t}:{WQ+4*t+3}], v2 offset:{1024*t}")
            for r in range(4): A(f"v_perm_b32 v{AO+4*t+r}, v{XO+t//2}, v{XO+t//2}, v{14+4*(t&1)+r}")
        if t > 1:
            A(f"s_waitcnt lgkmcnt({min(2, 21-t)})"); mfma(ACC, AO+4*(t-2), WQ+4*(t-2), t == 2)
    A("s_add_u32 s56, s56, 0x01010101")
    A("s_lshl_b32 s39, s39, 11"); A(f"s_add_u32 s39, s39, {WS_QP}")
    A("v_mov_b32 v34, s56"); A("v_mov_b32 v35, s56"); A("v_mov_b32 v38, s56"); A("v_mov_b32 v39, s56")
    A("v_mov_b64 v[32:33], v[28:29]"); A("v_mov_b64 v[36:37], v[30:31]")
    def qstore(fl):
        A(f"buffer_store_dwordx4 v[32:35], v2, {WS}, s39 offen {fl}")
        A(f"buffer_store_dwordx4 v[36:39], v2, {WS}, s39 offen offset:1024 {fl}")
    if QL:
        A("s_getreg_b32 s57, hwreg(HW_REG_XCC_ID, 0, 4)"); A("s_xor_b32 s57, s57, s56"); A("v_mov_b32 v35, s57"); A("v_mov_b32 v39, s57")
        qstore("")
    else: qstore("sc1")
    stamp(4)
    def recl():
        A("s_not_b32 s78, s56")
        for r in range(4): A(f"v_mov_b32 v{24+r}, s78")
        A("s_mov_b32 exec_hi, 0xff")
        A(f"buffer_store_dwordx4 v[24:27], v2, {WS}, s38 offen")
        A("s_mov_b32 exec_hi, -1")
    if RC == 1: recl()
    A("s_andn2_b32 s78, s39, 0x3fff"); A("s_lshl_b32 s80, s34, 9"); A("s_add_u32 s78, s78, s80")
    A("v_lshlrev_b32 v42, 10, v40"); A("v_lshl_add_u32 v42, v41, 4, v42"); A("v_add_u32 v42, s78, v42")
    for k in range(1, 4): A(f"s_movk_i32 s{80+k}, {4096*k}")
    A("v_lshlrev_b32 v43, 4, v9"); A("v_and_b32 v7, 1, v8"); A("v_lshl_add_u32 v43, v7, 3, v43"); A("v_lshl_add_u32 v43, v40, 2, v43"); A(f"v_add_u32 v43, {L_Q}, v43")
    assert QL
    A("s_lshl_b32 s77, s30, 16"); A(f"s_add_u32 s77, s77, {WS_QP}"); A("v_lshlrev_b32 v47, 11, v1")
    if CC is None:
        flush()
        A("s_cmp_ge_u32 s31, 24"); A("s_cbranch_scc0 L_v2")
        A("s_memtime s[60:61]"); A("s_waitcnt lgkmcnt(0)")
        A("s_load_dword s48, s[40:41], s44 glc"); A("s_waitcnt lgkmcnt(0)")
        A("s_memtime s[62:63]"); A("s_waitcnt lgkmcnt(0)")
        A("s_load_dword s49, s[40:41], s45 glc"); A("s_waitcnt lgkmcnt(0)")
        A("s_memtime s[64:65]"); A("s_waitcnt lgkmcnt(0)")
        A("s_sub_u32 s60, s62, s60"); A("s_sub_u32 s62, s64, s62"); A("s_cmp_gt_u32 s60, s62"); A("s_addc_u32 s46, s46, 0")
        A("s_getreg_b32 s78, hwreg(HW_REG_XCC_ID, 2, 1)"); A("s_xor_b32 s46, s46, s78"); A("s_and_b32 s46, s46, 1"); A("s_xor_b32 s46, s46, s56")
        A("v_mov_b32 v44, s46"); A("s_and_b32 s47, s47, 7"); A("s_lshl_b32 s78, s30, 5"); A("s_add_u32 s47, s47, s78"); A("s_lshl_b32 s47, s47, 2"); A("s_mov_b64 exec, 1")
        if qdelay is None: A("s_waitcnt vmcnt(0)")
        A(f"buffer_store_dword v44, v2, {WS}, s47 offen offset:{WS_VOTE} sc1")
        A("s_mov_b64 exec, -1")
        A("s_branch L_v3")
        A("L_v2:")
    if qdelay is None: A("s_waitcnt vmcnt(0)")
    elif qdelay: A(f"s_sleep {qdelay}")
    A("L_v3:")
    stamp(5)
    A(f"s_mov_b32 s90, {SPIN}")
    flush()
    if QL: A("s_mov_b32 s58, 0")
    A("L_qpoll:")
    if "halfq" in exp: A("s_mov_b32 exec_hi, 0")
    if "noqld" in exp: A("s_mov_b64 exec, 1")
    for jj in range(8):
        A(f"buffer_load_dwordx4 v[{64+4*jj}:{67+4*jj}], v42, {WS}, {f's{80+jj//2}' if jj//2 else '0'} offen offset:{2048*(jj&1)} sc1")
    A("s_waitcnt vmcnt(0)")
    if QL:
        A("v_xor_b32 v7, s56, v66"); A("v_xor_b32 v6, s57, v67")
        for i in range(1, 8):
            A(f"v_bitop3_b32 v7, v7, v{66 + 4*i}, s56 bitop3:0xf6"); A(f"v_bitop3_b32 v6, v6, v{67 + 4*i}, s57 bitop3:0xf6")
        A("v_or_b32 v5, v6, v7"); A("v_cmp_ne_u32 vcc, 0, v5")
        A("s_cbranch_vccz L_qok")
        A("s_cmp_eq_u32 s58, 0"); A("s_cbranch_scc0 L_q2")
        qstore("sc1"); A("s_mov_b32 s58, 1")
        A("L_q2:")
        A("v_lshrrev_b32 v6, 4, v6"); A("v_or_b32 v5, v6, v7"); A("v_cmp_ne_u32 vcc, 0, v5")
    else:
        A("v_xor_b32 v7, s56, v66")
        for i in range(1, 16): A(f"v_bitop3_b32 v7, v7, v{66 + 4*(i//2) + (i&1)}, s56 bitop3:0xf6")
        A("v_cmp_ne_u32 vcc, 0, v7")
    A("s_cbranch_vccz L_qok")
    A("s_sub_u32 s90, s90, 1"); A("s_cbranch_scc0 L_qpoll")
    A("L_qok:")
    if "halfq" in exp or "noqld" in exp: A("s_mov_b64 exec, -1")
    if QL: A("v_mov_b32 v39, s56")
    if diag: A("v_writelane_b32 v255, s90, 56")
    A("v_mov_b32 v48, s57"); A("s_mov_b64 exec, 0x3ff")
    A(f"buffer_load_dword v48, v47, {WS}, s77 offen offset:12 sc1")
    if PFO == 1:
        A("s_mov_b64 exec, 31"); A(f"buffer_load_dword v5, v22, {WS}, s38 offen sc1")
    A("s_mov_b64 exec, -1")
    if PFO == 2:
        A("s_sub_u32 s78, s31, 10"); A("s_cmp_lt_u32 s78, 8"); A("s_cbranch_scc0 L_pfo")
        A("s_lshl_b32 s78, s78, 12"); A("s_lshl_b32 s80, s30, 15"); A("s_add_u32 s78, s78, s80"); A(f"s_add_u32 s78, s78, {WS_OP}")
        A("s_mov_b64 exec, 0x1f1f1f1f"); A(f"buffer_load_dword v5, v22, {WS}, s78 offen sc1"); A("s_mov_b64 exec, -1")
        A("L_pfo:")
    if RC == 2: recl()
    for i in range(4): pk("add", 64+8*i, 64+8*i, 68+8*i)
    pk("add", 64, 64, 72); pk("add", 80, 80, 88); pk("add", 64, 64, 80)
    A("v_cvt_pk_bf16_f32 v64, v64, v65")
    A("ds_write_b32 v43, v64")
    stamp(6)
    def apbase(d):
        A(f"s_and_b32 s{d}, s30, 3"); A(f"s_lshl_b32 s{d}, s{d}, 4"); A("s_lshr_b32 s80, s30, 2"); A(f"s_add_u32 s{d}, s{d}, s80"); A(f"s_lshl_b32 s{d}, s{d}, 13")
        A(f"s_add_u32 s{d}, s{d}, {WS_AP}")
        if CC: A(f"s_xor_b32 s{d}, s{d}, 0x2000")
    def mlp5_setup():
        A("v_lshlrev_b32 v224, 2, v0")
        A("global_load_dword v252, v224, s[4:5]"); A("global_load_dword v253, v224, s[4:5] offset:1280")
        apbase(78); A("v_lshl_add_u32 v225, v0, 4, s78")
        A("v_lshrrev_b32 v226, 4, v0"); A("v_lshlrev_b32 v226, 6, v226"); A("v_bfe_u32 v7, v0, 1, 2"); A("v_lshl_add_u32 v226, v7, 4, v226")
        A("v_bfe_u32 v7, v0, 3, 1"); A("v_lshl_add_u32 v226, v7, 3, v226"); A("v_and_b32 v7, 1, v0"); A("v_lshl_add_u32 v226, v7, 2, v226"); A(f"v_add_u32 v226, {L_YB}, v226")
        A(f"v_mul_u32_u24 v227, {YBS}, v7"); A("v_lshl_add_u32 v227, v8, 4, v227"); A("s_lshl_b32 s78, s3, 8"); A("v_add_u32 v227, s78, v227")
        A("v_lshlrev_b32 v228, 7, v9"); A("v_lshl_add_u32 v228, v8, 4, v228"); A("s_lshl_b32 s78, s3, 9"); A("v_add_u32 v228, s78, v228")
        A(f"v_add_u32 v227, {L_YB}, v227"); A(f"v_add_u32 v228, {L_PB}, v228")
        A("v_and_b32 v7, 1, v8"); A("v_mul_u32_u24 v230, 48, v7"); A("v_lshrrev_b32 v7, 1, v8"); A("v_lshl_add_u32 v230, v7, 2, v230")
        A("s_lshl_b32 s78, s3, 3"); A(f"s_add_u32 s78, s78, {L_SB}"); A("v_add_u32 v230, s78, v230")
        A("v_lshrrev_b32 v7, 2, v1"); A("v_lshlrev_b32 v231, 6, v7"); A("v_and_b32 v7, 1, v8"); A("v_lshl_add_u32 v231, v7, 5, v231")
        A("v_and_b32 v7, 3, v1"); A("v_lshl_add_u32 v231, v7, 3, v231"); A("s_lshl_b32 s78, s3, 13"); A(f"s_add_u32 s78, s78, {L_W1}"); A("v_add_u32 v231, s78, v231"); A("v_xor_b32 v232, 32, v231")
    for r in (224, 225, 246, 56, 57): A(f"v_mov_b32 v{r}, 0")
    A("s_cmp_eq_u32 s36, 2"); A("s_cbranch_scc0 L_nofin")
    mlp5_setup()
    A("s_lshr_b32 s78, s37, 4"); A("s_lshl_b32 s78, s78, 3"); A("s_and_b32 s80, s37, 7"); A("s_add_u32 s33, s78, s80")
    A("s_min_u32 s34, s33, 19"); A("s_lshr_b32 s35, s30, 2"); A("s_mul_i32 s85, s35, 20"); A("s_add_u32 s85, s85, s34")
    A("s_mul_i32 s78, s85, 52"); A("s_lshr_b32 s78, s78, 9")
    A("s_mul_i32 s80, s78, 10"); A("s_sub_u32 s80, s85, s80")
    A("s_mul_i32 s78, s78, 160")
    A("s_and_b32 s81, s80, 1"); A("s_lshl_b32 s82, s81, 6"); A("s_lshr_b32 s83, s80, 1"); A("s_lshl_b32 s83, s83, 2"); A("s_add_u32 s82, s82, s83")
    A("s_lshl_b32 s81, s81, 3"); A("s_add_u32 s81, s81, 128")
    A("v_bfe_u32 v7, v1, 1, 2"); A("v_lshlrev_b32 v12, 4, v7")
    A("v_bfe_u32 v7, v1, 1, 1"); A("v_lshlrev_b32 v15, 4, v7"); A("v_bfe_u32 v7, v1, 2, 1"); A("v_lshl_add_u32 v15, v7, 2, v15")
    A("s_cmp_lt_u32 s80, 8"); A("s_cselect_b32 s82, s82, s81"); A("s_cselect_b64 vcc, -1, 0"); A("s_add_u32 s78, s78, s82")
    A("v_cndmask_b32 v12, v15, v12, vcc"); A("v_add3_u32 v14, v12, v8, s78"); A("v_lshlrev_b32 v12, 1, v14")
    A("v_mov_b32 v17, 0"); A("v_mov_b32 v16, 0")
    A("global_load_short_d16_hi v17, v12, s[22:23]")
    A("v_and_b32 v7, 1, v1"); A(f"v_mul_u32_u24 v15, {YBS}, v7"); A("v_mul_u32_u24 v7, 1280, v7"); A("v_add_u32 v12, v12, v7")
    if PFOUT: A("global_load_ushort v5, v12, s[24:25]")
    A("v_lshrrev_b32 v7, 5, v14"); A("v_lshl_add_u32 v15, v7, 6, v15"); A("v_bfe_u32 v7, v14, 2, 2"); A("v_lshl_add_u32 v15, v7, 4, v15")
    A("v_bfe_u32 v7, v14, 4, 1"); A("v_lshl_add_u32 v15, v7, 3, v15"); A("v_and_b32 v7, 3, v14"); A("v_lshl_add_u32 v15, v7, 1, v15"); A(f"v_add_u32 v15, {L_YB}, v15")
    A("v_bfe_u32 v7, v1, 3, 1"); A("v_cmp_eq_u32 vcc, 0, v7"); A("v_cndmask_b32 v12, v23, v12, vcc")
    A("v_lshlrev_b32 v56, 14, v8"); A("v_lshl_add_u32 v56, v7, 12, v56"); A("v_and_b32 v57, 7, v1"); A("v_lshl_add_u32 v56, v57, 4, v56")
    A("s_lshl_b32 s78, s34, 7"); A("s_lshl_b32 s80, s35, 13"); A("s_add_u32 s78, s78, s80"); A(f"s_add_u32 s78, s78, {WS_MP}")
    if CC: A("s_xor_b32 s78, s78, 0x2000")
    A("v_add_u32 v56, s78, v56")
    for n in range(1, 7): A(f"s_mov_b32 s{80+n}, {n*65536}")
    A("L_nofin:")
    stamp(7)
    A("s_waitcnt vmcnt(0)")
    A("v_cmp_ne_u32 vcc, s57, v48"); A("s_cmp_lg_u64 vcc, 0")
    if not local: A("s_cmp_eq_u32 0, 0")
    A("s_cselect_b32 s76, 0, -1")
    if OMS:
        A("s_cmp_eq_u32 s36, 2"); A("s_cselect_b32 s76, 0, s76")
    A("s_not_b32 s77, s76")
    if diag: A("v_writelane_b32 v255, s77, 55")
    stamp(8)
    flush()
    A(f"s_mov_b32 s90, {SPIN*8}")
    A("L_mlw:")
    A("ds_read_b128 v[64:67], v13"); A("ds_read_b128 v[68:71], v13 offset:16")
    A("s_waitcnt lgkmcnt(0)")
    A("v_max3_u32 v7, v65, v67, v69"); A("v_max_u32 v7, v7, v71"); A("v_cmp_eq_u32 vcc, -1, v7")
    A("s_cbranch_vccz L_mlw2")
    A("s_sleep 1")
    A("s_sub_u32 s90, s90, 1"); A("s_cbranch_scc0 L_mlw")
    A("L_mlw2:")
    A("v_max3_f32 v36, v64, v66, v68"); A("v_max_f32 v36, v36, v70")
    for i in range(4): A(f"v_sub_f32 v{64+2*i}, v{64+2*i}, v36")
    for i in range(4): A(f"v_mul_f32 v{64+2*i}, {LOG2E:#x}, v{64+2*i}")
    for i in range(4): A(f"v_exp_f32 v{64+2*i}, v{64+2*i}")
    A("v_mul_f32 v37, v64, v65")
    for i in range(1, 4): A(f"v_fmac_f32 v37, v{64+2*i}, v{65+2*i}")
    A("v_mov_b32 v45, s76"); A("ds_write_b32 v13, v45 offset:64")
    A("ds_write_b128 v13, v[64:67] offset:32"); A("ds_write_b128 v13, v[68:71] offset:48")
    A("s_mov_b32 exec_hi, 0")
    if MLS: A("s_mov_b32 exec_lo, 0xff")
    else:
        A("s_and_b32 exec_lo, s76, 0xff")
        A(f"buffer_store_dwordx4 v[36:39], v2, {WS}, s38 offen offset:512")
        A("s_and_b32 exec_lo, s77, 0xff")
    A(f"buffer_store_dwordx4 v[36:39], v2, {WS}, s38 offen offset:512 sc1")
    A("s_mov_b64 exec, -1")
    A(f"s_cmp_ge_u32 s31, {WARM or 99}"); A("s_cselect_b32 s59, 2, s36")
    A("v_lshrrev_b32 v47, 3, v1"); A("v_lshlrev_b32 v47, 7, v47"); A("v_and_b32 v7, 7, v1"); A("v_lshl_add_u32 v47, v7, 2, v47")
    flld = lambda: A(f"buffer_load_dword v46, v47, {WS}, 0 offen offset:{WS_VOTE} sc1")
    A("s_cmp_eq_u32 s59, 2"); A("s_cbranch_scc0 L_f0")
    flld()
    A("L_f0:")
    stamp(9)
    if "notail" not in exp:
        A("s_cmp_eq_u32 s59, 2"); A("s_cbranch_scc1 L_fl")
    A("L_aend:")
    fin()
    A("L_fl:")
    A(f"s_mov_b32 s90, {SPIN}")
    A("s_waitcnt vmcnt(0)")
    A("L_fchk:")
    assert CC is None
    A("v_xor_b32 v7, s56, v46"); A("v_cmp_lt_u32 vcc, 1, v7")
    A("s_cbranch_vccz L_fok")
    flld()
    A("s_waitcnt vmcnt(0)")
    A("s_sub_u32 s90, s90, 1"); A("s_cbranch_scc0 L_fchk")
    A("L_fok:")
    if CC is None:
        A("v_cmp_ne_u32 vcc, s56, v46"); A("s_bcnt1_i32_b64 s78, vcc"); A("s_cmp_gt_u32 s78, 32"); A("s_cselect_b32 s78, 0x2000, 0")
        A("v_mov_b32 v46, s78"); A(f"v_mov_b32 v47, {L_CW}"); A("ds_write_b32 v47, v46")
        A("v_xor_b32 v225, s78, v225"); A("v_xor_b32 v56, s78, v56")
        if diag: A("v_writelane_b32 v255, s78, 58"); A("s_bcnt1_i32_b64 s78, vcc"); A("v_writelane_b32 v255, s78, 57")
        A("s_waitcnt lgkmcnt(0)")
    A("s_cmp_eq_u32 s36, 2"); A("s_cbranch_scc0 L_aend")
    if MW:
        A("v_readfirstlane_b32 s60, v225")
        A("s_sub_u32 s78, s31, 10"); A("s_mul_i32 s78, s78, 54"); A("v_add_u32 v7, s78, v1")
        A("v_mul_u32_u24 v6, 1639, v7"); A("v_lshrrev_b32 v6, 16, v6"); A("v_mul_u32_u24 v6, 88, v6"); A("v_add_lshl_u32 v6, v6, v7, 7")
        A("v_cmp_gt_u32 vcc, 320, v7"); A("v_cndmask_b32 v6, v23, v6, vcc")
        A("s_mov_b32 exec_hi, 0x3fffff")
        A(f"buffer_load_dword v4, v6, {WS}, s60 offen sc1")
        A("s_mov_b64 exec, -1")
    if MPW:
        A("s_lshl_b32 s63, s37, 13"); A("s_and_b32 s64, s37, 1"); A("s_lshl_b32 s64, s64, 12"); A("s_sub_u32 s63, s63, s64"); A(f"s_add_u32 s63, s63, {WS_MP}")
        A("v_mul_u32_u24 v7, 7680, v40"); A("v_add_u32 v7, v7, v2"); A("s_not_b32 s64, s56")
        for r in range(4): A(f"v_mov_b32 v{24+r}, s64")
    if not W1W: A("s_barrier")
    if MPW:
        for k in range(5): A(f"buffer_store_dwordx4 v[24:27], v7, {WS}, s63 offen offset:{512*k} sc1")
    A("s_barrier")
    A("s_branch L_mlp5")

    A("L_stream:")
    pend.extend(keep)
    stamp(1)
    A("s_sub_u32 s91, s3, 1")
    A("s_waitcnt lgkmcnt(0)")
    A("s_add_u32 s56, s56, 0x01010101")
    A("s_lshl3_add_u32 s82, s91, s30" if H8 else "s_lshl2_add_u32 s82, s30, s91"); A(f"s_mul_i32 s82, s82, {128*1280}"); A("s_lshl_b32 s78, s37, 7"); A("s_add_u32 s82, s82, s78")
    A("s_lshl_b32 s78, s37, 2"); A("s_add_u32 s78, s78, s91"); A("s_mul_i32 s78, s78, 10240")
    A("s_lshl_b32 s83, s91, 14"); A("s_mul_i32 s80, s91, 10240"); A(f"s_add_u32 s88, s80, {L_W1}")
    A("s_cmp_eq_u32 s36, 1")
    A("s_cselect_b32 s44, s12, s20"); A("s_cselect_b32 s45, s13, s21"); A("s_cselect_b32 s46, 5242880, 0"); A("s_mov_b32 s47, 0x20000")
    A("s_cselect_b32 s82, s82, s78"); A("s_cselect_b32 s83, s83, s80"); A("s_cselect_b32 s87, 10240, 0")
    A("s_cmp_eq_u32 s36, 2"); A("s_cselect_b32 s46, 2211840, s46"); A("s_cselect_b32 s87, 128, s87"); A(f"s_addk_i32 s83, {L_WB}")
    if "nopre" in exp: A("s_mov_b32 s46, 0")
    srd(48, 12, 5242880); srd(52, 16, 2211840)
    A(f"v_mov_b32 v19, {OOB}")
    if NW:
        assert tall
        A(f"s_add_u32 s76, s83, {(16-NW)*1024}"); A(f"s_add_u32 s79, s82, {(16-NW)*10240}"); A("s_cmp_eq_u32 s36, 1")
        A(f"s_cselect_b32 s76, s76, {L_DUMMY}"); A("s_cselect_b32 s77, 0x400, 0"); A(f"s_cselect_b32 s79, s79, {OOB}")
    A("s_sub_u32 s78, s31, 18"); A("s_lshl2_add_u32 s78, s78, s91"); A("s_mul_i32 s78, s78, 46")
    A("v_add_u32 v32, s78, v1"); A("v_mul_u32_u24 v33, 6554, v32"); A("v_lshrrev_b32 v33, 22, v33")
    A("v_mul_u32_u24 v34, 640, v33"); A("v_sub_u32 v34, v32, v34")
    A("s_cmp_ge_u32 s31, 18"); A("s_cselect_b32 s80, 46, 0"); A("v_cmp_gt_u32 s[60:61], s80, v1")
    A("v_cmp_gt_u32 vcc, 4, v33"); A("s_and_b64 s[60:61], s[60:61], vcc")
    A(f"s_mul_i32 s80, s30, {163840 if H8 else 655360}")
    assert TS or not H8
    if TS:
        a_, b2_, c_ = TS; NL = 10*a_ + 8*b2_ + 14*c_
        assert NL % 80 == 0 and NL <= 1280 and NB == 16
        A("s_cmp_ge_u32 s31, 10"); A(f"s_cselect_b32 s81, {b2_}, {a_}"); A(f"s_cselect_b32 s85, {(40*a_ - 40*b2_) & 0xffffffff}, 0")
        A("s_cmp_ge_u32 s31, 18"); A(f"s_cselect_b32 s81, {c_}, s81"); A(f"s_cselect_b32 s85, {(40*a_ + 32*b2_ - 72*c_) & 0xffffffff}, s85")
        A("s_lshl2_add_u32 s78, s31, s91"); A("s_mul_i32 s78, s78, s81"); A("s_add_u32 s78, s78, s85")
        A("v_add_u32 v56, s78, v1")
        if NL < 1280 or H8:
            mg = -(-(1 << 22) // NL); assert all((x * mg) >> 22 == x // NL for x in range(4 * NL))
            A(f"v_mul_u32_u24 v35, {mg}, v56"); A("v_lshrrev_b32 v35, 22, v35"); A(f"v_mul_u32_u24 v35, {(10240 if H8 else 1280) - NL}, v35"); A("v_add_u32 v56, v56, v35")
        A("v_lshl_add_u32 v56, v56, 7, s80"); A("v_cmp_gt_u32 vcc, s81, v1"); A("v_cndmask_b32 v56, v19, v56, vcc")
    elif tall:
        A("s_mul_i32 s80, s32, 163840"); A("s_lshl2_add_u32 s78, s33, s91"); A(f"s_mul_i32 s78, s78, {320*NB}"); A("s_add_u32 s80, s80, s78")
        if NB < 16: A(f"s_add_u32 s80, s80, {(16-NB)*10240}")
        A("v_lshl_add_u32 v56, v1, 7, s80"); A(f"v_cmp_gt_u32 vcc, {5*NB//2}, v1"); A("v_cndmask_b32 v56, v19, v56, vcc")
    else:
        A("v_lshl_add_u32 v56, v32, 7, s80"); A("v_cndmask_b32 v56, v19, v56, s[60:61]"); A("s_mov_b32 s79, 327680")
    A("v_lshl_add_u32 v36, v33, 3, s30"); A("v_cmp_gt_u32 vcc, 27, v36"); A("s_and_b64 vcc, vcc, s[60:61]")
    A("v_mul_u32_u24 v57, 3456, v34"); A("v_lshl_add_u32 v57, v36, 7, v57"); A("v_cndmask_b32 v57, v19, v57, vcc")
    if T2:
        A("v_mul_u32_u24 v252, 81920, v36"); A("v_lshl_add_u32 v252, v34, 7, v252"); A("v_cndmask_b32 v252, v19, v252, vcc")
    A("v_and_b32 v7, 1, v1"); A("v_lshlrev_b32 v7, 4, v7"); A("v_mov_b32 v32, 0xffff"); A("v_lshlrev_b32 v7, v7, v32")
    A("v_bfe_u32 v32, v1, 1, 2")
    for r in range(4):
        A(f"v_cmp_eq_u32 vcc, {r}, v32"); A(f"v_cndmask_b32 v{20+r}, 0, v7, vcc")
    A(f"v_lshlrev_b32 v10, 4, v9"); A(f"v_add_u32 v10, {L_Q}, v10")
    A("s_lshl_b32 s78, s91, 3"); A(f"s_add_u32 s78, s78, {L_ML}"); A("v_mov_b32 v11, s78")
    A(f"v_add_u32 v3, {L_RED}, v2"); A("s_lshl_b32 s78, s91, 9"); A("v_add_u32 v12, s78, v3")
    A(f"v_mov_b32 v254, {L_ML}")
    slots()
    A("v_lshrrev_b32 v58, 3, v1"); A("v_mul_u32_u24 v58, 1280, v58"); A("v_bfe_u32 v7, v1, 1, 2"); A("v_xor_b32 v7, v7, v8")
    A("v_lshl_add_u32 v58, v7, 5, v58"); A("v_and_b32 v59, 1, v1"); A("v_lshlrev_b32 v59, 4, v59"); A("v_add_u32 v58, v58, v59")
    A("v_and_b32 v7, 1, v7"); A("v_lshl_add_u32 v59, v7, 5, v59"); A("v_lshrrev_b32 v7, 2, v1"); A("v_mul_u32_u24 v7, 3456, v7"); A("v_add_u32 v59, v59, v7")
    pump(); stamp(2); pump()
    ld1 = [(176 + 4*sp, f"v224, {WS}, 0 offen offset:{1024*sp}") for sp in range(4)]
    for r in (14, 224, 225, 229, 246): A(f"v_mov_b32 v{r}, 0")
    if "nosetup" in exp: A("s_branch L_su9")
    A("s_cmp_eq_u32 s36, 1"); A("s_cbranch_scc0 L_su2")
    A("s_lshl_b32 s78, s30, 2"); A("s_add_u32 s78, s78, s91"); A("s_lshl_b32 s78, s78, 13"); A(f"s_add_u32 s78, s78, {WS_OP}")
    A("v_lshrrev_b32 v32, 5, v1"); A("v_and_b32 v33, 31, v1"); A("v_lshl_add_u32 v224, v32, 12, s78"); A("v_lshl_add_u32 v224, v33, 4, v224")
    A("s_mul_i32 s80, s91, 2176"); A(f"s_add_u32 s80, s80, {L_OF}")
    A("v_mul_u32_u24 v226, 272, v32"); A("v_lshl_add_u32 v226, v33, 3, v226"); A("v_add_u32 v226, s80, v226")
    A("v_and_b32 v7, 1, v1"); A("v_add_u32 v235, -1, v7"); A("v_and_b32 v235, 0xff, v235")
    A("v_and_b32 v7, 7, v1"); A("v_mul_u32_u24 v227, 272, v7"); A("v_and_b32 v7, 1, v8"); A("v_lshl_add_u32 v227, v7, 7, v227"); A("v_lshlrev_b32 v234, 9, v7")
    A("v_lshrrev_b32 v7, 5, v1"); A("v_lshl_add_u32 v227, v7, 4, v227"); A("v_add_u32 v227, s80, v227")
    A("v_and_b32 v7, 7, v1"); A("v_lshl_add_u32 v225, v7, 10, s78")
    traddr1280(230, 2048)
    A("v_add_u32 v230, s83, v230")
    for ct in range(1, 4): A(f"v_xor_b32 v{230+ct}, {32*ct}, v230")
    A("v_lshlrev_b32 v229, 3, v1"); A(f"v_add_u32 v228, {L_OB}, v229")
    A("v_lshl_add_u32 v234, v9, 3, v234"); A("s_lshl_b32 s78, s91, 10"); A(f"s_add_u32 s78, s78, {L_OB}"); A("v_add_u32 v234, s78, v234")
    A("s_lshl_b32 s80, s30, 14"); A("s_lshl_b32 s81, s37, 9"); A("s_add_u32 s84, s80, s81"); A("s_lshl_b32 s80, s91, 17")
    A("s_add_u32 s84, s84, s80"); A(f"s_add_u32 s84, s84, {WS_AP}"); A("s_add_u32 s85, s84, 8192")
    A("s_branch L_su9")
    A("L_su2:")
    A("s_cmp_eq_u32 s36, 2"); A("s_cbranch_scc0 L_su9")
    mlp5_setup()
    A(f"s_mul_i32 s84, s91, {160*3456}"); A("s_lshl_b32 s78, s37, 6"); A("s_add_u32 s84, s84, s78"); A("s_mul_i32 s85, s91, 10")
    A("v_mov_b32 v13, 0"); A("v_and_b32 v14, 31, v1"); A("v_lshlrev_b32 v247, 2, v14"); A(f"v_add_u32 v247, {L_PB + 256}, v247")
    A("s_lshl_b32 s78, s37, 5"); A("v_add_lshl_u32 v14, v14, s78, 1")
    A("global_load_short_d16_hi v13, v14, s[18:19]")
    traddr1280(16, 10240)
    for i in range(10):
        A(f"s_add_u32 s78, s85, {i}"); A("s_and_b32 s80, s78, 3"); A("s_lshl_b32 s80, s80, 5"); A(f"v_xor_b32 v{233+i}, s80, v16")
        A("s_lshr_b32 s78, s78, 2"); A("s_lshl_b32 s78, s78, 10"); A(f"v_add_u32 v{233+i}, s78, v{233+i}")
    for i in range(0, 32, 2): A(f"v_mov_b64 v[{192+i}:{193+i}], 0")
    A("v_and_b32 v7, 1, v1")
    A("v_lshlrev_b32 v243, 6, v7"); A("v_lshl_add_u32 v243, v8, 4, v243"); A("s_lshl_b32 s78, s91, 7"); A(f"s_add_u32 s78, s78, {L_H1}"); A("v_add_u32 v243, s78, v243")
    A(f"v_lshlrev_b32 v244, 2, v1"); A(f"v_add_u32 v244, {L_PB}, v244")
    A("v_lshrrev_b32 v7, 5, v1"); A("v_mul_u32_u24 v248, 48, v7"); A(f"v_add_u32 v248, {L_SB}, v248")
    A("v_lshlrev_b32 v245, 6, v7"); A("v_bfe_u32 v7, v1, 2, 2"); A("v_lshl_add_u32 v245, v7, 4, v245")
    A("v_bfe_u32 v7, v1, 4, 1"); A("v_lshl_add_u32 v245, v7, 3, v245"); A("v_and_b32 v7, 3, v1"); A("v_lshl_add_u32 v245, v7, 1, v245"); A("v_add_u32 v245, s78, v245")
    A("s_lshl_b32 s86, s37, 13"); A("s_and_b32 s78, s37, 1"); A("s_lshl_b32 s78, s78, 12"); A("s_sub_u32 s86, s86, s78")
    A("s_lshr_b32 s78, s91, 1"); A("s_lshl_b32 s78, s78, 13"); A("s_add_u32 s86, s86, s78")
    A("s_and_b32 s78, s91, 1"); A("s_mul_i32 s78, s78, 1280"); A("s_add_u32 s86, s86, s78"); A(f"s_add_u32 s86, s86, {WS_MP}")
    if CC: A("s_xor_b32 s86, s86, 0x2000")
    A("v_lshl_add_u32 v246, v8, 2, v9"); A("v_lshlrev_b32 v246, 4, v246")
    A(f"v_mov_b32 v24, {F(-2*0.7978845608028654*1.4426950408889634)}"); A(f"v_mov_b32 v25, {F(-2*0.7978845608028654*1.4426950408889634*0.044715)}")
    A(f"v_mov_b32 v26, {F(1+1e-5)}"); A(f"v_mov_b32 v27, {F(1e-10)}"); A(f"v_mov_b32 v250, {F(1/640)}"); A(f"v_mov_b32 v249, {L_CW}")
    A("L_su9:")
    while st["waited"] < pos[16 + KQ]:
        pump()
        if st["waited"] == pos[15]: stamp(3)
    stamp(4)
    Q = 60
    A(f"s_mov_b32 s90, {SPIN*8}")
    flush()
    if "noqw" in exp: A("s_branch L_qw2")
    A("L_qw:")
    A(f"ds_read_b128 v[{Q}:{Q+3}], v10")
    A("s_waitcnt lgkmcnt(0)")
    A(f"v_max3_u32 v7, v{Q}, v{Q+1}, v{Q+2}"); A(f"v_max_u32 v7, v7, v{Q+3}"); A("v_cmp_eq_u32 vcc, -1, v7")
    A("s_cbranch_vccz L_qw2")
    A("s_sleep 1")
    A("s_sub_u32 s90, s90, 1"); A("s_cbranch_scc0 L_qw")
    A("L_qw2:")
    L_mark = len(L)
    stamp(5)
    LIM = pos[31 - W] if QKP == "kv" else pos[30]
    P = 32
    for half in range(2):
        for r in range(4):
            for t in range(8*half, 8*half+8):
                A(f"v_dot2_f32_bf16 v{P+t}, v{K0+4*t+r}, v{Q+r}, {'0' if r == 0 else f'v{P+t}'}")
            if r & 1: pump(lim=LIM)
    R = 48
    for t in range(8): A(f"v_add_f32_dpp v{R+t}, v{P+t}, v{P+t} row_mirror row_mask:0xf bank_mask:0x3")
    for t in range(8): A(f"v_add_f32_dpp v{R+t}, v{P+t+8}, v{P+t+8} row_mirror row_mask:0xf bank_mask:0xc")
    for t in range(4): A(f"v_add_f32_dpp v{P+t}, v{R+t}, v{R+t} row_half_mirror row_mask:0xf bank_mask:0x5")
    for t in range(4): A(f"v_add_f32_dpp v{P+t}, v{R+t+4}, v{R+t+4} row_half_mirror row_mask:0xf bank_mask:0xa")
    pump(lim=LIM)
    for t in range(4): A(f"v_add_f32_dpp v{R+t}, v{P+t}, v{P+t} quad_perm:[2,3,0,1] row_mask:0xf bank_mask:0xf")
    A("s_mov_b32 vcc_lo, 0xcccccccc"); A("s_mov_b32 vcc_hi, 0xcccccccc")
    for t in range(2): A(f"v_cndmask_b32 v{P+t}, v{R+t}, v{R+t+2}, vcc")
    for t in range(2): A(f"v_add_f32_dpp v{R+t}, v{P+t}, v{P+t} quad_perm:[1,0,3,2] row_mask:0xf bank_mask:0xf")
    A("s_mov_b32 vcc_lo, 0xaaaaaaaa"); A("s_mov_b32 vcc_hi, 0xaaaaaaaa")
    S = 40
    A(f"v_cndmask_b32 v{S}, v{R}, v{R+1}, vcc")
    bf16r(S, S); A(f"v_mul_f32 v{S}, {F(128**-0.5)}, v{S}"); bf16r(S, S)
    A(f"v_mov_b32 v42, v{S}")
    pump(lim=LIM)
    row_allred("v_max_f32", 42); swap_allred("v_max_f32", 42, 44, 16); swap_allred("v_max_f32", 42, 44, 32)
    pump(lim=LIM)
    A(f"v_sub_f32 v43, v{S}, v42"); A(f"v_mul_f32 v43, {LOG2E:#x}, v43"); A("v_exp_f32 v43, v43")
    A("v_cvt_pk_bf16_f32 v45, v43, v43")
    row_allred("v_add_f32", 43); swap_allred("v_add_f32", 43, 44, 16); swap_allred("v_add_f32", 43, 44, 32)
    A("ds_write_b64 v11, v[42:43]")
    stamp(6)
    pump(lim=LIM)
    done = 0
    for t in range(16):
        for r in range(4): A(f"v_and_b32_dpp v{K0+4*t+r}, v45, v{20+r} row_newbcast:{t} row_mask:0xf bank_mask:0xf")
        if t >= 1 and pos[16 + done] <= st["waited"]:
            mfma(ACC, K0+4*done, V0+4*done, done == 0); done += 1
        if t in (4, 9): pump(lim=LIM)
    if "noqk" in exp:
        L[L_mark:] = [l for l in L[L_mark:] if not l.strip().startswith(("v_dot2", "v_add_f32_dpp", "v_and_b32_dpp", "v_max_f32_dpp", "v_permlane"))]
    stamp(7)
    for t in range(done, 16):
        while t and st["waited"] < pos[15 + t]: pump()
        wait_for(pos[16 + t]); mfma(ACC, K0+4*t, V0+4*t, t == 0)
        if t < 15: issue_to(pos[16 + t] + 1 + W)
    assert st["issued"] == len(seq)
    stamp(8)
    A("s_mov_b32 exec_hi, 0"); A("v_mov_b32 v61, 1"); A("v_mov_b32 v6, s56"); A("v_mov_b32 v7, s56")
    A(f"ds_write_b128 v12, v[{ACC}:{ACC+3}]")
    A("s_mov_b32 exec_lo, 1")
    A("ds_add_rtn_u32 v60, v254, v61 offset:68")
    A("s_mov_b32 exec_lo, -1")
    for k in range(4): A(f"ds_read_b128 v[{32+4*k}:{35+4*k}], v3 offset:{512*k}")
    A(f"s_mov_b32 s90, {SPIN*8}")
    keepp = list(pend); pend.clear()
    A("L_fw:")
    A("ds_read_b128 v[52:55], v254 offset:48"); A("ds_read_b128 v[48:51], v254 offset:32"); A("ds_read_b32 v62, v254 offset:64")
    pend.extend(keepp)
    A("s_waitcnt lgkmcnt(0)")
    A("v_readfirstlane_b32 s78, v60"); A("v_readfirstlane_b32 s80, v55"); A("v_readfirstlane_b32 s81, v62")
    for k in range(4):
        for hh in (0, 2):
            if k == 0: pk("mul", 28+hh, 32+hh, 48, mod="op_sel_hi:[1,0]")
            else: pk("fma", 28+hh, 32+4*k+hh, 48+2*k, 28+hh, mod="op_sel_hi:[1,0,1]")
    A("s_cmp_eq_u32 s80, -1"); A("s_cbranch_scc1 L_fw3")
    A("L_fw4:")
    A("s_cmp_eq_u32 s78, 2"); A("s_cbranch_scc0 L_fw2")
    A("v_cvt_pk_bf16_f32 v4, v28, v29"); A("v_cvt_pk_bf16_f32 v5, v30, v31")
    A("s_mov_b32 exec_lo, s81")
    A(f"buffer_store_dwordx4 v[4:7], v2, {WS}, s38 offen")
    A("s_not_b32 exec_lo, s81")
    A(f"buffer_store_dwordx4 v[4:7], v2, {WS}, s38 offen sc1")
    stamp(16)
    flush()
    A("L_fw2:")
    A("s_mov_b64 exec, -1")
    save = dict(st); NPRE = len(seq)
    if "notail" in exp: fin()
    A("s_cmp_eq_u32 s36, 2"); A("s_cbranch_scc1 L_mlp")
    A("s_cmp_eq_u32 s36, 0"); A("s_cbranch_scc1 L_idle")

    mlld = lambda: A(f"buffer_load_dwordx4 v[208:211], v225, {WS}, 0 offen offset:512 sc1")
    for n in range(NR + PRE, 16 - NW):
        didx[n] = len(seq); seq.append(dma_a(n))
    blk = lambda n: didx[n]
    trd = [0]
    need = lambda ks: max(blk(4*ks + b) for b in range(4))
    kord = sorted(range(4), key=need)
    def trs():
        while trd[0] < 4 and need(kord[trd[0]]) <= st["waited"]:
            ks = kord[trd[0]]
            for ct in range(4):
                for u in range(2): A(f"ds_read_b64_tr_b16 v[{64+16*ks+4*ct+2*u}:{65+16*ks+4*ct+2*u}], v{230+ct} offset:{(4*ks+u)*1024}")
            trd[0] += 1
    Wc[0] = WO or W
    issue_to(pos[31] + 1 + W)
    trs()
    while st["issued"] < len(seq):
        pump(); trs()
    stamp(9)
    if P1G:
        def mlm():
            A("s_mov_b64 exec, 0x00ff00ff"); mlld(); A("s_mov_b64 exec, -1")
        l1 = [(r, lambda r=r, a=a: A(ldtext(r, a))) for r, a in ld1] + [(208, mlm)]
        A("v_mov_b32 v210, s56")
        poll_first(l1); st["issued"] += 5
        while trd[0] < 4:
            wait_for(need(kord[trd[0]])); trs()
        stamp(10)
        poll("1", l1, lambda: None, None, chk=lambda d, r: A(f"v_cmp_ne_u32 {d}, s56, v{r+2}"),
             clr=lambda r: r == 208 or A(f"ds_write_b64 v226, v[{r}:{r+1}] offset:{136*(r-176)}"))
    else:
        def round1(sk):
            for i, (r, a) in enumerate(ld1):
                if sk:
                    A(f"s_cmp_eq_u64 s[{62+2*i}:{63+2*i}], 0"); A(f"s_cbranch_scc1 L_r1_{i}")
                A(ldtext(r, a))
                if sk: A(f"L_r1_{i}:")
            A("s_mov_b64 exec, s[60:61]")
            if sk: A("s_cbranch_execz L_r1_4")
            mlld()
            if sk: A("L_r1_4:")
            A("s_mov_b64 exec, -1")
        A("s_mov_b64 s[60:61], 0x00ff00ff")
        A("v_mov_b32 v210, s56"); A("v_mov_b32 v211, s56")
        if WBAR == 1: A("s_barrier")
        if WBAR < 2:
            round1(False); st["issued"] += 5
        while trd[0] < 4:
            wait_for(need(kord[trd[0]])); trs()
        if WBAR == 2:
            A("s_barrier"); round1(False)
        stamp(10)
        A(f"s_mov_b32 s90, {SPIN}")
        if diag: flush()
        A("L_p1:")
        A("s_waitcnt vmcnt(0)")
        A("ds_write2_b64 v226, v[176:177], v[180:181] offset0:0 offset1:68"); A("ds_write2_b64 v226, v[184:185], v[188:189] offset0:136 offset1:204")
        for i in range(4): A(f"v_cmp_ne_u32 s[{62+2*i}:{63+2*i}], s56, v{178+4*i}")
        A("v_cmp_ne_u32 s[60:61], s56, v210"); A("v_cmp_ne_u32 vcc, s56, v211")
        A("s_or_b64 s[70:71], s[62:63], s[64:65]"); A("s_or_b64 s[72:73], s[66:67], s[68:69]"); A("s_or_b64 s[70:71], s[70:71], s[72:73]")
        A("s_or_b64 s[60:61], s[60:61], vcc"); A("s_or_b64 vcc, s[60:61], s[70:71]")
        A("s_cbranch_scc0 L_pd1")
        A("s_waitcnt lgkmcnt(0)")
        round1(True)
        A("s_sub_u32 s90, s90, 1"); A("s_cbranch_scc0 L_p1")
        A("s_waitcnt vmcnt(0)")
        A("L_pd1:")
    if diag: A("v_writelane_b32 v255, s90, 54")
    for ks in range(4): A(f"ds_read_b128 v[{192+4*ks}:{195+4*ks}], v227 offset:{32*ks}")
    stamp(11)
    fac = ["v_max_f32_dpp v210, v208, v208 quad_perm:[1,0,3,2] row_mask:0xf bank_mask:0xf",
           "v_max_f32_dpp v210, v210, v210 quad_perm:[2,3,0,1] row_mask:0xf bank_mask:0xf",
           "v_sub_f32 v208, v208, v210\nv_mul_f32 v208, %#x, v208" % LOG2E, "v_exp_f32 v208, v208", "v_mul_f32 v209, v208, v209",
           "v_add_f32_dpp v209, v209, v209 quad_perm:[1,0,3,2] row_mask:0xf bank_mask:0xf",
           "v_add_f32_dpp v209, v209, v209 quad_perm:[2,3,0,1] row_mask:0xf bank_mask:0xf",
           "v_rcp_f32 v209, v209", "v_mul_f32 v208, v208, v209", ""]
    for gh in range(2):
        for pr in range(2):
            fac.append("\n".join(f"v_mov_b32_dpp v{216+2*pr+b}, v208 row_newbcast:{4*b + 2*gh + pr} row_mask:{1 << gh:#x} bank_mask:0xf" for b in range(2)))
    n = 0
    for f_ in fac[:4]: A(f_)
    del fac[:4]
    for ct in range(4):
        for ks in range(4):
            if ct == 0: A(f"s_waitcnt lgkmcnt({3-ks})")
            mfma(144+4*ct, 192+4*ks, 64+16*ks+4*ct, ks == 0)
            if n < len(fac) and fac[n]: A(fac[n])
            n += 1
    A("s_mov_b32 exec_hi, 0")
    for ct in range(4):
        pk("mul", 144+4*ct, 144+4*ct, 216); pk("fma", 144+4*ct, 146+4*ct, 218, 144+4*ct)
        if ct & 1: A(f"ds_write2_b64 v234, v[{140+4*ct}:{141+4*ct}], v[{144+4*ct}:{145+4*ct}] offset0:{16*(ct-1)} offset1:{16*ct}")
    A("s_mov_b64 exec, -1")
    A("s_waitcnt lgkmcnt(0)"); A("s_barrier")
    for k in range(4): A(f"ds_read2st64_b64 v[{160+4*k}:{163+4*k}], v228 offset0:{2*k} offset1:{2*k+1}")
    for k in range(4):
        A(f"s_waitcnt lgkmcnt({3-k})"); pk("add", 160+4*k, 160+4*k, 162+4*k)
        if k & 1: pk("add", 156+4*k, 156+4*k, 160+4*k)
    pk("add", 160, 160, 168)
    A("v_bfi_b32 v160, v235, s56, v160")
    A(f"buffer_store_dwordx2 v[160:161], v229, {WS}, s84 offen sc1")
    A(f"buffer_store_dwordx2 v[160:161], v229, {WS}, s85 offen sc1")
    stamp(12)
    if WB == "wo":
        A("s_cmp_eq_u32 s31, 0"); A("s_cbranch_scc0 L_nwb"); A("s_cmp_eq_u32 s3, 1"); A("s_cbranch_scc0 L_nwb")
        A("s_waitcnt vmcnt(0)")
        A("buffer_wbl2 sc1")
        A("L_nwb:")
    fin()

    A("L_fw3:")
    A("s_cmp_eq_u32 s78, 2"); A("s_cbranch_scc0 L_fw2")
    A("s_sub_u32 s90, s90, 1"); A("s_cbranch_scc0 L_fw")
    A("s_branch L_fw4")

    A("L_idle:")
    if IB: A("s_barrier")
    if T1 and not PT1: A(f"buffer_load_dword v6, v57, s[52:55], 0 offen {tnt}")
    if T2:
        A("s_mov_b32 s46, 2211840")
        A(f"buffer_load_dword v5, v252, s[44:47], 0 offen {tnt}")
    if probe2:
        A("s_cmp_eq_u32 s99, 0"); A("s_cbranch_scc1 L_q2z")
        A("L_q2y:"); A("s_sleep 2"); A("s_memrealtime s[62:63]"); A("s_waitcnt lgkmcnt(0)"); A("s_sub_u32 s62, s62, s99"); A("s_cmp_lt_i32 s62, 0"); A("s_cbranch_scc1 L_q2y")
        A("L_q2z:")
    if probe3 is not None:
        A("s_cmp_eq_u32 s31, 31"); A("s_cbranch_scc0 L_q3z"); A("s_cmp_eq_u32 s3, 1"); A("s_cbranch_scc0 L_q3z")
        A("v_readlane_b32 s60, v255, 0"); A("s_lshl_b32 s61, s30, 7"); A("s_add_u32 s61, s61, 0x3000"); A("v_mov_b32 v7, s60"); A("s_mov_b64 exec, 1")
        A(f"buffer_store_dword v7, v2, {WS}, s61 offen sc1"); A("s_mov_b64 exec, -1")
        A("s_cmp_eq_u32 s30, 7"); A("s_cbranch_scc0 L_q3z")
        for _ in range(4): A("s_sleep 127")
        for g in range(8): A(f"s_load_dword s{64+g}, s[40:41], {0x3000 + 128*g} glc")
        A("s_waitcnt lgkmcnt(0)")
        A("s_mov_b32 s72, s64"); A("s_mov_b32 s73, s64")
        for g in range(1, 8):
            A(f"s_min_u32 s72, s72, s{64+g}"); A(f"s_max_u32 s73, s73, s{64+g}")
        A(f"s_sub_u32 s73, s{73 if probe3 < 0 else 64 + probe3}, s72"); A("s_mul_i32 s73, s73, 20"); A("s_add_u32 s73, s73, s72"); A("s_add_u32 s73, s73, 4000")
        A("L_q3y:"); A("s_sleep 2"); A("s_memrealtime s[62:63]"); A("s_waitcnt lgkmcnt(0)"); A("s_sub_u32 s62, s62, s73"); A("s_cmp_lt_i32 s62, 0"); A("s_cbranch_scc1 L_q3y")
        A("L_q3z:")
    if not IB: A("s_barrier")
    if WB == "idle":
        A("s_cmp_eq_u32 s31, 31"); A("s_cbranch_scc0 L_nwb"); A("s_cmp_eq_u32 s3, 1"); A("s_cbranch_scc0 L_nwb")
        A("buffer_wbl2 sc1")
        A("L_nwb:")
    if WARM:
        nwv = (32 - WARM) * 4; per = 320 // nwv
        A(f"s_cmp_ge_u32 s31, {WARM}"); A("s_cbranch_scc0 L_widone")
        assert nwv in (8, 16)
        apbase(78)
        A(f"s_sub_u32 s81, s31, {WARM}"); A("s_lshl2_add_u32 s81, s81, s91")
        if nwv == 16:
            A("s_and_b32 s80, s81, 1"); A("s_mul_i32 s80, s80, 2560"); A("s_add_u32 s78, s78, s80"); A("s_lshr_b32 s81, s81, 1")
        A("s_lshl_b32 s81, s81, 14"); A("s_add_u32 s78, s78, s81")
        if CC is None:
            A(f"v_mov_b32 v7, {L_CW}"); A("ds_read_b32 v7, v7"); A("s_waitcnt lgkmcnt(0)"); A("v_readfirstlane_b32 s80, v7"); A("s_xor_b32 s78, s78, s80")
        A("v_lshlrev_b32 v7, 7, v1"); A(f"v_cmp_gt_u32 vcc, {per}, v1"); A("s_movk_i32 s90, 200")
        A("L_wi:")
        A("s_mov_b64 exec, vcc")
        A(f"buffer_load_dword v5, v7, {WS}, s78 offen sc1")
        A("s_waitcnt vmcnt(0)")
        if WSL: A(f"s_sleep {WSL}")
        A("v_cmp_eq_u32 vcc, -1, v5")
        A("s_cbranch_vccz L_widone")
        A("s_sub_u32 s90, s90, 1"); A("s_cbranch_scc0 L_wi")
        A("L_widone:")
    fin()

    A("L_mlp:")
    st.update(save); del seq[NPRE:]; Wc[0] = WM or W
    if MPRE is None:
        seq.extend(dma_a(n) for n in range(NR + PRE, 10))
        issue_to(pos[31] + 1 + W)
        while st["issued"] < len(seq): pump()
    stamp(23)
    if not W1W: A("s_barrier")
    if MPRE is not None:
        redo[0] = True
        A("s_mov_b32 s46, 2211840"); A(f"s_sub_u32 s82, s82, {128*(NR + PRE - MPRE) - (128 if MPRE == 0 else 0)}")
        assert NR + PRE <= 10
        for n in range(MPRE, 10): dma_a(n)()
    stamp(24)
    wgt = [1] * len(seq)
    for n in range(10):
        if W1W:
            while sum(wgt[st["waited"] + 1:]) + 2 > W1W: wait_for(st["waited"] + 1)
            seq.append(None); wgt.append(2); st["issued"] += 1
        A(f"s_add_u32 m0, s88, {n*1024}")
        if n: A(f"s_add_u32 s84, s84, {16*3456}")
        A(f"buffer_load_dwordx4 v59, s[52:55], s84 offen {w1nt} lds")
    stamp(9)
    W1F, W2F, PL, HO, H1O = 64, 96, 136, 168, 192
    flush()
    A("s_waitcnt vmcnt(10)"); A("s_barrier")
    if CC is None: A("ds_read_b32 v15, v249")
    for i in range(10):
        for u in range(2):
            r = W2F + 4*i + 2*u
            A(f"ds_read_b64_tr_b16 v[{r}:{r+1}], v{233+i} offset:{L_W2 + u*20480}")
    if CC is None:
        A("s_waitcnt lgkmcnt(15)")
        A("v_readfirstlane_b32 s78, v15"); A("v_xor_b32 v225, v15, v225"); A("s_xor_b32 s86, s86, s78")
    A("L_mlp5:")
    sofr = [None, 76, 77, 87, 88, 89, 57, 58]
    for p in range(1, 8): A(f"s_mov_b32 s{sofr[p]}, {p*16384}")
    ld2 = [(PL + 4*p, lambda p=p: A(ldtext(PL + 4*p, f"v225, {WS}, {f's{sofr[p]}' if p else '0'} offen"))) for p in range(8)]
    A("v_mov_b32 v18, 0xffffff00"); A("v_mov_b32 v19, 0xff")
    for r in range(16): A(f"v_mov_b32 v{HO+r}, 0x3f803f80")
    A("s_mov_b32 s50, 0x00030003"); A("s_mov_b32 s51, 0x00030003"); A("s_mov_b32 s48, 0x00070007"); A("s_mov_b32 s49, 0x00070007")
    A("v_lshlrev_b32 v184, 16, v252"); A("v_lshlrev_b32 v185, 16, v253"); A("v_and_b32 v186, 0xffff0000, v252"); A("v_and_b32 v187, 0xffff0000, v253")
    if EF:
        poll_first(ld2); A("s_waitcnt vmcnt(8)")
    else: A("s_waitcnt vmcnt(0)")
    A("s_barrier")
    stamp(10)
    if not EF: poll_first(ld2)
    stamp(20)
    for ks in range(4):
        for ct in range(2):
            for u in range(2):
                r = W1F + 8*ks + 4*ct + 2*u
                A(f"ds_read_b64_tr_b16 v[{r}:{r+1}], v{231+ct} offset:{(2*ks+u)*1024}")
    stamp(22)
    SM = 40
    def sum2():
        for i in range(0, 16, 2): pk("add", SM+i, PL+i, PL+16+i)
        sum4(SM)
    poll("2", ld2, sum2, 18)
    stamp(11)
    a, b_, c = SM, SM+4, SM+6
    def unpack():
        A(f"v_lshlrev_b32 v{a}, 16, v{b_}"); A(f"v_lshlrev_b32 v{a+1}, 16, v{b_+1}"); A(f"v_and_b32 v{a+2}, 0xffff0000, v{b_}"); A(f"v_and_b32 v{a+3}, 0xffff0000, v{b_+1}")
    A(f"v_cvt_pk_bf16_f32 v{b_}, v{a}, v{a+2}"); A(f"v_cvt_pk_bf16_f32 v{b_+1}, v{a+1}, v{a+3}"); unpack()
    pk("add", a, a, 184); pk("add", a+2, a+2, 186)
    A(f"v_cvt_pk_bf16_f32 v{b_}, v{a}, v{a+2}"); A(f"v_cvt_pk_bf16_f32 v{b_+1}, v{a+1}, v{a+3}")
    A(f"ds_write_b32 v226, v{b_}"); A(f"ds_write_b32 v226, v{b_+1} offset:{YBS}")
    A("s_mov_b64 exec, s[50:51]")
    for ks in range(4): A(f"ds_read_b128 v[{HO+4*ks}:{HO+3+4*ks}], v227 offset:{64*ks}")
    A("s_mov_b64 exec, -1")
    unpack()
    pk("mul", c+2, a, a); pk("add", c, a, a+2); pk("fma", c+2, a+2, a+2, c+2)
    A(f"v_permlane32_swap_b32 v{c}, v{c+2}"); A(f"v_permlane32_swap_b32 v{c+1}, v{c+3}"); pk("add", c, c, c+2)
    A(f"v_permlane16_swap_b32 v{c}, v{c+1}"); A(f"v_add_f32 v{c}, v{c}, v{c+1}")
    red = [f"v_add_f32_dpp v{c}, v{c}, v{c} {m} row_mask:0xf bank_mask:0xf" for m in ("row_mirror", "row_half_mirror", "quad_perm:[2,3,0,1]", "quad_perm:[1,0,3,2]")]
    for ks in range(4):
        A(f"s_waitcnt lgkmcnt({3-ks})")
        for ct in range(2): mfma(28+4*ct, W1F+8*ks+4*ct, HO+4*ks, ks == 0)
        A(red[ks])
    A(f"ds_write_b32 v230, v{c}")
    A("s_mov_b64 exec, s[48:49]")
    A("ds_write_b128 v228, v[28:31]"); A("ds_write_b128 v228, v[32:35] offset:64")
    A("s_mov_b64 exec, -1")
    A("s_waitcnt lgkmcnt(0)")
    stamp(26)
    A("s_barrier")
    stamp(12)
    A("s_cmp_eq_u32 s3, 0"); A("s_cbranch_scc1 L_final ; nf")
    pend_fin = list(pend)
    A("ds_read_b128 v[40:43], v248"); A("ds_read_b128 v[44:47], v248 offset:16"); A("ds_read_b64 v[48:49], v248 offset:32")
    A("ds_read2st64_b32 v[52:53], v247 offset0:0 offset1:2"); A("ds_read2st64_b32 v[54:55], v247 offset0:4 offset1:6"); A("ds_read_b32 v15, v247 offset:2048")
    A("ds_read2st64_b32 v[36:37], v244 offset0:0 offset1:2"); A("ds_read2st64_b32 v[38:39], v244 offset0:4 offset1:6"); A("ds_read_b32 v50, v244 offset:2048")
    A("s_waitcnt lgkmcnt(6)")
    pk("add", 40, 40, 42); pk("add", 44, 44, 46); pk("add", 40, 40, 48); pk("add", 40, 40, 44)
    pk("mul", 40, 40, 250, mod="op_sel_hi:[1,0]")
    A("v_fma_f32 v41, -v40, v40, v41"); A("v_max_f32 v41, 0, v41")
    A("v_fma_f32 v41, v41, v26, v27"); A("v_rsq_f32 v41, v41")
    A("s_waitcnt lgkmcnt(3)")
    pk("add", 52, 52, 54); A("v_add_f32 v15, v15, v52"); A("v_add_f32 v15, v15, v53")
    A("s_waitcnt lgkmcnt(0)")
    pk("add", 36, 36, 38); A("v_fma_f32 v50, -v40, v15, v50"); A("v_add_f32 v36, v36, v37"); A("v_add_f32 v36, v36, v50")
    A("v_mul_f32 v36, v36, v41")
    bf16r(36, 36); A("v_add_f32 v36, v36, v13"); bf16r(36, 36)
    A("v_mul_f32 v37, v36, v36"); A("v_fma_f32 v37, v37, v25, v24"); A("v_mul_f32 v37, v37, v36"); A("v_exp_f32 v37, v37")
    A("v_add_f32 v37, 1.0, v37"); A("v_rcp_f32 v37, v37"); A("v_mul_f32 v36, v36, v37")
    A("v_cvt_pk_bf16_f32 v36, v36, v36")
    A("ds_write_b16 v245, v36")
    for t in range(8):
        A(f"s_lshl_b64 exec, s[50:51], {2*t}")
        A(f"ds_read_b128 v[{H1O+4*t}:{H1O+3+4*t}], v243")
    A("s_mov_b64 exec, -1")
    for i in [0, 8, 1, 9, 2, 3, 4, 5, 6, 7]:
        t = i & 7
        if i < 8: A(f"s_waitcnt lgkmcnt({7-t})")
        mfma(28 + 4*(i >> 3), W2F+4*i, H1O+4*t, t == 0)
    A("v_bfi_b32 v32, v19, s56, v32")
    A("s_mov_b32 exec_lo, 0x000f000f"); A("s_mov_b32 exec_hi, 0x000f000f")
    A(f"buffer_store_dwordx4 v[32:35], v246, {WS}, s86 offen offset:1024 sc1")
    A("s_mov_b64 exec, -1")
    A("v_bfi_b32 v28, v19, s56, v28")
    A(f"buffer_store_dwordx4 v[28:31], v2, {WS}, s86 offen sc1")
    stamp(18)
    if h3 is not None:
        if h3 < 0: A("s_waitcnt vmcnt(0)")
        A("s_barrier")
    stamp(13)
    fin()

    A("L_final:")
    pend.extend(pend_fin)
    A("s_cmp_ge_u32 s33, 20"); A("s_cbranch_scc1 L_epoch")
    A("ds_read_u16_d16_hi v16, v15")
    srd(44, 24, 2560)
    def l3(n):
        def f():
            if n == 6: A("s_mov_b32 exec_hi, 0xffff")
            A(ldtext(96 + 4*n, f"v56, {WS}, {f's{80+n}' if n else '0'} offen"))
            if n == 6: A("s_mov_b32 exec_hi, -1")
        return f
    ld3 = [(96 + 4*n, l3(n)) for n in range(7)]
    A("v_and_b32 v120, s56, v19"); A("v_mov_b32 v121, 0"); A("v_mov_b64 v[122:123], 0")
    A("s_waitcnt lgkmcnt(0)")
    if h3 is not None:
        A("s_barrier")
        if h3 > 0: A(f"s_sleep {h3}")
    poll_first(ld3)
    def sum3():
        for k in range(3):
            for hh in (0, 2): pk("add", 64+4*k+hh, 96+8*k+hh, 100+8*k+hh)
        for hh in (0, 2):
            pk("add", 64+hh, 64+hh, 68+hh); pk("add", 72+hh, 72+hh, 120+hh)
        for hh in (0, 2): pk("add", 64+hh, 64+hh, 72+hh)
    poll("3", ld3, sum3, 18)
    stamp(14)
    A("v_permlane32_swap_b32 v64, v66"); A("v_permlane32_swap_b32 v65, v67"); pk("add", 64, 64, 66)
    A("v_permlane16_swap_b32 v64, v65"); A("v_add_f32 v64, v64, v65")
    A("v_add_f32_dpp v64, v64, v64 row_ror:8 row_mask:0xf bank_mask:0xf")
    bf16r(64, 64); A("v_add_f32 v64, v64, v17"); bf16r(64, 64); A("v_add_f32 v64, v64, v16")
    A("v_cvt_pk_bf16_f32 v64, v64, v64")
    A(f"buffer_store_short v64, v12, s[44:47], 0 offen {osc}")
    stamp(15)
    fin()
    A("L_epoch:")
    A("s_cmp_eq_u32 s37, 53"); A("s_cbranch_scc0 L_fend")
    A("v_mov_b32 v34, s56"); A("s_mov_b64 exec, 1")
    A(f"buffer_store_dword v34, v2, {WS}, 0 offen {osc}")
    A("L_fend:")
    if diag: fin()
    A("L_end:")
    A("s_endpgm")

    body = fix(L)
    out = [HDR.rstrip("\n"),
           "; One launch, 256 workgroups (one per CU); hand-offs between workgroups go through d_ws.",
           f"; @launch grid=(256,1,1) block=(320,1,1) lds={LDS_BYTES}",
           '.amdgcn_target "amdgcn-amd-amdhsa--gfx950"', ".text", f".globl {NAME}_kernel", ".p2align 8",
           f".type {NAME}_kernel,@function", f"{NAME}_kernel:"] + body + [
           '.section .rodata,"a"', ".p2align 6", f".amdhsa_kernel {NAME}_kernel",
           "  .amdhsa_next_free_vgpr 256", "  .amdhsa_next_free_sgpr 102", "  .amdhsa_accum_offset 256",
           "  .amdhsa_group_segment_fixed_size 0", "  .amdhsa_kernarg_size 104", "  .amdhsa_user_sgpr_count 2",
           "  .amdhsa_user_sgpr_kernarg_segment_ptr 1", "  .amdhsa_system_sgpr_workgroup_id_x 1",
           "  .amdhsa_float_denorm_mode_32 3",
           ".end_amdhsa_kernel"]
    return "\n".join(out) + "\n"

if __name__ == "__main__":
    import argparse
    ap = argparse.ArgumentParser(); ap.add_argument("-o", default=f"cdna_kernels/{NAME}.s"); ap.add_argument("--diag", action="store_true")
    ap.add_argument("--kw", default="")
    a = ap.parse_args()
    open(a.o, "w").write(gen(diag=a.diag, **eval("dict(%s)" % a.kw)))
```

```python
import sys, struct
from hz import fix
NAME = "sequential_preLN__sliding_block_cached__mixer_channel_mlp__decode"
HDR = open("cdna_kernels/%s.s.ref" % NAME).read().split("; Override launch")[0]
def F(x): return "0x%08x" % struct.unpack("<I", struct.pack("<f", x))[0]

WS_FLAGS = 1024; WS_VOTE = 2048; WS_PRB = 0x4000; WS_MP = 0x10000; WS_AP = 0x80000; WS_QP = 0x100000; WS_OP = 0x180000
WS_STAMP = 0x200000
OOB = 0xF0000000
L_WB = 23552
L_W2 = L_WB; L_W1 = L_WB + 40960
L_RED = L_WB + 81920
L_Q = L_RED + 2048
L_ML = L_Q + 256
L_SB = L_ML + 96
L_OB = L_SB + 96
L_OF = L_OB + 4096
L_YB = L_OF + 8704
YBS = 1344
L_PB = L_YB + 2 * YBS
L_CW = L_PB + 2560
L_H1 = L_CW + 64
L_DUMMY = L_H1 + 512
LDS_BYTES = L_DUMMY + 1024
SPIN = 2000000
LOG2E = 0x3FB8AA3B

def gen(diag=False, nt='nt', W=7, wnt='nt', prio=False, KQ=2, depth=0, PT0=12, T1=True, T2=False, tnt='', local=True, probe=None, h3=-1, exp=(), qdelay=None, PRE=None, QKP='kv', W0=2, NR=0, PR=17, RS=1.5, tall=True, tfree=False, NB=16, MB=True, EF=True, IB=True, WARM=0, WSL=0, CC=None, ROT=False, w1nt='nt', WO=16, RC=0, WBAR=0, P1G=True, XP=0, probe2=None, probe3=None, DUM=(), M0=True, SP3=False, h3x=0, NR16=True, T1D=0, FPRE=True, CLP=0, cfl='sc1', TIGHT=2, PFOUT=False, H8=True, MW=True, PF1=True, MPW=True, NW=5, PW=20, WS_=2.4, TS=(0,19,52), W1W=None, WK=None, KW=12, KS=1, MIX='iw', PERM='t0 s0 s1 w0 w1 t1 t2 t3', QL=True, UNR=2, MLS=False, OMS=False, GW=False, PFO=2, TRF=True, WB=None, osc='', MPRE=None, WM=None, FASTP=True, CHK2=(0,), PT1=None, only=None):
    L = []
    pend = []
    def A(s):
        for l in s.split("\n"):
            l = l.strip()
            if pend and l.startswith(("s_cbranch", "s_branch")) and not l.endswith("; nf"):
                A("s_waitcnt lgkmcnt(0)")
            L.append("    " + l if not l.endswith(":") else l)
            if pend and l.startswith("s_waitcnt") and "lgkmcnt(0)" in l:
                for r, i in pend: L.append(f"    v_writelane_b32 v255, s{r}, {i}")
                pend.clear()
    def C(text):
        for l in text.strip("\n").split("\n"): L.append("    ; " + l.strip())
    def stamp(i, clk=False):
        if diag and (only is None or i in only or i >= 59):
            if len(pend) >= 4: A("s_waitcnt lgkmcnt(0)")
            r = 92 + 2 * len(pend)
            A(f"{'s_memtime' if clk else 's_memrealtime'} s[{r}:{r+1}]"); pend.append((r, i))
    def flush():
        if pend: A("s_waitcnt lgkmcnt(0)")
    def bf16r(d, x):
        A(f"v_cvt_pk_bf16_f32 v{d}, v{x}, v{x}"); A(f"v_and_b32 v{d}, 0xffff0000, v{d}")
    def row_allred(op, v):
        for c in ("row_mirror", "row_half_mirror", "quad_perm:[2,3,0,1]", "quad_perm:[1,0,3,2]"):
            A(f"{op}_dpp v{v}, v{v}, v{v} {c} row_mask:0xf bank_mask:0xf")
    def swap_allred(op, v, t, which):
        A(f"v_mov_b32 v{t}, v{v}"); A(f"v_permlane{which}_swap_b32 v{v}, v{t}"); A(f"{op} v{v}, v{v}, v{t}")
    def srd(r, base, size):
        A(f"s_mov_b32 s{r}, s{base}"); A(f"s_mov_b32 s{r+1}, s{base+1}"); A(f"s_mov_b32 s{r+2}, {size}"); A(f"s_mov_b32 s{r+3}, 0x20000")
    def pk(op, d, a, b, c=None, mod=""):
        A(f"v_pk_{op}_f32 v[{d}:{d+1}], v[{a}:{a+1}], v[{b}:{b+1}]" + (f", v[{c}:{c+1}]" if c is not None else "") + (" " + mod if mod else ""))
    def mfma(d, a, b, first):
        A(f"v_mfma_f32_16x16x32_bf16 v[{d}:{d+3}], v[{a}:{a+3}], v[{b}:{b+3}], {'0' if first else f'v[{d}:{d+3}]'}")
    def sum4(b):
        for hh in (0, 2):
            pk("add", b+hh, b+hh, b+4+hh); pk("add", b+8+hh, b+8+hh, b+12+hh)
        for hh in (0, 2): pk("add", b+hh, b+hh, b+8+hh)
    def role_decode():
        A("s_sub_u32 s78, s31, 10"); A("s_lshr_b32 s80, s78, 1")
        if M0:
            A("s_mul_i32 s80, s80, 7"); A("s_add_u32 s80, s80, s30"); A("s_sub_u32 s80, s80, 1"); A("s_cmp_eq_u32 s30, 0"); A("s_cselect_b32 s80, 27, s80")
        else:
            A("s_lshl_b32 s80, s80, 3"); A("s_add_u32 s80, s80, s30")
        A("s_and_b32 s78, s78, 1"); A("s_lshl_b32 s37, s80, 1"); A("s_add_u32 s37, s37, s78")
        A("s_cmp_lt_u32 s80, 27"); A("s_cselect_b32 s36, 2, 0")
        A("s_cmp_lt_u32 s31, 10"); A("s_cselect_b32 s36, 1, s36"); A("s_cselect_b32 s37, s31, s37")
    WS = "s[40:43]"
    def ldtext(r, a, n=4):
        return f"buffer_load_dwordx{n} v[{r}:{r+n-1}], {a} sc1"
    def poll_init(loads):
        for r, a, n, chk in loads:
            for c in chk: A(f"v_mov_b32 v{r+c}, -1")
    def poll_first(loads):
        for r, ld in loads: ld()
    def poll(tag, loads, work, km, chk=None, clr=None):
        n = len(loads)
        M = lambda i: f"s[{60+2*i}:{61+2*i}]"
        chk = chk or (lambda d, r: A(f"v_cmp_ne_u32_sdwa {d}, v{r}, s56 src0_sel:BYTE_0 src1_sel:BYTE_0"))
        clr = clr or (lambda r: A(f"v_and_b32 v{r}, v{km}, v{r}"))
        A(f"s_mov_b32 s90, {SPIN}")
        flush()
        A(f"L_p{tag}:")
        A("s_waitcnt vmcnt(0)")
        for i, (r, ld) in enumerate(loads): chk(M(i), r)
        for i in range(0, n - 1, 2): A(f"s_or_b64 s[{92+i}:{93+i}], {M(i)}, {M(i+1)}")
        G = lambda k: f"s[{92+2*k}:{93+2*k}]" if 2*k + 1 < n else M(2*k)
        A(f"s_or_b64 vcc, {G(0)}, {G(1)}")
        if n > 6:
            A(f"s_or_b64 s[100:101], {G(2)}, {G(3)}"); A("s_or_b64 vcc, vcc, s[100:101]")
        else: A(f"s_or_b64 vcc, vcc, {G(2)}")
        A(f"s_cbranch_scc0 L_pa{tag}")
        for k in range(4):
            if 2*k + 1 < n:
                A(f"s_cmp_eq_u64 {G(k)}, 0"); A(f"s_cbranch_scc1 L_k{tag}_{2*k+1}")
            for i in range(2*k, min(n, 2*k + 2)):
                A(f"s_cmp_eq_u64 {M(i)}, 0"); A(f"s_cbranch_scc1 L_k{tag}_{i}")
                loads[i][1]()
                A(f"L_k{tag}_{i}:")
        A("s_mov_b32 s59, 0")
        for i in reversed(range(n)):
            A(f"s_cmp_lg_u64 {M(i)}, 0"); A("s_addc_u32 s59, s59, s59")
        A("s_sub_u32 s90, s90, 1"); A(f"s_cbranch_scc1 L_u{tag}_0")
        A("s_bcnt1_i32_b32 s78, s59"); A("s_cmp_eq_u32 s78, 1"); A(f"s_cbranch_scc0 L_p{tag}")
        for i in range(n - 1):
            A(f"s_bitcmp0_b32 s59, {i}"); A(f"s_cbranch_scc0 L_e{tag}_{i}")
        A("s_cmp_eq_u32 0, 1")
        for i in reversed(range(n)):
            r, ld = loads[i]
            A(f"L_e{tag}_{i}:")
            for k, (r2, _) in enumerate(loads):
                if k != i: clr(r2)
            A(f"s_branch L_u{tag}_{i}")
            A(f"L_t{tag}_{i}:")
            ld()
            A("s_sub_u32 s90, s90, 1")
            A(f"L_u{tag}_{i}:")
            A("s_waitcnt vmcnt(0)")
            chk("vcc", r)
            part = tag == "1" or tag == "3" and i == 6
            if not part: clr(r)
            A(f"s_cbranch_scc1 L_pw{tag}")
            A(f"s_cbranch_vccnz L_t{tag}_{i}")
            if part: clr(r)
            A(f"s_branch L_pw{tag}")
        A(f"L_pa{tag}:")
        for r, ld in loads: clr(r)
        A(f"L_pw{tag}:")
        work()
    def fin():
        if diag:
            A("s_mov_b64 exec, -1")
            stamp(59); stamp(61, True); A("s_waitcnt lgkmcnt(0)")
            A("s_getreg_b32 s92, hwreg(HW_REG_XCC_ID)"); A("v_writelane_b32 v255, s92, 62")
            A("s_cmp_eq_u32 s3, 0"); A("s_cselect_b32 s92, 3, 0"); A("s_add_u32 s92, s92, s36"); A("v_writelane_b32 v255, s92, 63")
            A("s_mul_i32 s78, s2, 5"); A("s_add_u32 s78, s78, s3"); A("s_lshl_b32 s78, s78, 8"); A(f"s_add_u32 s78, s78, {WS_STAMP}")
            A("v_lshlrev_b32 v7, 2, v1")
            A(f"buffer_store_dword v255, v7, {WS}, s78 offen")
            if probe is not None:
                fin.n = getattr(fin, "n", 0) + 1
                pi, pw, role = probe
                A("s_cmp_eq_u32 s3, 0"); A(f"s_cbranch_scc{1 if pw == 1 else 0} L_pe{fin.n}")
                if role is not None:
                    A(f"s_cmp_eq_u32 s36, {role}"); A(f"s_cbranch_scc0 L_pe{fin.n}")
                A("v_readlane_b32 s80, v255, 0")
                if pi == "xcc":
                    A("s_getreg_b32 s78, hwreg(HW_REG_XCC_ID, 0, 4)"); A("s_cmp_eq_u32 s78, s30"); A("s_cselect_b32 s78, 0, 400")
                elif pi == "vote":
                    A("v_readlane_b32 s78, v255, 57"); A("s_nop 4"); A("s_mul_i32 s78, s78, 10")
                else:
                    A(f"v_readlane_b32 s78, v255, {pi}"); A("s_nop 4"); A("s_cmp_eq_u32 s78, 0"); A(f"s_cbranch_scc1 L_pe{fin.n}")
                    A("s_sub_u32 s78, s78, s80")
                A("s_mul_i32 s78, s78, 10"); A("s_add_u32 s78, s78, s80"); A("s_add_u32 s78, s78, 2000")
                A(f"L_prw{fin.n}:"); A("s_sleep 2"); A("s_memrealtime s[92:93]"); A("s_waitcnt lgkmcnt(0)"); A("s_sub_u32 s92, s92, s78"); A("s_cmp_lt_i32 s92, 0"); A(f"s_cbranch_scc1 L_prw{fin.n}")
                A(f"L_pe{fin.n}:")
        A("s_endpgm")
    def traddr1280(d, blk):
        A("v_bfe_u32 v7, v1, 2, 3"); A(f"v_lshlrev_b32 v{d}, 7, v7"); A("v_lshrrev_b32 v7, 1, v7"); A(f"v_lshl_add_u32 v{d}, v7, 5, v{d}")
        A("v_lshrrev_b32 v7, 5, v1"); A(f"v_mul_u32_u24 v7, {blk}, v7"); A(f"v_add_u32 v{d}, v{d}, v7")
        A("v_and_b32 v7, 3, v1"); A(f"v_lshl_add_u32 v{d}, v7, 3, v{d}")

    K0, V0 = 64, 128
    ACC = 28
    XS, XO, WQ, AO = 228, 238, 64, 144

    L_X = 20480
    if probe2:
        slot, off, stride = probe2
        A("s_memrealtime s[60:61]"); A(f"s_load_dwordx2 s[4:5], s[0:1], {slot*8}"); A("v_readfirstlane_b32 s3, v0"); A("s_waitcnt lgkmcnt(0)")
        A("s_mov_b32 s99, 0")
        A("s_cmp_eq_u32 s2, 255"); A("s_cbranch_scc0 L_q2w"); A("s_cmp_eq_u32 s3, 64"); A("s_cbranch_scc0 L_q2w")
        A("s_sleep 100")
        A("s_memrealtime s[62:63]"); A("s_waitcnt lgkmcnt(0)")
        for i in range(16):
            A(f"s_mov_b32 s6, {off + i*stride}"); A("s_load_dword s7, s[4:5], s6"); A("s_waitcnt lgkmcnt(0)")
        A("s_memrealtime s[64:65]"); A("s_waitcnt lgkmcnt(0)")
        A("s_sub_u32 s99, s64, s62"); A("s_mul_i32 s99, s99, 10"); A("s_add_u32 s99, s99, s60"); A("s_add_u32 s99, s99, 4000")
        A("L_q2w:")
        A("s_add_u32 s60, s60, 1500")
        A("L_q2x:"); A("s_sleep 2"); A("s_memrealtime s[62:63]"); A("s_waitcnt lgkmcnt(0)"); A("s_sub_u32 s62, s62, s60"); A("s_cmp_lt_i32 s62, 0"); A("s_cbranch_scc1 L_q2x")
    if diag: A("s_memrealtime s[100:101]")
    if "late0" in exp:
        A("s_and_b32 s30, s2, 7"); A("s_cbranch_scc1 L_l0"); A("s_sleep 20"); A("L_l0:")
    C("""start: only the first 256 bytes of code run before further code lines arrive, so the first loads sit here.
 s30 group = wg&7, s31 idx = wg>>3, s32 head = 8*(idx>>3)+group, s33 j = idx&7, s34 batch = j>>2, s35 key split = j&3, s3 wave""")
    A("s_load_dwordx16 s[4:19], s[0:1], 0"); A("s_load_dwordx2 s[40:41], s[0:1], 96")
    A("s_lshr_b32 s31, s2, 3"); A("s_and_b32 s33, s31, 7")
    C("""one workgroup per group reads the kernel's code lines so that they are in L2 ahead of the data stream""")
    A("s_getpc_b64 s[52:53]"); A("L_pc:")
    A(f"s_cmp_eq_u32 {'s31, 17' if PF1 else 's33, 7'}"); A("s_cselect_b32 s54, L_end-L_pc, 0"); A("s_mov_b32 s55, 0x20000"); A("v_lshlrev_b32 v22, 7, v0")
    A("buffer_load_dword v4, v22, s[52:55], 0 offen")
    A("v_lshrrev_b32 v7, 6, v0"); A("v_and_b32 v1, 63, v0"); A("s_cmp_ge_u32 s31, 32"); A("v_readfirstlane_b32 s3, v7")
    A("s_cbranch_scc1 L_end ; nf")
    A("s_and_b32 s30, s2, 7"); A("s_lshr_b32 s78, s31, 3"); A("s_lshl3_add_u32 s32, s78, s30" if H8 else "s_lshl2_add_u32 s32, s30, s78")
    A("v_lshlrev_b32 v2, 4, v1"); A("v_lshrrev_b32 v8, 4, v1"); A("v_and_b32 v9, 15, v1")
    A("s_lshr_b32 s34, s33, 2"); A("s_and_b32 s35, s33, 3")
    A("s_cmp_eq_u32 s3, 0"); A("s_cbranch_scc0 L_s0 ; nf")
    C("""wave 0: x and rows 80j..80j+79 x 128 columns of wq go to LDS (load t holds rows t, 20+t, 40+t, 60+t)""")
    A("s_mul_i32 s78, s33, 20"); A("v_mad_u32_u24 v7, v8, 5, s78")
    A("v_lshlrev_b32 v12, 15, v7"); A("v_lshl_add_u32 v12, v9, 4, v12"); A("s_lshl_b32 s78, s32, 8"); A("v_add_u32 v12, s78, v12")
    A("s_movk_i32 s79, 0x2000"); A(f"s_movk_i32 m0, {L_X}")
    A("s_waitcnt lgkmcnt(0)")
    A("global_load_lds_dwordx4 v2, s[4:5]"); A("global_load_lds_dwordx4 v2, s[4:5] offset:1024"); A("global_load_lds_dwordx4 v2, s[4:5] offset:1536")
    A("s_mov_b32 m0, 0")
    A("s_nop 0")
    A("L_wq:")
    for _ in range(UNR):
        A(f"global_load_lds_dwordx4 v12, s[10:11] {nt}")
        A("s_addk_i32 m0, 0x400"); A("v_add_u32 v12, s79, v12")
    A(f"s_cmpk_lt_u32 m0, {L_X}"); A("s_cbranch_scc1 L_wq ; nf")
    A("s_branch L_aux ; nf")
    C("""waves 1..4: 64 keys each; address bits 10..17 of the 1024-key window = t0 s0 s1 w0 w1 t1 t2 t3 (tile, split, wave)""")
    A("L_s0:")
    if PERM:
        pb = {n: 10 + i for i, n in enumerate(PERM.split())}
        assert pb["w1"] == pb["w0"] + 1
        A("s_lshl_b32 s78, s34, 5"); A("s_add_u32 s78, s78, s32"); A("s_lshl_b32 s78, s78, 20"); A(f"s_lshl_b32 s80, s3, {pb['w0']}"); A("s_add_u32 s78, s78, s80")
        if pb["s1"] == pb["s0"] + 1:
            A(f"s_lshl_b32 s80, s35, {pb['s0']}"); A("s_add_u32 s78, s78, s80")
        else:
            A("s_and_b32 s80, s35, 1"); A(f"s_lshl_b32 s80, s80, {pb['s0']}"); A("s_add_u32 s78, s78, s80")
            A("s_lshr_b32 s80, s35, 1"); A(f"s_lshl_b32 s80, s80, {pb['s1']}"); A("s_add_u32 s78, s78, s80")
        A(f"s_add_u32 s78, s78, {3072*256 + 4096 - (1 << pb['w0'])}")
        A("v_add_u32 v17, s78, v2")
    else:
        A("s_lshl_b32 s78, s34, 5"); A("s_add_u32 s78, s78, s32"); A("s_lshl_b32 s78, s78, 6"); A("s_lshl2_add_u32 s80, s35, s3"); A("s_add_u32 s78, s78, s80")
        A("s_add_u32 s78, s78, 47"); A("s_lshl_b32 s78, s78, 14"); A("s_addk_i32 s78, 0x1000")
        if 'w' in MIX:
            A("s_and_b32 s80, s3, 1"); A("s_lshl_b32 s80, s80, 13"); A("s_add_u32 s78, s78, s80")
        A("v_add_u32 v17, s78, v2"); A("v_xor_b32 v18, 0x2000, v17")
    A("L_s1:")
    def common2():
        A("s_load_dwordx8 s[20:27], s[0:1], 64")
        if diag:
            A("v_mov_b32 v255, 0"); pend.append((100, 0)); stamp(60, True)
        role_decode()
        A("s_mov_b32 s42, 0x10000000"); A("s_mov_b32 s43, 0x20000")
    cur18 = [None]
    def ldKV(base, ptr, t):
        if PERM:
            off = sum(((t >> k) & 1) << pb[f"t{k}"] for k in range(4))
            def f():
                hi = off & ~8191
                if hi and cur18[0] != hi:
                    A(f"v_add_u32 v18, {hi}, v17"); cur18[0] = hi
                A(f"global_load_dwordx4 v[{base+4*t}:{base+4*t+3}], v{18 if hi else 17}, {ptr} offset:{(off & 8191) - 4096} {nt}")
            return f
        hi, lo = (t & 1, t >> 1) if 'i' in MIX else (t // 8, t % 8)
        return lambda: A(f"global_load_dwordx4 v[{base+4*t}:{base+4*t+3}], v{17 + hi}, {ptr} offset:{lo*1024-4096} {nt}")
    redo = [False]
    def dma_a(n):
        def f():
            if n == MPRE and not redo[0]:
                A("s_cmp_eq_u32 s36, 2"); A("s_cselect_b32 s46, 0, s46")
            if n == 10:
                A("s_cmp_eq_u32 s36, 2"); A("s_cselect_b32 s46, 0, s46"); A(f"s_cselect_b32 s78, {40960 - 10240}, 0"); A("s_add_u32 s83, s83, s78")
            A(f"s_add_u32 m0, s83, {n*1024}")
            if n: A("s_add_u32 s82, s82, s87")
            A(f"buffer_load_dwordx4 v58, s[44:47], s82 offen {wnt} lds")
        return f
    kv = [ldKV(K0, "s[6:7]", t) for t in range(16)] + [ldKV(V0, "s[8:9]", t) for t in range(16)]
    def rider():
        A("s_mov_b32 m0, s76"); A("s_add_u32 s76, s76, s77")
        A(f"buffer_load_dwordx4 v58, s[44:47], s79 offen {wnt} lds"); A("s_addk_i32 s79, 10240")
    seq = []; pos = []; free = set(); nr = 0; nw_ = 0; didx = {}
    for i, f in enumerate(kv):
        if PT0 == i:
            if tfree or not tall: free.add(len(seq))
            seq.append(lambda: A(f"buffer_load_dword v4, v56, s[48:51], 0 offen {tnt}"))
        if PT0 + 3 == i and not tall:
            free.add(len(seq)); seq.append(lambda: A(f"buffer_load_dword v5, v56, s[48:51], s79 offen {tnt}"))
        while nr < NR and PR + nr * RS <= i:
            free.add(len(seq)); didx[nr] = len(seq); seq.append(dma_a(nr)); nr += 1
        while nw_ < NW and PW + nw_ * WS_ <= i:
            free.add(len(seq)); didx[16 - NW + nw_] = len(seq); seq.append(rider); nw_ += 1
        pos.append(len(seq)); seq.append(f)
    assert nr == NR and nw_ == NW
    if PT1:
        free.add(len(seq)); seq.append(lambda: A(f"buffer_load_dword v6, v57, s[52:55], 0 offen {tnt}"))
    PRE = min(W - 1 + XP, 16 - NR - NW)
    for n in range(NR, NR + PRE):
        k = NR + PRE - 1 - n
        if k < 2 * (PRE - (W - 1)) and k % 2 == 1: free.add(len(seq))
        didx[n] = len(seq); seq.append(dma_a(n))
    st = dict(issued=0, waited=-1)
    Wc = [WK or W]
    def issue_to(n):
        inflight = lambda: sum(1 for i in range(n - W, st["issued"]) if i not in free)
        while st["issued"] < len(seq) and (st["issued"] < n - W + Wc[0] or inflight() < Wc[0] and n >= W):
            seq[st["issued"]](); st["issued"] += 1
    def wait_for(k):
        if k > st["waited"]:
            A(f"s_waitcnt vmcnt({st['issued'] - k - 1})"); st["waited"] = k
    def pump(lim=None):
        k = st["waited"] + 1
        while k in free: k += 1
        if lim is not None and k > lim: return
        if WK and KW <= k <= pos[31] and Wc[0] != W and (k - KW) % KS == 0: Wc[0] += 1 if Wc[0] < W else -1
        wait_for(k)
        if k in DUM:
            A("s_cmp_eq_u32 s30, 0"); A(f"s_cbranch_scc1 L_du{k} ; nf")
            A("buffer_load_dword v5, v19, s[48:51], 0 offen")
            A(f"L_du{k}:")
        issue_to(k + 1 + W)
    A("s_waitcnt lgkmcnt(0)")
    assert W <= 8
    for _ in range(W0):
        seq[st["issued"]](); st["issued"] += 1
    A("s_cmp_eq_u32 s3, 2"); A("s_cbranch_scc0 L_s4 ; nf")
    A("v_mov_b64 v[24:25], -1"); A("v_mov_b64 v[26:27], -1")
    A(f"v_add_u32 v13, {L_Q}, v2"); A("s_mov_b64 exec, 0x3fffff")
    A("ds_write_b128 v13, v[24:27]")
    A("s_mov_b64 exec, -1"); A("s_waitcnt lgkmcnt(0)")
    A("L_s4:")
    A("s_load_dword s56, s[40:41], 0")
    common2()
    def slots():
        A("s_lshl_b32 s39, s30, 5"); A("s_add_u32 s39, s39, s31")
        A("s_lshl_b32 s38, s39, 10"); A(f"s_add_u32 s38, s38, {WS_OP}")
    keep = list(pend); pend.clear()
    A("s_barrier")
    issue_to(W)
    A("s_branch L_stream ; nf")

    C("""================= wave 0: LayerNorm(x), q partial sums, q exchange, softmax statistics =================""")
    A("L_aux:")
    A("s_barrier")
    if prio: A("s_setprio 3")
    A("v_bfe_u32 v11, v1, 3, 1"); A("v_mul_u32_u24 v11, 1280, v11"); A("v_lshl_add_u32 v11, v7, 3, v11")
    common2()
    stamp(1)
    A("v_lshrrev_b32 v40, 5, v1"); A("v_mul_u32_u24 v10, 1280, v40"); A("v_and_b32 v41, 31, v1"); A("v_mad_u32_u24 v10, v41, 40, v10")
    slots()
    C("""byte selectors that put one bf16 into element lane&7 of an otherwise zero MFMA operand row""")
    A("v_and_b32 v7, 1, v1"); A("v_cmp_eq_u32 vcc, 1, v7"); A("v_bfe_u32 v7, v1, 1, 2")
    A("v_mov_b32 v28, 0x0c0c0100"); A("v_mov_b32 v29, 0x01000c0c"); A("v_cndmask_b32 v28, v28, v29, vcc")
    A("v_mov_b32 v29, 0x0c0c0302"); A("v_mov_b32 v30, 0x03020c0c"); A("v_cndmask_b32 v29, v29, v30, vcc")
    A("v_mov_b32 v30, 0x0c0c0c0c")
    for r in range(4):
        A(f"v_cmp_eq_u32 vcc, {r}, v7"); A(f"v_cndmask_b32 v{14+r}, v30, v28, vcc"); A(f"v_cndmask_b32 v{18+r}, v30, v29, vcc")
    A(f"v_mov_b32 v13, {L_ML}"); A(f"v_mov_b32 v23, {OOB}")
    A("s_waitcnt vmcnt(20)")
    for base, a in ((XS, 10), (XO, 11)):
        A(f"ds_read_b64 v[{base}:{base+1}], v{a} offset:{L_X}"); A(f"ds_read_b64 v[{base+2}:{base+3}], v{a} offset:{L_X+8}")
        A(f"ds_read_b64 v[{base+4}:{base+5}], v{a} offset:{L_X+16}"); A(f"ds_read_b64 v[{base+6}:{base+7}], v{a} offset:{L_X+24}")
        A(f"ds_read_b64 v[{base+8}:{base+9}], v{a} offset:{L_X+32}")
    stamp(2)
    A("s_waitcnt lgkmcnt(0)")
    A("s_load_dword s56, s[40:41], 0")
    if CC is None:
        A("s_sub_u32 s78, s31, 24"); A("s_lshl3_add_u32 s47, s30, s78"); A("s_and_b32 s47, s47, 63")
        A("s_lshl_b32 s78, s47, 7"); A("s_and_b32 s46, s31, 1"); A("s_lshl_b32 s80, s46, 13"); A("s_add_u32 s44, s78, s80"); A(f"s_add_u32 s44, s44, {WS_PRB}")
        A("s_xor_b32 s45, s44, 0x2000")
        A("s_cmp_ge_u32 s31, 24"); A("s_cbranch_scc0 L_v1 ; nf")
        A("s_load_dword s48, s[40:41], s44 glc"); A("s_load_dword s49, s[40:41], s45 glc")
        A("L_v1:")
    C("""LayerNorm(x): lanes 0-31 row 0, lanes 32-63 row 1, two passes, rounded to bf16 where the reference rounds""")
    X, mean, tmp = 192, 52, 56
    for i in range(10):
        A(f"v_lshlrev_b32 v{X+2*i}, 16, v{XS+i}"); A(f"v_and_b32 v{X+2*i+1}, 0xffff0000, v{XS+i}")
    pk("add", tmp, X, X+2); pk("add", tmp+2, X+4, X+6)
    for i in range(4, 10): pk("add", tmp+2*(i&1), tmp+2*(i&1), X+2*i)
    pk("add", tmp, tmp, tmp+2); A(f"v_add_f32 v{mean}, v{tmp}, v{tmp+1}")
    row_allred("v_add_f32", mean); swap_allred("v_add_f32", mean, tmp, 16)
    A(f"v_mul_f32 v{mean}, {F(1/640)}, v{mean}")
    for i in range(10): pk("add", X+2*i, X+2*i, mean, mod="op_sel_hi:[1,0] neg_lo:[0,1] neg_hi:[0,1]")
    for i in range(10):
        t = tmp + 2*(i&1)
        if i < 2: pk("mul", t, X+2*i, X+2*i)
        else: pk("fma", t, X+2*i, X+2*i, t)
    pk("add", tmp, tmp, tmp+2)
    va = mean + 2
    A(f"v_add_f32 v{va}, v{tmp}, v{tmp+1}")
    row_allred("v_add_f32", va); swap_allred("v_add_f32", va, tmp, 16)
    A(f"v_mul_f32 v{va}, {F(1/640)}, v{va}")
    bf16r(mean, mean); bf16r(va, va)
    A(f"v_add_f32 v{va}, {F(1e-5)}, v{va}"); bf16r(va, va)
    A(f"v_sqrt_f32 v{va}, v{va}"); bf16r(va, va)
    A(f"v_rcp_f32 v{va}, v{va}")
    A("v_mov_b32 v53, v52"); A("v_mov_b32 v55, v54")
    for i in range(10):
        A(f"v_lshlrev_b32 v{X+2*i}, 16, v{XO+i}"); A(f"v_and_b32 v{X+2*i+1}, 0xffff0000, v{XO+i}")
    A("v_permlane32_swap_b32 v52, v53"); A("v_permlane32_swap_b32 v54, v55")
    A("s_mov_b32 vcc_lo, 0xff00ff00"); A("s_mov_b32 vcc_hi, 0xff00ff00")
    A("v_cndmask_b32 v52, v52, v53, vcc"); A("v_cndmask_b32 v54, v54, v55, vcc")
    for i in range(10): pk("add", X+2*i, X+2*i, mean, mod="op_sel_hi:[1,0] neg_lo:[0,1] neg_hi:[0,1]")
    for i in range(10): A(f"v_cvt_pk_bf16_f32 v{XO+i}, v{X+2*i}, v{X+2*i+1}")
    for i in range(10):
        A(f"v_lshlrev_b32 v{X+2*i}, 16, v{XO+i}"); A(f"v_and_b32 v{X+2*i+1}, 0xffff0000, v{XO+i}")
    for i in range(10): pk("mul", X+2*i, X+2*i, va, mod="op_sel_hi:[1,0]")
    for i in range(10): A(f"v_cvt_pk_bf16_f32 v{XO+i}, v{X+2*i}, v{X+2*i+1}")
    stamp(3)
    C("""q[b][8i+e] partial = sum over rows xn[b][row] * wq[row][8i+e]: A row (b,e) holds xn in element e, B = 4 rows x 128 columns as loaded""")
    for t in range(22):
        if t < 20:
            A(f"s_waitcnt vmcnt({19-t})"); A(f"ds_read_b128 v[{WQ+4*t}:{WQ+4*t+3}], v2 offset:{1024*t}")
            for r in range(4): A(f"v_perm_b32 v{AO+4*t+r}, v{XO+t//2}, v{XO+t//2}, v{14+4*(t&1)+r}")
        if t > 1:
            A(f"s_waitcnt lgkmcnt({min(2, 21-t)})"); mfma(ACC, AO+4*(t-2), WQ+4*(t-2), t == 2)
    C("""s56 = this launch's tag = epoch word of d_ws + 0x01010101; every hand-off carries it. record: (sum, sum, tag, tag ^ XCC id)""")
    A("s_add_u32 s56, s56, 0x01010101")
    A("s_lshl_b32 s39, s39, 11"); A(f"s_add_u32 s39, s39, {WS_QP}")
    A("v_mov_b32 v34, s56"); A("v_mov_b32 v35, s56"); A("v_mov_b32 v38, s56"); A("v_mov_b32 v39, s56")
    A("v_mov_b64 v[32:33], v[28:29]"); A("v_mov_b64 v[36:37], v[30:31]")
    def qstore(fl):
        A(f"buffer_store_dwordx4 v[32:35], v2, {WS}, s39 offen {fl}")
        A(f"buffer_store_dwordx4 v[36:39], v2, {WS}, s39 offen offset:1024 {fl}")
    if QL:
        A("s_getreg_b32 s57, hwreg(HW_REG_XCC_ID, 0, 4)"); A("s_xor_b32 s57, s57, s56"); A("v_mov_b32 v35, s57"); A("v_mov_b32 v39, s57")
        qstore("")
    else: qstore("sc1")
    stamp(4)
    def recl():
        A("s_not_b32 s78, s56")
        for r in range(4): A(f"v_mov_b32 v{24+r}, s78")
        A("s_mov_b32 exec_hi, 0xff")
        A(f"buffer_store_dwordx4 v[24:27], v2, {WS}, s38 offen")
        A("s_mov_b32 exec_hi, -1")
    if RC == 1: recl()
    A("s_andn2_b32 s78, s39, 0x3fff"); A("s_lshl_b32 s80, s34, 9"); A("s_add_u32 s78, s78, s80")
    A("v_lshlrev_b32 v42, 10, v40"); A("v_lshl_add_u32 v42, v41, 4, v42"); A("v_add_u32 v42, s78, v42")
    for k in range(1, 4): A(f"s_movk_i32 s{80+k}, {4096*k}")
    A("v_lshlrev_b32 v43, 4, v9"); A("v_and_b32 v7, 1, v8"); A("v_lshl_add_u32 v43, v7, 3, v43"); A("v_lshl_add_u32 v43, v40, 2, v43"); A(f"v_add_u32 v43, {L_Q}, v43")
    assert QL
    A("s_lshl_b32 s77, s30, 16"); A(f"s_add_u32 s77, s77, {WS_QP}"); A("v_lshlrev_b32 v47, 11, v1")
    C("""workgroups 24..31 time one line in each 8 KB block of a pair and vote which block is on which side of the package;
 the majority only places the hand-off buffers (speed), every reader and writer uses the same complete vote""")
    if CC is None:
        flush()
        A("s_cmp_ge_u32 s31, 24"); A("s_cbranch_scc0 L_v2")
        A("s_memtime s[60:61]"); A("s_waitcnt lgkmcnt(0)")
        A("s_load_dword s48, s[40:41], s44 glc"); A("s_waitcnt lgkmcnt(0)")
        A("s_memtime s[62:63]"); A("s_waitcnt lgkmcnt(0)")
        A("s_load_dword s49, s[40:41], s45 glc"); A("s_waitcnt lgkmcnt(0)")
        A("s_memtime s[64:65]"); A("s_waitcnt lgkmcnt(0)")
        A("s_sub_u32 s60, s62, s60"); A("s_sub_u32 s62, s64, s62"); A("s_cmp_gt_u32 s60, s62"); A("s_addc_u32 s46, s46, 0")
        A("s_getreg_b32 s78, hwreg(HW_REG_XCC_ID, 2, 1)"); A("s_xor_b32 s46, s46, s78"); A("s_and_b32 s46, s46, 1"); A("s_xor_b32 s46, s46, s56")
        A("v_mov_b32 v44, s46"); A("s_and_b32 s47, s47, 7"); A("s_lshl_b32 s78, s30, 5"); A("s_add_u32 s47, s47, s78"); A("s_lshl_b32 s47, s47, 2"); A("s_mov_b64 exec, 1")
        if qdelay is None: A("s_waitcnt vmcnt(0)")
        A(f"buffer_store_dword v44, v2, {WS}, s47 offen offset:{WS_VOTE} sc1")
        A("s_mov_b64 exec, -1")
        A("s_branch L_v3")
        A("L_v2:")
    if qdelay is None: A("s_waitcnt vmcnt(0)")
    elif qdelay: A(f"s_sleep {qdelay}")
    A("L_v3:")
    stamp(5)
    A(f"s_mov_b32 s90, {SPIN}")
    flush()
    if QL: A("s_mov_b32 s58, 0")
    C("""gather the eight partial sums of this head; a missing or foreign-XCD record makes this one be written through as well""")
    A("L_qpoll:")
    if "halfq" in exp: A("s_mov_b32 exec_hi, 0")
    if "noqld" in exp: A("s_mov_b64 exec, 1")
    for jj in range(8):
        A(f"buffer_load_dwordx4 v[{64+4*jj}:{67+4*jj}], v42, {WS}, {f's{80+jj//2}' if jj//2 else '0'} offen offset:{2048*(jj&1)} sc1")
    A("s_waitcnt vmcnt(0)")
    if QL:
        A("v_xor_b32 v7, s56, v66"); A("v_xor_b32 v6, s57, v67")
        for i in range(1, 8):
            A(f"v_bitop3_b32 v7, v7, v{66 + 4*i}, s56 bitop3:0xf6"); A(f"v_bitop3_b32 v6, v6, v{67 + 4*i}, s57 bitop3:0xf6")
        A("v_or_b32 v5, v6, v7"); A("v_cmp_ne_u32 vcc, 0, v5")
        A("s_cbranch_vccz L_qok")
        A("s_cmp_eq_u32 s58, 0"); A("s_cbranch_scc0 L_q2")
        qstore("sc1"); A("s_mov_b32 s58, 1")
        A("L_q2:")
        A("v_lshrrev_b32 v6, 4, v6"); A("v_or_b32 v5, v6, v7"); A("v_cmp_ne_u32 vcc, 0, v5")
    else:
        A("v_xor_b32 v7, s56, v66")
        for i in range(1, 16): A(f"v_bitop3_b32 v7, v7, v{66 + 4*(i//2) + (i&1)}, s56 bitop3:0xf6")
        A("v_cmp_ne_u32 vcc, 0, v7")
    A("s_cbranch_vccz L_qok")
    A("s_sub_u32 s90, s90, 1"); A("s_cbranch_scc0 L_qpoll")
    A("L_qok:")
    if "halfq" in exp or "noqld" in exp: A("s_mov_b64 exec, -1")
    if QL: A("v_mov_b32 v39, s56")
    if diag: A("v_writelane_b32 v255, s90, 56")
    A("v_mov_b32 v48, s57"); A("s_mov_b64 exec, 0x3ff")
    A(f"buffer_load_dword v48, v47, {WS}, s77 offen offset:12 sc1")
    if PFO == 1:
        A("s_mov_b64 exec, 31"); A(f"buffer_load_dword v5, v22, {WS}, s38 offen sc1")
    A("s_mov_b64 exec, -1")
    if PFO == 2:
        A("s_sub_u32 s78, s31, 10"); A("s_cmp_lt_u32 s78, 8"); A("s_cbranch_scc0 L_pfo")
        A("s_lshl_b32 s78, s78, 12"); A("s_lshl_b32 s80, s30, 15"); A("s_add_u32 s78, s78, s80"); A(f"s_add_u32 s78, s78, {WS_OP}")
        A("s_mov_b64 exec, 0x1f1f1f1f"); A(f"buffer_load_dword v5, v22, {WS}, s78 offen sc1"); A("s_mov_b64 exec, -1")
        A("L_pfo:")
    if RC == 2: recl()
    for i in range(4): pk("add", 64+8*i, 64+8*i, 68+8*i)
    pk("add", 64, 64, 72); pk("add", 80, 80, 88); pk("add", 64, 64, 80)
    A("v_cvt_pk_bf16_f32 v64, v64, v65")
    A("ds_write_b32 v43, v64")
    stamp(6)
    def apbase(d):
        A(f"s_and_b32 s{d}, s30, 3"); A(f"s_lshl_b32 s{d}, s{d}, 4"); A("s_lshr_b32 s80, s30, 2"); A(f"s_add_u32 s{d}, s{d}, s80"); A(f"s_lshl_b32 s{d}, s{d}, 13")
        A(f"s_add_u32 s{d}, s{d}, {WS_AP}")
        if CC: A(f"s_xor_b32 s{d}, s{d}, 0x2000")
    def mlp5_setup():
        A("v_lshlrev_b32 v224, 2, v0")
        A("global_load_dword v252, v224, s[4:5]"); A("global_load_dword v253, v224, s[4:5] offset:1280")
        apbase(78); A("v_lshl_add_u32 v225, v0, 4, s78")
        A("v_lshrrev_b32 v226, 4, v0"); A("v_lshlrev_b32 v226, 6, v226"); A("v_bfe_u32 v7, v0, 1, 2"); A("v_lshl_add_u32 v226, v7, 4, v226")
        A("v_bfe_u32 v7, v0, 3, 1"); A("v_lshl_add_u32 v226, v7, 3, v226"); A("v_and_b32 v7, 1, v0"); A("v_lshl_add_u32 v226, v7, 2, v226"); A(f"v_add_u32 v226, {L_YB}, v226")
        A(f"v_mul_u32_u24 v227, {YBS}, v7"); A("v_lshl_add_u32 v227, v8, 4, v227"); A("s_lshl_b32 s78, s3, 8"); A("v_add_u32 v227, s78, v227")
        A("v_lshlrev_b32 v228, 7, v9"); A("v_lshl_add_u32 v228, v8, 4, v228"); A("s_lshl_b32 s78, s3, 9"); A("v_add_u32 v228, s78, v228")
        A(f"v_add_u32 v227, {L_YB}, v227"); A(f"v_add_u32 v228, {L_PB}, v228")
        A("v_and_b32 v7, 1, v8"); A("v_mul_u32_u24 v230, 48, v7"); A("v_lshrrev_b32 v7, 1, v8"); A("v_lshl_add_u32 v230, v7, 2, v230")
        A("s_lshl_b32 s78, s3, 3"); A(f"s_add_u32 s78, s78, {L_SB}"); A("v_add_u32 v230, s78, v230")
        A("v_lshrrev_b32 v7, 2, v1"); A("v_lshlrev_b32 v231, 6, v7"); A("v_and_b32 v7, 1, v8"); A("v_lshl_add_u32 v231, v7, 5, v231")
        A("v_and_b32 v7, 3, v1"); A("v_lshl_add_u32 v231, v7, 3, v231"); A("s_lshl_b32 s78, s3, 13"); A(f"s_add_u32 s78, s78, {L_W1}"); A("v_add_u32 v231, s78, v231"); A("v_xor_b32 v232, 32, v231")
    for r in (224, 225, 246, 56, 57): A(f"v_mov_b32 v{r}, 0")
    A("s_cmp_eq_u32 s36, 2"); A("s_cbranch_scc0 L_nofin")
    mlp5_setup()
    A("s_lshr_b32 s35, s30, 2")
    if M0:
        A("s_sub_u32 s78, s31, 10"); A("s_lshr_b32 s78, s78, 1"); A("s_add_u32 s80, s35, 3"); A("s_mul_i32 s78, s78, s80")
        A("s_and_b32 s80, s30, 3"); A("s_add_u32 s78, s78, s80"); A("s_add_u32 s78, s78, s35"); A("s_sub_u32 s78, s78, 1")
        A("s_and_b32 s80, s31, 1"); A("s_lshl1_add_u32 s33, s78, s80")
    else:
        A("s_lshr_b32 s78, s37, 4"); A("s_lshl_b32 s78, s78, 3"); A("s_and_b32 s80, s37, 7"); A("s_add_u32 s33, s78, s80")
    A("s_min_u32 s34, s33, 19"); A("s_mul_i32 s85, s35, 20"); A("s_add_u32 s85, s85, s34")
    A("s_mul_i32 s78, s85, 52"); A("s_lshr_b32 s78, s78, 9")
    A("s_mul_i32 s80, s78, 10"); A("s_sub_u32 s80, s85, s80")
    A("s_mul_i32 s78, s78, 160")
    A("s_and_b32 s81, s80, 1"); A("s_lshl_b32 s82, s81, 6"); A("s_lshr_b32 s83, s80, 1"); A("s_lshl_b32 s83, s83, 2"); A("s_add_u32 s82, s82, s83")
    A("s_lshl_b32 s81, s81, 3"); A("s_add_u32 s81, s81, 128")
    A("v_bfe_u32 v7, v1, 1, 2"); A("v_lshlrev_b32 v12, 4, v7")
    A("v_bfe_u32 v7, v1, 1, 1"); A("v_lshlrev_b32 v15, 4, v7"); A("v_bfe_u32 v7, v1, 2, 1"); A("v_lshl_add_u32 v15, v7, 2, v15")
    A("s_cmp_lt_u32 s80, 8"); A("s_cselect_b32 s82, s82, s81"); A("s_cselect_b64 vcc, -1, 0"); A("s_add_u32 s78, s78, s82")
    A("v_cndmask_b32 v12, v15, v12, vcc"); A("v_add3_u32 v14, v12, v8, s78"); A("v_lshlrev_b32 v12, 1, v14")
    A("v_mov_b32 v17, 0"); A("v_mov_b32 v16, 0")
    A("global_load_short_d16_hi v17, v12, s[22:23]")
    A("v_and_b32 v7, 1, v1"); A(f"v_mul_u32_u24 v15, {YBS}, v7"); A("v_mul_u32_u24 v7, 1280, v7"); A("v_add_u32 v12, v12, v7")
    if PFOUT: A("global_load_ushort v5, v12, s[24:25]")
    A("v_lshrrev_b32 v7, 5, v14"); A("v_lshl_add_u32 v15, v7, 6, v15"); A("v_bfe_u32 v7, v14, 2, 2"); A("v_lshl_add_u32 v15, v7, 4, v15")
    A("v_bfe_u32 v7, v14, 4, 1"); A("v_lshl_add_u32 v15, v7, 3, v15"); A("v_and_b32 v7, 3, v14"); A("v_lshl_add_u32 v15, v7, 1, v15"); A(f"v_add_u32 v15, {L_YB}, v15")
    A("v_bfe_u32 v7, v1, 3, 1"); A("v_cmp_eq_u32 vcc, 0, v7"); A("v_cndmask_b32 v12, v23, v12, vcc")
    A("v_lshlrev_b32 v56, 14, v8"); A("v_lshl_add_u32 v56, v7, 12, v56"); A("v_and_b32 v57, 7, v1"); A("v_lshl_add_u32 v56, v57, 4, v56")
    A("s_lshl_b32 s78, s34, 7"); A("s_lshl_b32 s80, s35, 13"); A("s_add_u32 s78, s78, s80"); A(f"s_add_u32 s78, s78, {WS_MP}")
    if CC: A("s_xor_b32 s78, s78, 0x2000")
    A("v_add_u32 v56, s78, v56")
    for n in range(1, 7): A(f"s_mov_b32 s{80+n}, {n*65536}")
    A("L_nofin:")
    stamp(7)
    A("s_waitcnt vmcnt(0)")
    A("v_cmp_ne_u32 vcc, s57, v48"); A("s_cmp_lg_u64 vcc, 0")
    if not local: A("s_cmp_eq_u32 0, 0")
    A("s_cselect_b32 s76, 0, -1")
    if OMS:
        A("s_cmp_eq_u32 s36, 2"); A("s_cselect_b32 s76, 0, s76")
    A("s_not_b32 s77, s76")
    if diag: A("v_writelane_b32 v255, s77, 55")
    stamp(8)
    flush()
    A(f"s_mov_b32 s90, {SPIN*4}")
    C("""running max / sum of the four waves -> wave factors for the last wave, (max, sum, tag, tag) for the wo workgroups""")
    A("L_mlw:")
    A("ds_read_b128 v[64:67], v13"); A("ds_read_b128 v[68:71], v13 offset:16")
    A("s_waitcnt lgkmcnt(0)")
    A("v_max3_u32 v7, v65, v67, v69"); A("v_max_u32 v7, v7, v71"); A("v_cmp_eq_u32 vcc, -1, v7")
    A("s_cbranch_vccz L_mlw2")
    A("s_sleep 1")
    A("s_sub_u32 s90, s90, 1"); A("s_cbranch_scc0 L_mlw")
    A("L_mlw2:")
    A("v_max3_f32 v36, v64, v66, v68"); A("v_max_f32 v36, v36, v70")
    for i in range(4): A(f"v_sub_f32 v{64+2*i}, v{64+2*i}, v36")
    for i in range(4): A(f"v_mul_f32 v{64+2*i}, {LOG2E:#x}, v{64+2*i}")
    for i in range(4): A(f"v_exp_f32 v{64+2*i}, v{64+2*i}")
    A("v_mul_f32 v37, v64, v65")
    for i in range(1, 4): A(f"v_fmac_f32 v37, v{64+2*i}, v{65+2*i}")
    A("v_mov_b32 v45, s76"); A("ds_write_b32 v13, v45 offset:64")
    A("ds_write_b128 v13, v[64:67] offset:32"); A("ds_write_b128 v13, v[68:71] offset:48")
    A("s_mov_b32 exec_hi, 0")
    if MLS: A("s_mov_b32 exec_lo, 0xff")
    else:
        A("s_and_b32 exec_lo, s76, 0xff")
        A(f"buffer_store_dwordx4 v[36:39], v2, {WS}, s38 offen offset:512")
        A("s_and_b32 exec_lo, s77, 0xff")
    A(f"buffer_store_dwordx4 v[36:39], v2, {WS}, s38 offen offset:512 sc1")
    A("s_mov_b64 exec, -1")
    A(f"s_cmp_ge_u32 s31, {WARM or 99}"); A("s_cselect_b32 s59, 2, s36")
    A("v_lshrrev_b32 v47, 3, v1"); A("v_lshlrev_b32 v47, 7, v47"); A("v_and_b32 v7, 7, v1"); A("v_lshl_add_u32 v47, v7, 2, v47")
    flld = lambda: A(f"buffer_load_dword v46, v47, {WS}, 0 offen offset:{WS_VOTE} sc1")
    A("s_cmp_eq_u32 s59, 2"); A("s_cbranch_scc0 L_f0")
    flld()
    A("L_f0:")
    stamp(9)
    if "notail" not in exp:
        A("s_cmp_eq_u32 s59, 2"); A("s_cbranch_scc1 L_fl")
    A("L_aend:")
    fin()
    C("""MLP workgroups: all votes, side word, lines of the sums made resident""")
    A("L_fl:")
    A(f"s_mov_b32 s90, {SPIN}")
    A("s_waitcnt vmcnt(0)")
    A("L_fchk:")
    assert CC is None
    A("v_xor_b32 v7, s56, v46"); A("v_cmp_lt_u32 vcc, 1, v7")
    A("s_cbranch_vccz L_fok")
    flld()
    A("s_waitcnt vmcnt(0)")
    A("s_sub_u32 s90, s90, 1"); A("s_cbranch_scc0 L_fchk")
    A("L_fok:")
    if CC is None:
        A("v_cmp_ne_u32 vcc, s56, v46"); A("s_bcnt1_i32_b64 s78, vcc"); A("s_cmp_gt_u32 s78, 32"); A("s_cselect_b32 s78, 0x2000, 0")
        A("v_mov_b32 v46, s78"); A(f"v_mov_b32 v47, {L_CW}"); A("ds_write_b32 v47, v46")
        A("v_xor_b32 v225, s78, v225"); A("v_xor_b32 v56, s78, v56")
        if diag: A("v_writelane_b32 v255, s78, 58"); A("s_bcnt1_i32_b64 s78, vcc"); A("v_writelane_b32 v255, s78, 57")
        A("s_waitcnt lgkmcnt(0)")
    A("s_cmp_eq_u32 s36, 2"); A("s_cbranch_scc0 L_aend")
    if MW:
        A("v_readfirstlane_b32 s60, v225")
        A("s_sub_u32 s78, s31, 10"); A("s_mul_i32 s78, s78, 54"); A("v_add_u32 v7, s78, v1")
        A("v_mul_u32_u24 v6, 1639, v7"); A("v_lshrrev_b32 v6, 16, v6"); A("v_mul_u32_u24 v6, 88, v6"); A("v_add_lshl_u32 v6, v6, v7, 7")
        A("v_cmp_gt_u32 vcc, 320, v7"); A("v_cndmask_b32 v6, v23, v6, vcc")
        A("s_mov_b32 exec_hi, 0x3fffff")
        A(f"buffer_load_dword v4, v6, {WS}, s60 offen sc1")
        A("s_mov_b64 exec, -1")
    if MPW:
        A("s_lshl_b32 s63, s37, 13"); A("s_and_b32 s64, s37, 1"); A("s_lshl_b32 s64, s64, 12"); A("s_sub_u32 s63, s63, s64"); A(f"s_add_u32 s63, s63, {WS_MP}")
        A("v_mul_u32_u24 v7, 7680, v40"); A("v_add_u32 v7, v7, v2"); A("s_not_b32 s64, s56")
        for r in range(4): A(f"v_mov_b32 v{24+r}, s64")
    if not W1W: A("s_barrier")
    if MPW:
        for k in range(5): A(f"buffer_store_dwordx4 v[24:27], v7, {WS}, s63 offen offset:{512*k} sc1")
    A("s_barrier")
    A("s_branch L_mlp5")

    C("""================= waves 1..4: K / V stream with seven loads in flight each =================""")
    A("L_stream:")
    pend.extend(keep)
    stamp(1)
    A("s_sub_u32 s91, s3, 1")
    A("s_waitcnt lgkmcnt(0)")
    A("s_add_u32 s56, s56, 0x01010101")
    A("s_lshl3_add_u32 s82, s91, s30" if H8 else "s_lshl2_add_u32 s82, s30, s91"); A(f"s_mul_i32 s82, s82, {128*1280}"); A("s_lshl_b32 s78, s37, 7"); A("s_add_u32 s82, s82, s78")
    A("s_lshl_b32 s78, s37, 2"); A("s_add_u32 s78, s78, s91"); A("s_mul_i32 s78, s78, 10240")
    A("s_lshl_b32 s83, s91, 14"); A("s_mul_i32 s80, s91, 10240"); A(f"s_add_u32 s88, s80, {L_W1}")
    A("s_cmp_eq_u32 s36, 1")
    A("s_cselect_b32 s44, s12, s20"); A("s_cselect_b32 s45, s13, s21"); A("s_cselect_b32 s46, 5242880, 0"); A("s_mov_b32 s47, 0x20000")
    A("s_cselect_b32 s82, s82, s78"); A("s_cselect_b32 s83, s83, s80"); A("s_cselect_b32 s87, 10240, 0")
    A("s_cmp_eq_u32 s36, 2"); A("s_cselect_b32 s46, 2211840, s46"); A("s_cselect_b32 s87, 128, s87"); A(f"s_addk_i32 s83, {L_WB}")
    if "nopre" in exp: A("s_mov_b32 s46, 0")
    srd(48, 12, 5242880); srd(52, 16, 2211840)
    A(f"v_mov_b32 v19, {OOB}")
    if NW:
        assert tall
        A(f"s_add_u32 s76, s83, {(16-NW)*1024}"); A(f"s_add_u32 s79, s82, {(16-NW)*10240}"); A("s_cmp_eq_u32 s36, 1")
        A(f"s_cselect_b32 s76, s76, {L_DUMMY}"); A("s_cselect_b32 s77, 0x400, 0"); A(f"s_cselect_b32 s79, s79, {OOB}")
    A("s_sub_u32 s78, s31, 18"); A("s_lshl2_add_u32 s78, s78, s91"); A("s_mul_i32 s78, s78, 46")
    A("v_add_u32 v32, s78, v1"); A("v_mul_u32_u24 v33, 6554, v32"); A("v_lshrrev_b32 v33, 22, v33")
    A("v_mul_u32_u24 v34, 640, v33"); A("v_sub_u32 v34, v32, v34")
    A("s_cmp_ge_u32 s31, 18"); A("s_cselect_b32 s80, 46, 0"); A("v_cmp_gt_u32 s[60:61], s80, v1")
    A("v_cmp_gt_u32 vcc, 4, v33"); A("s_and_b64 s[60:61], s[60:61], vcc")
    A(f"s_mul_i32 s80, s30, {163840 if H8 else 655360}")
    assert TS or not H8
    if TS:
        a_, b2_, c_ = TS; NL = 10*a_ + 8*b2_ + 14*c_
        assert NL % 80 == 0 and NL <= 1280 and NB == 16
        A("s_cmp_ge_u32 s31, 10"); A(f"s_cselect_b32 s81, {b2_}, {a_}"); A(f"s_cselect_b32 s85, {(40*a_ - 40*b2_) & 0xffffffff}, 0")
        A("s_cmp_ge_u32 s31, 18"); A(f"s_cselect_b32 s81, {c_}, s81"); A(f"s_cselect_b32 s85, {(40*a_ + 32*b2_ - 72*c_) & 0xffffffff}, s85")
        A("s_lshl2_add_u32 s78, s31, s91"); A("s_mul_i32 s78, s78, s81"); A("s_add_u32 s78, s78, s85")
        A("v_add_u32 v56, s78, v1")
        if NL < 1280 or H8:
            mg = -(-(1 << 22) // NL); assert all((x * mg) >> 22 == x // NL for x in range(4 * NL))
            A(f"v_mul_u32_u24 v35, {mg}, v56"); A("v_lshrrev_b32 v35, 22, v35"); A(f"v_mul_u32_u24 v35, {(10240 if H8 else 1280) - NL}, v35"); A("v_add_u32 v56, v56, v35")
        A("v_lshl_add_u32 v56, v56, 7, s80"); A("v_cmp_gt_u32 vcc, s81, v1"); A("v_cndmask_b32 v56, v19, v56, vcc")
    elif tall:
        A("s_mul_i32 s80, s32, 163840"); A("s_lshl2_add_u32 s78, s33, s91"); A(f"s_mul_i32 s78, s78, {320*NB}"); A("s_add_u32 s80, s80, s78")
        if NB < 16: A(f"s_add_u32 s80, s80, {(16-NB)*10240}")
        A("v_lshl_add_u32 v56, v1, 7, s80"); A(f"v_cmp_gt_u32 vcc, {5*NB//2}, v1"); A("v_cndmask_b32 v56, v19, v56, vcc")
    else:
        A("v_lshl_add_u32 v56, v32, 7, s80"); A("v_cndmask_b32 v56, v19, v56, s[60:61]"); A("s_mov_b32 s79, 327680")
    if M0:
        A("s_sub_u32 s78, s30, 1"); A("s_cselect_b32 s78, 27, s78"); A("v_mad_u32_u24 v36, v33, 7, s78")
    else: A("v_lshl_add_u32 v36, v33, 3, s30")
    A("v_cmp_gt_u32 vcc, 27, v36"); A("s_and_b64 vcc, vcc, s[60:61]")
    A("v_mul_u32_u24 v57, 3456, v34"); A("v_lshl_add_u32 v57, v36, 7, v57"); A("v_cndmask_b32 v57, v19, v57, vcc")
    for d in range(T1D):
        assert M0 and not T2
        A(f"v_xor_b32 v35, {(2, 1, 3)[d]}, v33"); A("v_mad_u32_u24 v35, v35, 7, s78"); A("v_cmp_gt_u32 vcc, 27, v35"); A("s_and_b64 vcc, vcc, s[60:61]")
        A(f"v_mul_u32_u24 v{251+d}, 3456, v34"); A(f"v_lshl_add_u32 v{251+d}, v35, 7, v{251+d}"); A(f"v_cndmask_b32 v{251+d}, v19, v{251+d}, vcc")
    if T2:
        A("v_mul_u32_u24 v252, 81920, v36"); A("v_lshl_add_u32 v252, v34, 7, v252"); A("v_cndmask_b32 v252, v19, v252, vcc")
    A("v_and_b32 v7, 1, v1"); A("v_lshlrev_b32 v7, 4, v7"); A("v_mov_b32 v32, 0xffff"); A("v_lshlrev_b32 v7, v7, v32")
    A("v_bfe_u32 v32, v1, 1, 2")
    for r in range(4):
        A(f"v_cmp_eq_u32 vcc, {r}, v32"); A(f"v_cndmask_b32 v{20+r}, 0, v7, vcc")
    A(f"v_lshlrev_b32 v10, 4, v9"); A(f"v_add_u32 v10, {L_Q}, v10")
    A("s_lshl_b32 s78, s91, 3"); A(f"s_add_u32 s78, s78, {L_ML}"); A("v_mov_b32 v11, s78")
    A(f"v_add_u32 v3, {L_RED}, v2"); A("s_lshl_b32 s78, s91, 9"); A("v_add_u32 v12, s78, v3")
    A(f"v_mov_b32 v254, {L_ML}")
    slots()
    A("v_lshrrev_b32 v58, 3, v1"); A("v_mul_u32_u24 v58, 1280, v58"); A("v_bfe_u32 v7, v1, 1, 2"); A("v_xor_b32 v7, v7, v8")
    A("v_lshl_add_u32 v58, v7, 5, v58"); A("v_and_b32 v59, 1, v1"); A("v_lshlrev_b32 v59, 4, v59"); A("v_add_u32 v58, v58, v59")
    A("v_and_b32 v7, 1, v7"); A("v_lshl_add_u32 v59, v7, 5, v59"); A("v_lshrrev_b32 v7, 2, v1"); A("v_mul_u32_u24 v7, 3456, v7"); A("v_add_u32 v59, v59, v7")
    pump(); stamp(2); pump()
    C("""role set-up while K streams in: idx < 10 wo tile (4 heads x 64 columns), idx 10..17 of groups 1..7 MLP slice (32 of 1728), else none""")
    ld1 = [(176 + 4*sp, f"v224, {WS}, 0 offen offset:{1024*sp}") for sp in range(4)]
    for r in (14, 224, 225, 229, 246): A(f"v_mov_b32 v{r}, 0")
    if "nosetup" in exp: A("s_branch L_su9")
    A("s_cmp_eq_u32 s36, 1"); A("s_cbranch_scc0 L_su2")
    A("s_lshl_b32 s78, s30, 2"); A("s_add_u32 s78, s78, s91"); A("s_lshl_b32 s78, s78, 13"); A(f"s_add_u32 s78, s78, {WS_OP}")
    A("v_lshrrev_b32 v32, 5, v1"); A("v_and_b32 v33, 31, v1"); A("v_lshl_add_u32 v224, v32, 12, s78"); A("v_lshl_add_u32 v224, v33, 4, v224")
    A("s_mul_i32 s80, s91, 2176"); A(f"s_add_u32 s80, s80, {L_OF}")
    A("v_mul_u32_u24 v226, 272, v32"); A("v_lshl_add_u32 v226, v33, 3, v226"); A("v_add_u32 v226, s80, v226")
    A("v_and_b32 v7, 1, v1"); A("v_add_u32 v235, -1, v7"); A("v_and_b32 v235, 0xff, v235")
    A("v_and_b32 v7, 7, v1"); A("v_mul_u32_u24 v227, 272, v7"); A("v_and_b32 v7, 1, v8"); A("v_lshl_add_u32 v227, v7, 7, v227"); A("v_lshlrev_b32 v234, 9, v7")
    A("v_lshrrev_b32 v7, 5, v1"); A("v_lshl_add_u32 v227, v7, 4, v227"); A("v_add_u32 v227, s80, v227")
    A("v_and_b32 v7, 7, v1"); A("v_lshl_add_u32 v225, v7, 10, s78")
    traddr1280(230, 2048)
    A("v_add_u32 v230, s83, v230")
    for ct in range(1, 4): A(f"v_xor_b32 v{230+ct}, {32*ct}, v230")
    A("v_lshlrev_b32 v229, 3, v1"); A(f"v_add_u32 v228, {L_OB}, v229")
    A("v_lshl_add_u32 v234, v9, 3, v234"); A("s_lshl_b32 s78, s91, 10"); A(f"s_add_u32 s78, s78, {L_OB}"); A("v_add_u32 v234, s78, v234")
    A("s_lshl_b32 s80, s30, 14"); A("s_lshl_b32 s81, s37, 9"); A("s_add_u32 s84, s80, s81"); A("s_lshl_b32 s80, s91, 17")
    A("s_add_u32 s84, s84, s80"); A(f"s_add_u32 s84, s84, {WS_AP}"); A("s_add_u32 s85, s84, 8192")
    A("s_branch L_su9")
    A("L_su2:")
    A("s_cmp_eq_u32 s36, 2"); A("s_cbranch_scc0 L_su9")
    mlp5_setup()
    A(f"s_mul_i32 s84, s91, {160*3456}"); A("s_lshl_b32 s78, s37, 6"); A("s_add_u32 s84, s84, s78"); A("s_mul_i32 s85, s91, 10")
    A("v_mov_b32 v13, 0"); A("v_and_b32 v14, 31, v1"); A("v_lshlrev_b32 v247, 2, v14"); A(f"v_add_u32 v247, {L_PB + 256}, v247")
    A("s_lshl_b32 s78, s37, 5"); A("v_add_lshl_u32 v14, v14, s78, 1")
    A("global_load_short_d16_hi v13, v14, s[18:19]")
    traddr1280(16, 10240)
    for i in range(10):
        A(f"s_add_u32 s78, s85, {i}"); A("s_and_b32 s80, s78, 3"); A("s_lshl_b32 s80, s80, 5"); A(f"v_xor_b32 v{233+i}, s80, v16")
        A("s_lshr_b32 s78, s78, 2"); A("s_lshl_b32 s78, s78, 10"); A(f"v_add_u32 v{233+i}, s78, v{233+i}")
    for i in range(0, 32, 2): A(f"v_mov_b64 v[{192+i}:{193+i}], 0")
    A("v_and_b32 v7, 1, v1")
    A("v_lshlrev_b32 v243, 6, v7"); A("v_lshl_add_u32 v243, v8, 4, v243"); A("s_lshl_b32 s78, s91, 7"); A(f"s_add_u32 s78, s78, {L_H1}"); A("v_add_u32 v243, s78, v243")
    A(f"v_lshlrev_b32 v244, 2, v1"); A(f"v_add_u32 v244, {L_PB}, v244")
    A("v_lshrrev_b32 v7, 5, v1"); A("v_mul_u32_u24 v248, 48, v7"); A(f"v_add_u32 v248, {L_SB}, v248")
    A("v_lshlrev_b32 v245, 6, v7"); A("v_bfe_u32 v7, v1, 2, 2"); A("v_lshl_add_u32 v245, v7, 4, v245")
    A("v_bfe_u32 v7, v1, 4, 1"); A("v_lshl_add_u32 v245, v7, 3, v245"); A("v_and_b32 v7, 3, v1"); A("v_lshl_add_u32 v245, v7, 1, v245"); A("v_add_u32 v245, s78, v245")
    A("s_lshl_b32 s86, s37, 13"); A("s_and_b32 s78, s37, 1"); A("s_lshl_b32 s78, s78, 12"); A("s_sub_u32 s86, s86, s78")
    A("s_lshr_b32 s78, s91, 1"); A("s_lshl_b32 s78, s78, 13"); A("s_add_u32 s86, s86, s78")
    A("s_and_b32 s78, s91, 1"); A("s_mul_i32 s78, s78, 1280"); A("s_add_u32 s86, s86, s78"); A(f"s_add_u32 s86, s86, {WS_MP}")
    if CC: A("s_xor_b32 s86, s86, 0x2000")
    A("v_lshl_add_u32 v246, v8, 2, v9"); A("v_lshlrev_b32 v246, 4, v246")
    A(f"v_mov_b32 v24, {F(-2*0.7978845608028654*1.4426950408889634)}"); A(f"v_mov_b32 v25, {F(-2*0.7978845608028654*1.4426950408889634*0.044715)}")
    A(f"v_mov_b32 v26, {F(1+1e-5)}"); A(f"v_mov_b32 v27, {F(1e-10)}"); A(f"v_mov_b32 v250, {F(1/640)}"); A(f"v_mov_b32 v249, {L_CW}")
    A("L_su9:")
    while st["waited"] < pos[16 + KQ]:
        pump()
        if st["waited"] == pos[15]: stamp(3)
    stamp(4)
    C("""scores: dot products per 16-byte chunk, transposing reduction -> one key per lane, bf16 roundings as in the reference""")
    Q = 60
    A(f"s_mov_b32 s90, {SPIN*4}")
    flush()
    if "noqw" in exp: A("s_branch L_qw2")
    A("L_qw:")
    A(f"ds_read_b128 v[{Q}:{Q+3}], v10")
    A("s_waitcnt lgkmcnt(0)")
    A(f"v_max3_u32 v7, v{Q}, v{Q+1}, v{Q+2}"); A(f"v_max_u32 v7, v7, v{Q+3}"); A("v_cmp_eq_u32 vcc, -1, v7")
    A("s_cbranch_vccz L_qw2")
    A("s_sleep 1")
    A("s_sub_u32 s90, s90, 1"); A("s_cbranch_scc0 L_qw")
    A("L_qw2:")
    L_mark = len(L)
    stamp(5)
    LIM = pos[31 - W] if QKP == "kv" else pos[30]
    P = 32
    for half in range(2):
        for r in range(4):
            for t in range(8*half, 8*half+8):
                A(f"v_dot2_f32_bf16 v{P+t}, v{K0+4*t+r}, v{Q+r}, {'0' if r == 0 else f'v{P+t}'}")
            if r & 1: pump(lim=LIM)
    R = 48
    for t in range(8): A(f"v_add_f32_dpp v{R+t}, v{P+t}, v{P+t} row_mirror row_mask:0xf bank_mask:0x3")
    for t in range(8): A(f"v_add_f32_dpp v{R+t}, v{P+t+8}, v{P+t+8} row_mirror row_mask:0xf bank_mask:0xc")
    for t in range(4): A(f"v_add_f32_dpp v{P+t}, v{R+t}, v{R+t} row_half_mirror row_mask:0xf bank_mask:0x5")
    for t in range(4): A(f"v_add_f32_dpp v{P+t}, v{R+t+4}, v{R+t+4} row_half_mirror row_mask:0xf bank_mask:0xa")
    pump(lim=LIM)
    for t in range(4): A(f"v_add_f32_dpp v{R+t}, v{P+t}, v{P+t} quad_perm:[2,3,0,1] row_mask:0xf bank_mask:0xf")
    A("s_mov_b32 vcc_lo, 0xcccccccc"); A("s_mov_b32 vcc_hi, 0xcccccccc")
    for t in range(2): A(f"v_cndmask_b32 v{P+t}, v{R+t}, v{R+t+2}, vcc")
    for t in range(2): A(f"v_add_f32_dpp v{R+t}, v{P+t}, v{P+t} quad_perm:[1,0,3,2] row_mask:0xf bank_mask:0xf")
    A("s_mov_b32 vcc_lo, 0xaaaaaaaa"); A("s_mov_b32 vcc_hi, 0xaaaaaaaa")
    S = 40
    A(f"v_cndmask_b32 v{S}, v{R}, v{R+1}, vcc")
    bf16r(S, S); A(f"v_mul_f32 v{S}, {F(128**-0.5)}, v{S}"); bf16r(S, S)
    A(f"v_mov_b32 v42, v{S}")
    pump(lim=LIM)
    row_allred("v_max_f32", 42); swap_allred("v_max_f32", 42, 44, 16); swap_allred("v_max_f32", 42, 44, 32)
    pump(lim=LIM)
    A(f"v_sub_f32 v43, v{S}, v42"); A(f"v_mul_f32 v43, {LOG2E:#x}, v43"); A("v_exp_f32 v43, v43")
    A("v_cvt_pk_bf16_f32 v45, v43, v43")
    row_allred("v_add_f32", 43); swap_allred("v_add_f32", 43, 44, 16); swap_allred("v_add_f32", 43, 44, 32)
    A("ds_write_b64 v11, v[42:43]")
    stamp(6)
    pump(lim=LIM)
    C("""p = exp(s - wave max); o partial = p V with p in element lane&7 of the A rows""")
    done = 0
    for t in range(16):
        for r in range(4): A(f"v_and_b32_dpp v{K0+4*t+r}, v45, v{20+r} row_newbcast:{t} row_mask:0xf bank_mask:0xf")
        if t >= 1 and pos[16 + done] <= st["waited"]:
            mfma(ACC, K0+4*done, V0+4*done, done == 0); done += 1
        if t in (4, 9): pump(lim=LIM)
    if "noqk" in exp:
        L[L_mark:] = [l for l in L[L_mark:] if not l.strip().startswith(("v_dot2", "v_add_f32_dpp", "v_and_b32_dpp", "v_max_f32_dpp", "v_permlane"))]
    stamp(7)
    for t in range(done, 16):
        while t and st["waited"] < pos[15 + t]: pump()
        if t == 15 and FPRE:
            A("ds_read_b128 v[52:55], v254 offset:48"); A("ds_read_b128 v[48:51], v254 offset:32"); A("ds_read_b32 v62, v254 offset:64")
            A("v_mov_b32 v61, 1"); A("v_mov_b32 v6, s56"); A("v_mov_b32 v7, s56"); A(f"s_mov_b32 s90, {SPIN*4}")
        wait_for(pos[16 + t]); mfma(ACC, K0+4*t, V0+4*t, t == 0)
        if t < 15: issue_to(pos[16 + t] + 1 + W)
    assert st["issued"] == len(seq)
    stamp(8)
    C("""the wave that draws the last ticket scales and adds the four partial rows and publishes them as bf16 + tags""")
    def wsum():
        for k in range(4):
            if FPRE: A(f"s_waitcnt lgkmcnt({3-k})")
            for hh in (0, 2):
                if k == 0: pk("mul", 28+hh, 32+hh, 48, mod="op_sel_hi:[1,0]")
                else: pk("fma", 28+hh, 32+4*k+hh, 48+2*k, 28+hh, mod="op_sel_hi:[1,0,1]")
            if FPRE and k == 0: A("v_readfirstlane_b32 s78, v60")
    if FPRE:
        keepp = list(pend); pend.clear()
        A("s_mov_b32 exec_hi, 0"); A("s_waitcnt lgkmcnt(0)")
        A("v_readfirstlane_b32 s80, v55"); A("v_readfirstlane_b32 s81, v62")
        A(f"ds_write_b128 v12, v[{ACC}:{ACC+3}]")
        A("s_mov_b32 exec_lo, 1")
        A("ds_add_rtn_u32 v60, v254, v61 offset:68")
        A("s_mov_b32 exec_lo, -1")
        for k in range(4): A(f"ds_read_b128 v[{32+4*k}:{35+4*k}], v3 offset:{512*k}")
        pend.extend(keepp)
        wsum()
        A("s_cmp_eq_u32 s80, -1"); A("s_cbranch_scc1 L_fw3")
    else:
        A("s_mov_b32 exec_hi, 0"); A("v_mov_b32 v61, 1"); A("v_mov_b32 v6, s56"); A("v_mov_b32 v7, s56")
        A(f"ds_write_b128 v12, v[{ACC}:{ACC+3}]")
        A("s_mov_b32 exec_lo, 1")
        A("ds_add_rtn_u32 v60, v254, v61 offset:68")
        A("s_mov_b32 exec_lo, -1")
        for k in range(4): A(f"ds_read_b128 v[{32+4*k}:{35+4*k}], v3 offset:{512*k}")
        A(f"s_mov_b32 s90, {SPIN*4}")
        keepp = list(pend); pend.clear()
        A("L_fw:")
        A("ds_read_b128 v[52:55], v254 offset:48"); A("ds_read_b128 v[48:51], v254 offset:32"); A("ds_read_b32 v62, v254 offset:64")
        pend.extend(keepp)
        A("s_waitcnt lgkmcnt(0)")
        A("v_readfirstlane_b32 s78, v60"); A("v_readfirstlane_b32 s80, v55"); A("v_readfirstlane_b32 s81, v62")
        for k in range(4):
            for hh in (0, 2):
                if k == 0: pk("mul", 28+hh, 32+hh, 48, mod="op_sel_hi:[1,0]")
                else: pk("fma", 28+hh, 32+4*k+hh, 48+2*k, 28+hh, mod="op_sel_hi:[1,0,1]")
        A("s_cmp_eq_u32 s80, -1"); A("s_cbranch_scc1 L_fw3")
    A("L_fw4:")
    A("s_cmp_eq_u32 s78, 2"); A("s_cbranch_scc0 L_fw2")
    A("v_cvt_pk_bf16_f32 v4, v28, v29"); A("v_cvt_pk_bf16_f32 v5, v30, v31")
    A("s_mov_b32 exec_lo, s81")
    A(f"buffer_store_dwordx4 v[4:7], v2, {WS}, s38 offen")
    A("s_not_b32 exec_lo, s81")
    A(f"buffer_store_dwordx4 v[4:7], v2, {WS}, s38 offen sc1")
    stamp(16)
    flush()
    A("L_fw2:")
    A("s_mov_b64 exec, -1")
    save = dict(st); NPRE = len(seq)
    if "notail" in exp: fin()
    A("s_cmp_eq_u32 s36, 2"); A("s_cbranch_scc1 L_mlp")
    A("s_cmp_eq_u32 s36, 0"); A("s_cbranch_scc1 L_idle")

    C("""---- wo role: wave w multiplies head w; A rows = (split, batch), the softmax factors scale the product rows ----""")
    mlld = lambda: A(f"buffer_load_dwordx4 v[208:211], v225, {WS}, 0 offen offset:512 sc1")
    for n in range(NR + PRE, 16 - NW):
        didx[n] = len(seq); seq.append(dma_a(n))
    blk = lambda n: didx[n]
    trd = [0]
    need = lambda ks: max(blk(4*ks + b) for b in range(4))
    kord = sorted(range(4), key=need)
    def trs():
        while trd[0] < 4 and need(kord[trd[0]]) <= st["waited"]:
            ks = kord[trd[0]]
            for ct in range(4):
                for u in range(2): A(f"ds_read_b64_tr_b16 v[{64+16*ks+4*ct+2*u}:{65+16*ks+4*ct+2*u}], v{230+ct} offset:{(4*ks+u)*1024}")
            trd[0] += 1
    Wc[0] = WO or W
    issue_to(pos[31] + 1 + W)
    trs()
    while st["issued"] < len(seq):
        pump(); trs()
    stamp(9)
    if P1G:
        def mlm():
            A("s_mov_b64 exec, 0x00ff00ff"); mlld(); A("s_mov_b64 exec, -1")
        l1 = [(r, lambda r=r, a=a: A(ldtext(r, a))) for r, a in ld1] + [(208, mlm)]
        A("v_mov_b32 v210, s56")
        poll_first(l1); st["issued"] += 5
        while trd[0] < 4:
            wait_for(need(kord[trd[0]])); trs()
        stamp(10)
        poll("1", l1, lambda: None, None, chk=lambda d, r: A(f"v_cmp_ne_u32 {d}, s56, v{r+2}"),
             clr=lambda r: r == 208 or A(f"ds_write_b64 v226, v[{r}:{r+1}] offset:{136*(r-176)}"))
    else:
        def round1(sk):
            for i, (r, a) in enumerate(ld1):
                if sk:
                    A(f"s_cmp_eq_u64 s[{62+2*i}:{63+2*i}], 0"); A(f"s_cbranch_scc1 L_r1_{i}")
                A(ldtext(r, a))
                if sk: A(f"L_r1_{i}:")
            A("s_mov_b64 exec, s[60:61]")
            if sk: A("s_cbranch_execz L_r1_4")
            mlld()
            if sk: A("L_r1_4:")
            A("s_mov_b64 exec, -1")
        A("s_mov_b64 s[60:61], 0x00ff00ff")
        A("v_mov_b32 v210, s56"); A("v_mov_b32 v211, s56")
        if WBAR == 1: A("s_barrier")
        if WBAR < 2:
            round1(False); st["issued"] += 5
        while trd[0] < 4:
            wait_for(need(kord[trd[0]])); trs()
        if WBAR == 2:
            A("s_barrier"); round1(False)
        stamp(10)
        A(f"s_mov_b32 s90, {SPIN}")
        if diag: flush()
        A("L_p1:")
        A("s_waitcnt vmcnt(0)")
        A("ds_write2_b64 v226, v[176:177], v[180:181] offset0:0 offset1:68"); A("ds_write2_b64 v226, v[184:185], v[188:189] offset0:136 offset1:204")
        for i in range(4): A(f"v_cmp_ne_u32 s[{62+2*i}:{63+2*i}], s56, v{178+4*i}")
        A("v_cmp_ne_u32 s[60:61], s56, v210"); A("v_cmp_ne_u32 vcc, s56, v211")
        A("s_or_b64 s[70:71], s[62:63], s[64:65]"); A("s_or_b64 s[72:73], s[66:67], s[68:69]"); A("s_or_b64 s[70:71], s[70:71], s[72:73]")
        A("s_or_b64 s[60:61], s[60:61], vcc"); A("s_or_b64 vcc, s[60:61], s[70:71]")
        A("s_cbranch_scc0 L_pd1")
        A("s_waitcnt lgkmcnt(0)")
        round1(True)
        A("s_sub_u32 s90, s90, 1"); A("s_cbranch_scc0 L_p1")
        A("s_waitcnt vmcnt(0)")
        A("L_pd1:")
    if diag: A("v_writelane_b32 v255, s90, 54")
    for ks in range(4): A(f"ds_read_b128 v[{192+4*ks}:{195+4*ks}], v227 offset:{32*ks}")
    stamp(11)
    fac = ["v_max_f32_dpp v210, v208, v208 quad_perm:[1,0,3,2] row_mask:0xf bank_mask:0xf",
           "v_max_f32_dpp v210, v210, v210 quad_perm:[2,3,0,1] row_mask:0xf bank_mask:0xf",
           "v_sub_f32 v208, v208, v210\nv_mul_f32 v208, %#x, v208" % LOG2E, "v_exp_f32 v208, v208", "v_mul_f32 v209, v208, v209",
           "v_add_f32_dpp v209, v209, v209 quad_perm:[1,0,3,2] row_mask:0xf bank_mask:0xf",
           "v_add_f32_dpp v209, v209, v209 quad_perm:[2,3,0,1] row_mask:0xf bank_mask:0xf",
           "v_rcp_f32 v209, v209", "v_mul_f32 v208, v208, v209", ""]
    for gh in range(2):
        for pr in range(2):
            fac.append("\n".join(f"v_mov_b32_dpp v{216+2*pr+b}, v208 row_newbcast:{4*b + 2*gh + pr} row_mask:{1 << gh:#x} bank_mask:0xf" for b in range(2)))
    n = 0
    for f_ in fac[:4]: A(f_)
    del fac[:4]
    for ct in range(4):
        for ks in range(4):
            if ct == 0: A(f"s_waitcnt lgkmcnt({3-ks})")
            mfma(144+4*ct, 192+4*ks, 64+16*ks+4*ct, ks == 0)
            if n < len(fac) and fac[n]: A(fac[n])
            n += 1
    A("s_mov_b32 exec_hi, 0")
    for ct in range(4):
        pk("mul", 144+4*ct, 144+4*ct, 216); pk("fma", 144+4*ct, 146+4*ct, 218, 144+4*ct)
        if ct & 1: A(f"ds_write2_b64 v234, v[{140+4*ct}:{141+4*ct}], v[{144+4*ct}:{145+4*ct}] offset0:{16*(ct-1)} offset1:{16*ct}")
    A("s_mov_b64 exec, -1")
    A("s_waitcnt lgkmcnt(0)"); A("s_barrier")
    for k in range(4): A(f"ds_read2st64_b64 v[{160+4*k}:{163+4*k}], v228 offset0:{2*k} offset1:{2*k+1}")
    for k in range(4):
        A(f"s_waitcnt lgkmcnt({3-k})"); pk("add", 160+4*k, 160+4*k, 162+4*k)
        if k & 1: pk("add", 156+4*k, 156+4*k, 160+4*k)
    pk("add", 160, 160, 168)
    A("v_bfi_b32 v160, v235, s56, v160")
    A(f"buffer_store_dwordx2 v[160:161], v229, {WS}, s84 offen sc1")
    A(f"buffer_store_dwordx2 v[160:161], v229, {WS}, s85 offen sc1")
    stamp(12)
    if WB == "wo":
        A("s_cmp_eq_u32 s31, 0"); A("s_cbranch_scc0 L_nwb"); A("s_cmp_eq_u32 s3, 1"); A("s_cbranch_scc0 L_nwb")
        A("s_waitcnt vmcnt(0)")
        A("buffer_wbl2 sc1")
        A("L_nwb:")
    fin()

    A("L_fw3:")
    A("s_cmp_eq_u32 s78, 2"); A("s_cbranch_scc0 L_fw2")
    if FPRE:
        A("ds_read_b128 v[52:55], v254 offset:48"); A("ds_read_b128 v[48:51], v254 offset:32"); A("ds_read_b32 v62, v254 offset:64")
        A("s_waitcnt lgkmcnt(0)")
        A("v_readfirstlane_b32 s80, v55"); A("v_readfirstlane_b32 s81, v62")
        wsum()
        A("s_cmp_eq_u32 s80, -1"); A("s_cbranch_scc0 L_fw4")
        A("s_sub_u32 s90, s90, 1"); A("s_cbranch_scc0 L_fw3")
    else:
        A("s_sub_u32 s90, s90, 1"); A("s_cbranch_scc0 L_fw")
    A("s_branch L_fw4")

    C("""---- no role: pull the group's w1 lines into L2 ----""")
    A("L_idle:")
    if IB: A("s_barrier")
    if T1 and not PT1: A(f"buffer_load_dword v6, v57, s[52:55], 0 offen {tnt}")
    for d in range(T1D): A(f"buffer_load_dword v{32+d}, v{251+d}, s[52:55], 0 offen {tnt}")
    if T2:
        A("s_mov_b32 s46, 2211840")
        A(f"buffer_load_dword v5, v252, s[44:47], 0 offen {tnt}")
    if probe2:
        A("s_cmp_eq_u32 s99, 0"); A("s_cbranch_scc1 L_q2z")
        A("L_q2y:"); A("s_sleep 2"); A("s_memrealtime s[62:63]"); A("s_waitcnt lgkmcnt(0)"); A("s_sub_u32 s62, s62, s99"); A("s_cmp_lt_i32 s62, 0"); A("s_cbranch_scc1 L_q2y")
        A("L_q2z:")
    if probe3 is not None:
        A("s_cmp_eq_u32 s31, 31"); A("s_cbranch_scc0 L_q3z"); A("s_cmp_eq_u32 s3, 1"); A("s_cbranch_scc0 L_q3z")
        A("v_readlane_b32 s60, v255, 0"); A("s_lshl_b32 s61, s30, 7"); A("s_add_u32 s61, s61, 0x3000"); A("v_mov_b32 v7, s60"); A("s_mov_b64 exec, 1")
        A(f"buffer_store_dword v7, v2, {WS}, s61 offen sc1"); A("s_mov_b64 exec, -1")
        A("s_cmp_eq_u32 s30, 7"); A("s_cbranch_scc0 L_q3z")
        for _ in range(4): A("s_sleep 127")
        for g in range(8): A(f"s_load_dword s{64+g}, s[40:41], {0x3000 + 128*g} glc")
        A("s_waitcnt lgkmcnt(0)")
        A("s_mov_b32 s72, s64"); A("s_mov_b32 s73, s64")
        for g in range(1, 8):
            A(f"s_min_u32 s72, s72, s{64+g}"); A(f"s_max_u32 s73, s73, s{64+g}")
        A(f"s_sub_u32 s73, s{73 if probe3 < 0 else 64 + probe3}, s72"); A("s_mul_i32 s73, s73, 20"); A("s_add_u32 s73, s73, s72"); A("s_add_u32 s73, s73, 4000")
        A("L_q3y:"); A("s_sleep 2"); A("s_memrealtime s[62:63]"); A("s_waitcnt lgkmcnt(0)"); A("s_sub_u32 s62, s62, s73"); A("s_cmp_lt_i32 s62, 0"); A("s_cbranch_scc1 L_q3y")
        A("L_q3z:")
    if not IB: A("s_barrier")
    if WB == "idle":
        A("s_cmp_eq_u32 s31, 31"); A("s_cbranch_scc0 L_nwb"); A("s_cmp_eq_u32 s3, 1"); A("s_cbranch_scc0 L_nwb")
        A("buffer_wbl2 sc1")
        A("L_nwb:")
    if WARM:
        nwv = (32 - WARM) * 4; per = 320 // nwv
        A(f"s_cmp_ge_u32 s31, {WARM}"); A("s_cbranch_scc0 L_widone")
        assert nwv in (8, 16)
        apbase(78)
        A(f"s_sub_u32 s81, s31, {WARM}"); A("s_lshl2_add_u32 s81, s81, s91")
        if nwv == 16:
            A("s_and_b32 s80, s81, 1"); A("s_mul_i32 s80, s80, 2560"); A("s_add_u32 s78, s78, s80"); A("s_lshr_b32 s81, s81, 1")
        A("s_lshl_b32 s81, s81, 14"); A("s_add_u32 s78, s78, s81")
        if CC is None:
            A(f"v_mov_b32 v7, {L_CW}"); A("ds_read_b32 v7, v7"); A("s_waitcnt lgkmcnt(0)"); A("v_readfirstlane_b32 s80, v7"); A("s_xor_b32 s78, s78, s80")
        A("v_lshlrev_b32 v7, 7, v1"); A(f"v_cmp_gt_u32 vcc, {per}, v1"); A("s_movk_i32 s90, 200")
        A("L_wi:")
        A("s_mov_b64 exec, vcc")
        A(f"buffer_load_dword v5, v7, {WS}, s78 offen sc1")
        A("s_waitcnt vmcnt(0)")
        if WSL: A(f"s_sleep {WSL}")
        A("v_cmp_eq_u32 vcc, -1, v5")
        A("s_cbranch_vccz L_widone")
        A("s_sub_u32 s90, s90, 1"); A("s_cbranch_scc0 L_wi")
        A("L_widone:")
    fin()

    C("""---- MLP role ----""")
    A("L_mlp:")
    st.update(save); del seq[NPRE:]; Wc[0] = WM or W
    if MPRE is None:
        seq.extend(dma_a(n) for n in range(NR + PRE, 10))
        issue_to(pos[31] + 1 + W)
        while st["issued"] < len(seq): pump()
    stamp(23)
    if not W1W: A("s_barrier")
    if MPRE is not None:
        redo[0] = True
        A("s_mov_b32 s46, 2211840"); A(f"s_sub_u32 s82, s82, {128*(NR + PRE - MPRE) - (128 if MPRE == 0 else 0)}")
        assert NR + PRE <= 10
        for n in range(MPRE, 10): dma_a(n)()
    stamp(24)
    wgt = [1] * len(seq)
    for n in range(10):
        if W1W:
            while sum(wgt[st["waited"] + 1:]) + 2 > W1W: wait_for(st["waited"] + 1)
            seq.append(None); wgt.append(2); st["issued"] += 1
        A(f"s_add_u32 m0, s88, {n*1024}")
        if n: A(f"s_add_u32 s84, s84, {16*3456}")
        A(f"buffer_load_dwordx4 v59, s[52:55], s84 offen {w1nt} lds")
    stamp(9)
    W1F, W2F, PL, HO, H1O = 64, 96, 136, 168, 192
    flush()
    A("s_waitcnt vmcnt(10)"); A("s_barrier")
    if CC is None: A("ds_read_b32 v15, v249")
    for i in range(10):
        for u in range(2):
            r = W2F + 4*i + 2*u
            A(f"ds_read_b64_tr_b16 v[{r}:{r+1}], v{233+i} offset:{L_W2 + u*20480}")
    if CC is None:
        A("s_waitcnt lgkmcnt(15)")
        A("v_readfirstlane_b32 s78, v15"); A("v_xor_b32 v225, v15, v225"); A("s_xor_b32 s86, s86, s78")
    C("""all five waves: thread = column pair; h = x + sum of the eight groups' attention sums""")
    A("L_mlp5:")
    sofr = [None, 76, 77, 87, 88, 89, 57, 58]
    for p in range(1, 8): A(f"s_mov_b32 s{sofr[p]}, {p*16384}")
    ld2 = [(PL + 4*p, lambda p=p: A(ldtext(PL + 4*p, f"v225, {WS}, {f's{sofr[p]}' if p else '0'} offen"))) for p in range(8)]
    A("v_mov_b32 v18, 0xffffff00"); A("v_mov_b32 v19, 0xff")
    for r in range(16): A(f"v_mov_b32 v{HO+r}, 0x3f803f80")
    A("s_mov_b32 s50, 0x00030003"); A("s_mov_b32 s51, 0x00030003"); A("s_mov_b32 s48, 0x00070007"); A("s_mov_b32 s49, 0x00070007")
    A("v_lshlrev_b32 v184, 16, v252"); A("v_lshlrev_b32 v185, 16, v253"); A("v_and_b32 v186, 0xffff0000, v252"); A("v_and_b32 v187, 0xffff0000, v253")
    if EF:
        poll_first(ld2); A("s_waitcnt vmcnt(8)")
    else: A("s_waitcnt vmcnt(0)")
    A("s_barrier")
    stamp(10)
    if not EF: poll_first(ld2)
    stamp(20)
    for ks in range(4):
        for ct in range(2):
            for u in range(2):
                r = W1F + 8*ks + 4*ct + 2*u
                A(f"ds_read_b64_tr_b16 v[{r}:{r+1}], v{231+ct} offset:{(2*ks+u)*1024}")
    stamp(22)
    SM = 40
    def sum2():
        for i in range(0, 16, 2): pk("add", SM+i, PL+i, PL+16+i)
        sum4(SM)
        if NR16:
            pk("add", SM, SM, 184); pk("add", SM+2, SM+2, 186)
    poll("2", ld2, sum2, 18)
    stamp(11)
    a, b_, c = SM, SM+4, SM+6
    def unpack():
        A(f"v_lshlrev_b32 v{a}, 16, v{b_}"); A(f"v_lshlrev_b32 v{a+1}, 16, v{b_+1}"); A(f"v_and_b32 v{a+2}, 0xffff0000, v{b_}"); A(f"v_and_b32 v{a+3}, 0xffff0000, v{b_+1}")
    if not NR16:
        A(f"v_cvt_pk_bf16_f32 v{b_}, v{a}, v{a+2}"); A(f"v_cvt_pk_bf16_f32 v{b_+1}, v{a+1}, v{a+3}"); unpack()
        pk("add", a, a, 184); pk("add", a+2, a+2, 186)
    A(f"v_cvt_pk_bf16_f32 v{b_}, v{a}, v{a+2}"); A(f"v_cvt_pk_bf16_f32 v{b_+1}, v{a+1}, v{a+3}")
    A(f"ds_write_b32 v226, v{b_}"); A(f"ds_write_b32 v226, v{b_+1} offset:{YBS}")
    A("s_mov_b64 exec, s[50:51]")
    for ks in range(4): A(f"ds_read_b128 v[{HO+4*ks}:{HO+3+4*ks}], v227 offset:{64*ks}")
    A("s_mov_b64 exec, -1")
    unpack()
    pk("mul", c+2, a, a); pk("add", c, a, a+2); pk("fma", c+2, a+2, a+2, c+2)
    A(f"v_permlane32_swap_b32 v{c}, v{c+2}"); A(f"v_permlane32_swap_b32 v{c+1}, v{c+3}"); pk("add", c, c, c+2)
    A(f"v_permlane16_swap_b32 v{c}, v{c+1}"); A(f"v_add_f32 v{c}, v{c}, v{c+1}")
    red = [f"v_add_f32_dpp v{c}, v{c}, v{c} {m} row_mask:0xf bank_mask:0xf" for m in ("row_mirror", "row_half_mirror", "quad_perm:[2,3,0,1]", "quad_perm:[1,0,3,2]")]
    for ks in range(4):
        A(f"s_waitcnt lgkmcnt({3-ks})")
        for ct in range(2): mfma(28+4*ct, W1F+8*ks+4*ct, HO+4*ks, ks == 0)
        A(red[ks])
    A(f"ds_write_b32 v230, v{c}")
    A("s_mov_b64 exec, s[48:49]")
    A("ds_write_b128 v228, v[28:31]"); A("ds_write_b128 v228, v[32:35] offset:64")
    A("s_mov_b64 exec, -1")
    A("s_waitcnt lgkmcnt(0)")
    stamp(26)
    A("s_barrier")
    stamp(12)
    A("s_cmp_eq_u32 s3, 0"); A("s_cbranch_scc1 L_final ; nf")
    pend_fin = list(pend)
    C("""LN(LN(h)) = (h-mean) / sqrt(var+eps) / sqrt(var/(var+eps)+eps) = (h-mean) * rsq(var*(1+eps) + eps*eps), exactly;
 applied behind the product: y @ w1 = rs * (h @ w1 - mean * colsum(w1)); gelu(z) = z / (1 + exp(-2u)), u = sqrt(2/pi)(z + 0.044715 z^3)""")
    A("ds_read_b128 v[40:43], v248"); A("ds_read_b128 v[44:47], v248 offset:16"); A("ds_read_b64 v[48:49], v248 offset:32")
    A("ds_read2st64_b32 v[52:53], v247 offset0:0 offset1:2"); A("ds_read2st64_b32 v[54:55], v247 offset0:4 offset1:6"); A("ds_read_b32 v15, v247 offset:2048")
    A("ds_read2st64_b32 v[36:37], v244 offset0:0 offset1:2"); A("ds_read2st64_b32 v[38:39], v244 offset0:4 offset1:6"); A("ds_read_b32 v50, v244 offset:2048")
    A("s_waitcnt lgkmcnt(6)")
    pk("add", 40, 40, 42); pk("add", 44, 44, 46); pk("add", 40, 40, 48); pk("add", 40, 40, 44)
    pk("mul", 40, 40, 250, mod="op_sel_hi:[1,0]")
    A("v_fma_f32 v41, -v40, v40, v41"); A("v_max_f32 v41, 0, v41")
    A("v_fma_f32 v41, v41, v26, v27"); A("v_rsq_f32 v41, v41")
    A("s_waitcnt lgkmcnt(3)")
    pk("add", 52, 52, 54); A("v_add_f32 v15, v15, v52"); A("v_add_f32 v15, v15, v53")
    A("s_waitcnt lgkmcnt(0)")
    pk("add", 36, 36, 38); A("v_fma_f32 v50, -v40, v15, v50"); A("v_add_f32 v36, v36, v37"); A("v_add_f32 v36, v36, v50")
    if NR16: A("v_fma_f32 v36, v36, v41, v13")
    else:
        A("v_mul_f32 v36, v36, v41")
        bf16r(36, 36); A("v_add_f32 v36, v36, v13"); bf16r(36, 36)
    A("v_mul_f32 v37, v36, v36"); A("v_fma_f32 v37, v37, v25, v24"); A("v_mul_f32 v37, v37, v36"); A("v_exp_f32 v37, v37")
    A("v_add_f32 v37, 1.0, v37"); A("v_rcp_f32 v37, v37"); A("v_mul_f32 v36, v36, v37")
    A("v_cvt_pk_bf16_f32 v36, v36, v36")
    A("ds_write_b16 v245, v36")
    for t in range(8):
        A(f"s_lshl_b64 exec, s[50:51], {2*t}")
        A(f"ds_read_b128 v[{H1O+4*t}:{H1O+3+4*t}], v243")
    A("s_mov_b64 exec, -1")
    for i in [0, 8, 1, 9, 2, 3, 4, 5, 6, 7]:
        t = i & 7
        if i < 8: A(f"s_waitcnt lgkmcnt({7-t})")
        mfma(28 + 4*(i >> 3), W2F+4*i, H1O+4*t, t == 0)
    A("v_bfi_b32 v32, v19, s56, v32")
    A("s_mov_b32 exec_lo, 0x000f000f"); A("s_mov_b32 exec_hi, 0x000f000f")
    A(f"buffer_store_dwordx4 v[32:35], v246, {WS}, s86 offen offset:1024 sc1")
    A("s_mov_b64 exec, -1")
    A("v_bfi_b32 v28, v19, s56, v28")
    A(f"buffer_store_dwordx4 v[28:31], v2, {WS}, s86 offen sc1")
    stamp(18)
    if h3 is not None:
        if h3 < 0: A("s_waitcnt vmcnt(0)")
        A("s_barrier")
    stamp(13)
    fin()

    C("""---- final sum over the 54 slices: one 128-byte line of every record per wave, out = h + sum + b2 ----""")
    A("L_final:")
    pend.extend(pend_fin)
    A("s_cmp_ge_u32 s33, 20"); A("s_cbranch_scc1 L_epoch")
    A("ds_read_u16_d16_hi v16, v15")
    srd(44, 24, 2560)
    def l3(n):
        def f():
            if n == 6: A("s_mov_b32 exec_hi, 0xffff")
            A(ldtext(96 + 4*n, f"v56, {WS}, {f's{80+n}' if n else '0'} offen"))
            if n == 6: A("s_mov_b32 exec_hi, -1")
        return f
    ld3 = [(96 + 4*n, l3(n)) for n in range(7)]
    A("v_and_b32 v20, s56, v19"); A("v_and_b32 v120, s56, v19"); A("v_mov_b32 v121, 0"); A("v_mov_b64 v[122:123], 0")
    A("s_waitcnt lgkmcnt(0)")
    if NR16: A("v_add_f32 v16, v16, v17")
    if h3 is not None:
        A("s_barrier")
        if h3 > 0: A(f"s_sleep {h3}")
        if h3x: A(f"s_sleep {h3x}")
    poll_first(ld3)
    def sum3():
        for k in range(3):
            for hh in (0, 2): pk("add", 64+4*k+hh, 96+8*k+hh, 100+8*k+hh)
        for hh in (0, 2):
            pk("add", 64+hh, 64+hh, 68+hh); pk("add", 72+hh, 72+hh, 120+hh)
        for hh in (0, 2): pk("add", 64+hh, 64+hh, 72+hh)
    def red3():
        A("v_permlane32_swap_b32 v64, v66"); A("v_permlane32_swap_b32 v65, v67"); pk("add", 64, 64, 66)
        A("v_permlane16_swap_b32 v64, v65"); A("v_add_f32 v64, v64, v65")
        A("v_add_f32_dpp v64, v64, v64 row_ror:8 row_mask:0xf bank_mask:0xf")
    if SP3:
        A("s_waitcnt vmcnt(0)")
        for r, _ in ld3: A(f"v_xor_b32 v{r}, v20, v{r}")
        A("v_or3_b32 v7, v96, v100, v104"); A("v_or3_b32 v6, v108, v112, v116"); A("v_or3_b32 v7, v7, v6, v120")
        A("v_cmp_ne_u32_sdwa vcc, v7, 0 src0_sel:BYTE_0 src1_sel:DWORD")
        sum3(); red3()
        A("s_cbranch_vccnz L_slow3")
        A("L_back3:")
    else:
        poll("3", ld3, sum3, 18)
        red3()
    stamp(14)
    if diag: A("v_writelane_b32 v255, s90, 53")
    if not NR16:
        bf16r(64, 64); A("v_add_f32 v64, v64, v17"); bf16r(64, 64)
    A("v_add_f32 v64, v64, v16")
    A("v_cvt_pk_bf16_f32 v64, v64, v64")
    A(f"buffer_store_short v64, v12, s[44:47], 0 offen {osc}")
    stamp(15)
    fin()
    if SP3:
        A("L_slow3:")
        for r, _ in ld3: A(f"v_xor_b32 v{r}, v20, v{r}")
        poll("3", ld3, sum3, 18)
        red3()
        A("s_branch L_back3")
    C("""every wave that reads the epoch word has published by now (this wave has consumed sums over all of them)""")
    A("L_epoch:")
    A("s_cmp_eq_u32 s37, 53"); A("s_cbranch_scc0 L_fend")
    A("v_mov_b32 v34, s56"); A("s_mov_b64 exec, 1")
    A(f"buffer_store_dword v34, v2, {WS}, 0 offen {osc}")
    A("L_fend:")
    if diag: fin()
    A("L_end:")
    A("s_endpgm")

    body = [("    " + l if l.startswith("s_nop") else l).replace(" ; nf", "") for l in fix(L)]
    out = [HDR.rstrip("\n"),
           "; One launch, 256 workgroups of five waves (one per CU). Each streams 256 keys of one (batch, head); 80 of them then",
           "; apply wo, 54 the MLP. Hand-offs go through d_ws and carry a per-launch tag; all waits are bounded.",
           f"; @launch grid=(256,1,1) block=(320,1,1) lds={LDS_BYTES}",
           '.amdgcn_target "amdgcn-amd-amdhsa--gfx950"', ".text", f".globl {NAME}_kernel", ".p2align 8",
           f".type {NAME}_kernel,@function", f"{NAME}_kernel:"] + body + [
           '.section .rodata,"a"', ".p2align 6", f".amdhsa_kernel {NAME}_kernel",
           "  .amdhsa_next_free_vgpr 256", "  .amdhsa_next_free_sgpr 102", "  .amdhsa_accum_offset 256",
           "  .amdhsa_group_segment_fixed_size 0", "  .amdhsa_kernarg_size 104", "  .amdhsa_user_sgpr_count 2",
           "  .amdhsa_user_sgpr_kernarg_segment_ptr 1", "  .amdhsa_system_sgpr_workgroup_id_x 1",
           "  .amdhsa_float_denorm_mode_32 3",
           ".end_amdhsa_kernel"]
    return "\n".join(out) + "\n"

if __name__ == "__main__":
    import argparse
    ap = argparse.ArgumentParser(); ap.add_argument("-o", default=f"cdna_kernels/{NAME}.s"); ap.add_argument("--diag", action="store_true")
    ap.add_argument("--kw", default="")
    a = ap.parse_args()
    open(a.o, "w").write(gen(diag=a.diag, **eval("dict(%s)" % a.kw)))
```

```python
import sys, struct
from hz import fix
NAME = "sequential_preLN__sliding_block_cached__mixer_channel_mlp__decode"
HDR = open("cdna_kernels/%s.s.ref" % NAME).read().split("; Override launch")[0]
def F(x): return "0x%08x" % struct.unpack("<I", struct.pack("<f", x))[0]

WS_FLAGS = 1024; WS_VOTE = 2048; WS_PRB = 0x4000; WS_MP = 0x10000; WS_AP = 0x80000; WS_QP = 0x100000; WS_OP = 0x180000
WS_STAMP = 0x200000
OOB = 0xF0000000
L_WB = 23552
L_W2 = L_WB; L_W1 = L_WB + 40960
L_RED = L_WB + 81920
L_Q = L_RED + 2048
L_ML = L_Q + 256
L_SB = L_ML + 96
L_OB = L_SB + 96
L_OF = L_OB + 4096
L_YB = L_OF + 8704
YBS = 1344
L_PB = L_YB + 2 * YBS
L_CW = L_PB + 2560
L_H1 = L_CW + 64
L_DUMMY = L_H1 + 512
LDS_BYTES = L_DUMMY + 1024
SPIN = 2000000
LOG2E = 0x3FB8AA3B

def gen(diag=False, nt='nt', W=8, wnt='nt', prio=False, KQ=2, depth=0, PT0=12, T1=True, T2=False, tnt='', local=True, probe=None, h3=-1, exp=(), qdelay=None, PRE=None, QKP='kv', W0=2, NR=0, PR=17, RS=1.5, tall=True, tfree=False, NB=16, MB=True, EF=True, IB=True, WARM=0, WSL=0, CC=None, ROT=False, w1nt='nt', WO=16, RC=0, WBAR=0, P1G=True, XP=0, probe2=None, probe3=None, DUM=(), M0=True, SP3=False, h3x=0, NR16=True, T1D=0, hold=None, OL=True, FPRE=True, CLP=0, cfl='sc1', TIGHT=2, PFOUT=False, H8=True, MW=True, PF1=True, MPW=True, NW=5, PW=20, WS_=2.4, TS=(0,19,52), W1W=None, WK=None, KW=12, KS=1, MIX='iw', PERM='t0 s0 s1 w0 w1 t1 t2 t3', QL=True, UNR=2, MLS=False, OMS=False, GW=False, PFO=2, TRF=True, WB=None, osc='', MPRE=None, WM=None, FASTP=True, CHK2=(0,), PT1=None, only=None):
    L = []
    pend = []
    def A(s):
        for l in s.split("\n"):
            l = l.strip()
            if pend and l.startswith(("s_cbranch", "s_branch")) and not l.endswith("; nf"):
                A("s_waitcnt lgkmcnt(0)")
            L.append("    " + l if not l.endswith(":") else l)
            if pend and l.startswith("s_waitcnt") and "lgkmcnt(0)" in l:
                for r, i in pend: L.append(f"    v_writelane_b32 v255, s{r}, {i}")
                pend.clear()
    def C(text):
        for l in text.strip("\n").split("\n"): L.append("    ; " + l.strip())
    def stamp(i, clk=False):
        if diag and (only is None or i in only or i >= 59):
            if len(pend) >= 4: A("s_waitcnt lgkmcnt(0)")
            r = 92 + 2 * len(pend)
            A(f"{'s_memtime' if clk else 's_memrealtime'} s[{r}:{r+1}]"); pend.append((r, i))
    def flush():
        if pend: A("s_waitcnt lgkmcnt(0)")
    def bf16r(d, x):
        A(f"v_cvt_pk_bf16_f32 v{d}, v{x}, v{x}"); A(f"v_and_b32 v{d}, 0xffff0000, v{d}")
    def row_allred(op, v):
        for c in ("row_mirror", "row_half_mirror", "quad_perm:[2,3,0,1]", "quad_perm:[1,0,3,2]"):
            A(f"{op}_dpp v{v}, v{v}, v{v} {c} row_mask:0xf bank_mask:0xf")
    def swap_allred(op, v, t, which):
        A(f"v_mov_b32 v{t}, v{v}"); A(f"v_permlane{which}_swap_b32 v{v}, v{t}"); A(f"{op} v{v}, v{v}, v{t}")
    def srd(r, base, size):
        A(f"s_mov_b32 s{r}, s{base}"); A(f"s_mov_b32 s{r+1}, s{base+1}"); A(f"s_mov_b32 s{r+2}, {size}"); A(f"s_mov_b32 s{r+3}, 0x20000")
    def pk(op, d, a, b, c=None, mod=""):
        A(f"v_pk_{op}_f32 v[{d}:{d+1}], v[{a}:{a+1}], v[{b}:{b+1}]" + (f", v[{c}:{c+1}]" if c is not None else "") + (" " + mod if mod else ""))
    def mfma(d, a, b, first):
        A(f"v_mfma_f32_16x16x32_bf16 v[{d}:{d+3}], v[{a}:{a+3}], v[{b}:{b+3}], {'0' if first else f'v[{d}:{d+3}]'}")
    def sum4(b):
        for hh in (0, 2):
            pk("add", b+hh, b+hh, b+4+hh); pk("add", b+8+hh, b+8+hh, b+12+hh)
        for hh in (0, 2): pk("add", b+hh, b+hh, b+8+hh)
    def role_decode():
        A("s_sub_u32 s78, s31, 10"); A("s_lshr_b32 s80, s78, 1")
        if M0:
            A("s_mul_i32 s80, s80, 7"); A("s_add_u32 s80, s80, s30"); A("s_sub_u32 s80, s80, 1"); A("s_cmp_eq_u32 s30, 0"); A("s_cselect_b32 s80, 27, s80")
        else:
            A("s_lshl_b32 s80, s80, 3"); A("s_add_u32 s80, s80, s30")
        A("s_and_b32 s78, s78, 1"); A("s_lshl_b32 s37, s80, 1"); A("s_add_u32 s37, s37, s78")
        A("s_cmp_lt_u32 s80, 27"); A("s_cselect_b32 s36, 2, 0")
        A("s_cmp_lt_u32 s31, 10"); A("s_cselect_b32 s36, 1, s36"); A("s_cselect_b32 s37, s31, s37")
    WS = "s[40:43]"
    def ldtext(r, a, n=4):
        return f"buffer_load_dwordx{n} v[{r}:{r+n-1}], {a} sc1"
    def poll_init(loads):
        for r, a, n, chk in loads:
            for c in chk: A(f"v_mov_b32 v{r+c}, -1")
    def poll_first(loads):
        for r, ld in loads: ld()
    def poll(tag, loads, work, km, chk=None, clr=None):
        n = len(loads)
        M = lambda i: f"s[{60+2*i}:{61+2*i}]"
        chk = chk or (lambda d, r: A(f"v_cmp_ne_u32_sdwa {d}, v{r}, s56 src0_sel:BYTE_0 src1_sel:BYTE_0"))
        clr = clr or (lambda r: A(f"v_and_b32 v{r}, v{km}, v{r}"))
        A(f"s_mov_b32 s90, {SPIN}")
        flush()
        A(f"L_p{tag}:")
        A("s_waitcnt vmcnt(0)")
        for i, (r, ld) in enumerate(loads): chk(M(i), r)
        for i in range(0, n - 1, 2): A(f"s_or_b64 s[{92+i}:{93+i}], {M(i)}, {M(i+1)}")
        G = lambda k: f"s[{92+2*k}:{93+2*k}]" if 2*k + 1 < n else M(2*k)
        A(f"s_or_b64 vcc, {G(0)}, {G(1)}")
        if n > 6:
            A(f"s_or_b64 s[100:101], {G(2)}, {G(3)}"); A("s_or_b64 vcc, vcc, s[100:101]")
        else: A(f"s_or_b64 vcc, vcc, {G(2)}")
        A(f"s_cbranch_scc0 L_pa{tag}")
        for k in range(4):
            if 2*k + 1 < n:
                A(f"s_cmp_eq_u64 {G(k)}, 0"); A(f"s_cbranch_scc1 L_k{tag}_{2*k+1}")
            for i in range(2*k, min(n, 2*k + 2)):
                A(f"s_cmp_eq_u64 {M(i)}, 0"); A(f"s_cbranch_scc1 L_k{tag}_{i}")
                loads[i][1]()
                A(f"L_k{tag}_{i}:")
        A("s_mov_b32 s59, 0")
        for i in reversed(range(n)):
            A(f"s_cmp_lg_u64 {M(i)}, 0"); A("s_addc_u32 s59, s59, s59")
        A("s_sub_u32 s90, s90, 1"); A(f"s_cbranch_scc1 L_u{tag}_0")
        A("s_bcnt1_i32_b32 s78, s59"); A("s_cmp_eq_u32 s78, 1"); A(f"s_cbranch_scc0 L_p{tag}")
        for i in range(n - 1):
            A(f"s_bitcmp0_b32 s59, {i}"); A(f"s_cbranch_scc0 L_e{tag}_{i}")
        A("s_cmp_eq_u32 0, 1")
        for i in reversed(range(n)):
            r, ld = loads[i]
            A(f"L_e{tag}_{i}:")
            for k, (r2, _) in enumerate(loads):
                if k != i: clr(r2)
            A(f"s_branch L_u{tag}_{i}")
            A(f"L_t{tag}_{i}:")
            ld()
            A("s_sub_u32 s90, s90, 1")
            A(f"L_u{tag}_{i}:")
            A("s_waitcnt vmcnt(0)")
            chk("vcc", r)
            part = tag == "1" or tag == "3" and i == 6
            if not part: clr(r)
            A(f"s_cbranch_scc1 L_pw{tag}")
            A(f"s_cbranch_vccnz L_t{tag}_{i}")
            if part: clr(r)
            A(f"s_branch L_pw{tag}")
        A(f"L_pa{tag}:")
        for r, ld in loads: clr(r)
        A(f"L_pw{tag}:")
        work()
    def fin():
        if diag:
            A("s_mov_b64 exec, -1")
            stamp(59); stamp(61, True); A("s_waitcnt lgkmcnt(0)")
            A("s_getreg_b32 s92, hwreg(HW_REG_XCC_ID)"); A("v_writelane_b32 v255, s92, 62")
            A("s_cmp_eq_u32 s3, 0"); A("s_cselect_b32 s92, 3, 0"); A("s_add_u32 s92, s92, s36"); A("v_writelane_b32 v255, s92, 63")
            A("s_mul_i32 s78, s2, 5"); A("s_add_u32 s78, s78, s3"); A("s_lshl_b32 s78, s78, 8"); A(f"s_add_u32 s78, s78, {WS_STAMP}")
            A("v_lshlrev_b32 v7, 2, v1")
            A(f"buffer_store_dword v255, v7, {WS}, s78 offen")
            if probe is not None:
                fin.n = getattr(fin, "n", 0) + 1
                pi, pw, role = probe
                A("s_cmp_eq_u32 s3, 0"); A(f"s_cbranch_scc{1 if pw == 1 else 0} L_pe{fin.n}")
                if role is not None:
                    A(f"s_cmp_eq_u32 s36, {role}"); A(f"s_cbranch_scc0 L_pe{fin.n}")
                A("v_readlane_b32 s80, v255, 0")
                if pi == "xcc":
                    A("s_getreg_b32 s78, hwreg(HW_REG_XCC_ID, 0, 4)"); A("s_cmp_eq_u32 s78, s30"); A("s_cselect_b32 s78, 0, 400")
                elif pi == "vote":
                    A("v_readlane_b32 s78, v255, 57"); A("s_nop 4"); A("s_mul_i32 s78, s78, 10")
                else:
                    A(f"v_readlane_b32 s78, v255, {pi}"); A("s_nop 4"); A("s_cmp_eq_u32 s78, 0"); A(f"s_cbranch_scc1 L_pe{fin.n}")
                    A("s_sub_u32 s78, s78, s80")
                A("s_mul_i32 s78, s78, 10"); A("s_add_u32 s78, s78, s80"); A("s_add_u32 s78, s78, 2000")
                A(f"L_prw{fin.n}:"); A("s_sleep 2"); A("s_memrealtime s[92:93]"); A("s_waitcnt lgkmcnt(0)"); A("s_sub_u32 s92, s92, s78"); A("s_cmp_lt_i32 s92, 0"); A(f"s_cbranch_scc1 L_prw{fin.n}")
                A(f"L_pe{fin.n}:")
        A("s_endpgm")
    def traddr1280(d, blk):
        A("v_bfe_u32 v7, v1, 2, 3"); A(f"v_lshlrev_b32 v{d}, 7, v7"); A("v_lshrrev_b32 v7, 1, v7"); A(f"v_lshl_add_u32 v{d}, v7, 5, v{d}")
        A("v_lshrrev_b32 v7, 5, v1"); A(f"v_mul_u32_u24 v7, {blk}, v7"); A(f"v_add_u32 v{d}, v{d}, v7")
        A("v_and_b32 v7, 3, v1"); A(f"v_lshl_add_u32 v{d}, v7, 3, v{d}")

    K0, V0 = 64, 128
    ACC = 28
    XS, XO, WQ, AO = 228, 238, 64, 144

    L_X = 20480
    if probe2:
        slot, off, stride = probe2
        A("s_memrealtime s[60:61]"); A(f"s_load_dwordx2 s[4:5], s[0:1], {slot*8}"); A("v_readfirstlane_b32 s3, v0"); A("s_waitcnt lgkmcnt(0)")
        A("s_mov_b32 s99, 0")
        A("s_cmp_eq_u32 s2, 255"); A("s_cbranch_scc0 L_q2w"); A("s_cmp_eq_u32 s3, 64"); A("s_cbranch_scc0 L_q2w")
        A("s_sleep 100")
        A("s_memrealtime s[62:63]"); A("s_waitcnt lgkmcnt(0)")
        for i in range(16):
            A(f"s_mov_b32 s6, {off + i*stride}"); A("s_load_dword s7, s[4:5], s6"); A("s_waitcnt lgkmcnt(0)")
        A("s_memrealtime s[64:65]"); A("s_waitcnt lgkmcnt(0)")
        A("s_sub_u32 s99, s64, s62"); A("s_mul_i32 s99, s99, 10"); A("s_add_u32 s99, s99, s60"); A("s_add_u32 s99, s99, 4000")
        A("L_q2w:")
        A("s_add_u32 s60, s60, 1500")
        A("L_q2x:"); A("s_sleep 2"); A("s_memrealtime s[62:63]"); A("s_waitcnt lgkmcnt(0)"); A("s_sub_u32 s62, s62, s60"); A("s_cmp_lt_i32 s62, 0"); A("s_cbranch_scc1 L_q2x")
    if diag: A("s_memrealtime s[100:101]")
    if "late0" in exp:
        A("s_and_b32 s30, s2, 7"); A("s_cbranch_scc1 L_l0"); A("s_sleep 20"); A("L_l0:")
    C("""start: only the first 256 bytes of code run before further code lines arrive, so the first loads sit here.
 s30 group = wg&7, s31 idx = wg>>3, s32 head = 8*(idx>>3)+group, s33 j = idx&7, s34 batch = j>>2, s35 key split = j&3, s3 wave""")
    A("s_load_dwordx16 s[4:19], s[0:1], 0"); A("s_load_dwordx2 s[40:41], s[0:1], 96")
    A("s_lshr_b32 s31, s2, 3"); A("s_and_b32 s33, s31, 7")
    C("""one workgroup per group reads the kernel's code lines so that they are in L2 ahead of the data stream""")
    A("s_getpc_b64 s[52:53]"); A("L_pc:")
    A(f"s_cmp_eq_u32 {'s31, 17' if PF1 else 's33, 7'}"); A("s_cselect_b32 s54, L_end-L_pc, 0"); A("s_mov_b32 s55, 0x20000"); A("v_lshlrev_b32 v22, 7, v0")
    A("buffer_load_dword v4, v22, s[52:55], 0 offen")
    A("v_lshrrev_b32 v7, 6, v0"); A("v_and_b32 v1, 63, v0"); A("s_cmp_ge_u32 s31, 32"); A("v_readfirstlane_b32 s3, v7")
    A("s_cbranch_scc1 L_end ; nf")
    A("s_and_b32 s30, s2, 7"); A("s_lshr_b32 s78, s31, 3"); A("s_lshl3_add_u32 s32, s78, s30" if H8 else "s_lshl2_add_u32 s32, s30, s78")
    A("v_lshlrev_b32 v2, 4, v1"); A("v_lshrrev_b32 v8, 4, v1"); A("v_and_b32 v9, 15, v1")
    A("s_lshr_b32 s34, s33, 2"); A("s_and_b32 s35, s33, 3")
    A("s_cmp_eq_u32 s3, 0"); A("s_cbranch_scc0 L_s0 ; nf")
    C("""wave 0: x and rows 80j..80j+79 x 128 columns of wq go to LDS (load t holds rows t, 20+t, 40+t, 60+t)""")
    A("s_mul_i32 s78, s33, 20"); A("v_mad_u32_u24 v7, v8, 5, s78")
    A("v_lshlrev_b32 v12, 15, v7"); A("v_lshl_add_u32 v12, v9, 4, v12"); A("s_lshl_b32 s78, s32, 8"); A("v_add_u32 v12, s78, v12")
    A("s_movk_i32 s79, 0x2000"); A(f"s_movk_i32 m0, {L_X}")
    A("s_waitcnt lgkmcnt(0)")
    A("global_load_lds_dwordx4 v2, s[4:5]"); A("global_load_lds_dwordx4 v2, s[4:5] offset:1024"); A("global_load_lds_dwordx4 v2, s[4:5] offset:1536")
    A("s_mov_b32 m0, 0")
    A("s_nop 0")
    A("L_wq:")
    for _ in range(UNR):
        A(f"global_load_lds_dwordx4 v12, s[10:11] {nt}")
        A("s_addk_i32 m0, 0x400"); A("v_add_u32 v12, s79, v12")
    A(f"s_cmpk_lt_u32 m0, {L_X}"); A("s_cbranch_scc1 L_wq ; nf")
    A("s_branch L_aux ; nf")
    C("""waves 1..4: 64 keys each; address bits 10..17 of the 1024-key window = t0 s0 s1 w0 w1 t1 t2 t3 (tile, split, wave)""")
    A("L_s0:")
    if PERM:
        pb = {n: 10 + i for i, n in enumerate(PERM.split())}
        assert pb["w1"] == pb["w0"] + 1
        A("s_lshl_b32 s78, s34, 5"); A("s_add_u32 s78, s78, s32"); A("s_lshl_b32 s78, s78, 20"); A(f"s_lshl_b32 s80, s3, {pb['w0']}"); A("s_add_u32 s78, s78, s80")
        if pb["s1"] == pb["s0"] + 1:
            A(f"s_lshl_b32 s80, s35, {pb['s0']}"); A("s_add_u32 s78, s78, s80")
        else:
            A("s_and_b32 s80, s35, 1"); A(f"s_lshl_b32 s80, s80, {pb['s0']}"); A("s_add_u32 s78, s78, s80")
            A("s_lshr_b32 s80, s35, 1"); A(f"s_lshl_b32 s80, s80, {pb['s1']}"); A("s_add_u32 s78, s78, s80")
        A(f"s_add_u32 s78, s78, {3072*256 + 4096 - (1 << pb['w0'])}")
        A("v_add_u32 v17, s78, v2")
    else:
        A("s_lshl_b32 s78, s34, 5"); A("s_add_u32 s78, s78, s32"); A("s_lshl_b32 s78, s78, 6"); A("s_lshl2_add_u32 s80, s35, s3"); A("s_add_u32 s78, s78, s80")
        A("s_add_u32 s78, s78, 47"); A("s_lshl_b32 s78, s78, 14"); A("s_addk_i32 s78, 0x1000")
        if 'w' in MIX:
            A("s_and_b32 s80, s3, 1"); A("s_lshl_b32 s80, s80, 13"); A("s_add_u32 s78, s78, s80")
        A("v_add_u32 v17, s78, v2"); A("v_xor_b32 v18, 0x2000, v17")
    A("L_s1:")
    def common2():
        A("s_load_dwordx8 s[20:27], s[0:1], 64")
        if diag:
            A("v_mov_b32 v255, 0"); pend.append((100, 0)); stamp(60, True)
        role_decode()
        A("s_mov_b32 s42, 0x10000000"); A("s_mov_b32 s43, 0x20000")
    cur18 = [None]
    def ldKV(base, ptr, t):
        if PERM:
            off = sum(((t >> k) & 1) << pb[f"t{k}"] for k in range(4))
            def f():
                hi = off & ~8191
                if hi and cur18[0] != hi:
                    A(f"v_add_u32 v18, {hi}, v17"); cur18[0] = hi
                A(f"global_load_dwordx4 v[{base+4*t}:{base+4*t+3}], v{18 if hi else 17}, {ptr} offset:{(off & 8191) - 4096} {nt}")
            return f
        hi, lo = (t & 1, t >> 1) if 'i' in MIX else (t // 8, t % 8)
        return lambda: A(f"global_load_dwordx4 v[{base+4*t}:{base+4*t+3}], v{17 + hi}, {ptr} offset:{lo*1024-4096} {nt}")
    redo = [False]
    def dma_a(n):
        def f():
            if n == MPRE and not redo[0]:
                A("s_cmp_eq_u32 s36, 2"); A("s_cselect_b32 s46, 0, s46")
            if n == 10:
                A("s_cmp_eq_u32 s36, 2"); A("s_cselect_b32 s46, 0, s46"); A(f"s_cselect_b32 s78, {40960 - 10240}, 0"); A("s_add_u32 s83, s83, s78")
            A(f"s_add_u32 m0, s83, {n*1024}")
            if n: A("s_add_u32 s82, s82, s87")
            A(f"buffer_load_dwordx4 v58, s[44:47], s82 offen {wnt} lds")
        return f
    kv = [ldKV(K0, "s[6:7]", t) for t in range(16)] + [ldKV(V0, "s[8:9]", t) for t in range(16)]
    def rider():
        A("s_mov_b32 m0, s76"); A("s_add_u32 s76, s76, s77")
        A(f"buffer_load_dwordx4 v58, s[44:47], s79 offen {wnt} lds"); A("s_addk_i32 s79, 10240")
    seq = []; pos = []; free = set(); nr = 0; nw_ = 0; didx = {}
    for i, f in enumerate(kv):
        if PT0 == i:
            if tfree or not tall: free.add(len(seq))
            seq.append(lambda: A(f"buffer_load_dword v4, v56, s[48:51], 0 offen {tnt}"))
        if PT0 + 3 == i and not tall:
            free.add(len(seq)); seq.append(lambda: A(f"buffer_load_dword v5, v56, s[48:51], s79 offen {tnt}"))
        while nr < NR and PR + nr * RS <= i:
            free.add(len(seq)); didx[nr] = len(seq); seq.append(dma_a(nr)); nr += 1
        while nw_ < NW and PW + nw_ * WS_ <= i:
            free.add(len(seq)); didx[16 - NW + nw_] = len(seq); seq.append(rider); nw_ += 1
        pos.append(len(seq)); seq.append(f)
    assert nr == NR and nw_ == NW
    if PT1:
        free.add(len(seq)); seq.append(lambda: A(f"buffer_load_dword v6, v57, s[52:55], 0 offen {tnt}"))
    PRE = min(W - 1 + XP, 16 - NR - NW)
    for n in range(NR, NR + PRE):
        k = NR + PRE - 1 - n
        if k < 2 * (PRE - (W - 1)) and k % 2 == 1: free.add(len(seq))
        didx[n] = len(seq); seq.append(dma_a(n))
    st = dict(issued=0, waited=-1)
    Wc = [WK or W]
    def issue_to(n):
        inflight = lambda: sum(1 for i in range(n - W, st["issued"]) if i not in free)
        while st["issued"] < len(seq) and (st["issued"] < n - W + Wc[0] or inflight() < Wc[0] and n >= W):
            seq[st["issued"]](); st["issued"] += 1
    def wait_for(k):
        if k > st["waited"]:
            A(f"s_waitcnt vmcnt({st['issued'] - k - 1})"); st["waited"] = k
    def pump(lim=None):
        k = st["waited"] + 1
        while k in free: k += 1
        if lim is not None and k > lim: return
        if WK and KW <= k <= pos[31] and Wc[0] != W and (k - KW) % KS == 0: Wc[0] += 1 if Wc[0] < W else -1
        wait_for(k)
        if k in DUM:
            A("s_cmp_eq_u32 s30, 0"); A(f"s_cbranch_scc1 L_du{k} ; nf")
            A("buffer_load_dword v5, v19, s[48:51], 0 offen")
            A(f"L_du{k}:")
        issue_to(k + 1 + W)
    A("s_waitcnt lgkmcnt(0)")
    assert W <= 8
    for _ in range(W0):
        seq[st["issued"]](); st["issued"] += 1
    A("s_cmp_eq_u32 s3, 2"); A("s_cbranch_scc0 L_s4 ; nf")
    A("v_mov_b64 v[24:25], -1"); A("v_mov_b64 v[26:27], -1")
    A(f"v_add_u32 v13, {L_Q}, v2"); A("s_mov_b64 exec, 0x3fffff")
    A("ds_write_b128 v13, v[24:27]")
    A("s_mov_b64 exec, -1"); A("s_waitcnt lgkmcnt(0)")
    A("L_s4:")
    A("s_load_dword s56, s[40:41], 0")
    common2()
    def slots():
        A("s_lshl_b32 s39, s30, 5"); A("s_add_u32 s39, s39, s31")
        A("s_lshl_b32 s38, s39, 10"); A(f"s_add_u32 s38, s38, {WS_OP}")
    keep = list(pend); pend.clear()
    A("s_barrier")
    issue_to(W)
    A("s_branch L_stream ; nf")

    C("""================= wave 0: LayerNorm(x), q partial sums, q exchange, softmax statistics =================""")
    A("L_aux:")
    A("s_barrier")
    if prio: A("s_setprio 3")
    A("v_bfe_u32 v11, v1, 3, 1"); A("v_mul_u32_u24 v11, 1280, v11"); A("v_lshl_add_u32 v11, v7, 3, v11")
    common2()
    stamp(1)
    A("v_lshrrev_b32 v40, 5, v1"); A("v_mul_u32_u24 v10, 1280, v40"); A("v_and_b32 v41, 31, v1"); A("v_mad_u32_u24 v10, v41, 40, v10")
    slots()
    C("""byte selectors that put one bf16 into element lane&7 of an otherwise zero MFMA operand row""")
    A("v_and_b32 v7, 1, v1"); A("v_cmp_eq_u32 vcc, 1, v7"); A("v_bfe_u32 v7, v1, 1, 2")
    A("v_mov_b32 v28, 0x0c0c0100"); A("v_mov_b32 v29, 0x01000c0c"); A("v_cndmask_b32 v28, v28, v29, vcc")
    A("v_mov_b32 v29, 0x0c0c0302"); A("v_mov_b32 v30, 0x03020c0c"); A("v_cndmask_b32 v29, v29, v30, vcc")
    A("v_mov_b32 v30, 0x0c0c0c0c")
    for r in range(4):
        A(f"v_cmp_eq_u32 vcc, {r}, v7"); A(f"v_cndmask_b32 v{14+r}, v30, v28, vcc"); A(f"v_cndmask_b32 v{18+r}, v30, v29, vcc")
    A(f"v_mov_b32 v13, {L_ML}"); A(f"v_mov_b32 v23, {OOB}")
    A("s_waitcnt vmcnt(20)")
    for base, a in ((XS, 10), (XO, 11)):
        A(f"ds_read_b64 v[{base}:{base+1}], v{a} offset:{L_X}"); A(f"ds_read_b64 v[{base+2}:{base+3}], v{a} offset:{L_X+8}")
        A(f"ds_read_b64 v[{base+4}:{base+5}], v{a} offset:{L_X+16}"); A(f"ds_read_b64 v[{base+6}:{base+7}], v{a} offset:{L_X+24}")
        A(f"ds_read_b64 v[{base+8}:{base+9}], v{a} offset:{L_X+32}")
    stamp(2)
    A("s_waitcnt lgkmcnt(0)")
    A("s_load_dword s56, s[40:41], 0")
    if CC is None:
        A("s_sub_u32 s78, s31, 24"); A("s_lshl3_add_u32 s47, s30, s78"); A("s_and_b32 s47, s47, 63")
        A("s_lshl_b32 s78, s47, 7"); A("s_and_b32 s46, s31, 1"); A("s_lshl_b32 s80, s46, 13"); A("s_add_u32 s44, s78, s80"); A(f"s_add_u32 s44, s44, {WS_PRB}")
        A("s_xor_b32 s45, s44, 0x2000")
        A("s_cmp_ge_u32 s31, 24"); A("s_cbranch_scc0 L_v1 ; nf")
        A("s_load_dword s48, s[40:41], s44 glc"); A("s_load_dword s49, s[40:41], s45 glc")
        A("L_v1:")
    C("""LayerNorm(x): lanes 0-31 row 0, lanes 32-63 row 1, two passes, rounded to bf16 where the reference rounds""")
    X, mean, tmp = 192, 52, 56
    for i in range(10):
        A(f"v_lshlrev_b32 v{X+2*i}, 16, v{XS+i}"); A(f"v_and_b32 v{X+2*i+1}, 0xffff0000, v{XS+i}")
    pk("add", tmp, X, X+2); pk("add", tmp+2, X+4, X+6)
    for i in range(4, 10): pk("add", tmp+2*(i&1), tmp+2*(i&1), X+2*i)
    pk("add", tmp, tmp, tmp+2); A(f"v_add_f32 v{mean}, v{tmp}, v{tmp+1}")
    row_allred("v_add_f32", mean); swap_allred("v_add_f32", mean, tmp, 16)
    A(f"v_mul_f32 v{mean}, {F(1/640)}, v{mean}")
    for i in range(10): pk("add", X+2*i, X+2*i, mean, mod="op_sel_hi:[1,0] neg_lo:[0,1] neg_hi:[0,1]")
    for i in range(10):
        t = tmp + 2*(i&1)
        if i < 2: pk("mul", t, X+2*i, X+2*i)
        else: pk("fma", t, X+2*i, X+2*i, t)
    pk("add", tmp, tmp, tmp+2)
    va = mean + 2
    A(f"v_add_f32 v{va}, v{tmp}, v{tmp+1}")
    row_allred("v_add_f32", va); swap_allred("v_add_f32", va, tmp, 16)
    A(f"v_mul_f32 v{va}, {F(1/640)}, v{va}")
    bf16r(mean, mean); bf16r(va, va)
    A(f"v_add_f32 v{va}, {F(1e-5)}, v{va}"); bf16r(va, va)
    A(f"v_sqrt_f32 v{va}, v{va}"); bf16r(va, va)
    A(f"v_rcp_f32 v{va}, v{va}")
    A("v_mov_b32 v53, v52"); A("v_mov_b32 v55, v54")
    for i in range(10):
        A(f"v_lshlrev_b32 v{X+2*i}, 16, v{XO+i}"); A(f"v_and_b32 v{X+2*i+1}, 0xffff0000, v{XO+i}")
    A("v_permlane32_swap_b32 v52, v53"); A("v_permlane32_swap_b32 v54, v55")
    A("s_mov_b32 vcc_lo, 0xff00ff00"); A("s_mov_b32 vcc_hi, 0xff00ff00")
    A("v_cndmask_b32 v52, v52, v53, vcc"); A("v_cndmask_b32 v54, v54, v55, vcc")
    for i in range(10): pk("add", X+2*i, X+2*i, mean, mod="op_sel_hi:[1,0] neg_lo:[0,1] neg_hi:[0,1]")
    for i in range(10): A(f"v_cvt_pk_bf16_f32 v{XO+i}, v{X+2*i}, v{X+2*i+1}")
    for i in range(10):
        A(f"v_lshlrev_b32 v{X+2*i}, 16, v{XO+i}"); A(f"v_and_b32 v{X+2*i+1}, 0xffff0000, v{XO+i}")
    for i in range(10): pk("mul", X+2*i, X+2*i, va, mod="op_sel_hi:[1,0]")
    for i in range(10): A(f"v_cvt_pk_bf16_f32 v{XO+i}, v{X+2*i}, v{X+2*i+1}")
    stamp(3)
    C("""q[b][8i+e] partial = sum over rows xn[b][row] * wq[row][8i+e]: A row (b,e) holds xn in element e, B = 4 rows x 128 columns as loaded""")
    for t in range(22):
        if t < 20:
            A(f"s_waitcnt vmcnt({19-t})"); A(f"ds_read_b128 v[{WQ+4*t}:{WQ+4*t+3}], v2 offset:{1024*t}")
            for r in range(4): A(f"v_perm_b32 v{AO+4*t+r}, v{XO+t//2}, v{XO+t//2}, v{14+4*(t&1)+r}")
        if t > 1:
            A(f"s_waitcnt lgkmcnt({min(2, 21-t)})"); mfma(ACC, AO+4*(t-2), WQ+4*(t-2), t == 2)
    C("""s56 = this launch's tag = epoch word of d_ws + 0x01010101; every hand-off carries it. record: (sum, sum, tag, tag ^ XCC id)""")
    A("s_add_u32 s56, s56, 0x01010101")
    A("s_lshl_b32 s39, s39, 11"); A(f"s_add_u32 s39, s39, {WS_QP}")
    A("v_mov_b32 v34, s56"); A("v_mov_b32 v35, s56"); A("v_mov_b32 v38, s56"); A("v_mov_b32 v39, s56")
    A("v_mov_b64 v[32:33], v[28:29]"); A("v_mov_b64 v[36:37], v[30:31]")
    def qstore(fl):
        A(f"buffer_store_dwordx4 v[32:35], v2, {WS}, s39 offen {fl}")
        A(f"buffer_store_dwordx4 v[36:39], v2, {WS}, s39 offen offset:1024 {fl}")
    if QL:
        A("s_getreg_b32 s57, hwreg(HW_REG_XCC_ID, 0, 4)"); A("s_xor_b32 s57, s57, s56"); A("v_mov_b32 v35, s57"); A("v_mov_b32 v39, s57")
        qstore("")
    else: qstore("sc1")
    stamp(4)
    def recl():
        A("s_not_b32 s78, s56")
        for r in range(4): A(f"v_mov_b32 v{24+r}, s78")
        A("s_mov_b32 exec_hi, 0xff")
        A(f"buffer_store_dwordx4 v[24:27], v2, {WS}, s38 offen")
        A("s_mov_b32 exec_hi, -1")
    if RC == 1: recl()
    A("s_andn2_b32 s78, s39, 0x3fff"); A("s_lshl_b32 s80, s34, 9"); A("s_add_u32 s78, s78, s80")
    A("v_lshlrev_b32 v42, 10, v40"); A("v_lshl_add_u32 v42, v41, 4, v42"); A("v_add_u32 v42, s78, v42")
    for k in range(1, 4): A(f"s_movk_i32 s{80+k}, {4096*k}")
    A("v_lshlrev_b32 v43, 4, v9"); A("v_and_b32 v7, 1, v8"); A("v_lshl_add_u32 v43, v7, 3, v43"); A("v_lshl_add_u32 v43, v40, 2, v43"); A(f"v_add_u32 v43, {L_Q}, v43")
    assert QL
    A("s_lshl_b32 s77, s30, 16"); A(f"s_add_u32 s77, s77, {WS_QP}"); A("v_lshlrev_b32 v47, 11, v1")
    C("""workgroups 24..31 time one line in each 8 KB block of a pair and vote which block is on which side of the package;
 the majority only places the hand-off buffers (speed), every reader and writer uses the same complete vote""")
    if CC is None:
        flush()
        A("s_cmp_ge_u32 s31, 24"); A("s_cbranch_scc0 L_v2")
        A("s_memtime s[60:61]"); A("s_waitcnt lgkmcnt(0)")
        A("s_load_dword s48, s[40:41], s44 glc"); A("s_waitcnt lgkmcnt(0)")
        A("s_memtime s[62:63]"); A("s_waitcnt lgkmcnt(0)")
        A("s_load_dword s49, s[40:41], s45 glc"); A("s_waitcnt lgkmcnt(0)")
        A("s_memtime s[64:65]"); A("s_waitcnt lgkmcnt(0)")
        A("s_sub_u32 s60, s62, s60"); A("s_sub_u32 s62, s64, s62"); A("s_cmp_gt_u32 s60, s62"); A("s_addc_u32 s46, s46, 0")
        A("s_getreg_b32 s78, hwreg(HW_REG_XCC_ID, 2, 1)"); A("s_xor_b32 s46, s46, s78"); A("s_and_b32 s46, s46, 1"); A("s_xor_b32 s46, s46, s56")
        A("v_mov_b32 v44, s46"); A("s_and_b32 s47, s47, 7"); A("s_lshl_b32 s78, s30, 5"); A("s_add_u32 s47, s47, s78"); A("s_lshl_b32 s47, s47, 2"); A("s_mov_b64 exec, 1")
        if qdelay is None: A("s_waitcnt vmcnt(0)")
        A(f"buffer_store_dword v44, v2, {WS}, s47 offen offset:{WS_VOTE} sc1")
        A("s_mov_b64 exec, -1")
        A("s_branch L_v3")
        A("L_v2:")
    if qdelay is None: A("s_waitcnt vmcnt(0)")
    elif qdelay: A(f"s_sleep {qdelay}")
    A("L_v3:")
    stamp(5)
    A(f"s_mov_b32 s90, {SPIN}")
    flush()
    if QL: A("s_mov_b32 s58, 0")
    C("""gather the eight partial sums of this head; a missing or foreign-XCD record makes this one be written through as well""")
    A("L_qpoll:")
    if "halfq" in exp: A("s_mov_b32 exec_hi, 0")
    if "noqld" in exp: A("s_mov_b64 exec, 1")
    for jj in range(8):
        A(f"buffer_load_dwordx4 v[{64+4*jj}:{67+4*jj}], v42, {WS}, {f's{80+jj//2}' if jj//2 else '0'} offen offset:{2048*(jj&1)} sc1")
    A("s_waitcnt vmcnt(0)")
    if QL:
        A("v_xor_b32 v7, s56, v66"); A("v_xor_b32 v6, s57, v67")
        for i in range(1, 8):
            A(f"v_bitop3_b32 v7, v7, v{66 + 4*i}, s56 bitop3:0xf6"); A(f"v_bitop3_b32 v6, v6, v{67 + 4*i}, s57 bitop3:0xf6")
        A("v_or_b32 v5, v6, v7"); A("v_cmp_ne_u32 vcc, 0, v5")
        A("s_cbranch_vccz L_qok")
        A("s_cmp_eq_u32 s58, 0"); A("s_cbranch_scc0 L_q2")
        qstore("sc1"); A("s_mov_b32 s58, 1")
        A("L_q2:")
        A("v_lshrrev_b32 v6, 4, v6"); A("v_or_b32 v5, v6, v7"); A("v_cmp_ne_u32 vcc, 0, v5")
    else:
        A("v_xor_b32 v7, s56, v66")
        for i in range(1, 16): A(f"v_bitop3_b32 v7, v7, v{66 + 4*(i//2) + (i&1)}, s56 bitop3:0xf6")
        A("v_cmp_ne_u32 vcc, 0, v7")
    A("s_cbranch_vccz L_qok")
    A("s_sub_u32 s90, s90, 1"); A("s_cbranch_scc0 L_qpoll")
    A("L_qok:")
    if "halfq" in exp or "noqld" in exp: A("s_mov_b64 exec, -1")
    if QL: A("v_mov_b32 v39, s56")
    if diag: A("v_writelane_b32 v255, s90, 56")
    A("v_mov_b32 v48, s57"); A("s_mov_b64 exec, 0x3ff")
    A(f"buffer_load_dword v48, v47, {WS}, s77 offen offset:12 sc1")
    if PFO == 1:
        A("s_mov_b64 exec, 31"); A(f"buffer_load_dword v5, v22, {WS}, s38 offen sc1")
    A("s_mov_b64 exec, -1")
    if PFO == 2:
        A("s_sub_u32 s78, s31, 10"); A("s_cmp_lt_u32 s78, 8"); A("s_cbranch_scc0 L_pfo")
        A("s_lshl_b32 s78, s78, 12"); A("s_lshl_b32 s80, s30, 15"); A("s_add_u32 s78, s78, s80"); A(f"s_add_u32 s78, s78, {WS_OP}")
        A("s_mov_b64 exec, 0x1f1f1f1f"); A(f"buffer_load_dword v5, v22, {WS}, s78 offen sc1"); A("s_mov_b64 exec, -1")
        A("L_pfo:")
    if RC == 2: recl()
    for i in range(4): pk("add", 64+8*i, 64+8*i, 68+8*i)
    pk("add", 64, 64, 72); pk("add", 80, 80, 88); pk("add", 64, 64, 80)
    A("v_cvt_pk_bf16_f32 v64, v64, v65")
    A("ds_write_b32 v43, v64")
    stamp(6)
    def apbase(d):
        A(f"s_and_b32 s{d}, s30, 3"); A(f"s_lshl_b32 s{d}, s{d}, 4"); A("s_lshr_b32 s80, s30, 2"); A(f"s_add_u32 s{d}, s{d}, s80"); A(f"s_lshl_b32 s{d}, s{d}, 13")
        A(f"s_add_u32 s{d}, s{d}, {WS_AP}")
        if CC: A(f"s_xor_b32 s{d}, s{d}, 0x2000")
    def mlp5_setup():
        A("v_lshlrev_b32 v224, 2, v0")
        A("global_load_dword v252, v224, s[4:5]"); A("global_load_dword v253, v224, s[4:5] offset:1280")
        apbase(78); A("v_lshl_add_u32 v225, v0, 4, s78")
        A("v_lshrrev_b32 v226, 4, v0"); A("v_lshlrev_b32 v226, 6, v226"); A("v_bfe_u32 v7, v0, 1, 2"); A("v_lshl_add_u32 v226, v7, 4, v226")
        A("v_bfe_u32 v7, v0, 3, 1"); A("v_lshl_add_u32 v226, v7, 3, v226"); A("v_and_b32 v7, 1, v0"); A("v_lshl_add_u32 v226, v7, 2, v226"); A(f"v_add_u32 v226, {L_YB}, v226")
        A(f"v_mul_u32_u24 v227, {YBS}, v7"); A("v_lshl_add_u32 v227, v8, 4, v227"); A("s_lshl_b32 s78, s3, 8"); A("v_add_u32 v227, s78, v227")
        A("v_lshlrev_b32 v228, 7, v9"); A("v_lshl_add_u32 v228, v8, 4, v228"); A("s_lshl_b32 s78, s3, 9"); A("v_add_u32 v228, s78, v228")
        A(f"v_add_u32 v227, {L_YB}, v227"); A(f"v_add_u32 v228, {L_PB}, v228")
        A("v_and_b32 v7, 1, v8"); A("v_mul_u32_u24 v230, 48, v7"); A("v_lshrrev_b32 v7, 1, v8"); A("v_lshl_add_u32 v230, v7, 2, v230")
        A("s_lshl_b32 s78, s3, 3"); A(f"s_add_u32 s78, s78, {L_SB}"); A("v_add_u32 v230, s78, v230")
        A("v_lshrrev_b32 v7, 2, v1"); A("v_lshlrev_b32 v231, 6, v7"); A("v_and_b32 v7, 1, v8"); A("v_lshl_add_u32 v231, v7, 5, v231")
        A("v_and_b32 v7, 3, v1"); A("v_lshl_add_u32 v231, v7, 3, v231"); A("s_lshl_b32 s78, s3, 13"); A(f"s_add_u32 s78, s78, {L_W1}"); A("v_add_u32 v231, s78, v231"); A("v_xor_b32 v232, 32, v231")
    for r in (224, 225, 246, 56, 57): A(f"v_mov_b32 v{r}, 0")
    A("s_cmp_eq_u32 s36, 2"); A("s_cbranch_scc0 L_nofin")
    mlp5_setup()
    A("s_lshr_b32 s35, s30, 2")
    if OL:
        assert M0
        tab = [list(range(8)), [8, 9, 10, 12, 14, 16, 31, 31], [11, 13, 15, 17, 18, 19, 31, 31]]
        lo = lambda t: sum(v << 8*i for i, v in enumerate(t[:4])); hi = lambda t: sum(v << 8*i for i, v in enumerate(t[4:]))
        A("s_and_b32 s78, s30, 3"); A("s_add_u32 s78, s78, s35")
        A("s_mov_b64 s[60:61], -1")
        for k in range(3):
            A(f"s_cmp_eq_u32 s78, {k+1}"); A(f"s_cselect_b32 s60, {lo(tab[k]):#x}, s60"); A(f"s_cselect_b32 s61, {hi(tab[k]):#x}, s61")
        A("s_sub_u32 s78, s31, 10"); A("s_lshl_b32 s78, s78, 3"); A("s_lshr_b64 s[60:61], s[60:61], s78"); A("s_and_b32 s33, s60, 31")
    elif M0:
        A("s_sub_u32 s78, s31, 10"); A("s_lshr_b32 s78, s78, 1"); A("s_add_u32 s80, s35, 3"); A("s_mul_i32 s78, s78, s80")
        A("s_and_b32 s80, s30, 3"); A("s_add_u32 s78, s78, s80"); A("s_add_u32 s78, s78, s35"); A("s_sub_u32 s78, s78, 1")
        A("s_and_b32 s80, s31, 1"); A("s_lshl1_add_u32 s33, s78, s80")
    else:
        A("s_lshr_b32 s78, s37, 4"); A("s_lshl_b32 s78, s78, 3"); A("s_and_b32 s80, s37, 7"); A("s_add_u32 s33, s78, s80")
    A("s_min_u32 s34, s33, 19"); A("s_mul_i32 s85, s35, 20"); A("s_add_u32 s85, s85, s34")
    A("s_mul_i32 s78, s85, 52"); A("s_lshr_b32 s78, s78, 9")
    A("s_mul_i32 s80, s78, 10"); A("s_sub_u32 s80, s85, s80")
    A("s_mul_i32 s78, s78, 160")
    A("s_and_b32 s81, s80, 1"); A("s_lshl_b32 s82, s81, 6"); A("s_lshr_b32 s83, s80, 1"); A("s_lshl_b32 s83, s83, 2"); A("s_add_u32 s82, s82, s83")
    A("s_lshl_b32 s81, s81, 3"); A("s_add_u32 s81, s81, 128")
    A("v_bfe_u32 v7, v1, 1, 2"); A("v_lshlrev_b32 v12, 4, v7")
    A("v_bfe_u32 v7, v1, 1, 1"); A("v_lshlrev_b32 v15, 4, v7"); A("v_bfe_u32 v7, v1, 2, 1"); A("v_lshl_add_u32 v15, v7, 2, v15")
    A("s_cmp_lt_u32 s80, 8"); A("s_cselect_b32 s82, s82, s81"); A("s_cselect_b64 vcc, -1, 0"); A("s_add_u32 s78, s78, s82")
    A("v_cndmask_b32 v12, v15, v12, vcc"); A("v_add3_u32 v14, v12, v8, s78"); A("v_lshlrev_b32 v12, 1, v14")
    A("v_mov_b32 v17, 0"); A("v_mov_b32 v16, 0")
    A("global_load_short_d16_hi v17, v12, s[22:23]")
    A("v_and_b32 v7, 1, v1"); A(f"v_mul_u32_u24 v15, {YBS}, v7"); A("v_mul_u32_u24 v7, 1280, v7"); A("v_add_u32 v12, v12, v7")
    if PFOUT: A("global_load_ushort v5, v12, s[24:25]")
    A("v_lshrrev_b32 v7, 5, v14"); A("v_lshl_add_u32 v15, v7, 6, v15"); A("v_bfe_u32 v7, v14, 2, 2"); A("v_lshl_add_u32 v15, v7, 4, v15")
    A("v_bfe_u32 v7, v14, 4, 1"); A("v_lshl_add_u32 v15, v7, 3, v15"); A("v_and_b32 v7, 3, v14"); A("v_lshl_add_u32 v15, v7, 1, v15"); A(f"v_add_u32 v15, {L_YB}, v15")
    A("v_bfe_u32 v7, v1, 3, 1"); A("v_cmp_eq_u32 vcc, 0, v7"); A("v_cndmask_b32 v12, v23, v12, vcc")
    A("v_lshlrev_b32 v56, 14, v8"); A("v_lshl_add_u32 v56, v7, 12, v56"); A("v_and_b32 v57, 7, v1"); A("v_lshl_add_u32 v56, v57, 4, v56")
    A("s_lshl_b32 s78, s34, 7"); A("s_lshl_b32 s80, s35, 13"); A("s_add_u32 s78, s78, s80"); A(f"s_add_u32 s78, s78, {WS_MP}")
    if CC: A("s_xor_b32 s78, s78, 0x2000")
    A("v_add_u32 v56, s78, v56")
    for n in range(1, 7): A(f"s_mov_b32 s{80+n}, {n*65536}")
    A("L_nofin:")
    stamp(7)
    A("s_waitcnt vmcnt(0)")
    A("v_cmp_ne_u32 vcc, s57, v48"); A("s_cmp_lg_u64 vcc, 0")
    if not local: A("s_cmp_eq_u32 0, 0")
    A("s_cselect_b32 s76, 0, -1")
    if OMS:
        A("s_cmp_eq_u32 s36, 2"); A("s_cselect_b32 s76, 0, s76")
    A("s_not_b32 s77, s76")
    if diag: A("v_writelane_b32 v255, s77, 55")
    stamp(8)
    flush()
    A(f"s_mov_b32 s90, {SPIN*4}")
    C("""running max / sum of the four waves -> wave factors for the last wave, (max, sum, tag, tag) for the wo workgroups""")
    A("L_mlw:")
    A("ds_read_b128 v[64:67], v13"); A("ds_read_b128 v[68:71], v13 offset:16")
    A("s_waitcnt lgkmcnt(0)")
    A("v_max3_u32 v7, v65, v67, v69"); A("v_max_u32 v7, v7, v71"); A("v_cmp_eq_u32 vcc, -1, v7")
    A("s_cbranch_vccz L_mlw2")
    A("s_sleep 1")
    A("s_sub_u32 s90, s90, 1"); A("s_cbranch_scc0 L_mlw")
    A("L_mlw2:")
    A("v_max3_f32 v36, v64, v66, v68"); A("v_max_f32 v36, v36, v70")
    for i in range(4): A(f"v_sub_f32 v{64+2*i}, v{64+2*i}, v36")
    for i in range(4): A(f"v_mul_f32 v{64+2*i}, {LOG2E:#x}, v{64+2*i}")
    for i in range(4): A(f"v_exp_f32 v{64+2*i}, v{64+2*i}")
    A("v_mul_f32 v37, v64, v65")
    for i in range(1, 4): A(f"v_fmac_f32 v37, v{64+2*i}, v{65+2*i}")
    A("v_mov_b32 v45, s76"); A("ds_write_b32 v13, v45 offset:64")
    A("ds_write_b128 v13, v[64:67] offset:32"); A("ds_write_b128 v13, v[68:71] offset:48")
    A("s_mov_b32 exec_hi, 0")
    if MLS: A("s_mov_b32 exec_lo, 0xff")
    else:
        A("s_and_b32 exec_lo, s76, 0xff")
        A(f"buffer_store_dwordx4 v[36:39], v2, {WS}, s38 offen offset:512")
        A("s_and_b32 exec_lo, s77, 0xff")
    A(f"buffer_store_dwordx4 v[36:39], v2, {WS}, s38 offen offset:512 sc1")
    A("s_mov_b64 exec, -1")
    A(f"s_cmp_ge_u32 s31, {WARM or 99}"); A("s_cselect_b32 s59, 2, s36")
    A("v_lshrrev_b32 v47, 3, v1"); A("v_lshlrev_b32 v47, 7, v47"); A("v_and_b32 v7, 7, v1"); A("v_lshl_add_u32 v47, v7, 2, v47")
    flld = lambda: A(f"buffer_load_dword v46, v47, {WS}, 0 offen offset:{WS_VOTE} sc1")
    A("s_cmp_eq_u32 s59, 2"); A("s_cbranch_scc0 L_f0")
    flld()
    A("L_f0:")
    stamp(9)
    if "notail" not in exp:
        A("s_cmp_eq_u32 s59, 2"); A("s_cbranch_scc1 L_fl")
    A("L_aend:")
    fin()
    C("""MLP workgroups: all votes, side word, lines of the sums made resident""")
    A("L_fl:")
    A(f"s_mov_b32 s90, {SPIN}")
    A("s_waitcnt vmcnt(0)")
    A("L_fchk:")
    assert CC is None
    A("v_xor_b32 v7, s56, v46"); A("v_cmp_lt_u32 vcc, 1, v7")
    A("s_cbranch_vccz L_fok")
    flld()
    A("s_waitcnt vmcnt(0)")
    A("s_sub_u32 s90, s90, 1"); A("s_cbranch_scc0 L_fchk")
    A("L_fok:")
    if CC is None:
        A("v_cmp_ne_u32 vcc, s56, v46"); A("s_bcnt1_i32_b64 s78, vcc"); A("s_cmp_gt_u32 s78, 32"); A("s_cselect_b32 s78, 0x2000, 0")
        A("v_mov_b32 v46, s78"); A(f"v_mov_b32 v47, {L_CW}"); A("ds_write_b32 v47, v46")
        A("v_xor_b32 v225, s78, v225"); A("v_xor_b32 v56, s78, v56")
        if diag: A("v_writelane_b32 v255, s78, 58"); A("s_bcnt1_i32_b64 s78, vcc"); A("v_writelane_b32 v255, s78, 57")
        A("s_waitcnt lgkmcnt(0)")
    A("s_cmp_eq_u32 s36, 2"); A("s_cbranch_scc0 L_aend")
    if MW:
        A("v_readfirstlane_b32 s60, v225")
        A("s_sub_u32 s78, s31, 10"); A("s_mul_i32 s78, s78, 54"); A("v_add_u32 v7, s78, v1")
        A("v_mul_u32_u24 v6, 1639, v7"); A("v_lshrrev_b32 v6, 16, v6"); A("v_mul_u32_u24 v6, 88, v6"); A("v_add_lshl_u32 v6, v6, v7, 7")
        A("v_cmp_gt_u32 vcc, 320, v7"); A("v_cndmask_b32 v6, v23, v6, vcc")
        A("s_mov_b32 exec_hi, 0x3fffff")
        A(f"buffer_load_dword v4, v6, {WS}, s60 offen sc1")
        A("s_mov_b64 exec, -1")
    if MPW:
        A("s_lshl_b32 s63, s37, 13"); A("s_and_b32 s64, s37, 1"); A("s_lshl_b32 s64, s64, 12"); A("s_sub_u32 s63, s63, s64"); A(f"s_add_u32 s63, s63, {WS_MP}")
        A("v_mul_u32_u24 v7, 7680, v40"); A("v_add_u32 v7, v7, v2"); A("s_not_b32 s64, s56")
        for r in range(4): A(f"v_mov_b32 v{24+r}, s64")
    if not W1W: A("s_barrier")
    if MPW:
        for k in range(5): A(f"buffer_store_dwordx4 v[24:27], v7, {WS}, s63 offen offset:{512*k} sc1")
    A("s_barrier")
    A("s_branch L_mlp5")

    C("""================= waves 1..4: K / V stream with seven loads in flight each =================""")
    A("L_stream:")
    pend.extend(keep)
    stamp(1)
    A("s_sub_u32 s91, s3, 1")
    A("s_waitcnt lgkmcnt(0)")
    A("s_add_u32 s56, s56, 0x01010101")
    A("s_lshl3_add_u32 s82, s91, s30" if H8 else "s_lshl2_add_u32 s82, s30, s91"); A(f"s_mul_i32 s82, s82, {128*1280}"); A("s_lshl_b32 s78, s37, 7"); A("s_add_u32 s82, s82, s78")
    A("s_lshl_b32 s78, s37, 2"); A("s_add_u32 s78, s78, s91"); A("s_mul_i32 s78, s78, 10240")
    A("s_lshl_b32 s83, s91, 14"); A("s_mul_i32 s80, s91, 10240"); A(f"s_add_u32 s88, s80, {L_W1}")
    A("s_cmp_eq_u32 s36, 1")
    A("s_cselect_b32 s44, s12, s20"); A("s_cselect_b32 s45, s13, s21"); A("s_cselect_b32 s46, 5242880, 0"); A("s_mov_b32 s47, 0x20000")
    A("s_cselect_b32 s82, s82, s78"); A("s_cselect_b32 s83, s83, s80"); A("s_cselect_b32 s87, 10240, 0")
    A("s_cmp_eq_u32 s36, 2"); A("s_cselect_b32 s46, 2211840, s46"); A("s_cselect_b32 s87, 128, s87"); A(f"s_addk_i32 s83, {L_WB}")
    if "nopre" in exp: A("s_mov_b32 s46, 0")
    srd(48, 12, 5242880); srd(52, 16, 2211840)
    A(f"v_mov_b32 v19, {OOB}")
    if NW:
        assert tall
        A(f"s_add_u32 s76, s83, {(16-NW)*1024}"); A(f"s_add_u32 s79, s82, {(16-NW)*10240}"); A("s_cmp_eq_u32 s36, 1")
        A(f"s_cselect_b32 s76, s76, {L_DUMMY}"); A("s_cselect_b32 s77, 0x400, 0"); A(f"s_cselect_b32 s79, s79, {OOB}")
    A("s_sub_u32 s78, s31, 18"); A("s_lshl2_add_u32 s78, s78, s91"); A("s_mul_i32 s78, s78, 46")
    A("v_add_u32 v32, s78, v1"); A("v_mul_u32_u24 v33, 6554, v32"); A("v_lshrrev_b32 v33, 22, v33")
    A("v_mul_u32_u24 v34, 640, v33"); A("v_sub_u32 v34, v32, v34")
    A("s_cmp_ge_u32 s31, 18"); A("s_cselect_b32 s80, 46, 0"); A("v_cmp_gt_u32 s[60:61], s80, v1")
    A("v_cmp_gt_u32 vcc, 4, v33"); A("s_and_b64 s[60:61], s[60:61], vcc")
    A(f"s_mul_i32 s80, s30, {163840 if H8 else 655360}")
    assert TS or not H8
    if TS:
        a_, b2_, c_ = TS; NL = 10*a_ + 8*b2_ + 14*c_
        assert NL % 80 == 0 and NL <= 1280 and NB == 16
        A("s_cmp_ge_u32 s31, 10"); A(f"s_cselect_b32 s81, {b2_}, {a_}"); A(f"s_cselect_b32 s85, {(40*a_ - 40*b2_) & 0xffffffff}, 0")
        A("s_cmp_ge_u32 s31, 18"); A(f"s_cselect_b32 s81, {c_}, s81"); A(f"s_cselect_b32 s85, {(40*a_ + 32*b2_ - 72*c_) & 0xffffffff}, s85")
        A("s_lshl2_add_u32 s78, s31, s91"); A("s_mul_i32 s78, s78, s81"); A("s_add_u32 s78, s78, s85")
        A("v_add_u32 v56, s78, v1")
        if NL < 1280 or H8:
            mg = -(-(1 << 22) // NL); assert all((x * mg) >> 22 == x // NL for x in range(4 * NL))
            A(f"v_mul_u32_u24 v35, {mg}, v56"); A("v_lshrrev_b32 v35, 22, v35"); A(f"v_mul_u32_u24 v35, {(10240 if H8 else 1280) - NL}, v35"); A("v_add_u32 v56, v56, v35")
        A("v_lshl_add_u32 v56, v56, 7, s80"); A("v_cmp_gt_u32 vcc, s81, v1"); A("v_cndmask_b32 v56, v19, v56, vcc")
    elif tall:
        A("s_mul_i32 s80, s32, 163840"); A("s_lshl2_add_u32 s78, s33, s91"); A(f"s_mul_i32 s78, s78, {320*NB}"); A("s_add_u32 s80, s80, s78")
        if NB < 16: A(f"s_add_u32 s80, s80, {(16-NB)*10240}")
        A("v_lshl_add_u32 v56, v1, 7, s80"); A(f"v_cmp_gt_u32 vcc, {5*NB//2}, v1"); A("v_cndmask_b32 v56, v19, v56, vcc")
    else:
        A("v_lshl_add_u32 v56, v32, 7, s80"); A("v_cndmask_b32 v56, v19, v56, s[60:61]"); A("s_mov_b32 s79, 327680")
    if M0:
        A("s_sub_u32 s78, s30, 1"); A("s_cselect_b32 s78, 27, s78"); A("v_mad_u32_u24 v36, v33, 7, s78")
    else: A("v_lshl_add_u32 v36, v33, 3, s30")
    A("v_cmp_gt_u32 vcc, 27, v36"); A("s_and_b64 vcc, vcc, s[60:61]")
    A("v_mul_u32_u24 v57, 3456, v34"); A("v_lshl_add_u32 v57, v36, 7, v57"); A("v_cndmask_b32 v57, v19, v57, vcc")
    for d in range(T1D):
        assert M0 and not T2
        A(f"v_xor_b32 v35, {(2, 1, 3)[d]}, v33"); A("v_mad_u32_u24 v35, v35, 7, s78"); A("v_cmp_gt_u32 vcc, 27, v35"); A("s_and_b64 vcc, vcc, s[60:61]")
        A(f"v_mul_u32_u24 v{251+d}, 3456, v34"); A(f"v_lshl_add_u32 v{251+d}, v35, 7, v{251+d}"); A(f"v_cndmask_b32 v{251+d}, v19, v{251+d}, vcc")
    if T2:
        A("v_mul_u32_u24 v252, 81920, v36"); A("v_lshl_add_u32 v252, v34, 7, v252"); A("v_cndmask_b32 v252, v19, v252, vcc")
    A("v_and_b32 v7, 1, v1"); A("v_lshlrev_b32 v7, 4, v7"); A("v_mov_b32 v32, 0xffff"); A("v_lshlrev_b32 v7, v7, v32")
    A("v_bfe_u32 v32, v1, 1, 2")
    for r in range(4):
        A(f"v_cmp_eq_u32 vcc, {r}, v32"); A(f"v_cndmask_b32 v{20+r}, 0, v7, vcc")
    A(f"v_lshlrev_b32 v10, 4, v9"); A(f"v_add_u32 v10, {L_Q}, v10")
    A("s_lshl_b32 s78, s91, 3"); A(f"s_add_u32 s78, s78, {L_ML}"); A("v_mov_b32 v11, s78")
    A(f"v_add_u32 v3, {L_RED}, v2"); A("s_lshl_b32 s78, s91, 9"); A("v_add_u32 v12, s78, v3")
    A(f"v_mov_b32 v254, {L_ML}")
    slots()
    A("v_lshrrev_b32 v58, 3, v1"); A("v_mul_u32_u24 v58, 1280, v58"); A("v_bfe_u32 v7, v1, 1, 2"); A("v_xor_b32 v7, v7, v8")
    A("v_lshl_add_u32 v58, v7, 5, v58"); A("v_and_b32 v59, 1, v1"); A("v_lshlrev_b32 v59, 4, v59"); A("v_add_u32 v58, v58, v59")
    A("v_and_b32 v7, 1, v7"); A("v_lshl_add_u32 v59, v7, 5, v59"); A("v_lshrrev_b32 v7, 2, v1"); A("v_mul_u32_u24 v7, 3456, v7"); A("v_add_u32 v59, v59, v7")
    pump(); stamp(2); pump()
    C("""role set-up while K streams in: idx < 10 wo tile (4 heads x 64 columns), idx 10..17 of groups 1..7 MLP slice (32 of 1728), else none""")
    ld1 = [(176 + 4*sp, f"v224, {WS}, 0 offen offset:{1024*sp}") for sp in range(4)]
    for r in (14, 224, 225, 229, 246): A(f"v_mov_b32 v{r}, 0")
    if "nosetup" in exp: A("s_branch L_su9")
    A("s_cmp_eq_u32 s36, 1"); A("s_cbranch_scc0 L_su2")
    A("s_lshl_b32 s78, s30, 2"); A("s_add_u32 s78, s78, s91"); A("s_lshl_b32 s78, s78, 13"); A(f"s_add_u32 s78, s78, {WS_OP}")
    A("v_lshrrev_b32 v32, 5, v1"); A("v_and_b32 v33, 31, v1"); A("v_lshl_add_u32 v224, v32, 12, s78"); A("v_lshl_add_u32 v224, v33, 4, v224")
    A("s_mul_i32 s80, s91, 2176"); A(f"s_add_u32 s80, s80, {L_OF}")
    A("v_mul_u32_u24 v226, 272, v32"); A("v_lshl_add_u32 v226, v33, 3, v226"); A("v_add_u32 v226, s80, v226")
    A("v_and_b32 v7, 1, v1"); A("v_add_u32 v235, -1, v7"); A("v_and_b32 v235, 0xff, v235")
    A("v_and_b32 v7, 7, v1"); A("v_mul_u32_u24 v227, 272, v7"); A("v_and_b32 v7, 1, v8"); A("v_lshl_add_u32 v227, v7, 7, v227"); A("v_lshlrev_b32 v234, 9, v7")
    A("v_lshrrev_b32 v7, 5, v1"); A("v_lshl_add_u32 v227, v7, 4, v227"); A("v_add_u32 v227, s80, v227")
    A("v_and_b32 v7, 7, v1"); A("v_lshl_add_u32 v225, v7, 10, s78")
    traddr1280(230, 2048)
    A("v_add_u32 v230, s83, v230")
    for ct in range(1, 4): A(f"v_xor_b32 v{230+ct}, {32*ct}, v230")
    A("v_lshlrev_b32 v229, 3, v1"); A(f"v_add_u32 v228, {L_OB}, v229")
    A("v_lshl_add_u32 v234, v9, 3, v234"); A("s_lshl_b32 s78, s91, 10"); A(f"s_add_u32 s78, s78, {L_OB}"); A("v_add_u32 v234, s78, v234")
    A("s_lshl_b32 s80, s30, 14"); A("s_lshl_b32 s81, s37, 9"); A("s_add_u32 s84, s80, s81"); A("s_lshl_b32 s80, s91, 17")
    A("s_add_u32 s84, s84, s80"); A(f"s_add_u32 s84, s84, {WS_AP}"); A("s_add_u32 s85, s84, 8192")
    A("s_branch L_su9")
    A("L_su2:")
    A("s_cmp_eq_u32 s36, 2"); A("s_cbranch_scc0 L_su9")
    mlp5_setup()
    A(f"s_mul_i32 s84, s91, {160*3456}"); A("s_lshl_b32 s78, s37, 6"); A("s_add_u32 s84, s84, s78"); A("s_mul_i32 s85, s91, 10")
    A("v_mov_b32 v13, 0"); A("v_and_b32 v14, 31, v1"); A("v_lshlrev_b32 v247, 2, v14"); A(f"v_add_u32 v247, {L_PB + 256}, v247")
    A("s_lshl_b32 s78, s37, 5"); A("v_add_lshl_u32 v14, v14, s78, 1")
    A("global_load_short_d16_hi v13, v14, s[18:19]")
    traddr1280(16, 10240)
    for i in range(10):
        A(f"s_add_u32 s78, s85, {i}"); A("s_and_b32 s80, s78, 3"); A("s_lshl_b32 s80, s80, 5"); A(f"v_xor_b32 v{233+i}, s80, v16")
        A("s_lshr_b32 s78, s78, 2"); A("s_lshl_b32 s78, s78, 10"); A(f"v_add_u32 v{233+i}, s78, v{233+i}")
    for i in range(0, 32, 2): A(f"v_mov_b64 v[{192+i}:{193+i}], 0")
    A("v_and_b32 v7, 1, v1")
    A("v_lshlrev_b32 v243, 6, v7"); A("v_lshl_add_u32 v243, v8, 4, v243"); A("s_lshl_b32 s78, s91, 7"); A(f"s_add_u32 s78, s78, {L_H1}"); A("v_add_u32 v243, s78, v243")
    A(f"v_lshlrev_b32 v244, 2, v1"); A(f"v_add_u32 v244, {L_PB}, v244")
    A("v_lshrrev_b32 v7, 5, v1"); A("v_mul_u32_u24 v248, 48, v7"); A(f"v_add_u32 v248, {L_SB}, v248")
    A("v_lshlrev_b32 v245, 6, v7"); A("v_bfe_u32 v7, v1, 2, 2"); A("v_lshl_add_u32 v245, v7, 4, v245")
    A("v_bfe_u32 v7, v1, 4, 1"); A("v_lshl_add_u32 v245, v7, 3, v245"); A("v_and_b32 v7, 3, v1"); A("v_lshl_add_u32 v245, v7, 1, v245"); A("v_add_u32 v245, s78, v245")
    A("s_lshl_b32 s86, s37, 13"); A("s_and_b32 s78, s37, 1"); A("s_lshl_b32 s78, s78, 12"); A("s_sub_u32 s86, s86, s78")
    A("s_lshr_b32 s78, s91, 1"); A("s_lshl_b32 s78, s78, 13"); A("s_add_u32 s86, s86, s78")
    A("s_and_b32 s78, s91, 1"); A("s_mul_i32 s78, s78, 1280"); A("s_add_u32 s86, s86, s78"); A(f"s_add_u32 s86, s86, {WS_MP}")
    if CC: A("s_xor_b32 s86, s86, 0x2000")
    A("v_lshl_add_u32 v246, v8, 2, v9"); A("v_lshlrev_b32 v246, 4, v246")
    A(f"v_mov_b32 v24, {F(-2*0.7978845608028654*1.4426950408889634)}"); A(f"v_mov_b32 v25, {F(-2*0.7978845608028654*1.4426950408889634*0.044715)}")
    A(f"v_mov_b32 v26, {F(1+1e-5)}"); A(f"v_mov_b32 v27, {F(1e-10)}"); A(f"v_mov_b32 v250, {F(1/640)}"); A(f"v_mov_b32 v249, {L_CW}")
    A("L_su9:")
    while st["waited"] < pos[16 + KQ]:
        pump()
        if st["waited"] == pos[15]: stamp(3)
    stamp(4)
    C("""scores: dot products per 16-byte chunk, transposing reduction -> one key per lane, bf16 roundings as in the reference""")
    Q = 60
    A(f"s_mov_b32 s90, {SPIN*4}")
    flush()
    if "noqw" in exp: A("s_branch L_qw2")
    A("L_qw:")
    A(f"ds_read_b128 v[{Q}:{Q+3}], v10")
    A("s_waitcnt lgkmcnt(0)")
    A(f"v_max3_u32 v7, v{Q}, v{Q+1}, v{Q+2}"); A(f"v_max_u32 v7, v7, v{Q+3}"); A("v_cmp_eq_u32 vcc, -1, v7")
    A("s_cbranch_vccz L_qw2")
    A("s_sleep 1")
    A("s_sub_u32 s90, s90, 1"); A("s_cbranch_scc0 L_qw")
    A("L_qw2:")
    L_mark = len(L)
    stamp(5)
    LIM = pos[31 - W] if QKP == "kv" else pos[30]
    P = 32
    for half in range(2):
        for r in range(4):
            for t in range(8*half, 8*half+8):
                A(f"v_dot2_f32_bf16 v{P+t}, v{K0+4*t+r}, v{Q+r}, {'0' if r == 0 else f'v{P+t}'}")
            if r & 1: pump(lim=LIM)
    R = 48
    for t in range(8): A(f"v_add_f32_dpp v{R+t}, v{P+t}, v{P+t} row_mirror row_mask:0xf bank_mask:0x3")
    for t in range(8): A(f"v_add_f32_dpp v{R+t}, v{P+t+8}, v{P+t+8} row_mirror row_mask:0xf bank_mask:0xc")
    for t in range(4): A(f"v_add_f32_dpp v{P+t}, v{R+t}, v{R+t} row_half_mirror row_mask:0xf bank_mask:0x5")
    for t in range(4): A(f"v_add_f32_dpp v{P+t}, v{R+t+4}, v{R+t+4} row_half_mirror row_mask:0xf bank_mask:0xa")
    pump(lim=LIM)
    for t in range(4): A(f"v_add_f32_dpp v{R+t}, v{P+t}, v{P+t} quad_perm:[2,3,0,1] row_mask:0xf bank_mask:0xf")
    A("s_mov_b32 vcc_lo, 0xcccccccc"); A("s_mov_b32 vcc_hi, 0xcccccccc")
    for t in range(2): A(f"v_cndmask_b32 v{P+t}, v{R+t}, v{R+t+2}, vcc")
    for t in range(2): A(f"v_add_f32_dpp v{R+t}, v{P+t}, v{P+t} quad_perm:[1,0,3,2] row_mask:0xf bank_mask:0xf")
    A("s_mov_b32 vcc_lo, 0xaaaaaaaa"); A("s_mov_b32 vcc_hi, 0xaaaaaaaa")
    S = 40
    A(f"v_cndmask_b32 v{S}, v{R}, v{R+1}, vcc")
    bf16r(S, S); A(f"v_mul_f32 v{S}, {F(128**-0.5)}, v{S}"); bf16r(S, S)
    A(f"v_mov_b32 v42, v{S}")
    pump(lim=LIM)
    row_allred("v_max_f32", 42); swap_allred("v_max_f32", 42, 44, 16); swap_allred("v_max_f32", 42, 44, 32)
    pump(lim=LIM)
    A(f"v_sub_f32 v43, v{S}, v42"); A(f"v_mul_f32 v43, {LOG2E:#x}, v43"); A("v_exp_f32 v43, v43")
    A("v_cvt_pk_bf16_f32 v45, v43, v43")
    row_allred("v_add_f32", 43); swap_allred("v_add_f32", 43, 44, 16); swap_allred("v_add_f32", 43, 44, 32)
    A("ds_write_b64 v11, v[42:43]")
    stamp(6)
    pump(lim=LIM)
    C("""p = exp(s - wave max); o partial = p V with p in element lane&7 of the A rows""")
    done = 0
    for t in range(16):
        for r in range(4): A(f"v_and_b32_dpp v{K0+4*t+r}, v45, v{20+r} row_newbcast:{t} row_mask:0xf bank_mask:0xf")
        if t >= 1 and pos[16 + done] <= st["waited"]:
            mfma(ACC, K0+4*done, V0+4*done, done == 0); done += 1
        if t in (4, 9): pump(lim=LIM)
    if "noqk" in exp:
        L[L_mark:] = [l for l in L[L_mark:] if not l.strip().startswith(("v_dot2", "v_add_f32_dpp", "v_and_b32_dpp", "v_max_f32_dpp", "v_permlane"))]
    stamp(7)
    for t in range(done, 16):
        while t and st["waited"] < pos[15 + t]: pump()
        if t == 15 and FPRE:
            A("ds_read_b128 v[52:55], v254 offset:48"); A("ds_read_b128 v[48:51], v254 offset:32"); A("ds_read_b32 v62, v254 offset:64")
            A("v_mov_b32 v61, 1"); A("v_mov_b32 v6, s56"); A("v_mov_b32 v7, s56"); A(f"s_mov_b32 s90, {SPIN*4}")
        wait_for(pos[16 + t]); mfma(ACC, K0+4*t, V0+4*t, t == 0)
        if t < 15: issue_to(pos[16 + t] + 1 + W)
    assert st["issued"] == len(seq)
    stamp(8)
    C("""the wave that draws the last ticket scales and adds the four partial rows and publishes them as bf16 + tags""")
    def wsum():
        for k in range(4):
            if FPRE: A(f"s_waitcnt lgkmcnt({3-k})")
            for hh in (0, 2):
                if k == 0: pk("mul", 28+hh, 32+hh, 48, mod="op_sel_hi:[1,0]")
                else: pk("fma", 28+hh, 32+4*k+hh, 48+2*k, 28+hh, mod="op_sel_hi:[1,0,1]")
            if FPRE and k == 0: A("v_readfirstlane_b32 s78, v60")
    if FPRE:
        keepp = list(pend); pend.clear()
        A("s_mov_b32 exec_hi, 0"); A("s_waitcnt lgkmcnt(0)")
        A("v_readfirstlane_b32 s80, v55"); A("v_readfirstlane_b32 s81, v62")
        A(f"ds_write_b128 v12, v[{ACC}:{ACC+3}]")
        A("s_mov_b32 exec_lo, 1")
        A("ds_add_rtn_u32 v60, v254, v61 offset:68")
        A("s_mov_b32 exec_lo, -1")
        for k in range(4): A(f"ds_read_b128 v[{32+4*k}:{35+4*k}], v3 offset:{512*k}")
        pend.extend(keepp)
        wsum()
        A("s_cmp_eq_u32 s80, -1"); A("s_cbranch_scc1 L_fw3")
    else:
        A("s_mov_b32 exec_hi, 0"); A("v_mov_b32 v61, 1"); A("v_mov_b32 v6, s56"); A("v_mov_b32 v7, s56")
        A(f"ds_write_b128 v12, v[{ACC}:{ACC+3}]")
        A("s_mov_b32 exec_lo, 1")
        A("ds_add_rtn_u32 v60, v254, v61 offset:68")
        A("s_mov_b32 exec_lo, -1")
        for k in range(4): A(f"ds_read_b128 v[{32+4*k}:{35+4*k}], v3 offset:{512*k}")
        A(f"s_mov_b32 s90, {SPIN*4}")
        keepp = list(pend); pend.clear()
        A("L_fw:")
        A("ds_read_b128 v[52:55], v254 offset:48"); A("ds_read_b128 v[48:51], v254 offset:32"); A("ds_read_b32 v62, v254 offset:64")
        pend.extend(keepp)
        A("s_waitcnt lgkmcnt(0)")
        A("v_readfirstlane_b32 s78, v60"); A("v_readfirstlane_b32 s80, v55"); A("v_readfirstlane_b32 s81, v62")
        for k in range(4):
            for hh in (0, 2):
                if k == 0: pk("mul", 28+hh, 32+hh, 48, mod="op_sel_hi:[1,0]")
                else: pk("fma", 28+hh, 32+4*k+hh, 48+2*k, 28+hh, mod="op_sel_hi:[1,0,1]")
        A("s_cmp_eq_u32 s80, -1"); A("s_cbranch_scc1 L_fw3")
    A("L_fw4:")
    A("s_cmp_eq_u32 s78, 2"); A("s_cbranch_scc0 L_fw2")
    A("v_cvt_pk_bf16_f32 v4, v28, v29"); A("v_cvt_pk_bf16_f32 v5, v30, v31")
    A("s_mov_b32 exec_lo, s81")
    A(f"buffer_store_dwordx4 v[4:7], v2, {WS}, s38 offen")
    A("s_not_b32 exec_lo, s81")
    A(f"buffer_store_dwordx4 v[4:7], v2, {WS}, s38 offen sc1")
    stamp(16)
    flush()
    A("L_fw2:")
    A("s_mov_b64 exec, -1")
    save = dict(st); NPRE = len(seq)
    if "notail" in exp: fin()
    A("s_cmp_eq_u32 s36, 2"); A("s_cbranch_scc1 L_mlp")
    A("s_cmp_eq_u32 s36, 0"); A("s_cbranch_scc1 L_idle")

    C("""---- wo role: wave w multiplies head w; A rows = (split, batch), the softmax factors scale the product rows ----""")
    mlld = lambda: A(f"buffer_load_dwordx4 v[208:211], v225, {WS}, 0 offen offset:512 sc1")
    for n in range(NR + PRE, 16 - NW):
        didx[n] = len(seq); seq.append(dma_a(n))
    blk = lambda n: didx[n]
    trd = [0]
    need = lambda ks: max(blk(4*ks + b) for b in range(4))
    kord = sorted(range(4), key=need)
    def trs():
        while trd[0] < 4 and need(kord[trd[0]]) <= st["waited"]:
            ks = kord[trd[0]]
            for ct in range(4):
                for u in range(2): A(f"ds_read_b64_tr_b16 v[{64+16*ks+4*ct+2*u}:{65+16*ks+4*ct+2*u}], v{230+ct} offset:{(4*ks+u)*1024}")
            trd[0] += 1
    Wc[0] = WO or W
    issue_to(pos[31] + 1 + W)
    trs()
    while st["issued"] < len(seq):
        pump(); trs()
    stamp(9)
    if P1G:
        def mlm():
            A("s_mov_b64 exec, 0x00ff00ff"); mlld(); A("s_mov_b64 exec, -1")
        l1 = [(r, lambda r=r, a=a: A(ldtext(r, a))) for r, a in ld1] + [(208, mlm)]
        A("v_mov_b32 v210, s56")
        poll_first(l1); st["issued"] += 5
        while trd[0] < 4:
            wait_for(need(kord[trd[0]])); trs()
        stamp(10)
        poll("1", l1, lambda: None, None, chk=lambda d, r: A(f"v_cmp_ne_u32 {d}, s56, v{r+2}"),
             clr=lambda r: r == 208 or A(f"ds_write_b64 v226, v[{r}:{r+1}] offset:{136*(r-176)}"))
    else:
        def round1(sk):
            for i, (r, a) in enumerate(ld1):
                if sk:
                    A(f"s_cmp_eq_u64 s[{62+2*i}:{63+2*i}], 0"); A(f"s_cbranch_scc1 L_r1_{i}")
                A(ldtext(r, a))
                if sk: A(f"L_r1_{i}:")
            A("s_mov_b64 exec, s[60:61]")
            if sk: A("s_cbranch_execz L_r1_4")
            mlld()
            if sk: A("L_r1_4:")
            A("s_mov_b64 exec, -1")
        A("s_mov_b64 s[60:61], 0x00ff00ff")
        A("v_mov_b32 v210, s56"); A("v_mov_b32 v211, s56")
        if WBAR == 1: A("s_barrier")
        if WBAR < 2:
            round1(False); st["issued"] += 5
        while trd[0] < 4:
            wait_for(need(kord[trd[0]])); trs()
        if WBAR == 2:
            A("s_barrier"); round1(False)
        stamp(10)
        A(f"s_mov_b32 s90, {SPIN}")
        if diag: flush()
        A("L_p1:")
        A("s_waitcnt vmcnt(0)")
        A("ds_write2_b64 v226, v[176:177], v[180:181] offset0:0 offset1:68"); A("ds_write2_b64 v226, v[184:185], v[188:189] offset0:136 offset1:204")
        for i in range(4): A(f"v_cmp_ne_u32 s[{62+2*i}:{63+2*i}], s56, v{178+4*i}")
        A("v_cmp_ne_u32 s[60:61], s56, v210"); A("v_cmp_ne_u32 vcc, s56, v211")
        A("s_or_b64 s[70:71], s[62:63], s[64:65]"); A("s_or_b64 s[72:73], s[66:67], s[68:69]"); A("s_or_b64 s[70:71], s[70:71], s[72:73]")
        A("s_or_b64 s[60:61], s[60:61], vcc"); A("s_or_b64 vcc, s[60:61], s[70:71]")
        A("s_cbranch_scc0 L_pd1")
        A("s_waitcnt lgkmcnt(0)")
        round1(True)
        A("s_sub_u32 s90, s90, 1"); A("s_cbranch_scc0 L_p1")
        A("s_waitcnt vmcnt(0)")
        A("L_pd1:")
    if diag: A("v_writelane_b32 v255, s90, 54")
    for ks in range(4): A(f"ds_read_b128 v[{192+4*ks}:{195+4*ks}], v227 offset:{32*ks}")
    stamp(11)
    fac = ["v_max_f32_dpp v210, v208, v208 quad_perm:[1,0,3,2] row_mask:0xf bank_mask:0xf",
           "v_max_f32_dpp v210, v210, v210 quad_perm:[2,3,0,1] row_mask:0xf bank_mask:0xf",
           "v_sub_f32 v208, v208, v210\nv_mul_f32 v208, %#x, v208" % LOG2E, "v_exp_f32 v208, v208", "v_mul_f32 v209, v208, v209",
           "v_add_f32_dpp v209, v209, v209 quad_perm:[1,0,3,2] row_mask:0xf bank_mask:0xf",
           "v_add_f32_dpp v209, v209, v209 quad_perm:[2,3,0,1] row_mask:0xf bank_mask:0xf",
           "v_rcp_f32 v209, v209", "v_mul_f32 v208, v208, v209", ""]
    for gh in range(2):
        for pr in range(2):
            fac.append("\n".join(f"v_mov_b32_dpp v{216+2*pr+b}, v208 row_newbcast:{4*b + 2*gh + pr} row_mask:{1 << gh:#x} bank_mask:0xf" for b in range(2)))
    n = 0
    for f_ in fac[:4]: A(f_)
    del fac[:4]
    for ct in range(4):
        for ks in range(4):
            if ct == 0: A(f"s_waitcnt lgkmcnt({3-ks})")
            mfma(144+4*ct, 192+4*ks, 64+16*ks+4*ct, ks == 0)
            if n < len(fac) and fac[n]: A(fac[n])
            n += 1
    A("s_mov_b32 exec_hi, 0")
    for ct in range(4):
        pk("mul", 144+4*ct, 144+4*ct, 216); pk("fma", 144+4*ct, 146+4*ct, 218, 144+4*ct)
        if ct & 1: A(f"ds_write2_b64 v234, v[{140+4*ct}:{141+4*ct}], v[{144+4*ct}:{145+4*ct}] offset0:{16*(ct-1)} offset1:{16*ct}")
    A("s_mov_b64 exec, -1")
    A("s_waitcnt lgkmcnt(0)"); A("s_barrier")
    for k in range(4): A(f"ds_read2st64_b64 v[{160+4*k}:{163+4*k}], v228 offset0:{2*k} offset1:{2*k+1}")
    for k in range(4):
        A(f"s_waitcnt lgkmcnt({3-k})"); pk("add", 160+4*k, 160+4*k, 162+4*k)
        if k & 1: pk("add", 156+4*k, 156+4*k, 160+4*k)
    pk("add", 160, 160, 168)
    A("v_bfi_b32 v160, v235, s56, v160")
    A(f"buffer_store_dwordx2 v[160:161], v229, {WS}, s84 offen sc1")
    A(f"buffer_store_dwordx2 v[160:161], v229, {WS}, s85 offen sc1")
    stamp(12)
    if WB == "wo":
        A("s_cmp_eq_u32 s31, 0"); A("s_cbranch_scc0 L_nwb"); A("s_cmp_eq_u32 s3, 1"); A("s_cbranch_scc0 L_nwb")
        A("s_waitcnt vmcnt(0)")
        A("buffer_wbl2 sc1")
        A("L_nwb:")
    fin()

    A("L_fw3:")
    A("s_cmp_eq_u32 s78, 2"); A("s_cbranch_scc0 L_fw2")
    if FPRE:
        A("ds_read_b128 v[52:55], v254 offset:48"); A("ds_read_b128 v[48:51], v254 offset:32"); A("ds_read_b32 v62, v254 offset:64")
        A("s_waitcnt lgkmcnt(0)")
        A("v_readfirstlane_b32 s80, v55"); A("v_readfirstlane_b32 s81, v62")
        wsum()
        A("s_cmp_eq_u32 s80, -1"); A("s_cbranch_scc0 L_fw4")
        A("s_sub_u32 s90, s90, 1"); A("s_cbranch_scc0 L_fw3")
    else:
        A("s_sub_u32 s90, s90, 1"); A("s_cbranch_scc0 L_fw")
    A("s_branch L_fw4")

    C("""---- no role: pull the group's w1 lines into L2 ----""")
    A("L_idle:")
    if IB: A("s_barrier")
    if T1 and not PT1: A(f"buffer_load_dword v6, v57, s[52:55], 0 offen {tnt}")
    for d in range(T1D): A(f"buffer_load_dword v{32+d}, v{251+d}, s[52:55], 0 offen {tnt}")
    if T2:
        A("s_mov_b32 s46, 2211840")
        A(f"buffer_load_dword v5, v252, s[44:47], 0 offen {tnt}")
    if probe2:
        A("s_cmp_eq_u32 s99, 0"); A("s_cbranch_scc1 L_q2z")
        A("L_q2y:"); A("s_sleep 2"); A("s_memrealtime s[62:63]"); A("s_waitcnt lgkmcnt(0)"); A("s_sub_u32 s62, s62, s99"); A("s_cmp_lt_i32 s62, 0"); A("s_cbranch_scc1 L_q2y")
        A("L_q2z:")
    if probe3 is not None:
        A("s_cmp_eq_u32 s31, 31"); A("s_cbranch_scc0 L_q3z"); A("s_cmp_eq_u32 s3, 1"); A("s_cbranch_scc0 L_q3z")
        A("v_readlane_b32 s60, v255, 0"); A("s_lshl_b32 s61, s30, 7"); A("s_add_u32 s61, s61, 0x3000"); A("v_mov_b32 v7, s60"); A("s_mov_b64 exec, 1")
        A(f"buffer_store_dword v7, v2, {WS}, s61 offen sc1"); A("s_mov_b64 exec, -1")
        A("s_cmp_eq_u32 s30, 7"); A("s_cbranch_scc0 L_q3z")
        for _ in range(4): A("s_sleep 127")
        for g in range(8): A(f"s_load_dword s{64+g}, s[40:41], {0x3000 + 128*g} glc")
        A("s_waitcnt lgkmcnt(0)")
        A("s_mov_b32 s72, s64"); A("s_mov_b32 s73, s64")
        for g in range(1, 8):
            A(f"s_min_u32 s72, s72, s{64+g}"); A(f"s_max_u32 s73, s73, s{64+g}")
        A(f"s_sub_u32 s73, s{73 if probe3 < 0 else 64 + probe3}, s72"); A("s_mul_i32 s73, s73, 20"); A("s_add_u32 s73, s73, s72"); A("s_add_u32 s73, s73, 4000")
        A("L_q3y:"); A("s_sleep 2"); A("s_memrealtime s[62:63]"); A("s_waitcnt lgkmcnt(0)"); A("s_sub_u32 s62, s62, s73"); A("s_cmp_lt_i32 s62, 0"); A("s_cbranch_scc1 L_q3y")
        A("L_q3z:")
    if not IB: A("s_barrier")
    if WB == "idle":
        A("s_cmp_eq_u32 s31, 31"); A("s_cbranch_scc0 L_nwb"); A("s_cmp_eq_u32 s3, 1"); A("s_cbranch_scc0 L_nwb")
        A("buffer_wbl2 sc1")
        A("L_nwb:")
    if WARM:
        nwv = (32 - WARM) * 4; per = 320 // nwv
        A(f"s_cmp_ge_u32 s31, {WARM}"); A("s_cbranch_scc0 L_widone")
        assert nwv in (8, 16)
        apbase(78)
        A(f"s_sub_u32 s81, s31, {WARM}"); A("s_lshl2_add_u32 s81, s81, s91")
        if nwv == 16:
            A("s_and_b32 s80, s81, 1"); A("s_mul_i32 s80, s80, 2560"); A("s_add_u32 s78, s78, s80"); A("s_lshr_b32 s81, s81, 1")
        A("s_lshl_b32 s81, s81, 14"); A("s_add_u32 s78, s78, s81")
        if CC is None:
            A(f"v_mov_b32 v7, {L_CW}"); A("ds_read_b32 v7, v7"); A("s_waitcnt lgkmcnt(0)"); A("v_readfirstlane_b32 s80, v7"); A("s_xor_b32 s78, s78, s80")
        A("v_lshlrev_b32 v7, 7, v1"); A(f"v_cmp_gt_u32 vcc, {per}, v1"); A("s_movk_i32 s90, 200")
        A("L_wi:")
        A("s_mov_b64 exec, vcc")
        A(f"buffer_load_dword v5, v7, {WS}, s78 offen sc1")
        A("s_waitcnt vmcnt(0)")
        if WSL: A(f"s_sleep {WSL}")
        A("v_cmp_eq_u32 vcc, -1, v5")
        A("s_cbranch_vccz L_widone")
        A("s_sub_u32 s90, s90, 1"); A("s_cbranch_scc0 L_wi")
        A("L_widone:")
    fin()

    C("""---- MLP role ----""")
    A("L_mlp:")
    st.update(save); del seq[NPRE:]; Wc[0] = WM or W
    if MPRE is None:
        seq.extend(dma_a(n) for n in range(NR + PRE, 10))
        issue_to(pos[31] + 1 + W)
        while st["issued"] < len(seq): pump()
    stamp(23)
    if not W1W: A("s_barrier")
    if MPRE is not None:
        redo[0] = True
        A("s_mov_b32 s46, 2211840"); A(f"s_sub_u32 s82, s82, {128*(NR + PRE - MPRE) - (128 if MPRE == 0 else 0)}")
        assert NR + PRE <= 10
        for n in range(MPRE, 10): dma_a(n)()
    stamp(24)
    wgt = [1] * len(seq)
    for n in range(10):
        if W1W:
            while sum(wgt[st["waited"] + 1:]) + 2 > W1W: wait_for(st["waited"] + 1)
            seq.append(None); wgt.append(2); st["issued"] += 1
        A(f"s_add_u32 m0, s88, {n*1024}")
        if n: A(f"s_add_u32 s84, s84, {16*3456}")
        A(f"buffer_load_dwordx4 v59, s[52:55], s84 offen {w1nt} lds")
    stamp(9)
    W1F, W2F, PL, HO, H1O = 64, 96, 136, 168, 192
    flush()
    A("s_waitcnt vmcnt(10)"); A("s_barrier")
    if CC is None: A("ds_read_b32 v15, v249")
    for i in range(10):
        for u in range(2):
            r = W2F + 4*i + 2*u
            A(f"ds_read_b64_tr_b16 v[{r}:{r+1}], v{233+i} offset:{L_W2 + u*20480}")
    if CC is None:
        A("s_waitcnt lgkmcnt(15)")
        A("v_readfirstlane_b32 s78, v15"); A("v_xor_b32 v225, v15, v225"); A("s_xor_b32 s86, s86, s78")
    C("""all five waves: thread = column pair; h = x + sum of the eight groups' attention sums""")
    A("L_mlp5:")
    sofr = [None, 76, 77, 87, 88, 89, 57, 58]
    for p in range(1, 8): A(f"s_mov_b32 s{sofr[p]}, {p*16384}")
    ld2 = [(PL + 4*p, lambda p=p: A(ldtext(PL + 4*p, f"v225, {WS}, {f's{sofr[p]}' if p else '0'} offen"))) for p in range(8)]
    A("v_mov_b32 v18, 0xffffff00"); A("v_mov_b32 v19, 0xff")
    for r in range(16): A(f"v_mov_b32 v{HO+r}, 0x3f803f80")
    A("s_mov_b32 s50, 0x00030003"); A("s_mov_b32 s51, 0x00030003"); A("s_mov_b32 s48, 0x00070007"); A("s_mov_b32 s49, 0x00070007")
    A("v_lshlrev_b32 v184, 16, v252"); A("v_lshlrev_b32 v185, 16, v253"); A("v_and_b32 v186, 0xffff0000, v252"); A("v_and_b32 v187, 0xffff0000, v253")
    if EF:
        poll_first(ld2); A("s_waitcnt vmcnt(8)")
    else: A("s_waitcnt vmcnt(0)")
    A("s_barrier")
    stamp(10)
    if not EF: poll_first(ld2)
    stamp(20)
    for ks in range(4):
        for ct in range(2):
            for u in range(2):
                r = W1F + 8*ks + 4*ct + 2*u
                A(f"ds_read_b64_tr_b16 v[{r}:{r+1}], v{231+ct} offset:{(2*ks+u)*1024}")
    stamp(22)
    SM = 40
    def sum2():
        for i in range(0, 16, 2): pk("add", SM+i, PL+i, PL+16+i)
        sum4(SM)
        if NR16:
            pk("add", SM, SM, 184); pk("add", SM+2, SM+2, 186)
    poll("2", ld2, sum2, 18)
    stamp(11)
    a, b_, c = SM, SM+4, SM+6
    def unpack():
        A(f"v_lshlrev_b32 v{a}, 16, v{b_}"); A(f"v_lshlrev_b32 v{a+1}, 16, v{b_+1}"); A(f"v_and_b32 v{a+2}, 0xffff0000, v{b_}"); A(f"v_and_b32 v{a+3}, 0xffff0000, v{b_+1}")
    if not NR16:
        A(f"v_cvt_pk_bf16_f32 v{b_}, v{a}, v{a+2}"); A(f"v_cvt_pk_bf16_f32 v{b_+1}, v{a+1}, v{a+3}"); unpack()
        pk("add", a, a, 184); pk("add", a+2, a+2, 186)
    A(f"v_cvt_pk_bf16_f32 v{b_}, v{a}, v{a+2}"); A(f"v_cvt_pk_bf16_f32 v{b_+1}, v{a+1}, v{a+3}")
    A(f"ds_write_b32 v226, v{b_}"); A(f"ds_write_b32 v226, v{b_+1} offset:{YBS}")
    A("s_mov_b64 exec, s[50:51]")
    for ks in range(4): A(f"ds_read_b128 v[{HO+4*ks}:{HO+3+4*ks}], v227 offset:{64*ks}")
    A("s_mov_b64 exec, -1")
    unpack()
    pk("mul", c+2, a, a); pk("add", c, a, a+2); pk("fma", c+2, a+2, a+2, c+2)
    A(f"v_permlane32_swap_b32 v{c}, v{c+2}"); A(f"v_permlane32_swap_b32 v{c+1}, v{c+3}"); pk("add", c, c, c+2)
    A(f"v_permlane16_swap_b32 v{c}, v{c+1}"); A(f"v_add_f32 v{c}, v{c}, v{c+1}")
    red = [f"v_add_f32_dpp v{c}, v{c}, v{c} {m} row_mask:0xf bank_mask:0xf" for m in ("row_mirror", "row_half_mirror", "quad_perm:[2,3,0,1]", "quad_perm:[1,0,3,2]")]
    for ks in range(4):
        A(f"s_waitcnt lgkmcnt({3-ks})")
        for ct in range(2): mfma(28+4*ct, W1F+8*ks+4*ct, HO+4*ks, ks == 0)
        A(red[ks])
    A(f"ds_write_b32 v230, v{c}")
    A("s_mov_b64 exec, s[48:49]")
    A("ds_write_b128 v228, v[28:31]"); A("ds_write_b128 v228, v[32:35] offset:64")
    A("s_mov_b64 exec, -1")
    A("s_waitcnt lgkmcnt(0)")
    stamp(26)
    A("s_barrier")
    stamp(12)
    A("s_cmp_eq_u32 s3, 0"); A("s_cbranch_scc1 L_final ; nf")
    pend_fin = list(pend)
    C("""LN(LN(h)) = (h-mean) / sqrt(var+eps) / sqrt(var/(var+eps)+eps) = (h-mean) * rsq(var*(1+eps) + eps*eps), exactly;
 applied behind the product: y @ w1 = rs * (h @ w1 - mean * colsum(w1)); gelu(z) = z / (1 + exp(-2u)), u = sqrt(2/pi)(z + 0.044715 z^3)""")
    A("ds_read_b128 v[40:43], v248"); A("ds_read_b128 v[44:47], v248 offset:16"); A("ds_read_b64 v[48:49], v248 offset:32")
    A("ds_read2st64_b32 v[52:53], v247 offset0:0 offset1:2"); A("ds_read2st64_b32 v[54:55], v247 offset0:4 offset1:6"); A("ds_read_b32 v15, v247 offset:2048")
    A("ds_read2st64_b32 v[36:37], v244 offset0:0 offset1:2"); A("ds_read2st64_b32 v[38:39], v244 offset0:4 offset1:6"); A("ds_read_b32 v50, v244 offset:2048")
    A("s_waitcnt lgkmcnt(6)")
    pk("add", 40, 40, 42); pk("add", 44, 44, 46); pk("add", 40, 40, 48); pk("add", 40, 40, 44)
    pk("mul", 40, 40, 250, mod="op_sel_hi:[1,0]")
    A("v_fma_f32 v41, -v40, v40, v41"); A("v_max_f32 v41, 0, v41")
    A("v_fma_f32 v41, v41, v26, v27"); A("v_rsq_f32 v41, v41")
    A("s_waitcnt lgkmcnt(3)")
    pk("add", 52, 52, 54); A("v_add_f32 v15, v15, v52"); A("v_add_f32 v15, v15, v53")
    A("s_waitcnt lgkmcnt(0)")
    pk("add", 36, 36, 38); A("v_fma_f32 v50, -v40, v15, v50"); A("v_add_f32 v36, v36, v37"); A("v_add_f32 v36, v36, v50")
    if NR16: A("v_fma_f32 v36, v36, v41, v13")
    else:
        A("v_mul_f32 v36, v36, v41")
        bf16r(36, 36); A("v_add_f32 v36, v36, v13"); bf16r(36, 36)
    A("v_mul_f32 v37, v36, v36"); A("v_fma_f32 v37, v37, v25, v24"); A("v_mul_f32 v37, v37, v36"); A("v_exp_f32 v37, v37")
    A("v_add_f32 v37, 1.0, v37"); A("v_rcp_f32 v37, v37"); A("v_mul_f32 v36, v36, v37")
    A("v_cvt_pk_bf16_f32 v36, v36, v36")
    A("ds_write_b16 v245, v36")
    for t in range(8):
        A(f"s_lshl_b64 exec, s[50:51], {2*t}")
        A(f"ds_read_b128 v[{H1O+4*t}:{H1O+3+4*t}], v243")
    A("s_mov_b64 exec, -1")
    for i in [0, 8, 1, 9, 2, 3, 4, 5, 6, 7]:
        t = i & 7
        if i < 8: A(f"s_waitcnt lgkmcnt({7-t})")
        mfma(28 + 4*(i >> 3), W2F+4*i, H1O+4*t, t == 0)
    A("v_bfi_b32 v32, v19, s56, v32")
    A("s_mov_b32 exec_lo, 0x000f000f"); A("s_mov_b32 exec_hi, 0x000f000f")
    A(f"buffer_store_dwordx4 v[32:35], v246, {WS}, s86 offen offset:1024 sc1")
    A("s_mov_b64 exec, -1")
    A("v_bfi_b32 v28, v19, s56, v28")
    A(f"buffer_store_dwordx4 v[28:31], v2, {WS}, s86 offen sc1")
    stamp(18)
    if h3 is not None:
        if h3 < 0: A("s_waitcnt vmcnt(0)")
        A("s_barrier")
    stamp(13)
    fin()

    C("""---- final sum over the 54 slices: one 128-byte line of every record per wave, out = h + sum + b2 ----""")
    A("L_final:")
    pend.extend(pend_fin)
    A("s_cmp_ge_u32 s33, 20"); A("s_cbranch_scc1 L_epoch")
    A("ds_read_u16_d16_hi v16, v15")
    srd(44, 24, 2560)
    def l3(n):
        def f():
            if n == 6: A("s_mov_b32 exec_hi, 0xffff")
            A(ldtext(96 + 4*n, f"v56, {WS}, {f's{80+n}' if n else '0'} offen"))
            if n == 6: A("s_mov_b32 exec_hi, -1")
        return f
    ld3 = [(96 + 4*n, l3(n)) for n in range(7)]
    A("v_and_b32 v20, s56, v19"); A("v_and_b32 v120, s56, v19"); A("v_mov_b32 v121, 0"); A("v_mov_b64 v[122:123], 0")
    A("s_waitcnt lgkmcnt(0)")
    if NR16: A("v_add_f32 v16, v16, v17")
    if h3 is not None:
        A("s_barrier")
        if h3 > 0: A(f"s_sleep {h3}")
        if h3x: A(f"s_sleep {h3x}")
    poll_first(ld3)
    def sum3():
        for k in range(3):
            for hh in (0, 2): pk("add", 64+4*k+hh, 96+8*k+hh, 100+8*k+hh)
        for hh in (0, 2):
            pk("add", 64+hh, 64+hh, 68+hh); pk("add", 72+hh, 72+hh, 120+hh)
        for hh in (0, 2): pk("add", 64+hh, 64+hh, 72+hh)
    def red3():
        A("v_permlane32_swap_b32 v64, v66"); A("v_permlane32_swap_b32 v65, v67"); pk("add", 64, 64, 66)
        A("v_permlane16_swap_b32 v64, v65"); A("v_add_f32 v64, v64, v65")
        A("v_add_f32_dpp v64, v64, v64 row_ror:8 row_mask:0xf bank_mask:0xf")
    if SP3:
        A("s_waitcnt vmcnt(0)")
        for r, _ in ld3: A(f"v_xor_b32 v{r}, v20, v{r}")
        A("v_or3_b32 v7, v96, v100, v104"); A("v_or3_b32 v6, v108, v112, v116"); A("v_or3_b32 v7, v7, v6, v120")
        A("v_cmp_ne_u32_sdwa vcc, v7, 0 src0_sel:BYTE_0 src1_sel:DWORD")
        sum3(); red3()
        A("s_cbranch_vccnz L_slow3")
        A("L_back3:")
    else:
        poll("3", ld3, sum3, 18)
        red3()
    stamp(14)
    if diag: A("v_writelane_b32 v255, s90, 53")
    if not NR16:
        bf16r(64, 64); A("v_add_f32 v64, v64, v17"); bf16r(64, 64)
    A("v_add_f32 v64, v64, v16")
    A("v_cvt_pk_bf16_f32 v64, v64, v64")
    if hold == "before":
        for _ in range(4): A("s_sleep 90")
    A(f"buffer_store_short v64, v12, s[44:47], 0 offen {osc}")
    if hold == "after":
        for _ in range(4): A("s_sleep 90")
    stamp(15)
    fin()
    if SP3:
        A("L_slow3:")
        for r, _ in ld3: A(f"v_xor_b32 v{r}, v20, v{r}")
        poll("3", ld3, sum3, 18)
        red3()
        A("s_branch L_back3")
    C("""every wave that reads the epoch word has published by now (this wave has consumed sums over all of them)""")
    A("L_epoch:")
    A("s_cmp_eq_u32 s37, 53"); A("s_cbranch_scc0 L_fend")
    A("v_mov_b32 v34, s56"); A("s_mov_b64 exec, 1")
    A(f"buffer_store_dword v34, v2, {WS}, 0 offen {osc}")
    A("L_fend:")
    if diag: fin()
    A("L_end:")
    A("s_endpgm")

    body = [("    " + l if l.startswith("s_nop") else l).replace(" ; nf", "") for l in fix(L)]
    out = [HDR.rstrip("\n"),
           "; One launch, 256 workgroups of five waves (one per CU). Each streams 256 keys of one (batch, head); 80 of them then",
           "; apply wo, 54 the MLP. Hand-offs go through d_ws and carry a per-launch tag; all waits are bounded.",
           f"; @launch grid=(256,1,1) block=(320,1,1) lds={LDS_BYTES}",
           '.amdgcn_target "amdgcn-amd-amdhsa--gfx950"', ".text", f".globl {NAME}_kernel", ".p2align 8",
           f".type {NAME}_kernel,@function", f"{NAME}_kernel:"] + body + [
           '.section .rodata,"a"', ".p2align 6", f".amdhsa_kernel {NAME}_kernel",
           "  .amdhsa_next_free_vgpr 256", "  .amdhsa_next_free_sgpr 102", "  .amdhsa_accum_offset 256",
           "  .amdhsa_group_segment_fixed_size 0", "  .amdhsa_kernarg_size 104", "  .amdhsa_user_sgpr_count 2",
           "  .amdhsa_user_sgpr_kernarg_segment_ptr 1", "  .amdhsa_system_sgpr_workgroup_id_x 1",
           "  .amdhsa_float_denorm_mode_32 3",
           ".end_amdhsa_kernel"]
    return "\n".join(out) + "\n"

if __name__ == "__main__":
    import argparse
    ap = argparse.ArgumentParser(); ap.add_argument("-o", default=f"cdna_kernels/{NAME}.s"); ap.add_argument("--diag", action="store_true")
    ap.add_argument("--kw", default="")
    a = ap.parse_args()
    open(a.o, "w").write(gen(diag=a.diag, **eval("dict(%s)" % a.kw)))
```

```python
import sys, struct
from hz import fix
NAME = "sequential_preLN__sliding_block_cached__mixer_channel_mlp__decode"
HDR = open("cdna_kernels/%s.s.ref" % NAME).read().split("; Override launch")[0]
def F(x): return "0x%08x" % struct.unpack("<I", struct.pack("<f", x))[0]

WS_FLAGS = 1024; WS_VOTE = 2048; WS_PRB = 0x4000; WS_MP = 0x10000; WS_AP = 0x80000; WS_QP = 0x100000; WS_OP = 0x180000
WS_STAMP = 0x200000
OOB = 0xF0000000
L_WB = 23552
L_W2 = L_WB; L_W1 = L_WB + 40960
L_RED = L_WB + 81920
L_Q = L_RED + 2048
L_ML = L_Q + 256
L_SB = L_ML + 96
L_OB = L_SB + 96
L_OF = L_OB + 4096
L_YB = L_OF + 8704
YBS = 1344
L_PB = L_YB + 2 * YBS
L_CW = L_PB + 2560
L_H1 = L_CW + 64
L_DUMMY = L_H1 + 512
LDS_BYTES = L_DUMMY + 1024
SPIN = 2000000
LOG2E = 0x3FB8AA3B

def gen(diag=False, nt='nt', W=8, wnt='nt', prio=False, KQ=2, depth=0, PT0=12, T1=True, T2=False, tnt='', local=True, probe=None, h3=-1, exp=(), qdelay=None, PRE=None, QKP='kv', W0=2, NR=0, PR=17, RS=1.5, tall=True, tfree=False, NB=16, MB=True, EF=True, IB=True, WARM=0, WSL=0, CC=None, ROT=False, w1nt='nt', WO=16, RC=0, WBAR=0, P1G=True, XP=0, probe2=None, probe3=None, DUM=(), M0=True, SP3=False, h3x=0, NR16=True, T1D=0, hold=None, OL=True, FPRE=True, CLP=0, cfl='sc1', TIGHT=2, PFOUT=False, H8=True, MW=True, PF1=True, MPW=True, NW=5, PW=20, WS_=2.4, TS=(0,19,52), W1W=None, WK=None, KW=12, KS=1, MIX='iw', PERM='t0 t1 s0 w0 s1 t3 t2 w1', XT=(), QL=True, UNR=2, MLS=False, OMS=False, GW=False, PFO=2, TRF=True, WB=None, osc='', MPRE=None, WM=None, FASTP=True, CHK2=(0,), PT1=None, only=None):
    L = []
    pend = []
    def A(s):
        for l in s.split("\n"):
            l = l.strip()
            if pend and l.startswith(("s_cbranch", "s_branch")) and not l.endswith("; nf"):
                A("s_waitcnt lgkmcnt(0)")
            L.append("    " + l if not l.endswith(":") else l)
            if pend and l.startswith("s_waitcnt") and "lgkmcnt(0)" in l:
                for r, i in pend: L.append(f"    v_writelane_b32 v255, s{r}, {i}")
                pend.clear()
    def C(text):
        for l in text.strip("\n").split("\n"): L.append("    ; " + l.strip())
    def stamp(i, clk=False):
        if diag and (only is None or i in only or i >= 59):
            if len(pend) >= 4: A("s_waitcnt lgkmcnt(0)")
            r = 92 + 2 * len(pend)
            A(f"{'s_memtime' if clk else 's_memrealtime'} s[{r}:{r+1}]"); pend.append((r, i))
    def flush():
        if pend: A("s_waitcnt lgkmcnt(0)")
    def bf16r(d, x):
        A(f"v_cvt_pk_bf16_f32 v{d}, v{x}, v{x}"); A(f"v_and_b32 v{d}, 0xffff0000, v{d}")
    def row_allred(op, v):
        for c in ("row_mirror", "row_half_mirror", "quad_perm:[2,3,0,1]", "quad_perm:[1,0,3,2]"):
            A(f"{op}_dpp v{v}, v{v}, v{v} {c} row_mask:0xf bank_mask:0xf")
    def swap_allred(op, v, t, which):
        A(f"v_mov_b32 v{t}, v{v}"); A(f"v_permlane{which}_swap_b32 v{v}, v{t}"); A(f"{op} v{v}, v{v}, v{t}")
    def srd(r, base, size):
        A(f"s_mov_b32 s{r}, s{base}"); A(f"s_mov_b32 s{r+1}, s{base+1}"); A(f"s_mov_b32 s{r+2}, {size}"); A(f"s_mov_b32 s{r+3}, 0x20000")
    def pk(op, d, a, b, c=None, mod=""):
        A(f"v_pk_{op}_f32 v[{d}:{d+1}], v[{a}:{a+1}], v[{b}:{b+1}]" + (f", v[{c}:{c+1}]" if c is not None else "") + (" " + mod if mod else ""))
    def mfma(d, a, b, first):
        A(f"v_mfma_f32_16x16x32_bf16 v[{d}:{d+3}], v[{a}:{a+3}], v[{b}:{b+3}], {'0' if first else f'v[{d}:{d+3}]'}")
    def sum4(b):
        for hh in (0, 2):
            pk("add", b+hh, b+hh, b+4+hh); pk("add", b+8+hh, b+8+hh, b+12+hh)
        for hh in (0, 2): pk("add", b+hh, b+hh, b+8+hh)
    def role_decode():
        A("s_sub_u32 s78, s31, 10"); A("s_lshr_b32 s80, s78, 1")
        if M0:
            A("s_mul_i32 s80, s80, 7"); A("s_add_u32 s80, s80, s30"); A("s_sub_u32 s80, s80, 1"); A("s_cmp_eq_u32 s30, 0"); A("s_cselect_b32 s80, 27, s80")
        else:
            A("s_lshl_b32 s80, s80, 3"); A("s_add_u32 s80, s80, s30")
        A("s_and_b32 s78, s78, 1"); A("s_lshl_b32 s37, s80, 1"); A("s_add_u32 s37, s37, s78")
        A("s_cmp_lt_u32 s80, 27"); A("s_cselect_b32 s36, 2, 0")
        A("s_cmp_lt_u32 s31, 10"); A("s_cselect_b32 s36, 1, s36"); A("s_cselect_b32 s37, s31, s37")
    WS = "s[40:43]"
    def ldtext(r, a, n=4):
        return f"buffer_load_dwordx{n} v[{r}:{r+n-1}], {a} sc1"
    def poll_init(loads):
        for r, a, n, chk in loads:
            for c in chk: A(f"v_mov_b32 v{r+c}, -1")
    def poll_first(loads):
        for r, ld in loads: ld()
    def poll(tag, loads, work, km, chk=None, clr=None):
        n = len(loads)
        M = lambda i: f"s[{60+2*i}:{61+2*i}]"
        chk = chk or (lambda d, r: A(f"v_cmp_ne_u32_sdwa {d}, v{r}, s56 src0_sel:BYTE_0 src1_sel:BYTE_0"))
        clr = clr or (lambda r: A(f"v_and_b32 v{r}, v{km}, v{r}"))
        A(f"s_mov_b32 s90, {SPIN}")
        flush()
        A(f"L_p{tag}:")
        A("s_waitcnt vmcnt(0)")
        for i, (r, ld) in enumerate(loads): chk(M(i), r)
        for i in range(0, n - 1, 2): A(f"s_or_b64 s[{92+i}:{93+i}], {M(i)}, {M(i+1)}")
        G = lambda k: f"s[{92+2*k}:{93+2*k}]" if 2*k + 1 < n else M(2*k)
        A(f"s_or_b64 vcc, {G(0)}, {G(1)}")
        if n > 6:
            A(f"s_or_b64 s[100:101], {G(2)}, {G(3)}"); A("s_or_b64 vcc, vcc, s[100:101]")
        else: A(f"s_or_b64 vcc, vcc, {G(2)}")
        A(f"s_cbranch_scc0 L_pa{tag}")
        for k in range(4):
            if 2*k + 1 < n:
                A(f"s_cmp_eq_u64 {G(k)}, 0"); A(f"s_cbranch_scc1 L_k{tag}_{2*k+1}")
            for i in range(2*k, min(n, 2*k + 2)):
                A(f"s_cmp_eq_u64 {M(i)}, 0"); A(f"s_cbranch_scc1 L_k{tag}_{i}")
                loads[i][1]()
                A(f"L_k{tag}_{i}:")
        A("s_mov_b32 s59, 0")
        for i in reversed(range(n)):
            A(f"s_cmp_lg_u64 {M(i)}, 0"); A("s_addc_u32 s59, s59, s59")
        A("s_sub_u32 s90, s90, 1"); A(f"s_cbranch_scc1 L_u{tag}_0")
        A("s_bcnt1_i32_b32 s78, s59"); A("s_cmp_eq_u32 s78, 1"); A(f"s_cbranch_scc0 L_p{tag}")
        for i in range(n - 1):
            A(f"s_bitcmp0_b32 s59, {i}"); A(f"s_cbranch_scc0 L_e{tag}_{i}")
        A("s_cmp_eq_u32 0, 1")
        for i in reversed(range(n)):
            r, ld = loads[i]
            A(f"L_e{tag}_{i}:")
            for k, (r2, _) in enumerate(loads):
                if k != i: clr(r2)
            A(f"s_branch L_u{tag}_{i}")
            A(f"L_t{tag}_{i}:")
            ld()
            A("s_sub_u32 s90, s90, 1")
            A(f"L_u{tag}_{i}:")
            A("s_waitcnt vmcnt(0)")
            chk("vcc", r)
            part = tag == "1" or tag == "3" and i == 6
            if not part: clr(r)
            A(f"s_cbranch_scc1 L_pw{tag}")
            A(f"s_cbranch_vccnz L_t{tag}_{i}")
            if part: clr(r)
            A(f"s_branch L_pw{tag}")
        A(f"L_pa{tag}:")
        for r, ld in loads: clr(r)
        A(f"L_pw{tag}:")
        work()
    def fin():
        if diag:
            A("s_mov_b64 exec, -1")
            stamp(59); stamp(61, True); A("s_waitcnt lgkmcnt(0)")
            A("s_getreg_b32 s92, hwreg(HW_REG_XCC_ID)"); A("v_writelane_b32 v255, s92, 62")
            A("s_cmp_eq_u32 s3, 0"); A("s_cselect_b32 s92, 3, 0"); A("s_add_u32 s92, s92, s36"); A("v_writelane_b32 v255, s92, 63")
            A("s_mul_i32 s78, s2, 5"); A("s_add_u32 s78, s78, s3"); A("s_lshl_b32 s78, s78, 8"); A(f"s_add_u32 s78, s78, {WS_STAMP}")
            A("v_lshlrev_b32 v7, 2, v1")
            A(f"buffer_store_dword v255, v7, {WS}, s78 offen")
            if probe is not None:
                fin.n = getattr(fin, "n", 0) + 1
                pi, pw, role = probe
                A("s_cmp_eq_u32 s3, 0"); A(f"s_cbranch_scc{1 if pw == 1 else 0} L_pe{fin.n}")
                if role is not None:
                    A(f"s_cmp_eq_u32 s36, {role}"); A(f"s_cbranch_scc0 L_pe{fin.n}")
                A("v_readlane_b32 s80, v255, 0")
                if pi == "xcc":
                    A("s_getreg_b32 s78, hwreg(HW_REG_XCC_ID, 0, 4)"); A("s_cmp_eq_u32 s78, s30"); A("s_cselect_b32 s78, 0, 400")
                elif pi == "vote":
                    A("v_readlane_b32 s78, v255, 57"); A("s_nop 4"); A("s_mul_i32 s78, s78, 10")
                else:
                    A(f"v_readlane_b32 s78, v255, {pi}"); A("s_nop 4"); A("s_cmp_eq_u32 s78, 0"); A(f"s_cbranch_scc1 L_pe{fin.n}")
                    A("s_sub_u32 s78, s78, s80")
                A("s_mul_i32 s78, s78, 10"); A("s_add_u32 s78, s78, s80"); A("s_add_u32 s78, s78, 2000")
                A(f"L_prw{fin.n}:"); A("s_sleep 2"); A("s_memrealtime s[92:93]"); A("s_waitcnt lgkmcnt(0)"); A("s_sub_u32 s92, s92, s78"); A("s_cmp_lt_i32 s92, 0"); A(f"s_cbranch_scc1 L_prw{fin.n}")
                A(f"L_pe{fin.n}:")
        A("s_endpgm")
    def traddr1280(d, blk):
        A("v_bfe_u32 v7, v1, 2, 3"); A(f"v_lshlrev_b32 v{d}, 7, v7"); A("v_lshrrev_b32 v7, 1, v7"); A(f"v_lshl_add_u32 v{d}, v7, 5, v{d}")
        A("v_lshrrev_b32 v7, 5, v1"); A(f"v_mul_u32_u24 v7, {blk}, v7"); A(f"v_add_u32 v{d}, v{d}, v7")
        A("v_and_b32 v7, 3, v1"); A(f"v_lshl_add_u32 v{d}, v7, 3, v{d}")

    K0, V0 = 64, 128
    ACC = 28
    XS, XO, WQ, AO = 228, 238, 64, 144

    L_X = 20480
    if probe2:
        slot, off, stride = probe2
        A("s_memrealtime s[60:61]"); A(f"s_load_dwordx2 s[4:5], s[0:1], {slot*8}"); A("v_readfirstlane_b32 s3, v0"); A("s_waitcnt lgkmcnt(0)")
        A("s_mov_b32 s99, 0")
        A("s_cmp_eq_u32 s2, 255"); A("s_cbranch_scc0 L_q2w"); A("s_cmp_eq_u32 s3, 64"); A("s_cbranch_scc0 L_q2w")
        A("s_sleep 100")
        A("s_memrealtime s[62:63]"); A("s_waitcnt lgkmcnt(0)")
        for i in range(16):
            A(f"s_mov_b32 s6, {off + i*stride}"); A("s_load_dword s7, s[4:5], s6"); A("s_waitcnt lgkmcnt(0)")
        A("s_memrealtime s[64:65]"); A("s_waitcnt lgkmcnt(0)")
        A("s_sub_u32 s99, s64, s62"); A("s_mul_i32 s99, s99, 10"); A("s_add_u32 s99, s99, s60"); A("s_add_u32 s99, s99, 4000")
        A("L_q2w:")
        A("s_add_u32 s60, s60, 1500")
        A("L_q2x:"); A("s_sleep 2"); A("s_memrealtime s[62:63]"); A("s_waitcnt lgkmcnt(0)"); A("s_sub_u32 s62, s62, s60"); A("s_cmp_lt_i32 s62, 0"); A("s_cbranch_scc1 L_q2x")
    if diag: A("s_memrealtime s[100:101]")
    if "late0" in exp:
        A("s_and_b32 s30, s2, 7"); A("s_cbranch_scc1 L_l0"); A("s_sleep 20"); A("L_l0:")
    C("""start: only the first 256 bytes of code run before further code lines arrive, so the first loads sit here.
 s30 group = wg&7, s31 idx = wg>>3, s32 head = 8*(idx>>3)+group, s33 j = idx&7, s34 batch = j>>2, s35 key split = j&3, s3 wave""")
    A("s_load_dwordx16 s[4:19], s[0:1], 0"); A("s_load_dwordx2 s[40:41], s[0:1], 96")
    A("s_lshr_b32 s31, s2, 3"); A("s_and_b32 s33, s31, 7")
    C("""one workgroup per group reads the kernel's code lines so that they are in L2 ahead of the data stream""")
    A("s_getpc_b64 s[52:53]"); A("L_pc:")
    A(f"s_cmp_eq_u32 {'s31, 17' if PF1 else 's33, 7'}"); A("s_cselect_b32 s54, L_end-L_pc, 0"); A("s_mov_b32 s55, 0x20000"); A("v_lshlrev_b32 v22, 7, v0")
    A("buffer_load_dword v4, v22, s[52:55], 0 offen")
    A("v_lshrrev_b32 v7, 6, v0"); A("v_and_b32 v1, 63, v0"); A("s_cmp_ge_u32 s31, 32"); A("v_readfirstlane_b32 s3, v7")
    A("s_cbranch_scc1 L_end ; nf")
    A("s_and_b32 s30, s2, 7"); A("s_lshr_b32 s78, s31, 3"); A("s_lshl3_add_u32 s32, s78, s30" if H8 else "s_lshl2_add_u32 s32, s30, s78")
    A("v_lshlrev_b32 v2, 4, v1"); A("v_lshrrev_b32 v8, 4, v1"); A("v_and_b32 v9, 15, v1")
    A("s_lshr_b32 s34, s33, 2"); A("s_and_b32 s35, s33, 3")
    A("s_cmp_eq_u32 s3, 0"); A("s_cbranch_scc0 L_s0 ; nf")
    C("""wave 0: x and rows 80j..80j+79 x 128 columns of wq go to LDS (load t holds rows t, 20+t, 40+t, 60+t)""")
    A("s_mul_i32 s78, s33, 20"); A("v_mad_u32_u24 v7, v8, 5, s78")
    A("v_lshlrev_b32 v12, 15, v7"); A("v_lshl_add_u32 v12, v9, 4, v12"); A("s_lshl_b32 s78, s32, 8"); A("v_add_u32 v12, s78, v12")
    A("s_movk_i32 s79, 0x2000"); A(f"s_movk_i32 m0, {L_X}")
    if "light0" in exp:
        A("s_cmp_eq_u32 s30, 0"); A("s_cselect_b32 s79, 0, s79")
    A("s_waitcnt lgkmcnt(0)")
    A("global_load_lds_dwordx4 v2, s[4:5]"); A("global_load_lds_dwordx4 v2, s[4:5] offset:1024"); A("global_load_lds_dwordx4 v2, s[4:5] offset:1536")
    A("s_mov_b32 m0, 0")
    A("s_nop 0")
    A("L_wq:")
    for _ in range(UNR):
        A(f"global_load_lds_dwordx4 v12, s[10:11] {nt}")
        A("s_addk_i32 m0, 0x400"); A("v_add_u32 v12, s79, v12")
    A(f"s_cmpk_lt_u32 m0, {L_X}"); A("s_cbranch_scc1 L_wq ; nf")
    A("s_branch L_aux ; nf")
    C("""waves 1..4: 64 keys each; address bits 10..17 of the 1024-key window = t0 t1 s0 w0 s1 t3 t2 w1 (tile, split, wave): all stacks are in use at any time""")
    A("L_s0:")
    if PERM:
        pb = {n: 10 + i for i, n in enumerate(PERM.split())}
        A("s_lshl_b32 s78, s34, 5"); A("s_add_u32 s78, s78, s32"); A("s_lshl_b32 s78, s78, 20")
        wadj = pb["w1"] == pb["w0"] + 1
        bias = 4096 if 12 in [pb[f"t{k}"] for k in range(4)] else 0
        if wadj:
            A(f"s_lshl_b32 s80, s3, {pb['w0']}"); A("s_add_u32 s78, s78, s80")
        else:
            A("s_and_b32 s80, s3, 1"); A(f"s_lshl_b32 s80, s80, {pb['w0']}"); A("s_add_u32 s78, s78, s80")
            A("s_and_b32 s80, s3, 2"); A(f"s_lshl_b32 s80, s80, {pb['w1'] - 1}"); A("s_add_u32 s78, s78, s80")
        if pb["s1"] == pb["s0"] + 1:
            A(f"s_lshl_b32 s80, s35, {pb['s0']}"); A("s_add_u32 s78, s78, s80")
        else:
            A("s_and_b32 s80, s35, 1"); A(f"s_lshl_b32 s80, s80, {pb['s0']}"); A("s_add_u32 s78, s78, s80")
            A("s_lshr_b32 s80, s35, 1"); A(f"s_lshl_b32 s80, s80, {pb['s1']}"); A("s_add_u32 s78, s78, s80")
        A(f"s_add_u32 s78, s78, {3072*256 + bias - ((1 << pb['w0']) if wadj else 0)}")
        for tb, wb in XT:
            assert pb[tb] >= 13
            A(f"s_bfe_u32 s80, s2, {0x10000 + wb:#x}"); A(f"s_lshl_b32 s80, s80, {pb[tb]}"); A("s_add_u32 s78, s78, s80")
        A("v_add_u32 v17, s78, v2")
    else:
        A("s_lshl_b32 s78, s34, 5"); A("s_add_u32 s78, s78, s32"); A("s_lshl_b32 s78, s78, 6"); A("s_lshl2_add_u32 s80, s35, s3"); A("s_add_u32 s78, s78, s80")
        A("s_add_u32 s78, s78, 47"); A("s_lshl_b32 s78, s78, 14"); A("s_addk_i32 s78, 0x1000")
        if 'w' in MIX:
            A("s_and_b32 s80, s3, 1"); A("s_lshl_b32 s80, s80, 13"); A("s_add_u32 s78, s78, s80")
        A("v_add_u32 v17, s78, v2"); A("v_xor_b32 v18, 0x2000, v17")
    A("L_s1:")
    def common2():
        A("s_load_dwordx8 s[20:27], s[0:1], 64")
        if diag:
            A("v_mov_b32 v255, 0"); pend.append((100, 0)); stamp(60, True)
        role_decode()
        A("s_mov_b32 s42, 0x10000000"); A("s_mov_b32 s43, 0x20000")
    cur18 = [None]
    def ldKV(base, ptr, t):
        if PERM:
            off = sum(((t >> k) & 1) << pb[f"t{k}"] for k in range(4))
            def f():
                hi = off & ~8191
                if hi and cur18[0] != hi:
                    A(f"{'v_xor_b32' if XT else 'v_add_u32'} v18, {hi}, v17"); cur18[0] = hi
                A(f"global_load_dwordx4 v[{base+4*t}:{base+4*t+3}], v{18 if hi else 17}, {ptr} offset:{(off & 8191) - bias} {nt}")
            return f
        hi, lo = (t & 1, t >> 1) if 'i' in MIX else (t // 8, t % 8)
        return lambda: A(f"global_load_dwordx4 v[{base+4*t}:{base+4*t+3}], v{17 + hi}, {ptr} offset:{lo*1024-4096} {nt}")
    redo = [False]
    def dma_a(n):
        def f():
            if n == MPRE and not redo[0]:
                A("s_cmp_eq_u32 s36, 2"); A("s_cselect_b32 s46, 0, s46")
            if n == 10:
                A("s_cmp_eq_u32 s36, 2"); A("s_cselect_b32 s46, 0, s46"); A(f"s_cselect_b32 s78, {40960 - 10240}, 0"); A("s_add_u32 s83, s83, s78")
            A(f"s_add_u32 m0, s83, {n*1024}")
            if n: A("s_add_u32 s82, s82, s87")
            A(f"buffer_load_dwordx4 v58, s[44:47], s82 offen {wnt} lds")
        return f
    kv = [ldKV(K0, "s[6:7]", t) for t in range(16)] + [ldKV(V0, "s[8:9]", t) for t in range(16)]
    def rider():
        A("s_mov_b32 m0, s76"); A("s_add_u32 s76, s76, s77")
        A(f"buffer_load_dwordx4 v58, s[44:47], s79 offen {wnt} lds"); A("s_addk_i32 s79, 10240")
    seq = []; pos = []; free = set(); nr = 0; nw_ = 0; didx = {}
    for i, f in enumerate(kv):
        if PT0 == i:
            if tfree or not tall: free.add(len(seq))
            seq.append(lambda: A(f"buffer_load_dword v4, v56, s[48:51], 0 offen {tnt}"))
        if PT0 + 3 == i and not tall:
            free.add(len(seq)); seq.append(lambda: A(f"buffer_load_dword v5, v56, s[48:51], s79 offen {tnt}"))
        while nr < NR and PR + nr * RS <= i:
            free.add(len(seq)); didx[nr] = len(seq); seq.append(dma_a(nr)); nr += 1
        while nw_ < NW and PW + nw_ * WS_ <= i:
            free.add(len(seq)); didx[16 - NW + nw_] = len(seq); seq.append(rider); nw_ += 1
        pos.append(len(seq)); seq.append(f)
    assert nr == NR and nw_ == NW
    if PT1:
        free.add(len(seq)); seq.append(lambda: A(f"buffer_load_dword v6, v57, s[52:55], 0 offen {tnt}"))
    PRE = min(W - 1 + XP, 16 - NR - NW)
    for n in range(NR, NR + PRE):
        k = NR + PRE - 1 - n
        if k < 2 * (PRE - (W - 1)) and k % 2 == 1: free.add(len(seq))
        didx[n] = len(seq); seq.append(dma_a(n))
    st = dict(issued=0, waited=-1)
    Wc = [WK or W]
    def issue_to(n):
        inflight = lambda: sum(1 for i in range(n - W, st["issued"]) if i not in free)
        while st["issued"] < len(seq) and (st["issued"] < n - W + Wc[0] or inflight() < Wc[0] and n >= W):
            seq[st["issued"]](); st["issued"] += 1
    def wait_for(k):
        if k > st["waited"]:
            A(f"s_waitcnt vmcnt({st['issued'] - k - 1})"); st["waited"] = k
    def pump(lim=None):
        k = st["waited"] + 1
        while k in free: k += 1
        if lim is not None and k > lim: return
        if WK and KW <= k <= pos[31] and Wc[0] != W and (k - KW) % KS == 0: Wc[0] += 1 if Wc[0] < W else -1
        wait_for(k)
        if k in DUM:
            A("s_cmp_eq_u32 s30, 0"); A(f"s_cbranch_scc1 L_du{k} ; nf")
            A("buffer_load_dword v5, v19, s[48:51], 0 offen")
            A(f"L_du{k}:")
        issue_to(k + 1 + W)
    A("s_waitcnt lgkmcnt(0)")
    assert W <= 8
    for _ in range(W0):
        seq[st["issued"]](); st["issued"] += 1
    A("s_cmp_eq_u32 s3, 2"); A("s_cbranch_scc0 L_s4 ; nf")
    A("v_mov_b64 v[24:25], -1"); A("v_mov_b64 v[26:27], -1")
    A(f"v_add_u32 v13, {L_Q}, v2"); A("s_mov_b64 exec, 0x3fffff")
    A("ds_write_b128 v13, v[24:27]")
    A("s_mov_b64 exec, -1"); A("s_waitcnt lgkmcnt(0)")
    A("L_s4:")
    A("s_load_dword s56, s[40:41], 0")
    common2()
    def slots():
        A("s_lshl_b32 s39, s30, 5"); A("s_add_u32 s39, s39, s31")
        A("s_lshl_b32 s38, s39, 10"); A(f"s_add_u32 s38, s38, {WS_OP}")
    keep = list(pend); pend.clear()
    A("s_barrier")
    issue_to(W)
    A("s_branch L_stream ; nf")

    C("""================= wave 0: LayerNorm(x), q partial sums, q exchange, softmax statistics =================""")
    A("L_aux:")
    A("s_barrier")
    if prio: A("s_setprio 3")
    A("v_bfe_u32 v11, v1, 3, 1"); A("v_mul_u32_u24 v11, 1280, v11"); A("v_lshl_add_u32 v11, v7, 3, v11")
    common2()
    stamp(1)
    A("v_lshrrev_b32 v40, 5, v1"); A("v_mul_u32_u24 v10, 1280, v40"); A("v_and_b32 v41, 31, v1"); A("v_mad_u32_u24 v10, v41, 40, v10")
    slots()
    C("""byte selectors that put one bf16 into element lane&7 of an otherwise zero MFMA operand row""")
    A("v_and_b32 v7, 1, v1"); A("v_cmp_eq_u32 vcc, 1, v7"); A("v_bfe_u32 v7, v1, 1, 2")
    A("v_mov_b32 v28, 0x0c0c0100"); A("v_mov_b32 v29, 0x01000c0c"); A("v_cndmask_b32 v28, v28, v29, vcc")
    A("v_mov_b32 v29, 0x0c0c0302"); A("v_mov_b32 v30, 0x03020c0c"); A("v_cndmask_b32 v29, v29, v30, vcc")
    A("v_mov_b32 v30, 0x0c0c0c0c")
    for r in range(4):
        A(f"v_cmp_eq_u32 vcc, {r}, v7"); A(f"v_cndmask_b32 v{14+r}, v30, v28, vcc"); A(f"v_cndmask_b32 v{18+r}, v30, v29, vcc")
    A(f"v_mov_b32 v13, {L_ML}"); A(f"v_mov_b32 v23, {OOB}")
    A("s_waitcnt vmcnt(20)")
    for base, a in ((XS, 10), (XO, 11)):
        A(f"ds_read_b64 v[{base}:{base+1}], v{a} offset:{L_X}"); A(f"ds_read_b64 v[{base+2}:{base+3}], v{a} offset:{L_X+8}")
        A(f"ds_read_b64 v[{base+4}:{base+5}], v{a} offset:{L_X+16}"); A(f"ds_read_b64 v[{base+6}:{base+7}], v{a} offset:{L_X+24}")
        A(f"ds_read_b64 v[{base+8}:{base+9}], v{a} offset:{L_X+32}")
    stamp(2)
    A("s_waitcnt lgkmcnt(0)")
    A("s_load_dword s56, s[40:41], 0")
    if CC is None:
        A("s_sub_u32 s78, s31, 24"); A("s_lshl3_add_u32 s47, s30, s78"); A("s_and_b32 s47, s47, 63")
        A("s_lshl_b32 s78, s47, 7"); A("s_and_b32 s46, s31, 1"); A("s_lshl_b32 s80, s46, 13"); A("s_add_u32 s44, s78, s80"); A(f"s_add_u32 s44, s44, {WS_PRB}")
        A("s_xor_b32 s45, s44, 0x2000")
        A("s_cmp_ge_u32 s31, 24"); A("s_cbranch_scc0 L_v1 ; nf")
        A("s_load_dword s48, s[40:41], s44 glc"); A("s_load_dword s49, s[40:41], s45 glc")
        A("L_v1:")
    C("""LayerNorm(x): lanes 0-31 row 0, lanes 32-63 row 1, two passes, rounded to bf16 where the reference rounds""")
    X, mean, tmp = 192, 52, 56
    for i in range(10):
        A(f"v_lshlrev_b32 v{X+2*i}, 16, v{XS+i}"); A(f"v_and_b32 v{X+2*i+1}, 0xffff0000, v{XS+i}")
    pk("add", tmp, X, X+2); pk("add", tmp+2, X+4, X+6)
    for i in range(4, 10): pk("add", tmp+2*(i&1), tmp+2*(i&1), X+2*i)
    pk("add", tmp, tmp, tmp+2); A(f"v_add_f32 v{mean}, v{tmp}, v{tmp+1}")
    row_allred("v_add_f32", mean); swap_allred("v_add_f32", mean, tmp, 16)
    A(f"v_mul_f32 v{mean}, {F(1/640)}, v{mean}")
    for i in range(10): pk("add", X+2*i, X+2*i, mean, mod="op_sel_hi:[1,0] neg_lo:[0,1] neg_hi:[0,1]")
    for i in range(10):
        t = tmp + 2*(i&1)
        if i < 2: pk("mul", t, X+2*i, X+2*i)
        else: pk("fma", t, X+2*i, X+2*i, t)
    pk("add", tmp, tmp, tmp+2)
    va = mean + 2
    A(f"v_add_f32 v{va}, v{tmp}, v{tmp+1}")
    row_allred("v_add_f32", va); swap_allred("v_add_f32", va, tmp, 16)
    A(f"v_mul_f32 v{va}, {F(1/640)}, v{va}")
    bf16r(mean, mean); bf16r(va, va)
    A(f"v_add_f32 v{va}, {F(1e-5)}, v{va}"); bf16r(va, va)
    A(f"v_sqrt_f32 v{va}, v{va}"); bf16r(va, va)
    A(f"v_rcp_f32 v{va}, v{va}")
    A("v_mov_b32 v53, v52"); A("v_mov_b32 v55, v54")
    for i in range(10):
        A(f"v_lshlrev_b32 v{X+2*i}, 16, v{XO+i}"); A(f"v_and_b32 v{X+2*i+1}, 0xffff0000, v{XO+i}")
    A("v_permlane32_swap_b32 v52, v53"); A("v_permlane32_swap_b32 v54, v55")
    A("s_mov_b32 vcc_lo, 0xff00ff00"); A("s_mov_b32 vcc_hi, 0xff00ff00")
    A("v_cndmask_b32 v52, v52, v53, vcc"); A("v_cndmask_b32 v54, v54, v55, vcc")
    for i in range(10): pk("add", X+2*i, X+2*i, mean, mod="op_sel_hi:[1,0] neg_lo:[0,1] neg_hi:[0,1]")
    for i in range(10): A(f"v_cvt_pk_bf16_f32 v{XO+i}, v{X+2*i}, v{X+2*i+1}")
    for i in range(10):
        A(f"v_lshlrev_b32 v{X+2*i}, 16, v{XO+i}"); A(f"v_and_b32 v{X+2*i+1}, 0xffff0000, v{XO+i}")
    for i in range(10): pk("mul", X+2*i, X+2*i, va, mod="op_sel_hi:[1,0]")
    for i in range(10): A(f"v_cvt_pk_bf16_f32 v{XO+i}, v{X+2*i}, v{X+2*i+1}")
    stamp(3)
    C("""q[b][8i+e] partial = sum over rows xn[b][row] * wq[row][8i+e]: A row (b,e) holds xn in element e, B = 4 rows x 128 columns as loaded""")
    for t in range(22):
        if t < 20:
            A(f"s_waitcnt vmcnt({19-t})"); A(f"ds_read_b128 v[{WQ+4*t}:{WQ+4*t+3}], v2 offset:{1024*t}")
            for r in range(4): A(f"v_perm_b32 v{AO+4*t+r}, v{XO+t//2}, v{XO+t//2}, v{14+4*(t&1)+r}")
        if t > 1:
            A(f"s_waitcnt lgkmcnt({min(2, 21-t)})"); mfma(ACC, AO+4*(t-2), WQ+4*(t-2), t == 2)
    C("""s56 = this launch's tag = epoch word of d_ws + 0x01010101; every hand-off carries it. record: (sum, sum, tag, tag ^ XCC id)""")
    A("s_add_u32 s56, s56, 0x01010101")
    A("s_lshl_b32 s39, s39, 11"); A(f"s_add_u32 s39, s39, {WS_QP}")
    A("v_mov_b32 v34, s56"); A("v_mov_b32 v35, s56"); A("v_mov_b32 v38, s56"); A("v_mov_b32 v39, s56")
    A("v_mov_b64 v[32:33], v[28:29]"); A("v_mov_b64 v[36:37], v[30:31]")
    def qstore(fl):
        A(f"buffer_store_dwordx4 v[32:35], v2, {WS}, s39 offen {fl}")
        A(f"buffer_store_dwordx4 v[36:39], v2, {WS}, s39 offen offset:1024 {fl}")
    if QL:
        A("s_getreg_b32 s57, hwreg(HW_REG_XCC_ID, 0, 4)"); A("s_xor_b32 s57, s57, s56"); A("v_mov_b32 v35, s57"); A("v_mov_b32 v39, s57")
        qstore("")
    else: qstore("sc1")
    stamp(4)
    def recl():
        A("s_not_b32 s78, s56")
        for r in range(4): A(f"v_mov_b32 v{24+r}, s78")
        A("s_mov_b32 exec_hi, 0xff")
        A(f"buffer_store_dwordx4 v[24:27], v2, {WS}, s38 offen")
        A("s_mov_b32 exec_hi, -1")
    if RC == 1: recl()
    A("s_andn2_b32 s78, s39, 0x3fff"); A("s_lshl_b32 s80, s34, 9"); A("s_add_u32 s78, s78, s80")
    A("v_lshlrev_b32 v42, 10, v40"); A("v_lshl_add_u32 v42, v41, 4, v42"); A("v_add_u32 v42, s78, v42")
    for k in range(1, 4): A(f"s_movk_i32 s{80+k}, {4096*k}")
    A("v_lshlrev_b32 v43, 4, v9"); A("v_and_b32 v7, 1, v8"); A("v_lshl_add_u32 v43, v7, 3, v43"); A("v_lshl_add_u32 v43, v40, 2, v43"); A(f"v_add_u32 v43, {L_Q}, v43")
    assert QL
    A("s_lshl_b32 s77, s30, 16"); A(f"s_add_u32 s77, s77, {WS_QP}"); A("v_lshlrev_b32 v47, 11, v1")
    C("""workgroups 24..31 time one line in each 8 KB block of a pair and vote which block is on which side of the package;
 the majority only places the hand-off buffers (speed), every reader and writer uses the same complete vote""")
    if CC is None:
        flush()
        A("s_cmp_ge_u32 s31, 24"); A("s_cbranch_scc0 L_v2")
        A("s_memtime s[60:61]"); A("s_waitcnt lgkmcnt(0)")
        A("s_load_dword s48, s[40:41], s44 glc"); A("s_waitcnt lgkmcnt(0)")
        A("s_memtime s[62:63]"); A("s_waitcnt lgkmcnt(0)")
        A("s_load_dword s49, s[40:41], s45 glc"); A("s_waitcnt lgkmcnt(0)")
        A("s_memtime s[64:65]"); A("s_waitcnt lgkmcnt(0)")
        A("s_sub_u32 s60, s62, s60"); A("s_sub_u32 s62, s64, s62"); A("s_cmp_gt_u32 s60, s62"); A("s_addc_u32 s46, s46, 0")
        A("s_getreg_b32 s78, hwreg(HW_REG_XCC_ID, 2, 1)"); A("s_xor_b32 s46, s46, s78"); A("s_and_b32 s46, s46, 1"); A("s_xor_b32 s46, s46, s56")
        A("v_mov_b32 v44, s46"); A("s_and_b32 s47, s47, 7"); A("s_lshl_b32 s78, s30, 5"); A("s_add_u32 s47, s47, s78"); A("s_lshl_b32 s47, s47, 2"); A("s_mov_b64 exec, 1")
        if qdelay is None: A("s_waitcnt vmcnt(0)")
        A(f"buffer_store_dword v44, v2, {WS}, s47 offen offset:{WS_VOTE} sc1")
        A("s_mov_b64 exec, -1")
        A("s_branch L_v3")
        A("L_v2:")
    if qdelay is None: A("s_waitcnt vmcnt(0)")
    elif qdelay: A(f"s_sleep {qdelay}")
    A("L_v3:")
    stamp(5)
    A(f"s_mov_b32 s90, {SPIN}")
    flush()
    if QL: A("s_mov_b32 s58, 0")
    C("""gather the eight partial sums of this head; a missing or foreign-XCD record makes this one be written through as well""")
    A("L_qpoll:")
    if "halfq" in exp: A("s_mov_b32 exec_hi, 0")
    if "noqld" in exp: A("s_mov_b64 exec, 1")
    for jj in range(8):
        A(f"buffer_load_dwordx4 v[{64+4*jj}:{67+4*jj}], v42, {WS}, {f's{80+jj//2}' if jj//2 else '0'} offen offset:{2048*(jj&1)} sc1")
    A("s_waitcnt vmcnt(0)")
    if QL:
        A("v_xor_b32 v7, s56, v66"); A("v_xor_b32 v6, s57, v67")
        for i in range(1, 8):
            A(f"v_bitop3_b32 v7, v7, v{66 + 4*i}, s56 bitop3:0xf6"); A(f"v_bitop3_b32 v6, v6, v{67 + 4*i}, s57 bitop3:0xf6")
        A("v_or_b32 v5, v6, v7"); A("v_cmp_ne_u32 vcc, 0, v5")
        A("s_cbranch_vccz L_qok")
        A("s_cmp_eq_u32 s58, 0"); A("s_cbranch_scc0 L_q2")
        qstore("sc1"); A("s_mov_b32 s58, 1")
        A("L_q2:")
        A("v_lshrrev_b32 v6, 4, v6"); A("v_or_b32 v5, v6, v7"); A("v_cmp_ne_u32 vcc, 0, v5")
    else:
        A("v_xor_b32 v7, s56, v66")
        for i in range(1, 16): A(f"v_bitop3_b32 v7, v7, v{66 + 4*(i//2) + (i&1)}, s56 bitop3:0xf6")
        A("v_cmp_ne_u32 vcc, 0, v7")
    A("s_cbranch_vccz L_qok")
    A("s_sub_u32 s90, s90, 1"); A("s_cbranch_scc0 L_qpoll")
    A("L_qok:")
    if "halfq" in exp or "noqld" in exp: A("s_mov_b64 exec, -1")
    if QL: A("v_mov_b32 v39, s56")
    if diag: A("v_writelane_b32 v255, s90, 56")
    A("v_mov_b32 v48, s57"); A("s_mov_b64 exec, 0x3ff")
    A(f"buffer_load_dword v48, v47, {WS}, s77 offen offset:12 sc1")
    if PFO == 1:
        A("s_mov_b64 exec, 31"); A(f"buffer_load_dword v5, v22, {WS}, s38 offen sc1")
    A("s_mov_b64 exec, -1")
    if PFO == 2:
        A("s_sub_u32 s78, s31, 10"); A("s_cmp_lt_u32 s78, 8"); A("s_cbranch_scc0 L_pfo")
        A("s_lshl_b32 s78, s78, 12"); A("s_lshl_b32 s80, s30, 15"); A("s_add_u32 s78, s78, s80"); A(f"s_add_u32 s78, s78, {WS_OP}")
        A("s_mov_b64 exec, 0x1f1f1f1f"); A(f"buffer_load_dword v5, v22, {WS}, s78 offen sc1"); A("s_mov_b64 exec, -1")
        A("L_pfo:")
    if RC == 2: recl()
    for i in range(4): pk("add", 64+8*i, 64+8*i, 68+8*i)
    pk("add", 64, 64, 72); pk("add", 80, 80, 88); pk("add", 64, 64, 80)
    A("v_cvt_pk_bf16_f32 v64, v64, v65")
    A("ds_write_b32 v43, v64")
    stamp(6)
    def apbase(d):
        A(f"s_and_b32 s{d}, s30, 3"); A(f"s_lshl_b32 s{d}, s{d}, 4"); A("s_lshr_b32 s80, s30, 2"); A(f"s_add_u32 s{d}, s{d}, s80"); A(f"s_lshl_b32 s{d}, s{d}, 13")
        A(f"s_add_u32 s{d}, s{d}, {WS_AP}")
        if CC: A(f"s_xor_b32 s{d}, s{d}, 0x2000")
    def mlp5_setup():
        A("v_lshlrev_b32 v224, 2, v0")
        A("global_load_dword v252, v224, s[4:5]"); A("global_load_dword v253, v224, s[4:5] offset:1280")
        apbase(78); A("v_lshl_add_u32 v225, v0, 4, s78")
        A("v_lshrrev_b32 v226, 4, v0"); A("v_lshlrev_b32 v226, 6, v226"); A("v_bfe_u32 v7, v0, 1, 2"); A("v_lshl_add_u32 v226, v7, 4, v226")
        A("v_bfe_u32 v7, v0, 3, 1"); A("v_lshl_add_u32 v226, v7, 3, v226"); A("v_and_b32 v7, 1, v0"); A("v_lshl_add_u32 v226, v7, 2, v226"); A(f"v_add_u32 v226, {L_YB}, v226")
        A(f"v_mul_u32_u24 v227, {YBS}, v7"); A("v_lshl_add_u32 v227, v8, 4, v227"); A("s_lshl_b32 s78, s3, 8"); A("v_add_u32 v227, s78, v227")
        A("v_lshlrev_b32 v228, 7, v9"); A("v_lshl_add_u32 v228, v8, 4, v228"); A("s_lshl_b32 s78, s3, 9"); A("v_add_u32 v228, s78, v228")
        A(f"v_add_u32 v227, {L_YB}, v227"); A(f"v_add_u32 v228, {L_PB}, v228")
        A("v_and_b32 v7, 1, v8"); A("v_mul_u32_u24 v230, 48, v7"); A("v_lshrrev_b32 v7, 1, v8"); A("v_lshl_add_u32 v230, v7, 2, v230")
        A("s_lshl_b32 s78, s3, 3"); A(f"s_add_u32 s78, s78, {L_SB}"); A("v_add_u32 v230, s78, v230")
        A("v_lshrrev_b32 v7, 2, v1"); A("v_lshlrev_b32 v231, 6, v7"); A("v_and_b32 v7, 1, v8"); A("v_lshl_add_u32 v231, v7, 5, v231")
        A("v_and_b32 v7, 3, v1"); A("v_lshl_add_u32 v231, v7, 3, v231"); A("s_lshl_b32 s78, s3, 13"); A(f"s_add_u32 s78, s78, {L_W1}"); A("v_add_u32 v231, s78, v231"); A("v_xor_b32 v232, 32, v231")
    for r in (224, 225, 246, 56, 57): A(f"v_mov_b32 v{r}, 0")
    A("s_cmp_eq_u32 s36, 2"); A("s_cbranch_scc0 L_nofin")
    mlp5_setup()
    A("s_lshr_b32 s35, s30, 2")
    if OL:
        assert M0
        tab = [list(range(8)), [8, 9, 10, 12, 14, 16, 31, 31], [11, 13, 15, 17, 18, 19, 31, 31]]
        lo = lambda t: sum(v << 8*i for i, v in enumerate(t[:4])); hi = lambda t: sum(v << 8*i for i, v in enumerate(t[4:]))
        A("s_and_b32 s78, s30, 3"); A("s_add_u32 s78, s78, s35")
        A("s_mov_b64 s[60:61], -1")
        for k in range(3):
            A(f"s_cmp_eq_u32 s78, {k+1}"); A(f"s_cselect_b32 s60, {lo(tab[k]):#x}, s60"); A(f"s_cselect_b32 s61, {hi(tab[k]):#x}, s61")
        A("s_sub_u32 s78, s31, 10"); A("s_lshl_b32 s78, s78, 3"); A("s_lshr_b64 s[60:61], s[60:61], s78"); A("s_and_b32 s33, s60, 31")
    elif M0:
        A("s_sub_u32 s78, s31, 10"); A("s_lshr_b32 s78, s78, 1"); A("s_add_u32 s80, s35, 3"); A("s_mul_i32 s78, s78, s80")
        A("s_and_b32 s80, s30, 3"); A("s_add_u32 s78, s78, s80"); A("s_add_u32 s78, s78, s35"); A("s_sub_u32 s78, s78, 1")
        A("s_and_b32 s80, s31, 1"); A("s_lshl1_add_u32 s33, s78, s80")
    else:
        A("s_lshr_b32 s78, s37, 4"); A("s_lshl_b32 s78, s78, 3"); A("s_and_b32 s80, s37, 7"); A("s_add_u32 s33, s78, s80")
    A("s_min_u32 s34, s33, 19"); A("s_mul_i32 s85, s35, 20"); A("s_add_u32 s85, s85, s34")
    A("s_mul_i32 s78, s85, 52"); A("s_lshr_b32 s78, s78, 9")
    A("s_mul_i32 s80, s78, 10"); A("s_sub_u32 s80, s85, s80")
    A("s_mul_i32 s78, s78, 160")
    A("s_and_b32 s81, s80, 1"); A("s_lshl_b32 s82, s81, 6"); A("s_lshr_b32 s83, s80, 1"); A("s_lshl_b32 s83, s83, 2"); A("s_add_u32 s82, s82, s83")
    A("s_lshl_b32 s81, s81, 3"); A("s_add_u32 s81, s81, 128")
    A("v_bfe_u32 v7, v1, 1, 2"); A("v_lshlrev_b32 v12, 4, v7")
    A("v_bfe_u32 v7, v1, 1, 1"); A("v_lshlrev_b32 v15, 4, v7"); A("v_bfe_u32 v7, v1, 2, 1"); A("v_lshl_add_u32 v15, v7, 2, v15")
    A("s_cmp_lt_u32 s80, 8"); A("s_cselect_b32 s82, s82, s81"); A("s_cselect_b64 vcc, -1, 0"); A("s_add_u32 s78, s78, s82")
    A("v_cndmask_b32 v12, v15, v12, vcc"); A("v_add3_u32 v14, v12, v8, s78"); A("v_lshlrev_b32 v12, 1, v14")
    A("v_mov_b32 v17, 0"); A("v_mov_b32 v16, 0")
    A("global_load_short_d16_hi v17, v12, s[22:23]")
    A("v_and_b32 v7, 1, v1"); A(f"v_mul_u32_u24 v15, {YBS}, v7"); A("v_mul_u32_u24 v7, 1280, v7"); A("v_add_u32 v12, v12, v7")
    if PFOUT: A("global_load_ushort v5, v12, s[24:25]")
    A("v_lshrrev_b32 v7, 5, v14"); A("v_lshl_add_u32 v15, v7, 6, v15"); A("v_bfe_u32 v7, v14, 2, 2"); A("v_lshl_add_u32 v15, v7, 4, v15")
    A("v_bfe_u32 v7, v14, 4, 1"); A("v_lshl_add_u32 v15, v7, 3, v15"); A("v_and_b32 v7, 3, v14"); A("v_lshl_add_u32 v15, v7, 1, v15"); A(f"v_add_u32 v15, {L_YB}, v15")
    A("v_bfe_u32 v7, v1, 3, 1"); A("v_cmp_eq_u32 vcc, 0, v7"); A("v_cndmask_b32 v12, v23, v12, vcc")
    A("v_lshlrev_b32 v56, 14, v8"); A("v_lshl_add_u32 v56, v7, 12, v56"); A("v_and_b32 v57, 7, v1"); A("v_lshl_add_u32 v56, v57, 4, v56")
    A("s_lshl_b32 s78, s34, 7"); A("s_lshl_b32 s80, s35, 13"); A("s_add_u32 s78, s78, s80"); A(f"s_add_u32 s78, s78, {WS_MP}")
    if CC: A("s_xor_b32 s78, s78, 0x2000")
    A("v_add_u32 v56, s78, v56")
    for n in range(1, 7): A(f"s_mov_b32 s{80+n}, {n*65536}")
    A("L_nofin:")
    stamp(7)
    A("s_waitcnt vmcnt(0)")
    A("v_cmp_ne_u32 vcc, s57, v48"); A("s_cmp_lg_u64 vcc, 0")
    if not local: A("s_cmp_eq_u32 0, 0")
    A("s_cselect_b32 s76, 0, -1")
    if OMS:
        A("s_cmp_eq_u32 s36, 2"); A("s_cselect_b32 s76, 0, s76")
    A("s_not_b32 s77, s76")
    if diag: A("v_writelane_b32 v255, s77, 55")
    stamp(8)
    flush()
    A(f"s_mov_b32 s90, {SPIN*4}")
    C("""running max / sum of the four waves -> wave factors for the last wave, (max, sum, tag, tag) for the wo workgroups""")
    A("L_mlw:")
    A("ds_read_b128 v[64:67], v13"); A("ds_read_b128 v[68:71], v13 offset:16")
    A("s_waitcnt lgkmcnt(0)")
    A("v_max3_u32 v7, v65, v67, v69"); A("v_max_u32 v7, v7, v71"); A("v_cmp_eq_u32 vcc, -1, v7")
    A("s_cbranch_vccz L_mlw2")
    A("s_sleep 1")
    A("s_sub_u32 s90, s90, 1"); A("s_cbranch_scc0 L_mlw")
    A("L_mlw2:")
    A("v_max3_f32 v36, v64, v66, v68"); A("v_max_f32 v36, v36, v70")
    for i in range(4): A(f"v_sub_f32 v{64+2*i}, v{64+2*i}, v36")
    for i in range(4): A(f"v_mul_f32 v{64+2*i}, {LOG2E:#x}, v{64+2*i}")
    for i in range(4): A(f"v_exp_f32 v{64+2*i}, v{64+2*i}")
    A("v_mul_f32 v37, v64, v65")
    for i in range(1, 4): A(f"v_fmac_f32 v37, v{64+2*i}, v{65+2*i}")
    A("v_mov_b32 v45, s76"); A("ds_write_b32 v13, v45 offset:64")
    A("ds_write_b128 v13, v[64:67] offset:32"); A("ds_write_b128 v13, v[68:71] offset:48")
    A("s_mov_b32 exec_hi, 0")
    if MLS: A("s_mov_b32 exec_lo, 0xff")
    else:
        A("s_and_b32 exec_lo, s76, 0xff")
        A(f"buffer_store_dwordx4 v[36:39], v2, {WS}, s38 offen offset:512")
        A("s_and_b32 exec_lo, s77, 0xff")
    A(f"buffer_store_dwordx4 v[36:39], v2, {WS}, s38 offen offset:512 sc1")
    A("s_mov_b64 exec, -1")
    A(f"s_cmp_ge_u32 s31, {WARM or 99}"); A("s_cselect_b32 s59, 2, s36")
    A("v_lshrrev_b32 v47, 3, v1"); A("v_lshlrev_b32 v47, 7, v47"); A("v_and_b32 v7, 7, v1"); A("v_lshl_add_u32 v47, v7, 2, v47")
    flld = lambda: A(f"buffer_load_dword v46, v47, {WS}, 0 offen offset:{WS_VOTE} sc1")
    A("s_cmp_eq_u32 s59, 2"); A("s_cbranch_scc0 L_f0")
    flld()
    A("L_f0:")
    stamp(9)
    if "notail" not in exp:
        A("s_cmp_eq_u32 s59, 2"); A("s_cbranch_scc1 L_fl")
    A("L_aend:")
    fin()
    C("""MLP workgroups: all votes, side word, lines of the sums made resident""")
    A("L_fl:")
    A(f"s_mov_b32 s90, {SPIN}")
    A("s_waitcnt vmcnt(0)")
    A("L_fchk:")
    assert CC is None
    A("v_xor_b32 v7, s56, v46"); A("v_cmp_lt_u32 vcc, 1, v7")
    A("s_cbranch_vccz L_fok")
    flld()
    A("s_waitcnt vmcnt(0)")
    A("s_sub_u32 s90, s90, 1"); A("s_cbranch_scc0 L_fchk")
    A("L_fok:")
    if CC is None:
        A("v_cmp_ne_u32 vcc, s56, v46"); A("s_bcnt1_i32_b64 s78, vcc"); A("s_cmp_gt_u32 s78, 32"); A("s_cselect_b32 s78, 0x2000, 0")
        A("v_mov_b32 v46, s78"); A(f"v_mov_b32 v47, {L_CW}"); A("ds_write_b32 v47, v46")
        A("v_xor_b32 v225, s78, v225"); A("v_xor_b32 v56, s78, v56")
        if diag: A("v_writelane_b32 v255, s78, 58"); A("s_bcnt1_i32_b64 s78, vcc"); A("v_writelane_b32 v255, s78, 57")
        A("s_waitcnt lgkmcnt(0)")
    A("s_cmp_eq_u32 s36, 2"); A("s_cbranch_scc0 L_aend")
    if MW:
        A("v_readfirstlane_b32 s60, v225")
        A("s_sub_u32 s78, s31, 10"); A("s_mul_i32 s78, s78, 54"); A("v_add_u32 v7, s78, v1")
        A("v_mul_u32_u24 v6, 1639, v7"); A("v_lshrrev_b32 v6, 16, v6"); A("v_mul_u32_u24 v6, 88, v6"); A("v_add_lshl_u32 v6, v6, v7, 7")
        A("v_cmp_gt_u32 vcc, 320, v7"); A("v_cndmask_b32 v6, v23, v6, vcc")
        A("s_mov_b32 exec_hi, 0x3fffff")
        A(f"buffer_load_dword v4, v6, {WS}, s60 offen sc1")
        A("s_mov_b64 exec, -1")
    if MPW:
        A("s_lshl_b32 s63, s37, 13"); A("s_and_b32 s64, s37, 1"); A("s_lshl_b32 s64, s64, 12"); A("s_sub_u32 s63, s63, s64"); A(f"s_add_u32 s63, s63, {WS_MP}")
        A("v_mul_u32_u24 v7, 7680, v40"); A("v_add_u32 v7, v7, v2"); A("s_not_b32 s64, s56")
        for r in range(4): A(f"v_mov_b32 v{24+r}, s64")
    if not W1W: A("s_barrier")
    if MPW:
        for k in range(5): A(f"buffer_store_dwordx4 v[24:27], v7, {WS}, s63 offen offset:{512*k} sc1")
    A("s_barrier")
    A("s_branch L_mlp5")

    C("""================= waves 1..4: K / V stream with eight loads in flight each =================""")
    A("L_stream:")
    pend.extend(keep)
    stamp(1)
    A("s_sub_u32 s91, s3, 1")
    A("s_waitcnt lgkmcnt(0)")
    A("s_add_u32 s56, s56, 0x01010101")
    A("s_lshl3_add_u32 s82, s91, s30" if H8 else "s_lshl2_add_u32 s82, s30, s91"); A(f"s_mul_i32 s82, s82, {128*1280}"); A("s_lshl_b32 s78, s37, 7"); A("s_add_u32 s82, s82, s78")
    A("s_lshl_b32 s78, s37, 2"); A("s_add_u32 s78, s78, s91"); A("s_mul_i32 s78, s78, 10240")
    A("s_lshl_b32 s83, s91, 14"); A("s_mul_i32 s80, s91, 10240"); A(f"s_add_u32 s88, s80, {L_W1}")
    A("s_cmp_eq_u32 s36, 1")
    A("s_cselect_b32 s44, s12, s20"); A("s_cselect_b32 s45, s13, s21"); A("s_cselect_b32 s46, 5242880, 0"); A("s_mov_b32 s47, 0x20000")
    A("s_cselect_b32 s82, s82, s78"); A("s_cselect_b32 s83, s83, s80"); A("s_cselect_b32 s87, 10240, 0")
    A("s_cmp_eq_u32 s36, 2"); A("s_cselect_b32 s46, 2211840, s46"); A("s_cselect_b32 s87, 128, s87"); A(f"s_addk_i32 s83, {L_WB}")
    if "nopre" in exp: A("s_mov_b32 s46, 0")
    srd(48, 12, 5242880); srd(52, 16, 2211840)
    A(f"v_mov_b32 v19, {OOB}")
    if NW:
        assert tall
        A(f"s_add_u32 s76, s83, {(16-NW)*1024}"); A(f"s_add_u32 s79, s82, {(16-NW)*10240}"); A("s_cmp_eq_u32 s36, 1")
        A(f"s_cselect_b32 s76, s76, {L_DUMMY}"); A("s_cselect_b32 s77, 0x400, 0"); A(f"s_cselect_b32 s79, s79, {OOB}")
    A("s_sub_u32 s78, s31, 18"); A("s_lshl2_add_u32 s78, s78, s91"); A("s_mul_i32 s78, s78, 46")
    A("v_add_u32 v32, s78, v1"); A("v_mul_u32_u24 v33, 6554, v32"); A("v_lshrrev_b32 v33, 22, v33")
    A("v_mul_u32_u24 v34, 640, v33"); A("v_sub_u32 v34, v32, v34")
    A("s_cmp_ge_u32 s31, 18"); A("s_cselect_b32 s80, 46, 0"); A("v_cmp_gt_u32 s[60:61], s80, v1")
    A("v_cmp_gt_u32 vcc, 4, v33"); A("s_and_b64 s[60:61], s[60:61], vcc")
    A(f"s_mul_i32 s80, s30, {163840 if H8 else 655360}")
    assert TS or not H8
    if TS:
        a_, b2_, c_ = TS; NL = 10*a_ + 8*b2_ + 14*c_
        assert NL % 80 == 0 and NL <= 1280 and NB == 16
        A("s_cmp_ge_u32 s31, 10"); A(f"s_cselect_b32 s81, {b2_}, {a_}"); A(f"s_cselect_b32 s85, {(40*a_ - 40*b2_) & 0xffffffff}, 0")
        A("s_cmp_ge_u32 s31, 18"); A(f"s_cselect_b32 s81, {c_}, s81"); A(f"s_cselect_b32 s85, {(40*a_ + 32*b2_ - 72*c_) & 0xffffffff}, s85")
        A("s_lshl2_add_u32 s78, s31, s91"); A("s_mul_i32 s78, s78, s81"); A("s_add_u32 s78, s78, s85")
        A("v_add_u32 v56, s78, v1")
        if NL < 1280 or H8:
            mg = -(-(1 << 22) // NL); assert all((x * mg) >> 22 == x // NL for x in range(4 * NL))
            A(f"v_mul_u32_u24 v35, {mg}, v56"); A("v_lshrrev_b32 v35, 22, v35"); A(f"v_mul_u32_u24 v35, {(10240 if H8 else 1280) - NL}, v35"); A("v_add_u32 v56, v56, v35")
        A("v_lshl_add_u32 v56, v56, 7, s80"); A("v_cmp_gt_u32 vcc, s81, v1"); A("v_cndmask_b32 v56, v19, v56, vcc")
    elif tall:
        A("s_mul_i32 s80, s32, 163840"); A("s_lshl2_add_u32 s78, s33, s91"); A(f"s_mul_i32 s78, s78, {320*NB}"); A("s_add_u32 s80, s80, s78")
        if NB < 16: A(f"s_add_u32 s80, s80, {(16-NB)*10240}")
        A("v_lshl_add_u32 v56, v1, 7, s80"); A(f"v_cmp_gt_u32 vcc, {5*NB//2}, v1"); A("v_cndmask_b32 v56, v19, v56, vcc")
    else:
        A("v_lshl_add_u32 v56, v32, 7, s80"); A("v_cndmask_b32 v56, v19, v56, s[60:61]"); A("s_mov_b32 s79, 327680")
    if M0:
        A("s_sub_u32 s78, s30, 1"); A("s_cselect_b32 s78, 27, s78"); A("v_mad_u32_u24 v36, v33, 7, s78")
    else: A("v_lshl_add_u32 v36, v33, 3, s30")
    A("v_cmp_gt_u32 vcc, 27, v36"); A("s_and_b64 vcc, vcc, s[60:61]")
    A("v_mul_u32_u24 v57, 3456, v34"); A("v_lshl_add_u32 v57, v36, 7, v57"); A("v_cndmask_b32 v57, v19, v57, vcc")
    for d in range(T1D):
        assert M0 and not T2
        A(f"v_xor_b32 v35, {(2, 1, 3)[d]}, v33"); A("v_mad_u32_u24 v35, v35, 7, s78"); A("v_cmp_gt_u32 vcc, 27, v35"); A("s_and_b64 vcc, vcc, s[60:61]")
        A(f"v_mul_u32_u24 v{251+d}, 3456, v34"); A(f"v_lshl_add_u32 v{251+d}, v35, 7, v{251+d}"); A(f"v_cndmask_b32 v{251+d}, v19, v{251+d}, vcc")
    if T2:
        A("v_mul_u32_u24 v252, 81920, v36"); A("v_lshl_add_u32 v252, v34, 7, v252"); A("v_cndmask_b32 v252, v19, v252, vcc")
    A("v_and_b32 v7, 1, v1"); A("v_lshlrev_b32 v7, 4, v7"); A("v_mov_b32 v32, 0xffff"); A("v_lshlrev_b32 v7, v7, v32")
    A("v_bfe_u32 v32, v1, 1, 2")
    for r in range(4):
        A(f"v_cmp_eq_u32 vcc, {r}, v32"); A(f"v_cndmask_b32 v{20+r}, 0, v7, vcc")
    A(f"v_lshlrev_b32 v10, 4, v9"); A(f"v_add_u32 v10, {L_Q}, v10")
    A("s_lshl_b32 s78, s91, 3"); A(f"s_add_u32 s78, s78, {L_ML}"); A("v_mov_b32 v11, s78")
    A(f"v_add_u32 v3, {L_RED}, v2"); A("s_lshl_b32 s78, s91, 9"); A("v_add_u32 v12, s78, v3")
    A(f"v_mov_b32 v254, {L_ML}")
    slots()
    A("v_lshrrev_b32 v58, 3, v1"); A("v_mul_u32_u24 v58, 1280, v58"); A("v_bfe_u32 v7, v1, 1, 2"); A("v_xor_b32 v7, v7, v8")
    A("v_lshl_add_u32 v58, v7, 5, v58"); A("v_and_b32 v59, 1, v1"); A("v_lshlrev_b32 v59, 4, v59"); A("v_add_u32 v58, v58, v59")
    A("v_and_b32 v7, 1, v7"); A("v_lshl_add_u32 v59, v7, 5, v59"); A("v_lshrrev_b32 v7, 2, v1"); A("v_mul_u32_u24 v7, 3456, v7"); A("v_add_u32 v59, v59, v7")
    pump(); stamp(2); pump()
    C("""role set-up while K streams in: idx < 10 wo tile (4 heads x 64 columns), idx 10..17 of groups 1..7 MLP slice (32 of 1728), else none""")
    ld1 = [(176 + 4*sp, f"v224, {WS}, 0 offen offset:{1024*sp}") for sp in range(4)]
    for r in (14, 224, 225, 229, 246): A(f"v_mov_b32 v{r}, 0")
    if "nosetup" in exp: A("s_branch L_su9")
    A("s_cmp_eq_u32 s36, 1"); A("s_cbranch_scc0 L_su2")
    A("s_lshl_b32 s78, s30, 2"); A("s_add_u32 s78, s78, s91"); A("s_lshl_b32 s78, s78, 13"); A(f"s_add_u32 s78, s78, {WS_OP}")
    A("v_lshrrev_b32 v32, 5, v1"); A("v_and_b32 v33, 31, v1"); A("v_lshl_add_u32 v224, v32, 12, s78"); A("v_lshl_add_u32 v224, v33, 4, v224")
    A("s_mul_i32 s80, s91, 2176"); A(f"s_add_u32 s80, s80, {L_OF}")
    A("v_mul_u32_u24 v226, 272, v32"); A("v_lshl_add_u32 v226, v33, 3, v226"); A("v_add_u32 v226, s80, v226")
    A("v_and_b32 v7, 1, v1"); A("v_add_u32 v235, -1, v7"); A("v_and_b32 v235, 0xff, v235")
    A("v_and_b32 v7, 7, v1"); A("v_mul_u32_u24 v227, 272, v7"); A("v_and_b32 v7, 1, v8"); A("v_lshl_add_u32 v227, v7, 7, v227"); A("v_lshlrev_b32 v234, 9, v7")
    A("v_lshrrev_b32 v7, 5, v1"); A("v_lshl_add_u32 v227, v7, 4, v227"); A("v_add_u32 v227, s80, v227")
    A("v_and_b32 v7, 7, v1"); A("v_lshl_add_u32 v225, v7, 10, s78")
    traddr1280(230, 2048)
    A("v_add_u32 v230, s83, v230")
    for ct in range(1, 4): A(f"v_xor_b32 v{230+ct}, {32*ct}, v230")
    A("v_lshlrev_b32 v229, 3, v1"); A(f"v_add_u32 v228, {L_OB}, v229")
    A("v_lshl_add_u32 v234, v9, 3, v234"); A("s_lshl_b32 s78, s91, 10"); A(f"s_add_u32 s78, s78, {L_OB}"); A("v_add_u32 v234, s78, v234")
    A("s_lshl_b32 s80, s30, 14"); A("s_lshl_b32 s81, s37, 9"); A("s_add_u32 s84, s80, s81"); A("s_lshl_b32 s80, s91, 17")
    A("s_add_u32 s84, s84, s80"); A(f"s_add_u32 s84, s84, {WS_AP}"); A("s_add_u32 s85, s84, 8192")
    A("s_branch L_su9")
    A("L_su2:")
    A("s_cmp_eq_u32 s36, 2"); A("s_cbranch_scc0 L_su9")
    mlp5_setup()
    A(f"s_mul_i32 s84, s91, {160*3456}"); A("s_lshl_b32 s78, s37, 6"); A("s_add_u32 s84, s84, s78"); A("s_mul_i32 s85, s91, 10")
    A("v_mov_b32 v13, 0"); A("v_and_b32 v14, 31, v1"); A("v_lshlrev_b32 v247, 2, v14"); A(f"v_add_u32 v247, {L_PB + 256}, v247")
    A("s_lshl_b32 s78, s37, 5"); A("v_add_lshl_u32 v14, v14, s78, 1")
    A("global_load_short_d16_hi v13, v14, s[18:19]")
    traddr1280(16, 10240)
    for i in range(10):
        A(f"s_add_u32 s78, s85, {i}"); A("s_and_b32 s80, s78, 3"); A("s_lshl_b32 s80, s80, 5"); A(f"v_xor_b32 v{233+i}, s80, v16")
        A("s_lshr_b32 s78, s78, 2"); A("s_lshl_b32 s78, s78, 10"); A(f"v_add_u32 v{233+i}, s78, v{233+i}")
    for i in range(0, 32, 2): A(f"v_mov_b64 v[{192+i}:{193+i}], 0")
    A("v_and_b32 v7, 1, v1")
    A("v_lshlrev_b32 v243, 6, v7"); A("v_lshl_add_u32 v243, v8, 4, v243"); A("s_lshl_b32 s78, s91, 7"); A(f"s_add_u32 s78, s78, {L_H1}"); A("v_add_u32 v243, s78, v243")
    A(f"v_lshlrev_b32 v244, 2, v1"); A(f"v_add_u32 v244, {L_PB}, v244")
    A("v_lshrrev_b32 v7, 5, v1"); A("v_mul_u32_u24 v248, 48, v7"); A(f"v_add_u32 v248, {L_SB}, v248")
    A("v_lshlrev_b32 v245, 6, v7"); A("v_bfe_u32 v7, v1, 2, 2"); A("v_lshl_add_u32 v245, v7, 4, v245")
    A("v_bfe_u32 v7, v1, 4, 1"); A("v_lshl_add_u32 v245, v7, 3, v245"); A("v_and_b32 v7, 3, v1"); A("v_lshl_add_u32 v245, v7, 1, v245"); A("v_add_u32 v245, s78, v245")
    A("s_lshl_b32 s86, s37, 13"); A("s_and_b32 s78, s37, 1"); A("s_lshl_b32 s78, s78, 12"); A("s_sub_u32 s86, s86, s78")
    A("s_lshr_b32 s78, s91, 1"); A("s_lshl_b32 s78, s78, 13"); A("s_add_u32 s86, s86, s78")
    A("s_and_b32 s78, s91, 1"); A("s_mul_i32 s78, s78, 1280"); A("s_add_u32 s86, s86, s78"); A(f"s_add_u32 s86, s86, {WS_MP}")
    if CC: A("s_xor_b32 s86, s86, 0x2000")
    A("v_lshl_add_u32 v246, v8, 2, v9"); A("v_lshlrev_b32 v246, 4, v246")
    A(f"v_mov_b32 v24, {F(-2*0.7978845608028654*1.4426950408889634)}"); A(f"v_mov_b32 v25, {F(-2*0.7978845608028654*1.4426950408889634*0.044715)}")
    A(f"v_mov_b32 v26, {F(1+1e-5)}"); A(f"v_mov_b32 v27, {F(1e-10)}"); A(f"v_mov_b32 v250, {F(1/640)}"); A(f"v_mov_b32 v249, {L_CW}")
    A("L_su9:")
    while st["waited"] < pos[16 + KQ]:
        pump()
        if st["waited"] == pos[15]: stamp(3)
    stamp(4)
    C("""scores: dot products per 16-byte chunk, transposing reduction -> one key per lane, bf16 roundings as in the reference""")
    Q = 60
    A(f"s_mov_b32 s90, {SPIN*4}")
    flush()
    if "noqw" in exp: A("s_branch L_qw2")
    A("L_qw:")
    A(f"ds_read_b128 v[{Q}:{Q+3}], v10")
    A("s_waitcnt lgkmcnt(0)")
    A(f"v_max3_u32 v7, v{Q}, v{Q+1}, v{Q+2}"); A(f"v_max_u32 v7, v7, v{Q+3}"); A("v_cmp_eq_u32 vcc, -1, v7")
    A("s_cbranch_vccz L_qw2")
    A("s_sleep 1")
    A("s_sub_u32 s90, s90, 1"); A("s_cbranch_scc0 L_qw")
    A("L_qw2:")
    L_mark = len(L)
    stamp(5)
    LIM = pos[31 - W] if QKP == "kv" else pos[30]
    P = 32
    for half in range(2):
        for r in range(4):
            for t in range(8*half, 8*half+8):
                A(f"v_dot2_f32_bf16 v{P+t}, v{K0+4*t+r}, v{Q+r}, {'0' if r == 0 else f'v{P+t}'}")
            if r & 1: pump(lim=LIM)
    R = 48
    for t in range(8): A(f"v_add_f32_dpp v{R+t}, v{P+t}, v{P+t} row_mirror row_mask:0xf bank_mask:0x3")
    for t in range(8): A(f"v_add_f32_dpp v{R+t}, v{P+t+8}, v{P+t+8} row_mirror row_mask:0xf bank_mask:0xc")
    for t in range(4): A(f"v_add_f32_dpp v{P+t}, v{R+t}, v{R+t} row_half_mirror row_mask:0xf bank_mask:0x5")
    for t in range(4): A(f"v_add_f32_dpp v{P+t}, v{R+t+4}, v{R+t+4} row_half_mirror row_mask:0xf bank_mask:0xa")
    pump(lim=LIM)
    for t in range(4): A(f"v_add_f32_dpp v{R+t}, v{P+t}, v{P+t} quad_perm:[2,3,0,1] row_mask:0xf bank_mask:0xf")
    A("s_mov_b32 vcc_lo, 0xcccccccc"); A("s_mov_b32 vcc_hi, 0xcccccccc")
    for t in range(2): A(f"v_cndmask_b32 v{P+t}, v{R+t}, v{R+t+2}, vcc")
    for t in range(2): A(f"v_add_f32_dpp v{R+t}, v{P+t}, v{P+t} quad_perm:[1,0,3,2] row_mask:0xf bank_mask:0xf")
    A("s_mov_b32 vcc_lo, 0xaaaaaaaa"); A("s_mov_b32 vcc_hi, 0xaaaaaaaa")
    S = 40
    A(f"v_cndmask_b32 v{S}, v{R}, v{R+1}, vcc")
    bf16r(S, S); A(f"v_mul_f32 v{S}, {F(128**-0.5)}, v{S}"); bf16r(S, S)
    A(f"v_mov_b32 v42, v{S}")
    pump(lim=LIM)
    row_allred("v_max_f32", 42); swap_allred("v_max_f32", 42, 44, 16); swap_allred("v_max_f32", 42, 44, 32)
    pump(lim=LIM)
    A(f"v_sub_f32 v43, v{S}, v42"); A(f"v_mul_f32 v43, {LOG2E:#x}, v43"); A("v_exp_f32 v43, v43")
    A("v_cvt_pk_bf16_f32 v45, v43, v43")
    row_allred("v_add_f32", 43); swap_allred("v_add_f32", 43, 44, 16); swap_allred("v_add_f32", 43, 44, 32)
    A("ds_write_b64 v11, v[42:43]")
    stamp(6)
    pump(lim=LIM)
    C("""p = exp(s - wave max); o partial = p V with p in element lane&7 of the A rows""")
    done = 0
    for t in range(16):
        for r in range(4): A(f"v_and_b32_dpp v{K0+4*t+r}, v45, v{20+r} row_newbcast:{t} row_mask:0xf bank_mask:0xf")
        if t >= 1 and pos[16 + done] <= st["waited"]:
            mfma(ACC, K0+4*done, V0+4*done, done == 0); done += 1
        if t in (4, 9): pump(lim=LIM)
    if "noqk" in exp:
        L[L_mark:] = [l for l in L[L_mark:] if not l.strip().startswith(("v_dot2", "v_add_f32_dpp", "v_and_b32_dpp", "v_max_f32_dpp", "v_permlane"))]
    stamp(7)
    for t in range(done, 16):
        while t and st["waited"] < pos[15 + t]: pump()
        if t == 15 and FPRE:
            A("ds_read_b128 v[52:55], v254 offset:48"); A("ds_read_b128 v[48:51], v254 offset:32"); A("ds_read_b32 v62, v254 offset:64")
            A("v_mov_b32 v61, 1"); A("v_mov_b32 v6, s56"); A("v_mov_b32 v7, s56"); A(f"s_mov_b32 s90, {SPIN*4}")
        wait_for(pos[16 + t]); mfma(ACC, K0+4*t, V0+4*t, t == 0)
        if t < 15: issue_to(pos[16 + t] + 1 + W)
    assert st["issued"] == len(seq)
    stamp(8)
    C("""the wave that draws the last ticket scales and adds the four partial rows and publishes them as bf16 + tags""")
    def wsum():
        for k in range(4):
            if FPRE: A(f"s_waitcnt lgkmcnt({3-k})")
            for hh in (0, 2):
                if k == 0: pk("mul", 28+hh, 32+hh, 48, mod="op_sel_hi:[1,0]")
                else: pk("fma", 28+hh, 32+4*k+hh, 48+2*k, 28+hh, mod="op_sel_hi:[1,0,1]")
            if FPRE and k == 0: A("v_readfirstlane_b32 s78, v60")
    if FPRE:
        keepp = list(pend); pend.clear()
        A("s_mov_b32 exec_hi, 0"); A("s_waitcnt lgkmcnt(0)")
        A("v_readfirstlane_b32 s80, v55"); A("v_readfirstlane_b32 s81, v62")
        A(f"ds_write_b128 v12, v[{ACC}:{ACC+3}]")
        A("s_mov_b32 exec_lo, 1")
        A("ds_add_rtn_u32 v60, v254, v61 offset:68")
        A("s_mov_b32 exec_lo, -1")
        for k in range(4): A(f"ds_read_b128 v[{32+4*k}:{35+4*k}], v3 offset:{512*k}")
        pend.extend(keepp)
        wsum()
        A("s_cmp_eq_u32 s80, -1"); A("s_cbranch_scc1 L_fw3")
    else:
        A("s_mov_b32 exec_hi, 0"); A("v_mov_b32 v61, 1"); A("v_mov_b32 v6, s56"); A("v_mov_b32 v7, s56")
        A(f"ds_write_b128 v12, v[{ACC}:{ACC+3}]")
        A("s_mov_b32 exec_lo, 1")
        A("ds_add_rtn_u32 v60, v254, v61 offset:68")
        A("s_mov_b32 exec_lo, -1")
        for k in range(4): A(f"ds_read_b128 v[{32+4*k}:{35+4*k}], v3 offset:{512*k}")
        A(f"s_mov_b32 s90, {SPIN*4}")
        keepp = list(pend); pend.clear()
        A("L_fw:")
        A("ds_read_b128 v[52:55], v254 offset:48"); A("ds_read_b128 v[48:51], v254 offset:32"); A("ds_read_b32 v62, v254 offset:64")
        pend.extend(keepp)
        A("s_waitcnt lgkmcnt(0)")
        A("v_readfirstlane_b32 s78, v60"); A("v_readfirstlane_b32 s80, v55"); A("v_readfirstlane_b32 s81, v62")
        for k in range(4):
            for hh in (0, 2):
                if k == 0: pk("mul", 28+hh, 32+hh, 48, mod="op_sel_hi:[1,0]")
                else: pk("fma", 28+hh, 32+4*k+hh, 48+2*k, 28+hh, mod="op_sel_hi:[1,0,1]")
        A("s_cmp_eq_u32 s80, -1"); A("s_cbranch_scc1 L_fw3")
    A("L_fw4:")
    A("s_cmp_eq_u32 s78, 2"); A("s_cbranch_scc0 L_fw2")
    A("v_cvt_pk_bf16_f32 v4, v28, v29"); A("v_cvt_pk_bf16_f32 v5, v30, v31")
    A("s_mov_b32 exec_lo, s81")
    A(f"buffer_store_dwordx4 v[4:7], v2, {WS}, s38 offen")
    A("s_not_b32 exec_lo, s81")
    A(f"buffer_store_dwordx4 v[4:7], v2, {WS}, s38 offen sc1")
    stamp(16)
    flush()
    A("L_fw2:")
    A("s_mov_b64 exec, -1")
    save = dict(st); NPRE = len(seq)
    if "notail" in exp: fin()
    A("s_cmp_eq_u32 s36, 2"); A("s_cbranch_scc1 L_mlp")
    A("s_cmp_eq_u32 s36, 0"); A("s_cbranch_scc1 L_idle")

    C("""---- wo role: wave w multiplies head w; A rows = (split, batch), the softmax factors scale the product rows ----""")
    mlld = lambda: A(f"buffer_load_dwordx4 v[208:211], v225, {WS}, 0 offen offset:512 sc1")
    for n in range(NR + PRE, 16 - NW):
        didx[n] = len(seq); seq.append(dma_a(n))
    blk = lambda n: didx[n]
    trd = [0]
    need = lambda ks: max(blk(4*ks + b) for b in range(4))
    kord = sorted(range(4), key=need)
    def trs():
        while trd[0] < 4 and need(kord[trd[0]]) <= st["waited"]:
            ks = kord[trd[0]]
            for ct in range(4):
                for u in range(2): A(f"ds_read_b64_tr_b16 v[{64+16*ks+4*ct+2*u}:{65+16*ks+4*ct+2*u}], v{230+ct} offset:{(4*ks+u)*1024}")
            trd[0] += 1
    Wc[0] = WO or W
    issue_to(pos[31] + 1 + W)
    trs()
    while st["issued"] < len(seq):
        pump(); trs()
    stamp(9)
    if P1G:
        def mlm():
            A("s_mov_b64 exec, 0x00ff00ff"); mlld(); A("s_mov_b64 exec, -1")
        l1 = [(r, lambda r=r, a=a: A(ldtext(r, a))) for r, a in ld1] + [(208, mlm)]
        A("v_mov_b32 v210, s56")
        poll_first(l1); st["issued"] += 5
        while trd[0] < 4:
            wait_for(need(kord[trd[0]])); trs()
        stamp(10)
        poll("1", l1, lambda: None, None, chk=lambda d, r: A(f"v_cmp_ne_u32 {d}, s56, v{r+2}"),
             clr=lambda r: r == 208 or A(f"ds_write_b64 v226, v[{r}:{r+1}] offset:{136*(r-176)}"))
    else:
        def round1(sk):
            for i, (r, a) in enumerate(ld1):
                if sk:
                    A(f"s_cmp_eq_u64 s[{62+2*i}:{63+2*i}], 0"); A(f"s_cbranch_scc1 L_r1_{i}")
                A(ldtext(r, a))
                if sk: A(f"L_r1_{i}:")
            A("s_mov_b64 exec, s[60:61]")
            if sk: A("s_cbranch_execz L_r1_4")
            mlld()
            if sk: A("L_r1_4:")
            A("s_mov_b64 exec, -1")
        A("s_mov_b64 s[60:61], 0x00ff00ff")
        A("v_mov_b32 v210, s56"); A("v_mov_b32 v211, s56")
        if WBAR == 1: A("s_barrier")
        if WBAR < 2:
            round1(False); st["issued"] += 5
        while trd[0] < 4:
            wait_for(need(kord[trd[0]])); trs()
        if WBAR == 2:
            A("s_barrier"); round1(False)
        stamp(10)
        A(f"s_mov_b32 s90, {SPIN}")
        if diag: flush()
        A("L_p1:")
        A("s_waitcnt vmcnt(0)")
        A("ds_write2_b64 v226, v[176:177], v[180:181] offset0:0 offset1:68"); A("ds_write2_b64 v226, v[184:185], v[188:189] offset0:136 offset1:204")
        for i in range(4): A(f"v_cmp_ne_u32 s[{62+2*i}:{63+2*i}], s56, v{178+4*i}")
        A("v_cmp_ne_u32 s[60:61], s56, v210"); A("v_cmp_ne_u32 vcc, s56, v211")
        A("s_or_b64 s[70:71], s[62:63], s[64:65]"); A("s_or_b64 s[72:73], s[66:67], s[68:69]"); A("s_or_b64 s[70:71], s[70:71], s[72:73]")
        A("s_or_b64 s[60:61], s[60:61], vcc"); A("s_or_b64 vcc, s[60:61], s[70:71]")
        A("s_cbranch_scc0 L_pd1")
        A("s_waitcnt lgkmcnt(0)")
        round1(True)
        A("s_sub_u32 s90, s90, 1"); A("s_cbranch_scc0 L_p1")
        A("s_waitcnt vmcnt(0)")
        A("L_pd1:")
    if diag: A("v_writelane_b32 v255, s90, 54")
    for ks in range(4): A(f"ds_read_b128 v[{192+4*ks}:{195+4*ks}], v227 offset:{32*ks}")
    stamp(11)
    fac = ["v_max_f32_dpp v210, v208, v208 quad_perm:[1,0,3,2] row_mask:0xf bank_mask:0xf",
           "v_max_f32_dpp v210, v210, v210 quad_perm:[2,3,0,1] row_mask:0xf bank_mask:0xf",
           "v_sub_f32 v208, v208, v210\nv_mul_f32 v208, %#x, v208" % LOG2E, "v_exp_f32 v208, v208", "v_mul_f32 v209, v208, v209",
           "v_add_f32_dpp v209, v209, v209 quad_perm:[1,0,3,2] row_mask:0xf bank_mask:0xf",
           "v_add_f32_dpp v209, v209, v209 quad_perm:[2,3,0,1] row_mask:0xf bank_mask:0xf",
           "v_rcp_f32 v209, v209", "v_mul_f32 v208, v208, v209", ""]
    for gh in range(2):
        for pr in range(2):
            fac.append("\n".join(f"v_mov_b32_dpp v{216+2*pr+b}, v208 row_newbcast:{4*b + 2*gh + pr} row_mask:{1 << gh:#x} bank_mask:0xf" for b in range(2)))
    n = 0
    for f_ in fac[:4]: A(f_)
    del fac[:4]
    for ct in range(4):
        for ks in range(4):
            if ct == 0: A(f"s_waitcnt lgkmcnt({3-ks})")
            mfma(144+4*ct, 192+4*ks, 64+16*ks+4*ct, ks == 0)
            if n < len(fac) and fac[n]: A(fac[n])
            n += 1
    A("s_mov_b32 exec_hi, 0")
    for ct in range(4):
        pk("mul", 144+4*ct, 144+4*ct, 216); pk("fma", 144+4*ct, 146+4*ct, 218, 144+4*ct)
        if ct & 1: A(f"ds_write2_b64 v234, v[{140+4*ct}:{141+4*ct}], v[{144+4*ct}:{145+4*ct}] offset0:{16*(ct-1)} offset1:{16*ct}")
    A("s_mov_b64 exec, -1")
    A("s_waitcnt lgkmcnt(0)"); A("s_barrier")
    for k in range(4): A(f"ds_read2st64_b64 v[{160+4*k}:{163+4*k}], v228 offset0:{2*k} offset1:{2*k+1}")
    for k in range(4):
        A(f"s_waitcnt lgkmcnt({3-k})"); pk("add", 160+4*k, 160+4*k, 162+4*k)
        if k & 1: pk("add", 156+4*k, 156+4*k, 160+4*k)
    pk("add", 160, 160, 168)
    A("v_bfi_b32 v160, v235, s56, v160")
    A(f"buffer_store_dwordx2 v[160:161], v229, {WS}, s84 offen sc1")
    A(f"buffer_store_dwordx2 v[160:161], v229, {WS}, s85 offen sc1")
    stamp(12)
    if WB == "wo":
        A("s_cmp_eq_u32 s31, 0"); A("s_cbranch_scc0 L_nwb"); A("s_cmp_eq_u32 s3, 1"); A("s_cbranch_scc0 L_nwb")
        A("s_waitcnt vmcnt(0)")
        A("buffer_wbl2 sc1")
        A("L_nwb:")
    fin()

    A("L_fw3:")
    A("s_cmp_eq_u32 s78, 2"); A("s_cbranch_scc0 L_fw2")
    if FPRE:
        A("ds_read_b128 v[52:55], v254 offset:48"); A("ds_read_b128 v[48:51], v254 offset:32"); A("ds_read_b32 v62, v254 offset:64")
        A("s_waitcnt lgkmcnt(0)")
        A("v_readfirstlane_b32 s80, v55"); A("v_readfirstlane_b32 s81, v62")
        wsum()
        A("s_cmp_eq_u32 s80, -1"); A("s_cbranch_scc0 L_fw4")
        A("s_sub_u32 s90, s90, 1"); A("s_cbranch_scc0 L_fw3")
    else:
        A("s_sub_u32 s90, s90, 1"); A("s_cbranch_scc0 L_fw")
    A("s_branch L_fw4")

    C("""---- no role: pull the group's w1 lines into L2 ----""")
    A("L_idle:")
    if IB: A("s_barrier")
    if T1 and not PT1: A(f"buffer_load_dword v6, v57, s[52:55], 0 offen {tnt}")
    for d in range(T1D): A(f"buffer_load_dword v{32+d}, v{251+d}, s[52:55], 0 offen {tnt}")
    if T2:
        A("s_mov_b32 s46, 2211840")
        A(f"buffer_load_dword v5, v252, s[44:47], 0 offen {tnt}")
    if probe2:
        A("s_cmp_eq_u32 s99, 0"); A("s_cbranch_scc1 L_q2z")
        A("L_q2y:"); A("s_sleep 2"); A("s_memrealtime s[62:63]"); A("s_waitcnt lgkmcnt(0)"); A("s_sub_u32 s62, s62, s99"); A("s_cmp_lt_i32 s62, 0"); A("s_cbranch_scc1 L_q2y")
        A("L_q2z:")
    if probe3 is not None:
        A("s_cmp_eq_u32 s31, 31"); A("s_cbranch_scc0 L_q3z"); A("s_cmp_eq_u32 s3, 1"); A("s_cbranch_scc0 L_q3z")
        A("v_readlane_b32 s60, v255, 0"); A("s_lshl_b32 s61, s30, 7"); A("s_add_u32 s61, s61, 0x3000"); A("v_mov_b32 v7, s60"); A("s_mov_b64 exec, 1")
        A(f"buffer_store_dword v7, v2, {WS}, s61 offen sc1"); A("s_mov_b64 exec, -1")
        A("s_cmp_eq_u32 s30, 7"); A("s_cbranch_scc0 L_q3z")
        for _ in range(4): A("s_sleep 127")
        for g in range(8): A(f"s_load_dword s{64+g}, s[40:41], {0x3000 + 128*g} glc")
        A("s_waitcnt lgkmcnt(0)")
        A("s_mov_b32 s72, s64"); A("s_mov_b32 s73, s64")
        for g in range(1, 8):
            A(f"s_min_u32 s72, s72, s{64+g}"); A(f"s_max_u32 s73, s73, s{64+g}")
        A(f"s_sub_u32 s73, s{73 if probe3 < 0 else 64 + probe3}, s72"); A("s_mul_i32 s73, s73, 20"); A("s_add_u32 s73, s73, s72"); A("s_add_u32 s73, s73, 4000")
        A("L_q3y:"); A("s_sleep 2"); A("s_memrealtime s[62:63]"); A("s_waitcnt lgkmcnt(0)"); A("s_sub_u32 s62, s62, s73"); A("s_cmp_lt_i32 s62, 0"); A("s_cbranch_scc1 L_q3y")
        A("L_q3z:")
    if not IB: A("s_barrier")
    if WB == "idle":
        A("s_cmp_eq_u32 s31, 31"); A("s_cbranch_scc0 L_nwb"); A("s_cmp_eq_u32 s3, 1"); A("s_cbranch_scc0 L_nwb")
        A("buffer_wbl2 sc1")
        A("L_nwb:")
    if WARM:
        nwv = (32 - WARM) * 4; per = 320 // nwv
        A(f"s_cmp_ge_u32 s31, {WARM}"); A("s_cbranch_scc0 L_widone")
        assert nwv in (8, 16)
        apbase(78)
        A(f"s_sub_u32 s81, s31, {WARM}"); A("s_lshl2_add_u32 s81, s81, s91")
        if nwv == 16:
            A("s_and_b32 s80, s81, 1"); A("s_mul_i32 s80, s80, 2560"); A("s_add_u32 s78, s78, s80"); A("s_lshr_b32 s81, s81, 1")
        A("s_lshl_b32 s81, s81, 14"); A("s_add_u32 s78, s78, s81")
        if CC is None:
            A(f"v_mov_b32 v7, {L_CW}"); A("ds_read_b32 v7, v7"); A("s_waitcnt lgkmcnt(0)"); A("v_readfirstlane_b32 s80, v7"); A("s_xor_b32 s78, s78, s80")
        A("v_lshlrev_b32 v7, 7, v1"); A(f"v_cmp_gt_u32 vcc, {per}, v1"); A("s_movk_i32 s90, 200")
        A("L_wi:")
        A("s_mov_b64 exec, vcc")
        A(f"buffer_load_dword v5, v7, {WS}, s78 offen sc1")
        A("s_waitcnt vmcnt(0)")
        if WSL: A(f"s_sleep {WSL}")
        A("v_cmp_eq_u32 vcc, -1, v5")
        A("s_cbranch_vccz L_widone")
        A("s_sub_u32 s90, s90, 1"); A("s_cbranch_scc0 L_wi")
        A("L_widone:")
    fin()

    C("""---- MLP role ----""")
    A("L_mlp:")
    st.update(save); del seq[NPRE:]; Wc[0] = WM or W
    if MPRE is None:
        seq.extend(dma_a(n) for n in range(NR + PRE, 10))
        issue_to(pos[31] + 1 + W)
        while st["issued"] < len(seq): pump()
    stamp(23)
    if not W1W: A("s_barrier")
    if MPRE is not None:
        redo[0] = True
        A("s_mov_b32 s46, 2211840"); A(f"s_sub_u32 s82, s82, {128*(NR + PRE - MPRE) - (128 if MPRE == 0 else 0)}")
        assert NR + PRE <= 10
        for n in range(MPRE, 10): dma_a(n)()
    stamp(24)
    wgt = [1] * len(seq)
    for n in range(10):
        if W1W:
            while sum(wgt[st["waited"] + 1:]) + 2 > W1W: wait_for(st["waited"] + 1)
            seq.append(None); wgt.append(2); st["issued"] += 1
        A(f"s_add_u32 m0, s88, {n*1024}")
        if n: A(f"s_add_u32 s84, s84, {16*3456}")
        A(f"buffer_load_dwordx4 v59, s[52:55], s84 offen {w1nt} lds")
    stamp(9)
    W1F, W2F, PL, HO, H1O = 64, 96, 136, 168, 192
    flush()
    A("s_waitcnt vmcnt(10)"); A("s_barrier")
    if CC is None: A("ds_read_b32 v15, v249")
    for i in range(10):
        for u in range(2):
            r = W2F + 4*i + 2*u
            A(f"ds_read_b64_tr_b16 v[{r}:{r+1}], v{233+i} offset:{L_W2 + u*20480}")
    if CC is None:
        A("s_waitcnt lgkmcnt(15)")
        A("v_readfirstlane_b32 s78, v15"); A("v_xor_b32 v225, v15, v225"); A("s_xor_b32 s86, s86, s78")
    C("""all five waves: thread = column pair; h = x + sum of the eight groups' attention sums""")
    A("L_mlp5:")
    sofr = [None, 76, 77, 87, 88, 89, 57, 58]
    for p in range(1, 8): A(f"s_mov_b32 s{sofr[p]}, {p*16384}")
    ld2 = [(PL + 4*p, lambda p=p: A(ldtext(PL + 4*p, f"v225, {WS}, {f's{sofr[p]}' if p else '0'} offen"))) for p in range(8)]
    A("v_mov_b32 v18, 0xffffff00"); A("v_mov_b32 v19, 0xff")
    for r in range(16): A(f"v_mov_b32 v{HO+r}, 0x3f803f80")
    A("s_mov_b32 s50, 0x00030003"); A("s_mov_b32 s51, 0x00030003"); A("s_mov_b32 s48, 0x00070007"); A("s_mov_b32 s49, 0x00070007")
    A("v_lshlrev_b32 v184, 16, v252"); A("v_lshlrev_b32 v185, 16, v253"); A("v_and_b32 v186, 0xffff0000, v252"); A("v_and_b32 v187, 0xffff0000, v253")
    if EF:
        poll_first(ld2); A("s_waitcnt vmcnt(8)")
    else: A("s_waitcnt vmcnt(0)")
    A("s_barrier")
    stamp(10)
    if not EF: poll_first(ld2)
    stamp(20)
    for ks in range(4):
        for ct in range(2):
            for u in range(2):
                r = W1F + 8*ks + 4*ct + 2*u
                A(f"ds_read_b64_tr_b16 v[{r}:{r+1}], v{231+ct} offset:{(2*ks+u)*1024}")
    stamp(22)
    SM = 40
    def sum2():
        for i in range(0, 16, 2): pk("add", SM+i, PL+i, PL+16+i)
        sum4(SM)
        if NR16:
            pk("add", SM, SM, 184); pk("add", SM+2, SM+2, 186)
    poll("2", ld2, sum2, 18)
    stamp(11)
    a, b_, c = SM, SM+4, SM+6
    def unpack():
        A(f"v_lshlrev_b32 v{a}, 16, v{b_}"); A(f"v_lshlrev_b32 v{a+1}, 16, v{b_+1}"); A(f"v_and_b32 v{a+2}, 0xffff0000, v{b_}"); A(f"v_and_b32 v{a+3}, 0xffff0000, v{b_+1}")
    if not NR16:
        A(f"v_cvt_pk_bf16_f32 v{b_}, v{a}, v{a+2}"); A(f"v_cvt_pk_bf16_f32 v{b_+1}, v{a+1}, v{a+3}"); unpack()
        pk("add", a, a, 184); pk("add", a+2, a+2, 186)
    A(f"v_cvt_pk_bf16_f32 v{b_}, v{a}, v{a+2}"); A(f"v_cvt_pk_bf16_f32 v{b_+1}, v{a+1}, v{a+3}")
    A(f"ds_write_b32 v226, v{b_}"); A(f"ds_write_b32 v226, v{b_+1} offset:{YBS}")
    A("s_mov_b64 exec, s[50:51]")
    for ks in range(4): A(f"ds_read_b128 v[{HO+4*ks}:{HO+3+4*ks}], v227 offset:{64*ks}")
    A("s_mov_b64 exec, -1")
    unpack()
    pk("mul", c+2, a, a); pk("add", c, a, a+2); pk("fma", c+2, a+2, a+2, c+2)
    A(f"v_permlane32_swap_b32 v{c}, v{c+2}"); A(f"v_permlane32_swap_b32 v{c+1}, v{c+3}"); pk("add", c, c, c+2)
    A(f"v_permlane16_swap_b32 v{c}, v{c+1}"); A(f"v_add_f32 v{c}, v{c}, v{c+1}")
    red = [f"v_add_f32_dpp v{c}, v{c}, v{c} {m} row_mask:0xf bank_mask:0xf" for m in ("row_mirror", "row_half_mirror", "quad_perm:[2,3,0,1]", "quad_perm:[1,0,3,2]")]
    for ks in range(4):
        A(f"s_waitcnt lgkmcnt({3-ks})")
        for ct in range(2): mfma(28+4*ct, W1F+8*ks+4*ct, HO+4*ks, ks == 0)
        A(red[ks])
    A(f"ds_write_b32 v230, v{c}")
    A("s_mov_b64 exec, s[48:49]")
    A("ds_write_b128 v228, v[28:31]"); A("ds_write_b128 v228, v[32:35] offset:64")
    A("s_mov_b64 exec, -1")
    A("s_waitcnt lgkmcnt(0)")
    stamp(26)
    A("s_barrier")
    stamp(12)
    A("s_cmp_eq_u32 s3, 0"); A("s_cbranch_scc1 L_final ; nf")
    pend_fin = list(pend)
    C("""LN(LN(h)) = (h-mean) / sqrt(var+eps) / sqrt(var/(var+eps)+eps) = (h-mean) * rsq(var*(1+eps) + eps*eps), exactly;
 applied behind the product: y @ w1 = rs * (h @ w1 - mean * colsum(w1)); gelu(z) = z / (1 + exp(-2u)), u = sqrt(2/pi)(z + 0.044715 z^3)""")
    A("ds_read_b128 v[40:43], v248"); A("ds_read_b128 v[44:47], v248 offset:16"); A("ds_read_b64 v[48:49], v248 offset:32")
    A("ds_read2st64_b32 v[52:53], v247 offset0:0 offset1:2"); A("ds_read2st64_b32 v[54:55], v247 offset0:4 offset1:6"); A("ds_read_b32 v15, v247 offset:2048")
    A("ds_read2st64_b32 v[36:37], v244 offset0:0 offset1:2"); A("ds_read2st64_b32 v[38:39], v244 offset0:4 offset1:6"); A("ds_read_b32 v50, v244 offset:2048")
    A("s_waitcnt lgkmcnt(6)")
    pk("add", 40, 40, 42); pk("add", 44, 44, 46); pk("add", 40, 40, 48); pk("add", 40, 40, 44)
    pk("mul", 40, 40, 250, mod="op_sel_hi:[1,0]")
    A("v_fma_f32 v41, -v40, v40, v41"); A("v_max_f32 v41, 0, v41")
    A("v_fma_f32 v41, v41, v26, v27"); A("v_rsq_f32 v41, v41")
    A("s_waitcnt lgkmcnt(3)")
    pk("add", 52, 52, 54); A("v_add_f32 v15, v15, v52"); A("v_add_f32 v15, v15, v53")
    A("s_waitcnt lgkmcnt(0)")
    pk("add", 36, 36, 38); A("v_fma_f32 v50, -v40, v15, v50"); A("v_add_f32 v36, v36, v37"); A("v_add_f32 v36, v36, v50")
    if NR16: A("v_fma_f32 v36, v36, v41, v13")
    else:
        A("v_mul_f32 v36, v36, v41")
        bf16r(36, 36); A("v_add_f32 v36, v36, v13"); bf16r(36, 36)
    A("v_mul_f32 v37, v36, v36"); A("v_fma_f32 v37, v37, v25, v24"); A("v_mul_f32 v37, v37, v36"); A("v_exp_f32 v37, v37")
    A("v_add_f32 v37, 1.0, v37"); A("v_rcp_f32 v37, v37"); A("v_mul_f32 v36, v36, v37")
    A("v_cvt_pk_bf16_f32 v36, v36, v36")
    A("ds_write_b16 v245, v36")
    for t in range(8):
        A(f"s_lshl_b64 exec, s[50:51], {2*t}")
        A(f"ds_read_b128 v[{H1O+4*t}:{H1O+3+4*t}], v243")
    A("s_mov_b64 exec, -1")
    for i in [0, 8, 1, 9, 2, 3, 4, 5, 6, 7]:
        t = i & 7
        if i < 8: A(f"s_waitcnt lgkmcnt({7-t})")
        mfma(28 + 4*(i >> 3), W2F+4*i, H1O+4*t, t == 0)
    A("v_bfi_b32 v32, v19, s56, v32")
    A("s_mov_b32 exec_lo, 0x000f000f"); A("s_mov_b32 exec_hi, 0x000f000f")
    A(f"buffer_store_dwordx4 v[32:35], v246, {WS}, s86 offen offset:1024 sc1")
    A("s_mov_b64 exec, -1")
    A("v_bfi_b32 v28, v19, s56, v28")
    A(f"buffer_store_dwordx4 v[28:31], v2, {WS}, s86 offen sc1")
    stamp(18)
    if h3 is not None:
        if h3 < 0: A("s_waitcnt vmcnt(0)")
        A("s_barrier")
    stamp(13)
    fin()

    C("""---- final sum over the 54 slices: one 128-byte line of every record per wave, out = h + sum + b2 ----""")
    A("L_final:")
    pend.extend(pend_fin)
    A("s_cmp_ge_u32 s33, 20"); A("s_cbranch_scc1 L_epoch")
    A("ds_read_u16_d16_hi v16, v15")
    srd(44, 24, 2560)
    def l3(n):
        def f():
            if n == 6: A("s_mov_b32 exec_hi, 0xffff")
            A(ldtext(96 + 4*n, f"v56, {WS}, {f's{80+n}' if n else '0'} offen"))
            if n == 6: A("s_mov_b32 exec_hi, -1")
        return f
    ld3 = [(96 + 4*n, l3(n)) for n in range(7)]
    A("v_and_b32 v20, s56, v19"); A("v_and_b32 v120, s56, v19"); A("v_mov_b32 v121, 0"); A("v_mov_b64 v[122:123], 0")
    A("s_waitcnt lgkmcnt(0)")
    if NR16: A("v_add_f32 v16, v16, v17")
    if h3 is not None:
        A("s_barrier")
        if h3 > 0: A(f"s_sleep {h3}")
        if h3x: A(f"s_sleep {h3x}")
    poll_first(ld3)
    def sum3():
        for k in range(3):
            for hh in (0, 2): pk("add", 64+4*k+hh, 96+8*k+hh, 100+8*k+hh)
        for hh in (0, 2):
            pk("add", 64+hh, 64+hh, 68+hh); pk("add", 72+hh, 72+hh, 120+hh)
        for hh in (0, 2): pk("add", 64+hh, 64+hh, 72+hh)
    def red3():
        A("v_permlane32_swap_b32 v64, v66"); A("v_permlane32_swap_b32 v65, v67"); pk("add", 64, 64, 66)
        A("v_permlane16_swap_b32 v64, v65"); A("v_add_f32 v64, v64, v65")
        A("v_add_f32_dpp v64, v64, v64 row_ror:8 row_mask:0xf bank_mask:0xf")
    if SP3:
        A("s_waitcnt vmcnt(0)")
        for r, _ in ld3: A(f"v_xor_b32 v{r}, v20, v{r}")
        A("v_or3_b32 v7, v96, v100, v104"); A("v_or3_b32 v6, v108, v112, v116"); A("v_or3_b32 v7, v7, v6, v120")
        A("v_cmp_ne_u32_sdwa vcc, v7, 0 src0_sel:BYTE_0 src1_sel:DWORD")
        sum3(); red3()
        A("s_cbranch_vccnz L_slow3")
        A("L_back3:")
    else:
        poll("3", ld3, sum3, 18)
        red3()
    stamp(14)
    if diag: A("v_writelane_b32 v255, s90, 53")
    if not NR16:
        bf16r(64, 64); A("v_add_f32 v64, v64, v17"); bf16r(64, 64)
    A("v_add_f32 v64, v64, v16")
    A("v_cvt_pk_bf16_f32 v64, v64, v64")
    if hold == "before":
        for _ in range(4): A("s_sleep 90")
    A(f"buffer_store_short v64, v12, s[44:47], 0 offen {osc}")
    if hold == "after":
        for _ in range(4): A("s_sleep 90")
    stamp(15)
    fin()
    if SP3:
        A("L_slow3:")
        for r, _ in ld3: A(f"v_xor_b32 v{r}, v20, v{r}")
        poll("3", ld3, sum3, 18)
        red3()
        A("s_branch L_back3")
    C("""every wave that reads the epoch word has published by now (this wave has consumed sums over all of them)""")
    A("L_epoch:")
    A("s_cmp_eq_u32 s37, 53"); A("s_cbranch_scc0 L_fend")
    A("v_mov_b32 v34, s56"); A("s_mov_b64 exec, 1")
    A(f"buffer_store_dword v34, v2, {WS}, 0 offen {osc}")
    A("L_fend:")
    if diag: fin()
    A("L_end:")
    A("s_endpgm")

    body = [("    " + l if l.startswith("s_nop") else l).replace(" ; nf", "") for l in fix(L)]
    out = [HDR.rstrip("\n"),
           "; One launch, 256 workgroups of five waves (one per CU). Each streams 256 keys of one (batch, head); 80 of them then",
           "; apply wo, 54 the MLP. Hand-offs go through d_ws and carry a per-launch tag; all waits are bounded.",
           f"; @launch grid=(256,1,1) block=(320,1,1) lds={LDS_BYTES}",
           '.amdgcn_target "amdgcn-amd-amdhsa--gfx950"', ".text", f".globl {NAME}_kernel", ".p2align 8",
           f".type {NAME}_kernel,@function", f"{NAME}_kernel:"] + body + [
           '.section .rodata,"a"', ".p2align 6", f".amdhsa_kernel {NAME}_kernel",
           "  .amdhsa_next_free_vgpr 256", "  .amdhsa_next_free_sgpr 102", "  .amdhsa_accum_offset 256",
           "  .amdhsa_group_segment_fixed_size 0", "  .amdhsa_kernarg_size 104", "  .amdhsa_user_sgpr_count 2",
           "  .amdhsa_user_sgpr_kernarg_segment_ptr 1", "  .amdhsa_system_sgpr_workgroup_id_x 1",
           "  .amdhsa_float_denorm_mode_32 3",
           ".end_amdhsa_kernel"]
    return "\n".join(out) + "\n"

if __name__ == "__main__":
    import argparse
    ap = argparse.ArgumentParser(); ap.add_argument("-o", default=f"cdna_kernels/{NAME}.s"); ap.add_argument("--diag", action="store_true")
    ap.add_argument("--kw", default="")
    a = ap.parse_args()
    open(a.o, "w").write(gen(diag=a.diag, **eval("dict(%s)" % a.kw)))
```

```python
import sys, struct
from hz import fix
NAME = "sequential_preLN__sliding_block_cached__mixer_channel_mlp__decode"
HDR = open("cdna_kernels/%s.s.ref" % NAME).read().split("; Override launch")[0]
def F(x): return "0x%08x" % struct.unpack("<I", struct.pack("<f", x))[0]

WS_FLAGS = 1024; WS_VOTE = 2048; WS_PRB = 0x4000; WS_MP = 0x10000; WS_AP = 0x80000; WS_QP = 0x100000; WS_OP = 0x180000
WS_STAMP = 0x200000
OOB = 0xF0000000
L_WB = 23552
L_W2 = L_WB; L_W1 = L_WB + 40960
L_RED = L_WB + 81920
L_Q = L_RED + 2048
L_ML = L_Q + 256
L_SB = L_ML + 96
L_OB = L_SB + 96
L_OF = L_OB + 4096
L_YB = L_OF + 8704
YBS = 1344
L_PB = L_YB + 2 * YBS
L_CW = L_PB + 2560
L_H1 = L_CW + 64
L_DUMMY = L_H1 + 512
LDS_BYTES = L_DUMMY + 1024
SPIN = 2000000
LOG2E = 0x3FB8AA3B

def gen(diag=False, nt='nt', W=8, wnt='nt', prio=False, KQ=2, depth=0, PT0=12, T1=True, T2=False, tnt='', local=True, probe=None, h3=-3, exp=(), qdelay=None, PRE=None, QKP='kv', W0=2, NR=0, PR=17, RS=1.5, tall=True, tfree=False, NB=16, MB=True, EF=True, IB=True, WARM=0, WSL=0, CC=None, ROT=False, w1nt='nt', WO=16, RC=0, WBAR=0, P1G=True, XP=0, probe2=None, probe3=None, DUM=(), M0=True, SP3=False, h3x=0, NR16=True, T1D=0, hold=None, OL=True, NOSL=True, ALN=0, FPRE=True, CLP=0, cfl='sc1', TIGHT=2, PFOUT=False, H8=True, MW=True, PF1=True, MPW=True, NW=5, PW=20, WS_=2.4, TS=(0,19,52), W1W=None, WK=None, KW=12, KS=1, MIX='iw', PERM='t0 t1 s0 w0 s1 t3 t2 w1', XT=(), QL=True, UNR=2, MLS=False, OMS=False, GW=False, PFO=2, TRF=True, WB=None, osc='', MPRE=None, WM=None, FASTP=True, CHK2=(0,), PT1=None, only=None):
    L = []
    pend = []
    def A(s):
        for l in s.split("\n"):
            l = l.strip()
            if pend and l.startswith(("s_cbranch", "s_branch")) and not l.endswith("; nf"):
                A("s_waitcnt lgkmcnt(0)")
            L.append("    " + l if not l.endswith(":") else l)
            if pend and l.startswith("s_waitcnt") and "lgkmcnt(0)" in l:
                for r, i in pend: L.append(f"    v_writelane_b32 v255, s{r}, {i}")
                pend.clear()
    def C(text):
        for l in text.strip("\n").split("\n"): L.append("    ; " + l.strip())
    def stamp(i, clk=False):
        if diag and (only is None or i in only or i >= 59):
            if len(pend) >= 4: A("s_waitcnt lgkmcnt(0)")
            r = 92 + 2 * len(pend)
            A(f"{'s_memtime' if clk else 's_memrealtime'} s[{r}:{r+1}]"); pend.append((r, i))
    def flush():
        if pend: A("s_waitcnt lgkmcnt(0)")
    def bf16r(d, x):
        A(f"v_cvt_pk_bf16_f32 v{d}, v{x}, v{x}"); A(f"v_and_b32 v{d}, 0xffff0000, v{d}")
    def row_allred(op, v):
        for c in ("row_mirror", "row_half_mirror", "quad_perm:[2,3,0,1]", "quad_perm:[1,0,3,2]"):
            A(f"{op}_dpp v{v}, v{v}, v{v} {c} row_mask:0xf bank_mask:0xf")
    def swap_allred(op, v, t, which):
        A(f"v_mov_b32 v{t}, v{v}"); A(f"v_permlane{which}_swap_b32 v{v}, v{t}"); A(f"{op} v{v}, v{v}, v{t}")
    def srd(r, base, size):
        A(f"s_mov_b32 s{r}, s{base}"); A(f"s_mov_b32 s{r+1}, s{base+1}"); A(f"s_mov_b32 s{r+2}, {size}"); A(f"s_mov_b32 s{r+3}, 0x20000")
    def pk(op, d, a, b, c=None, mod=""):
        A(f"v_pk_{op}_f32 v[{d}:{d+1}], v[{a}:{a+1}], v[{b}:{b+1}]" + (f", v[{c}:{c+1}]" if c is not None else "") + (" " + mod if mod else ""))
    def mfma(d, a, b, first):
        A(f"v_mfma_f32_16x16x32_bf16 v[{d}:{d+3}], v[{a}:{a+3}], v[{b}:{b+3}], {'0' if first else f'v[{d}:{d+3}]'}")
    def sum4(b):
        for hh in (0, 2):
            pk("add", b+hh, b+hh, b+4+hh); pk("add", b+8+hh, b+8+hh, b+12+hh)
        for hh in (0, 2): pk("add", b+hh, b+hh, b+8+hh)
    def role_decode():
        A("s_sub_u32 s78, s31, 10"); A("s_lshr_b32 s80, s78, 1")
        if M0:
            A("s_mul_i32 s80, s80, 7"); A("s_add_u32 s80, s80, s30"); A("s_sub_u32 s80, s80, 1"); A("s_cmp_eq_u32 s30, 0"); A("s_cselect_b32 s80, 27, s80")
        else:
            A("s_lshl_b32 s80, s80, 3"); A("s_add_u32 s80, s80, s30")
        A("s_and_b32 s78, s78, 1"); A("s_lshl_b32 s37, s80, 1"); A("s_add_u32 s37, s37, s78")
        A("s_cmp_lt_u32 s80, 27"); A("s_cselect_b32 s36, 2, 0")
        A("s_cmp_lt_u32 s31, 10"); A("s_cselect_b32 s36, 1, s36"); A("s_cselect_b32 s37, s31, s37")
    WS = "s[40:43]"
    def ldtext(r, a, n=4):
        return f"buffer_load_dwordx{n} v[{r}:{r+n-1}], {a} sc1"
    def poll_init(loads):
        for r, a, n, chk in loads:
            for c in chk: A(f"v_mov_b32 v{r+c}, -1")
    def poll_first(loads):
        for r, ld in loads: ld()
    def poll(tag, loads, work, km, chk=None, clr=None):
        n = len(loads)
        M = lambda i: f"s[{60+2*i}:{61+2*i}]"
        chk = chk or (lambda d, r: A(f"v_cmp_ne_u32_sdwa {d}, v{r}, s56 src0_sel:BYTE_0 src1_sel:BYTE_0"))
        clr = clr or (lambda r: A(f"v_and_b32 v{r}, v{km}, v{r}"))
        A(f"s_mov_b32 s90, {SPIN}")
        flush()
        A(f"L_p{tag}:")
        A("s_waitcnt vmcnt(0)")
        for i, (r, ld) in enumerate(loads): chk(M(i), r)
        for i in range(0, n - 1, 2): A(f"s_or_b64 s[{92+i}:{93+i}], {M(i)}, {M(i+1)}")
        G = lambda k: f"s[{92+2*k}:{93+2*k}]" if 2*k + 1 < n else M(2*k)
        A(f"s_or_b64 vcc, {G(0)}, {G(1)}")
        if n > 6:
            A(f"s_or_b64 s[100:101], {G(2)}, {G(3)}"); A("s_or_b64 vcc, vcc, s[100:101]")
        else: A(f"s_or_b64 vcc, vcc, {G(2)}")
        A(f"s_cbranch_scc0 L_pa{tag}")
        for k in range(4):
            if 2*k + 1 < n:
                A(f"s_cmp_eq_u64 {G(k)}, 0"); A(f"s_cbranch_scc1 L_k{tag}_{2*k+1}")
            for i in range(2*k, min(n, 2*k + 2)):
                A(f"s_cmp_eq_u64 {M(i)}, 0"); A(f"s_cbranch_scc1 L_k{tag}_{i}")
                loads[i][1]()
                A(f"L_k{tag}_{i}:")
        A("s_mov_b32 s59, 0")
        for i in reversed(range(n)):
            A(f"s_cmp_lg_u64 {M(i)}, 0"); A("s_addc_u32 s59, s59, s59")
        A("s_sub_u32 s90, s90, 1"); A(f"s_cbranch_scc1 L_u{tag}_0")
        A("s_bcnt1_i32_b32 s78, s59"); A("s_cmp_eq_u32 s78, 1"); A(f"s_cbranch_scc0 L_p{tag}")
        for i in range(n - 1):
            A(f"s_bitcmp0_b32 s59, {i}"); A(f"s_cbranch_scc0 L_e{tag}_{i}")
        A("s_cmp_eq_u32 0, 1")
        for i in reversed(range(n)):
            r, ld = loads[i]
            A(f"L_e{tag}_{i}:")
            for k, (r2, _) in enumerate(loads):
                if k != i: clr(r2)
            A(f"s_branch L_u{tag}_{i}")
            if ALN: A(f".p2align {ALN}")
            A(f"L_t{tag}_{i}:")
            ld()
            A("s_sub_u32 s90, s90, 1")
            A(f"L_u{tag}_{i}:")
            A("s_waitcnt vmcnt(0)")
            chk("vcc", r)
            part = tag == "1" or tag == "3" and i == 6
            if not part: clr(r)
            A(f"s_cbranch_scc1 L_pw{tag}")
            A(f"s_cbranch_vccnz L_t{tag}_{i}")
            if part: clr(r)
            A(f"s_branch L_pw{tag}")
        A(f"L_pa{tag}:")
        for r, ld in loads: clr(r)
        A(f"L_pw{tag}:")
        work()
    def fin():
        if diag:
            A("s_mov_b64 exec, -1")
            stamp(59); stamp(61, True); A("s_waitcnt lgkmcnt(0)")
            A("s_getreg_b32 s92, hwreg(HW_REG_XCC_ID)"); A("v_writelane_b32 v255, s92, 62")
            A("s_cmp_eq_u32 s3, 0"); A("s_cselect_b32 s92, 3, 0"); A("s_add_u32 s92, s92, s36"); A("v_writelane_b32 v255, s92, 63")
            A("s_mul_i32 s78, s2, 5"); A("s_add_u32 s78, s78, s3"); A("s_lshl_b32 s78, s78, 8"); A(f"s_add_u32 s78, s78, {WS_STAMP}")
            A("v_lshlrev_b32 v7, 2, v1")
            A(f"buffer_store_dword v255, v7, {WS}, s78 offen")
            if probe is not None:
                fin.n = getattr(fin, "n", 0) + 1
                pi, pw, role = probe
                A("s_cmp_eq_u32 s3, 0"); A(f"s_cbranch_scc{1 if pw == 1 else 0} L_pe{fin.n}")
                if role is not None:
                    A(f"s_cmp_eq_u32 s36, {role}"); A(f"s_cbranch_scc0 L_pe{fin.n}")
                A("v_readlane_b32 s80, v255, 0")
                if pi == "xcc":
                    A("s_getreg_b32 s78, hwreg(HW_REG_XCC_ID, 0, 4)"); A("s_cmp_eq_u32 s78, s30"); A("s_cselect_b32 s78, 0, 400")
                elif pi == "vote":
                    A("v_readlane_b32 s78, v255, 57"); A("s_nop 4"); A("s_mul_i32 s78, s78, 10")
                else:
                    A(f"v_readlane_b32 s78, v255, {pi}"); A("s_nop 4"); A("s_cmp_eq_u32 s78, 0"); A(f"s_cbranch_scc1 L_pe{fin.n}")
                    A("s_sub_u32 s78, s78, s80")
                A("s_mul_i32 s78, s78, 10"); A("s_add_u32 s78, s78, s80"); A("s_add_u32 s78, s78, 2000")
                A(f"L_prw{fin.n}:"); A("s_sleep 2"); A("s_memrealtime s[92:93]"); A("s_waitcnt lgkmcnt(0)"); A("s_sub_u32 s92, s92, s78"); A("s_cmp_lt_i32 s92, 0"); A(f"s_cbranch_scc1 L_prw{fin.n}")
                A(f"L_pe{fin.n}:")
        A("s_endpgm")
    def traddr1280(d, blk):
        A("v_bfe_u32 v7, v1, 2, 3"); A(f"v_lshlrev_b32 v{d}, 7, v7"); A("v_lshrrev_b32 v7, 1, v7"); A(f"v_lshl_add_u32 v{d}, v7, 5, v{d}")
        A("v_lshrrev_b32 v7, 5, v1"); A(f"v_mul_u32_u24 v7, {blk}, v7"); A(f"v_add_u32 v{d}, v{d}, v7")
        A("v_and_b32 v7, 3, v1"); A(f"v_lshl_add_u32 v{d}, v7, 3, v{d}")

    K0, V0 = 64, 128
    ACC = 28
    XS, XO, WQ, AO = 228, 238, 64, 144

    L_X = 20480
    if probe2:
        slot, off, stride = probe2
        A("s_memrealtime s[60:61]"); A(f"s_load_dwordx2 s[4:5], s[0:1], {slot*8}"); A("v_readfirstlane_b32 s3, v0"); A("s_waitcnt lgkmcnt(0)")
        A("s_mov_b32 s99, 0")
        A("s_cmp_eq_u32 s2, 255"); A("s_cbranch_scc0 L_q2w"); A("s_cmp_eq_u32 s3, 64"); A("s_cbranch_scc0 L_q2w")
        A("s_sleep 100")
        A("s_memrealtime s[62:63]"); A("s_waitcnt lgkmcnt(0)")
        for i in range(16):
            A(f"s_mov_b32 s6, {off + i*stride}"); A("s_load_dword s7, s[4:5], s6"); A("s_waitcnt lgkmcnt(0)")
        A("s_memrealtime s[64:65]"); A("s_waitcnt lgkmcnt(0)")
        A("s_sub_u32 s99, s64, s62"); A("s_mul_i32 s99, s99, 10"); A("s_add_u32 s99, s99, s60"); A("s_add_u32 s99, s99, 4000")
        A("L_q2w:")
        A("s_add_u32 s60, s60, 1500")
        A("L_q2x:"); A("s_sleep 2"); A("s_memrealtime s[62:63]"); A("s_waitcnt lgkmcnt(0)"); A("s_sub_u32 s62, s62, s60"); A("s_cmp_lt_i32 s62, 0"); A("s_cbranch_scc1 L_q2x")
    if diag: A("s_memrealtime s[100:101]")
    if "late0" in exp:
        A("s_and_b32 s30, s2, 7"); A("s_cbranch_scc1 L_l0"); A("s_sleep 20"); A("L_l0:")
    C("""start: only the first 256 bytes of code run before further code lines arrive, so the first loads sit here.
 s30 group = wg&7, s31 idx = wg>>3, s32 head = 8*(idx>>3)+group, s33 j = idx&7, s34 batch = j>>2, s35 key split = j&3, s3 wave""")
    A("s_load_dwordx16 s[4:19], s[0:1], 0"); A("s_load_dwordx2 s[40:41], s[0:1], 96")
    A("s_lshr_b32 s31, s2, 3"); A("s_and_b32 s33, s31, 7")
    C("""one workgroup per group reads the kernel's code lines so that they are in L2 ahead of the data stream""")
    A("s_getpc_b64 s[52:53]"); A("L_pc:")
    A(f"s_cmp_eq_u32 {'s31, 17' if PF1 else 's33, 7'}"); A("s_cselect_b32 s54, L_end-L_pc, 0"); A("s_mov_b32 s55, 0x20000"); A("v_lshlrev_b32 v22, 7, v0")
    A("buffer_load_dword v4, v22, s[52:55], 0 offen")
    A("v_lshrrev_b32 v7, 6, v0"); A("v_and_b32 v1, 63, v0"); A("s_cmp_ge_u32 s31, 32"); A("v_readfirstlane_b32 s3, v7")
    A("s_cbranch_scc1 L_end ; nf")
    A("s_and_b32 s30, s2, 7"); A("s_lshr_b32 s78, s31, 3"); A("s_lshl3_add_u32 s32, s78, s30" if H8 else "s_lshl2_add_u32 s32, s30, s78")
    A("v_lshlrev_b32 v2, 4, v1"); A("v_lshrrev_b32 v8, 4, v1"); A("v_and_b32 v9, 15, v1")
    A("s_lshr_b32 s34, s33, 2"); A("s_and_b32 s35, s33, 3")
    A("s_cmp_eq_u32 s3, 0"); A("s_cbranch_scc0 L_s0 ; nf")
    C("""wave 0: x and rows 80j..80j+79 x 128 columns of wq go to LDS (load t holds rows t, 20+t, 40+t, 60+t)""")
    A("s_mul_i32 s78, s33, 20"); A("v_mad_u32_u24 v7, v8, 5, s78")
    A("v_lshlrev_b32 v12, 15, v7"); A("v_lshl_add_u32 v12, v9, 4, v12"); A("s_lshl_b32 s78, s32, 8"); A("v_add_u32 v12, s78, v12")
    A("s_movk_i32 s79, 0x2000"); A(f"s_movk_i32 m0, {L_X}")
    if "light0" in exp:
        A("s_cmp_eq_u32 s30, 0"); A("s_cselect_b32 s79, 0, s79")
    A("s_waitcnt lgkmcnt(0)")
    A("global_load_lds_dwordx4 v2, s[4:5]"); A("global_load_lds_dwordx4 v2, s[4:5] offset:1024"); A("global_load_lds_dwordx4 v2, s[4:5] offset:1536")
    A("s_mov_b32 m0, 0")
    A("s_nop 0")
    A("L_wq:")
    for _ in range(UNR):
        A(f"global_load_lds_dwordx4 v12, s[10:11] {nt}")
        A("s_addk_i32 m0, 0x400"); A("v_add_u32 v12, s79, v12")
    A(f"s_cmpk_lt_u32 m0, {L_X}"); A("s_cbranch_scc1 L_wq ; nf")
    A("s_branch L_aux ; nf")
    C("""waves 1..4: 64 keys each; address bits 10..17 of the 1024-key window = t0 t1 s0 w0 s1 t3 t2 w1 (tile, split, wave): all stacks are in use at any time""")
    A("L_s0:")
    if PERM:
        pb = {n: 10 + i for i, n in enumerate(PERM.split())}
        A("s_lshl_b32 s78, s34, 5"); A("s_add_u32 s78, s78, s32"); A("s_lshl_b32 s78, s78, 20")
        wadj = pb["w1"] == pb["w0"] + 1
        bias = 4096 if 12 in [pb[f"t{k}"] for k in range(4)] else 0
        if wadj:
            A(f"s_lshl_b32 s80, s3, {pb['w0']}"); A("s_add_u32 s78, s78, s80")
        else:
            A("s_and_b32 s80, s3, 1"); A(f"s_lshl_b32 s80, s80, {pb['w0']}"); A("s_add_u32 s78, s78, s80")
            A("s_and_b32 s80, s3, 2"); A(f"s_lshl_b32 s80, s80, {pb['w1'] - 1}"); A("s_add_u32 s78, s78, s80")
        if pb["s1"] == pb["s0"] + 1:
            A(f"s_lshl_b32 s80, s35, {pb['s0']}"); A("s_add_u32 s78, s78, s80")
        else:
            A("s_and_b32 s80, s35, 1"); A(f"s_lshl_b32 s80, s80, {pb['s0']}"); A("s_add_u32 s78, s78, s80")
            A("s_lshr_b32 s80, s35, 1"); A(f"s_lshl_b32 s80, s80, {pb['s1']}"); A("s_add_u32 s78, s78, s80")
        A(f"s_add_u32 s78, s78, {3072*256 + bias - ((1 << pb['w0']) if wadj else 0)}")
        for tb, wb in XT:
            assert pb[tb] >= 13
            A(f"s_bfe_u32 s80, s2, {0x10000 + wb:#x}"); A(f"s_lshl_b32 s80, s80, {pb[tb]}"); A("s_add_u32 s78, s78, s80")
        A("v_add_u32 v17, s78, v2")
    else:
        A("s_lshl_b32 s78, s34, 5"); A("s_add_u32 s78, s78, s32"); A("s_lshl_b32 s78, s78, 6"); A("s_lshl2_add_u32 s80, s35, s3"); A("s_add_u32 s78, s78, s80")
        A("s_add_u32 s78, s78, 47"); A("s_lshl_b32 s78, s78, 14"); A("s_addk_i32 s78, 0x1000")
        if 'w' in MIX:
            A("s_and_b32 s80, s3, 1"); A("s_lshl_b32 s80, s80, 13"); A("s_add_u32 s78, s78, s80")
        A("v_add_u32 v17, s78, v2"); A("v_xor_b32 v18, 0x2000, v17")
    A("L_s1:")
    def common2():
        A("s_load_dwordx8 s[20:27], s[0:1], 64")
        if diag:
            A("v_mov_b32 v255, 0"); pend.append((100, 0)); stamp(60, True)
        role_decode()
        A("s_mov_b32 s42, 0x10000000"); A("s_mov_b32 s43, 0x20000")
    cur18 = [None]
    def ldKV(base, ptr, t):
        if PERM:
            off = sum(((t >> k) & 1) << pb[f"t{k}"] for k in range(4))
            def f():
                hi = off & ~8191
                if hi and cur18[0] != hi:
                    A(f"{'v_xor_b32' if XT else 'v_add_u32'} v18, {hi}, v17"); cur18[0] = hi
                A(f"global_load_dwordx4 v[{base+4*t}:{base+4*t+3}], v{18 if hi else 17}, {ptr} offset:{(off & 8191) - bias} {nt}")
            return f
        hi, lo = (t & 1, t >> 1) if 'i' in MIX else (t // 8, t % 8)
        return lambda: A(f"global_load_dwordx4 v[{base+4*t}:{base+4*t+3}], v{17 + hi}, {ptr} offset:{lo*1024-4096} {nt}")
    redo = [False]
    def dma_a(n):
        def f():
            if n == MPRE and not redo[0]:
                A("s_cmp_eq_u32 s36, 2"); A("s_cselect_b32 s46, 0, s46")
            if n == 10:
                A("s_cmp_eq_u32 s36, 2"); A("s_cselect_b32 s46, 0, s46"); A(f"s_cselect_b32 s78, {40960 - 10240}, 0"); A("s_add_u32 s83, s83, s78")
            A(f"s_add_u32 m0, s83, {n*1024}")
            if n: A("s_add_u32 s82, s82, s87")
            A(f"buffer_load_dwordx4 v58, s[44:47], s82 offen {wnt} lds")
        return f
    kv = [ldKV(K0, "s[6:7]", t) for t in range(16)] + [ldKV(V0, "s[8:9]", t) for t in range(16)]
    def rider():
        A("s_mov_b32 m0, s76"); A("s_add_u32 s76, s76, s77")
        A(f"buffer_load_dwordx4 v58, s[44:47], s79 offen {wnt} lds"); A("s_addk_i32 s79, 10240")
    seq = []; pos = []; free = set(); nr = 0; nw_ = 0; didx = {}
    for i, f in enumerate(kv):
        if PT0 == i:
            if tfree or not tall: free.add(len(seq))
            seq.append(lambda: A(f"buffer_load_dword v4, v56, s[48:51], 0 offen {tnt}"))
        if PT0 + 3 == i and not tall:
            free.add(len(seq)); seq.append(lambda: A(f"buffer_load_dword v5, v56, s[48:51], s79 offen {tnt}"))
        while nr < NR and PR + nr * RS <= i:
            free.add(len(seq)); didx[nr] = len(seq); seq.append(dma_a(nr)); nr += 1
        while nw_ < NW and PW + nw_ * WS_ <= i:
            free.add(len(seq)); didx[16 - NW + nw_] = len(seq); seq.append(rider); nw_ += 1
        pos.append(len(seq)); seq.append(f)
    assert nr == NR and nw_ == NW
    if PT1:
        free.add(len(seq)); seq.append(lambda: A(f"buffer_load_dword v6, v57, s[52:55], 0 offen {tnt}"))
    PRE = min(W - 1 + XP, 16 - NR - NW)
    for n in range(NR, NR + PRE):
        k = NR + PRE - 1 - n
        if k < 2 * (PRE - (W - 1)) and k % 2 == 1: free.add(len(seq))
        didx[n] = len(seq); seq.append(dma_a(n))
    st = dict(issued=0, waited=-1)
    Wc = [WK or W]
    def issue_to(n):
        inflight = lambda: sum(1 for i in range(n - W, st["issued"]) if i not in free)
        while st["issued"] < len(seq) and (st["issued"] < n - W + Wc[0] or inflight() < Wc[0] and n >= W):
            seq[st["issued"]](); st["issued"] += 1
    def wait_for(k):
        if k > st["waited"]:
            A(f"s_waitcnt vmcnt({st['issued'] - k - 1})"); st["waited"] = k
    def pump(lim=None):
        k = st["waited"] + 1
        while k in free: k += 1
        if lim is not None and k > lim: return
        if WK and KW <= k <= pos[31] and Wc[0] != W and (k - KW) % KS == 0: Wc[0] += 1 if Wc[0] < W else -1
        wait_for(k)
        if k in DUM:
            A("s_cmp_eq_u32 s30, 0"); A(f"s_cbranch_scc1 L_du{k} ; nf")
            A("buffer_load_dword v5, v19, s[48:51], 0 offen")
            A(f"L_du{k}:")
        issue_to(k + 1 + W)
    A("s_waitcnt lgkmcnt(0)")
    assert W <= 8
    for _ in range(W0):
        seq[st["issued"]](); st["issued"] += 1
    A("s_cmp_eq_u32 s3, 2"); A("s_cbranch_scc0 L_s4 ; nf")
    A("v_mov_b64 v[24:25], -1"); A("v_mov_b64 v[26:27], -1")
    A(f"v_add_u32 v13, {L_Q}, v2"); A("s_mov_b64 exec, 0x3fffff")
    A("ds_write_b128 v13, v[24:27]")
    A("s_mov_b64 exec, -1"); A("s_waitcnt lgkmcnt(0)")
    A("L_s4:")
    A("s_load_dword s56, s[40:41], 0")
    common2()
    def slots():
        A("s_lshl_b32 s39, s30, 5"); A("s_add_u32 s39, s39, s31")
        A("s_lshl_b32 s38, s39, 10"); A(f"s_add_u32 s38, s38, {WS_OP}")
    keep = list(pend); pend.clear()
    A("s_barrier")
    issue_to(W)
    A("s_branch L_stream ; nf")

    C("""================= wave 0: LayerNorm(x), q partial sums, q exchange, softmax statistics =================""")
    A("L_aux:")
    A("s_barrier")
    if prio: A("s_setprio 3")
    A("v_bfe_u32 v11, v1, 3, 1"); A("v_mul_u32_u24 v11, 1280, v11"); A("v_lshl_add_u32 v11, v7, 3, v11")
    common2()
    stamp(1)
    A("v_lshrrev_b32 v40, 5, v1"); A("v_mul_u32_u24 v10, 1280, v40"); A("v_and_b32 v41, 31, v1"); A("v_mad_u32_u24 v10, v41, 40, v10")
    slots()
    C("""byte selectors that put one bf16 into element lane&7 of an otherwise zero MFMA operand row""")
    A("v_and_b32 v7, 1, v1"); A("v_cmp_eq_u32 vcc, 1, v7"); A("v_bfe_u32 v7, v1, 1, 2")
    A("v_mov_b32 v28, 0x0c0c0100"); A("v_mov_b32 v29, 0x01000c0c"); A("v_cndmask_b32 v28, v28, v29, vcc")
    A("v_mov_b32 v29, 0x0c0c0302"); A("v_mov_b32 v30, 0x03020c0c"); A("v_cndmask_b32 v29, v29, v30, vcc")
    A("v_mov_b32 v30, 0x0c0c0c0c")
    for r in range(4):
        A(f"v_cmp_eq_u32 vcc, {r}, v7"); A(f"v_cndmask_b32 v{14+r}, v30, v28, vcc"); A(f"v_cndmask_b32 v{18+r}, v30, v29, vcc")
    A(f"v_mov_b32 v13, {L_ML}"); A(f"v_mov_b32 v23, {OOB}")
    A("s_waitcnt vmcnt(20)")
    for base, a in ((XS, 10), (XO, 11)):
        A(f"ds_read_b64 v[{base}:{base+1}], v{a} offset:{L_X}"); A(f"ds_read_b64 v[{base+2}:{base+3}], v{a} offset:{L_X+8}")
        A(f"ds_read_b64 v[{base+4}:{base+5}], v{a} offset:{L_X+16}"); A(f"ds_read_b64 v[{base+6}:{base+7}], v{a} offset:{L_X+24}")
        A(f"ds_read_b64 v[{base+8}:{base+9}], v{a} offset:{L_X+32}")
    stamp(2)
    A("s_waitcnt lgkmcnt(0)")
    A("s_load_dword s56, s[40:41], 0")
    if CC is None:
        A("s_sub_u32 s78, s31, 24"); A("s_lshl3_add_u32 s47, s30, s78"); A("s_and_b32 s47, s47, 63")
        A("s_lshl_b32 s78, s47, 7"); A("s_and_b32 s46, s31, 1"); A("s_lshl_b32 s80, s46, 13"); A("s_add_u32 s44, s78, s80"); A(f"s_add_u32 s44, s44, {WS_PRB}")
        A("s_xor_b32 s45, s44, 0x2000")
        A("s_cmp_ge_u32 s31, 24"); A("s_cbranch_scc0 L_v1 ; nf")
        A("s_load_dword s48, s[40:41], s44 glc"); A("s_load_dword s49, s[40:41], s45 glc")
        A("L_v1:")
    C("""LayerNorm(x): lanes 0-31 row 0, lanes 32-63 row 1, two passes, rounded to bf16 where the reference rounds""")
    X, mean, tmp = 192, 52, 56
    for i in range(10):
        A(f"v_lshlrev_b32 v{X+2*i}, 16, v{XS+i}"); A(f"v_and_b32 v{X+2*i+1}, 0xffff0000, v{XS+i}")
    pk("add", tmp, X, X+2); pk("add", tmp+2, X+4, X+6)
    for i in range(4, 10): pk("add", tmp+2*(i&1), tmp+2*(i&1), X+2*i)
    pk("add", tmp, tmp, tmp+2); A(f"v_add_f32 v{mean}, v{tmp}, v{tmp+1}")
    row_allred("v_add_f32", mean); swap_allred("v_add_f32", mean, tmp, 16)
    A(f"v_mul_f32 v{mean}, {F(1/640)}, v{mean}")
    for i in range(10): pk("add", X+2*i, X+2*i, mean, mod="op_sel_hi:[1,0] neg_lo:[0,1] neg_hi:[0,1]")
    for i in range(10):
        t = tmp + 2*(i&1)
        if i < 2: pk("mul", t, X+2*i, X+2*i)
        else: pk("fma", t, X+2*i, X+2*i, t)
    pk("add", tmp, tmp, tmp+2)
    va = mean + 2
    A(f"v_add_f32 v{va}, v{tmp}, v{tmp+1}")
    row_allred("v_add_f32", va); swap_allred("v_add_f32", va, tmp, 16)
    A(f"v_mul_f32 v{va}, {F(1/640)}, v{va}")
    bf16r(mean, mean); bf16r(va, va)
    A(f"v_add_f32 v{va}, {F(1e-5)}, v{va}"); bf16r(va, va)
    A(f"v_sqrt_f32 v{va}, v{va}"); bf16r(va, va)
    A(f"v_rcp_f32 v{va}, v{va}")
    A("v_mov_b32 v53, v52"); A("v_mov_b32 v55, v54")
    for i in range(10):
        A(f"v_lshlrev_b32 v{X+2*i}, 16, v{XO+i}"); A(f"v_and_b32 v{X+2*i+1}, 0xffff0000, v{XO+i}")
    A("v_permlane32_swap_b32 v52, v53"); A("v_permlane32_swap_b32 v54, v55")
    A("s_mov_b32 vcc_lo, 0xff00ff00"); A("s_mov_b32 vcc_hi, 0xff00ff00")
    A("v_cndmask_b32 v52, v52, v53, vcc"); A("v_cndmask_b32 v54, v54, v55, vcc")
    for i in range(10): pk("add", X+2*i, X+2*i, mean, mod="op_sel_hi:[1,0] neg_lo:[0,1] neg_hi:[0,1]")
    for i in range(10): A(f"v_cvt_pk_bf16_f32 v{XO+i}, v{X+2*i}, v{X+2*i+1}")
    for i in range(10):
        A(f"v_lshlrev_b32 v{X+2*i}, 16, v{XO+i}"); A(f"v_and_b32 v{X+2*i+1}, 0xffff0000, v{XO+i}")
    for i in range(10): pk("mul", X+2*i, X+2*i, va, mod="op_sel_hi:[1,0]")
    for i in range(10): A(f"v_cvt_pk_bf16_f32 v{XO+i}, v{X+2*i}, v{X+2*i+1}")
    stamp(3)
    C("""q[b][8i+e] partial = sum over rows xn[b][row] * wq[row][8i+e]: A row (b,e) holds xn in element e, B = 4 rows x 128 columns as loaded""")
    for t in range(22):
        if t < 20:
            A(f"s_waitcnt vmcnt({19-t})"); A(f"ds_read_b128 v[{WQ+4*t}:{WQ+4*t+3}], v2 offset:{1024*t}")
            for r in range(4): A(f"v_perm_b32 v{AO+4*t+r}, v{XO+t//2}, v{XO+t//2}, v{14+4*(t&1)+r}")
        if t > 1:
            A(f"s_waitcnt lgkmcnt({min(2, 21-t)})"); mfma(ACC, AO+4*(t-2), WQ+4*(t-2), t == 2)
    C("""s56 = this launch's tag = epoch word of d_ws + 0x01010101; every hand-off carries it. record: (sum, sum, tag, tag ^ XCC id)""")
    A("s_add_u32 s56, s56, 0x01010101")
    A("s_lshl_b32 s39, s39, 11"); A(f"s_add_u32 s39, s39, {WS_QP}")
    A("v_mov_b32 v34, s56"); A("v_mov_b32 v35, s56"); A("v_mov_b32 v38, s56"); A("v_mov_b32 v39, s56")
    A("v_mov_b64 v[32:33], v[28:29]"); A("v_mov_b64 v[36:37], v[30:31]")
    def qstore(fl):
        A(f"buffer_store_dwordx4 v[32:35], v2, {WS}, s39 offen {fl}")
        A(f"buffer_store_dwordx4 v[36:39], v2, {WS}, s39 offen offset:1024 {fl}")
    if QL:
        A("s_getreg_b32 s57, hwreg(HW_REG_XCC_ID, 0, 4)"); A("s_xor_b32 s57, s57, s56"); A("v_mov_b32 v35, s57"); A("v_mov_b32 v39, s57")
        qstore("")
    else: qstore("sc1")
    stamp(4)
    def recl():
        A("s_not_b32 s78, s56")
        for r in range(4): A(f"v_mov_b32 v{24+r}, s78")
        A("s_mov_b32 exec_hi, 0xff")
        A(f"buffer_store_dwordx4 v[24:27], v2, {WS}, s38 offen")
        A("s_mov_b32 exec_hi, -1")
    if RC == 1: recl()
    A("s_andn2_b32 s78, s39, 0x3fff"); A("s_lshl_b32 s80, s34, 9"); A("s_add_u32 s78, s78, s80")
    A("v_lshlrev_b32 v42, 10, v40"); A("v_lshl_add_u32 v42, v41, 4, v42"); A("v_add_u32 v42, s78, v42")
    for k in range(1, 4): A(f"s_movk_i32 s{80+k}, {4096*k}")
    A("v_lshlrev_b32 v43, 4, v9"); A("v_and_b32 v7, 1, v8"); A("v_lshl_add_u32 v43, v7, 3, v43"); A("v_lshl_add_u32 v43, v40, 2, v43"); A(f"v_add_u32 v43, {L_Q}, v43")
    assert QL
    A("s_lshl_b32 s77, s30, 16"); A(f"s_add_u32 s77, s77, {WS_QP}"); A("v_lshlrev_b32 v47, 11, v1")
    C("""workgroups 24..31 time one line in each 8 KB block of a pair and vote which block is on which side of the package;
 the majority only places the hand-off buffers (speed), every reader and writer uses the same complete vote""")
    if CC is None:
        flush()
        A("s_cmp_ge_u32 s31, 24"); A("s_cbranch_scc0 L_v2")
        A("s_memtime s[60:61]"); A("s_waitcnt lgkmcnt(0)")
        A("s_load_dword s48, s[40:41], s44 glc"); A("s_waitcnt lgkmcnt(0)")
        A("s_memtime s[62:63]"); A("s_waitcnt lgkmcnt(0)")
        A("s_load_dword s49, s[40:41], s45 glc"); A("s_waitcnt lgkmcnt(0)")
        A("s_memtime s[64:65]"); A("s_waitcnt lgkmcnt(0)")
        A("s_sub_u32 s60, s62, s60"); A("s_sub_u32 s62, s64, s62"); A("s_cmp_gt_u32 s60, s62"); A("s_addc_u32 s46, s46, 0")
        A("s_getreg_b32 s78, hwreg(HW_REG_XCC_ID, 2, 1)"); A("s_xor_b32 s46, s46, s78"); A("s_and_b32 s46, s46, 1"); A("s_xor_b32 s46, s46, s56")
        A("v_mov_b32 v44, s46"); A("s_and_b32 s47, s47, 7"); A("s_lshl_b32 s78, s30, 5"); A("s_add_u32 s47, s47, s78"); A("s_lshl_b32 s47, s47, 2"); A("s_mov_b64 exec, 1")
        if qdelay is None: A("s_waitcnt vmcnt(0)")
        A(f"buffer_store_dword v44, v2, {WS}, s47 offen offset:{WS_VOTE} sc1")
        A("s_mov_b64 exec, -1")
        A("s_branch L_v3")
        A("L_v2:")
    if qdelay is None: A("s_waitcnt vmcnt(0)")
    elif qdelay: A(f"s_sleep {qdelay}")
    A("L_v3:")
    stamp(5)
    A(f"s_mov_b32 s90, {SPIN}")
    flush()
    if QL: A("s_mov_b32 s58, 0")
    C("""gather the eight partial sums of this head; a missing or foreign-XCD record makes this one be written through as well""")
    A("L_qpoll:")
    if "halfq" in exp: A("s_mov_b32 exec_hi, 0")
    if "noqld" in exp: A("s_mov_b64 exec, 1")
    for jj in range(8):
        A(f"buffer_load_dwordx4 v[{64+4*jj}:{67+4*jj}], v42, {WS}, {f's{80+jj//2}' if jj//2 else '0'} offen offset:{2048*(jj&1)} sc1")
    A("s_waitcnt vmcnt(0)")
    if QL:
        A("v_xor_b32 v7, s56, v66"); A("v_xor_b32 v6, s57, v67")
        for i in range(1, 8):
            A(f"v_bitop3_b32 v7, v7, v{66 + 4*i}, s56 bitop3:0xf6"); A(f"v_bitop3_b32 v6, v6, v{67 + 4*i}, s57 bitop3:0xf6")
        A("v_or_b32 v5, v6, v7"); A("v_cmp_ne_u32 vcc, 0, v5")
        A("s_cbranch_vccz L_qok")
        A("s_cmp_eq_u32 s58, 0"); A("s_cbranch_scc0 L_q2")
        qstore("sc1"); A("s_mov_b32 s58, 1")
        A("L_q2:")
        A("v_lshrrev_b32 v6, 4, v6"); A("v_or_b32 v5, v6, v7"); A("v_cmp_ne_u32 vcc, 0, v5")
    else:
        A("v_xor_b32 v7, s56, v66")
        for i in range(1, 16): A(f"v_bitop3_b32 v7, v7, v{66 + 4*(i//2) + (i&1)}, s56 bitop3:0xf6")
        A("v_cmp_ne_u32 vcc, 0, v7")
    A("s_cbranch_vccz L_qok")
    A("s_sub_u32 s90, s90, 1"); A("s_cbranch_scc0 L_qpoll")
    A("L_qok:")
    if "halfq" in exp or "noqld" in exp: A("s_mov_b64 exec, -1")
    if QL: A("v_mov_b32 v39, s56")
    if diag: A("v_writelane_b32 v255, s90, 56")
    A("v_mov_b32 v48, s57"); A("s_mov_b64 exec, 0x3ff")
    A(f"buffer_load_dword v48, v47, {WS}, s77 offen offset:12 sc1")
    if PFO == 1:
        A("s_mov_b64 exec, 31"); A(f"buffer_load_dword v5, v22, {WS}, s38 offen sc1")
    A("s_mov_b64 exec, -1")
    if PFO == 2:
        A("s_sub_u32 s78, s31, 10"); A("s_cmp_lt_u32 s78, 8"); A("s_cbranch_scc0 L_pfo")
        A("s_lshl_b32 s78, s78, 12"); A("s_lshl_b32 s80, s30, 15"); A("s_add_u32 s78, s78, s80"); A(f"s_add_u32 s78, s78, {WS_OP}")
        A("s_mov_b64 exec, 0x1f1f1f1f"); A(f"buffer_load_dword v5, v22, {WS}, s78 offen sc1"); A("s_mov_b64 exec, -1")
        A("L_pfo:")
    if RC == 2: recl()
    for i in range(4): pk("add", 64+8*i, 64+8*i, 68+8*i)
    pk("add", 64, 64, 72); pk("add", 80, 80, 88); pk("add", 64, 64, 80)
    A("v_cvt_pk_bf16_f32 v64, v64, v65")
    A("ds_write_b32 v43, v64")
    stamp(6)
    def apbase(d):
        A(f"s_and_b32 s{d}, s30, 3"); A(f"s_lshl_b32 s{d}, s{d}, 4"); A("s_lshr_b32 s80, s30, 2"); A(f"s_add_u32 s{d}, s{d}, s80"); A(f"s_lshl_b32 s{d}, s{d}, 13")
        A(f"s_add_u32 s{d}, s{d}, {WS_AP}")
        if CC: A(f"s_xor_b32 s{d}, s{d}, 0x2000")
    def mlp5_setup():
        A("v_lshlrev_b32 v224, 2, v0")
        A("global_load_dword v252, v224, s[4:5]"); A("global_load_dword v253, v224, s[4:5] offset:1280")
        apbase(78); A("v_lshl_add_u32 v225, v0, 4, s78")
        A("v_lshrrev_b32 v226, 4, v0"); A("v_lshlrev_b32 v226, 6, v226"); A("v_bfe_u32 v7, v0, 1, 2"); A("v_lshl_add_u32 v226, v7, 4, v226")
        A("v_bfe_u32 v7, v0, 3, 1"); A("v_lshl_add_u32 v226, v7, 3, v226"); A("v_and_b32 v7, 1, v0"); A("v_lshl_add_u32 v226, v7, 2, v226"); A(f"v_add_u32 v226, {L_YB}, v226")
        A(f"v_mul_u32_u24 v227, {YBS}, v7"); A("v_lshl_add_u32 v227, v8, 4, v227"); A("s_lshl_b32 s78, s3, 8"); A("v_add_u32 v227, s78, v227")
        A("v_lshlrev_b32 v228, 7, v9"); A("v_lshl_add_u32 v228, v8, 4, v228"); A("s_lshl_b32 s78, s3, 9"); A("v_add_u32 v228, s78, v228")
        A(f"v_add_u32 v227, {L_YB}, v227"); A(f"v_add_u32 v228, {L_PB}, v228")
        A("v_and_b32 v7, 1, v8"); A("v_mul_u32_u24 v230, 48, v7"); A("v_lshrrev_b32 v7, 1, v8"); A("v_lshl_add_u32 v230, v7, 2, v230")
        A("s_lshl_b32 s78, s3, 3"); A(f"s_add_u32 s78, s78, {L_SB}"); A("v_add_u32 v230, s78, v230")
        A("v_lshrrev_b32 v7, 2, v1"); A("v_lshlrev_b32 v231, 6, v7"); A("v_and_b32 v7, 1, v8"); A("v_lshl_add_u32 v231, v7, 5, v231")
        A("v_and_b32 v7, 3, v1"); A("v_lshl_add_u32 v231, v7, 3, v231"); A("s_lshl_b32 s78, s3, 13"); A(f"s_add_u32 s78, s78, {L_W1}"); A("v_add_u32 v231, s78, v231"); A("v_xor_b32 v232, 32, v231")
    for r in (224, 225, 246, 56, 57): A(f"v_mov_b32 v{r}, 0")
    A("s_cmp_eq_u32 s36, 2"); A("s_cbranch_scc0 L_nofin")
    mlp5_setup()
    A("s_lshr_b32 s35, s30, 2")
    if OL:
        assert M0
        tab = [list(range(8)), [8, 9, 10, 12, 14, 16, 31, 31], [11, 13, 15, 17, 18, 19, 31, 31]]
        lo = lambda t: sum(v << 8*i for i, v in enumerate(t[:4])); hi = lambda t: sum(v << 8*i for i, v in enumerate(t[4:]))
        A("s_and_b32 s78, s30, 3"); A("s_add_u32 s78, s78, s35")
        A("s_mov_b64 s[60:61], -1")
        for k in range(3):
            A(f"s_cmp_eq_u32 s78, {k+1}"); A(f"s_cselect_b32 s60, {lo(tab[k]):#x}, s60"); A(f"s_cselect_b32 s61, {hi(tab[k]):#x}, s61")
        A("s_sub_u32 s78, s31, 10"); A("s_lshl_b32 s78, s78, 3"); A("s_lshr_b64 s[60:61], s[60:61], s78"); A("s_and_b32 s33, s60, 31")
    elif M0:
        A("s_sub_u32 s78, s31, 10"); A("s_lshr_b32 s78, s78, 1"); A("s_add_u32 s80, s35, 3"); A("s_mul_i32 s78, s78, s80")
        A("s_and_b32 s80, s30, 3"); A("s_add_u32 s78, s78, s80"); A("s_add_u32 s78, s78, s35"); A("s_sub_u32 s78, s78, 1")
        A("s_and_b32 s80, s31, 1"); A("s_lshl1_add_u32 s33, s78, s80")
    else:
        A("s_lshr_b32 s78, s37, 4"); A("s_lshl_b32 s78, s78, 3"); A("s_and_b32 s80, s37, 7"); A("s_add_u32 s33, s78, s80")
    A("s_min_u32 s34, s33, 19"); A("s_mul_i32 s85, s35, 20"); A("s_add_u32 s85, s85, s34")
    A("s_mul_i32 s78, s85, 52"); A("s_lshr_b32 s78, s78, 9")
    A("s_mul_i32 s80, s78, 10"); A("s_sub_u32 s80, s85, s80")
    A("s_mul_i32 s78, s78, 160")
    A("s_and_b32 s81, s80, 1"); A("s_lshl_b32 s82, s81, 6"); A("s_lshr_b32 s83, s80, 1"); A("s_lshl_b32 s83, s83, 2"); A("s_add_u32 s82, s82, s83")
    A("s_lshl_b32 s81, s81, 3"); A("s_add_u32 s81, s81, 128")
    A("v_bfe_u32 v7, v1, 1, 2"); A("v_lshlrev_b32 v12, 4, v7")
    A("v_bfe_u32 v7, v1, 1, 1"); A("v_lshlrev_b32 v15, 4, v7"); A("v_bfe_u32 v7, v1, 2, 1"); A("v_lshl_add_u32 v15, v7, 2, v15")
    A("s_cmp_lt_u32 s80, 8"); A("s_cselect_b32 s82, s82, s81"); A("s_cselect_b64 vcc, -1, 0"); A("s_add_u32 s78, s78, s82")
    A("v_cndmask_b32 v12, v15, v12, vcc"); A("v_add3_u32 v14, v12, v8, s78"); A("v_lshlrev_b32 v12, 1, v14")
    A("v_mov_b32 v17, 0"); A("v_mov_b32 v16, 0")
    A("global_load_short_d16_hi v17, v12, s[22:23]")
    A("v_and_b32 v7, 1, v1"); A(f"v_mul_u32_u24 v15, {YBS}, v7"); A("v_mul_u32_u24 v7, 1280, v7"); A("v_add_u32 v12, v12, v7")
    if PFOUT: A("global_load_ushort v5, v12, s[24:25]")
    A("v_lshrrev_b32 v7, 5, v14"); A("v_lshl_add_u32 v15, v7, 6, v15"); A("v_bfe_u32 v7, v14, 2, 2"); A("v_lshl_add_u32 v15, v7, 4, v15")
    A("v_bfe_u32 v7, v14, 4, 1"); A("v_lshl_add_u32 v15, v7, 3, v15"); A("v_and_b32 v7, 3, v14"); A("v_lshl_add_u32 v15, v7, 1, v15"); A(f"v_add_u32 v15, {L_YB}, v15")
    A("v_bfe_u32 v7, v1, 3, 1"); A("v_cmp_eq_u32 vcc, 0, v7"); A("v_cndmask_b32 v12, v23, v12, vcc")
    A("v_lshlrev_b32 v56, 14, v8"); A("v_lshl_add_u32 v56, v7, 12, v56"); A("v_and_b32 v57, 7, v1"); A("v_lshl_add_u32 v56, v57, 4, v56")
    A("s_lshl_b32 s78, s34, 7"); A("s_lshl_b32 s80, s35, 13"); A("s_add_u32 s78, s78, s80"); A(f"s_add_u32 s78, s78, {WS_MP}")
    if CC: A("s_xor_b32 s78, s78, 0x2000")
    A("v_add_u32 v56, s78, v56")
    for n in range(1, 7): A(f"s_mov_b32 s{80+n}, {n*65536}")
    A("L_nofin:")
    stamp(7)
    A("s_waitcnt vmcnt(0)")
    A("v_cmp_ne_u32 vcc, s57, v48"); A("s_cmp_lg_u64 vcc, 0")
    if not local: A("s_cmp_eq_u32 0, 0")
    A("s_cselect_b32 s76, 0, -1")
    if OMS:
        A("s_cmp_eq_u32 s36, 2"); A("s_cselect_b32 s76, 0, s76")
    A("s_not_b32 s77, s76")
    if diag: A("v_writelane_b32 v255, s77, 55")
    stamp(8)
    flush()
    A(f"s_mov_b32 s90, {SPIN*4}")
    C("""running max / sum of the four waves -> wave factors for the last wave, (max, sum, tag, tag) for the wo workgroups""")
    A("L_mlw:")
    A("ds_read_b128 v[64:67], v13"); A("ds_read_b128 v[68:71], v13 offset:16")
    A("s_waitcnt lgkmcnt(0)")
    A("v_max3_u32 v7, v65, v67, v69"); A("v_max_u32 v7, v7, v71"); A("v_cmp_eq_u32 vcc, -1, v7")
    A("s_cbranch_vccz L_mlw2")
    if not NOSL: A("s_sleep 1")
    A("s_sub_u32 s90, s90, 1"); A("s_cbranch_scc0 L_mlw")
    A("L_mlw2:")
    A("v_max3_f32 v36, v64, v66, v68"); A("v_max_f32 v36, v36, v70")
    for i in range(4): A(f"v_sub_f32 v{64+2*i}, v{64+2*i}, v36")
    for i in range(4): A(f"v_mul_f32 v{64+2*i}, {LOG2E:#x}, v{64+2*i}")
    for i in range(4): A(f"v_exp_f32 v{64+2*i}, v{64+2*i}")
    A("v_mul_f32 v37, v64, v65")
    for i in range(1, 4): A(f"v_fmac_f32 v37, v{64+2*i}, v{65+2*i}")
    A("v_mov_b32 v45, s76"); A("ds_write_b32 v13, v45 offset:64")
    A("ds_write_b128 v13, v[64:67] offset:32"); A("ds_write_b128 v13, v[68:71] offset:48")
    A("s_mov_b32 exec_hi, 0")
    if MLS: A("s_mov_b32 exec_lo, 0xff")
    else:
        A("s_and_b32 exec_lo, s76, 0xff")
        A(f"buffer_store_dwordx4 v[36:39], v2, {WS}, s38 offen offset:512")
        A("s_and_b32 exec_lo, s77, 0xff")
    A(f"buffer_store_dwordx4 v[36:39], v2, {WS}, s38 offen offset:512 sc1")
    A("s_mov_b64 exec, -1")
    A(f"s_cmp_ge_u32 s31, {WARM or 99}"); A("s_cselect_b32 s59, 2, s36")
    A("v_lshrrev_b32 v47, 3, v1"); A("v_lshlrev_b32 v47, 7, v47"); A("v_and_b32 v7, 7, v1"); A("v_lshl_add_u32 v47, v7, 2, v47")
    flld = lambda: A(f"buffer_load_dword v46, v47, {WS}, 0 offen offset:{WS_VOTE} sc1")
    A("s_cmp_eq_u32 s59, 2"); A("s_cbranch_scc0 L_f0")
    flld()
    A("L_f0:")
    stamp(9)
    if "notail" not in exp:
        A("s_cmp_eq_u32 s59, 2"); A("s_cbranch_scc1 L_fl")
    A("L_aend:")
    fin()
    C("""MLP workgroups: all votes, side word, lines of the sums made resident""")
    A("L_fl:")
    A(f"s_mov_b32 s90, {SPIN}")
    A("s_waitcnt vmcnt(0)")
    A("L_fchk:")
    assert CC is None
    A("v_xor_b32 v7, s56, v46"); A("v_cmp_lt_u32 vcc, 1, v7")
    A("s_cbranch_vccz L_fok")
    flld()
    A("s_waitcnt vmcnt(0)")
    A("s_sub_u32 s90, s90, 1"); A("s_cbranch_scc0 L_fchk")
    A("L_fok:")
    if CC is None:
        A("v_cmp_ne_u32 vcc, s56, v46"); A("s_bcnt1_i32_b64 s78, vcc"); A("s_cmp_gt_u32 s78, 32"); A("s_cselect_b32 s78, 0x2000, 0")
        A("v_mov_b32 v46, s78"); A(f"v_mov_b32 v47, {L_CW}"); A("ds_write_b32 v47, v46")
        A("v_xor_b32 v225, s78, v225"); A("v_xor_b32 v56, s78, v56")
        if diag: A("v_writelane_b32 v255, s78, 58"); A("s_bcnt1_i32_b64 s78, vcc"); A("v_writelane_b32 v255, s78, 57")
        A("s_waitcnt lgkmcnt(0)")
    A("s_cmp_eq_u32 s36, 2"); A("s_cbranch_scc0 L_aend")
    if MW:
        A("v_readfirstlane_b32 s60, v225")
        A("s_sub_u32 s78, s31, 10"); A("s_mul_i32 s78, s78, 54"); A("v_add_u32 v7, s78, v1")
        A("v_mul_u32_u24 v6, 1639, v7"); A("v_lshrrev_b32 v6, 16, v6"); A("v_mul_u32_u24 v6, 88, v6"); A("v_add_lshl_u32 v6, v6, v7, 7")
        A("v_cmp_gt_u32 vcc, 320, v7"); A("v_cndmask_b32 v6, v23, v6, vcc")
        A("s_mov_b32 exec_hi, 0x3fffff")
        A(f"buffer_load_dword v4, v6, {WS}, s60 offen sc1")
        A("s_mov_b64 exec, -1")
    if MPW:
        A("s_lshl_b32 s63, s37, 13"); A("s_and_b32 s64, s37, 1"); A("s_lshl_b32 s64, s64, 12"); A("s_sub_u32 s63, s63, s64"); A(f"s_add_u32 s63, s63, {WS_MP}")
        A("v_mul_u32_u24 v7, 7680, v40"); A("v_add_u32 v7, v7, v2"); A("s_not_b32 s64, s56")
        for r in range(4): A(f"v_mov_b32 v{24+r}, s64")
    if not W1W: A("s_barrier")
    if MPW:
        for k in range(5): A(f"buffer_store_dwordx4 v[24:27], v7, {WS}, s63 offen offset:{512*k} sc1")
    A("s_barrier")
    A("s_branch L_mlp5")

    C("""================= waves 1..4: K / V stream with eight loads in flight each =================""")
    A("L_stream:")
    pend.extend(keep)
    stamp(1)
    A("s_sub_u32 s91, s3, 1")
    A("s_waitcnt lgkmcnt(0)")
    A("s_add_u32 s56, s56, 0x01010101")
    A("s_lshl3_add_u32 s82, s91, s30" if H8 else "s_lshl2_add_u32 s82, s30, s91"); A(f"s_mul_i32 s82, s82, {128*1280}"); A("s_lshl_b32 s78, s37, 7"); A("s_add_u32 s82, s82, s78")
    A("s_lshl_b32 s78, s37, 2"); A("s_add_u32 s78, s78, s91"); A("s_mul_i32 s78, s78, 10240")
    A("s_lshl_b32 s83, s91, 14"); A("s_mul_i32 s80, s91, 10240"); A(f"s_add_u32 s88, s80, {L_W1}")
    A("s_cmp_eq_u32 s36, 1")
    A("s_cselect_b32 s44, s12, s20"); A("s_cselect_b32 s45, s13, s21"); A("s_cselect_b32 s46, 5242880, 0"); A("s_mov_b32 s47, 0x20000")
    A("s_cselect_b32 s82, s82, s78"); A("s_cselect_b32 s83, s83, s80"); A("s_cselect_b32 s87, 10240, 0")
    A("s_cmp_eq_u32 s36, 2"); A("s_cselect_b32 s46, 2211840, s46"); A("s_cselect_b32 s87, 128, s87"); A(f"s_addk_i32 s83, {L_WB}")
    if "nopre" in exp: A("s_mov_b32 s46, 0")
    srd(48, 12, 5242880); srd(52, 16, 2211840)
    A(f"v_mov_b32 v19, {OOB}")
    if NW:
        assert tall
        A(f"s_add_u32 s76, s83, {(16-NW)*1024}"); A(f"s_add_u32 s79, s82, {(16-NW)*10240}"); A("s_cmp_eq_u32 s36, 1")
        A(f"s_cselect_b32 s76, s76, {L_DUMMY}"); A("s_cselect_b32 s77, 0x400, 0"); A(f"s_cselect_b32 s79, s79, {OOB}")
    A("s_sub_u32 s78, s31, 18"); A("s_lshl2_add_u32 s78, s78, s91"); A("s_mul_i32 s78, s78, 46")
    A("v_add_u32 v32, s78, v1"); A("v_mul_u32_u24 v33, 6554, v32"); A("v_lshrrev_b32 v33, 22, v33")
    A("v_mul_u32_u24 v34, 640, v33"); A("v_sub_u32 v34, v32, v34")
    A("s_cmp_ge_u32 s31, 18"); A("s_cselect_b32 s80, 46, 0"); A("v_cmp_gt_u32 s[60:61], s80, v1")
    A("v_cmp_gt_u32 vcc, 4, v33"); A("s_and_b64 s[60:61], s[60:61], vcc")
    A(f"s_mul_i32 s80, s30, {163840 if H8 else 655360}")
    assert TS or not H8
    if TS:
        a_, b2_, c_ = TS; NL = 10*a_ + 8*b2_ + 14*c_
        assert NL % 80 == 0 and NL <= 1280 and NB == 16
        A("s_cmp_ge_u32 s31, 10"); A(f"s_cselect_b32 s81, {b2_}, {a_}"); A(f"s_cselect_b32 s85, {(40*a_ - 40*b2_) & 0xffffffff}, 0")
        A("s_cmp_ge_u32 s31, 18"); A(f"s_cselect_b32 s81, {c_}, s81"); A(f"s_cselect_b32 s85, {(40*a_ + 32*b2_ - 72*c_) & 0xffffffff}, s85")
        A("s_lshl2_add_u32 s78, s31, s91"); A("s_mul_i32 s78, s78, s81"); A("s_add_u32 s78, s78, s85")
        A("v_add_u32 v56, s78, v1")
        if NL < 1280 or H8:
            mg = -(-(1 << 22) // NL); assert all((x * mg) >> 22 == x // NL for x in range(4 * NL))
            A(f"v_mul_u32_u24 v35, {mg}, v56"); A("v_lshrrev_b32 v35, 22, v35"); A(f"v_mul_u32_u24 v35, {(10240 if H8 else 1280) - NL}, v35"); A("v_add_u32 v56, v56, v35")
        A("v_lshl_add_u32 v56, v56, 7, s80"); A("v_cmp_gt_u32 vcc, s81, v1"); A("v_cndmask_b32 v56, v19, v56, vcc")
    elif tall:
        A("s_mul_i32 s80, s32, 163840"); A("s_lshl2_add_u32 s78, s33, s91"); A(f"s_mul_i32 s78, s78, {320*NB}"); A("s_add_u32 s80, s80, s78")
        if NB < 16: A(f"s_add_u32 s80, s80, {(16-NB)*10240}")
        A("v_lshl_add_u32 v56, v1, 7, s80"); A(f"v_cmp_gt_u32 vcc, {5*NB//2}, v1"); A("v_cndmask_b32 v56, v19, v56, vcc")
    else:
        A("v_lshl_add_u32 v56, v32, 7, s80"); A("v_cndmask_b32 v56, v19, v56, s[60:61]"); A("s_mov_b32 s79, 327680")
    if M0:
        A("s_sub_u32 s78, s30, 1"); A("s_cselect_b32 s78, 27, s78"); A("v_mad_u32_u24 v36, v33, 7, s78")
    else: A("v_lshl_add_u32 v36, v33, 3, s30")
    A("v_cmp_gt_u32 vcc, 27, v36"); A("s_and_b64 vcc, vcc, s[60:61]")
    A("v_mul_u32_u24 v57, 3456, v34"); A("v_lshl_add_u32 v57, v36, 7, v57"); A("v_cndmask_b32 v57, v19, v57, vcc")
    for d in range(T1D):
        assert M0 and not T2
        A(f"v_xor_b32 v35, {(2, 1, 3)[d]}, v33"); A("v_mad_u32_u24 v35, v35, 7, s78"); A("v_cmp_gt_u32 vcc, 27, v35"); A("s_and_b64 vcc, vcc, s[60:61]")
        A(f"v_mul_u32_u24 v{251+d}, 3456, v34"); A(f"v_lshl_add_u32 v{251+d}, v35, 7, v{251+d}"); A(f"v_cndmask_b32 v{251+d}, v19, v{251+d}, vcc")
    if T2:
        A("v_mul_u32_u24 v252, 81920, v36"); A("v_lshl_add_u32 v252, v34, 7, v252"); A("v_cndmask_b32 v252, v19, v252, vcc")
    A("v_and_b32 v7, 1, v1"); A("v_lshlrev_b32 v7, 4, v7"); A("v_mov_b32 v32, 0xffff"); A("v_lshlrev_b32 v7, v7, v32")
    A("v_bfe_u32 v32, v1, 1, 2")
    for r in range(4):
        A(f"v_cmp_eq_u32 vcc, {r}, v32"); A(f"v_cndmask_b32 v{20+r}, 0, v7, vcc")
    A(f"v_lshlrev_b32 v10, 4, v9"); A(f"v_add_u32 v10, {L_Q}, v10")
    A("s_lshl_b32 s78, s91, 3"); A(f"s_add_u32 s78, s78, {L_ML}"); A("v_mov_b32 v11, s78")
    A(f"v_add_u32 v3, {L_RED}, v2"); A("s_lshl_b32 s78, s91, 9"); A("v_add_u32 v12, s78, v3")
    A(f"v_mov_b32 v254, {L_ML}")
    slots()
    A("v_lshrrev_b32 v58, 3, v1"); A("v_mul_u32_u24 v58, 1280, v58"); A("v_bfe_u32 v7, v1, 1, 2"); A("v_xor_b32 v7, v7, v8")
    A("v_lshl_add_u32 v58, v7, 5, v58"); A("v_and_b32 v59, 1, v1"); A("v_lshlrev_b32 v59, 4, v59"); A("v_add_u32 v58, v58, v59")
    A("v_and_b32 v7, 1, v7"); A("v_lshl_add_u32 v59, v7, 5, v59"); A("v_lshrrev_b32 v7, 2, v1"); A("v_mul_u32_u24 v7, 3456, v7"); A("v_add_u32 v59, v59, v7")
    pump(); stamp(2); pump()
    C("""role set-up while K streams in: idx < 10 wo tile (4 heads x 64 columns), idx 10..17 of groups 1..7 MLP slice (32 of 1728), else none""")
    ld1 = [(176 + 4*sp, f"v224, {WS}, 0 offen offset:{1024*sp}") for sp in range(4)]
    for r in (14, 224, 225, 229, 246): A(f"v_mov_b32 v{r}, 0")
    if "nosetup" in exp: A("s_branch L_su9")
    A("s_cmp_eq_u32 s36, 1"); A("s_cbranch_scc0 L_su2")
    A("s_lshl_b32 s78, s30, 2"); A("s_add_u32 s78, s78, s91"); A("s_lshl_b32 s78, s78, 13"); A(f"s_add_u32 s78, s78, {WS_OP}")
    A("v_lshrrev_b32 v32, 5, v1"); A("v_and_b32 v33, 31, v1"); A("v_lshl_add_u32 v224, v32, 12, s78"); A("v_lshl_add_u32 v224, v33, 4, v224")
    A("s_mul_i32 s80, s91, 2176"); A(f"s_add_u32 s80, s80, {L_OF}")
    A("v_mul_u32_u24 v226, 272, v32"); A("v_lshl_add_u32 v226, v33, 3, v226"); A("v_add_u32 v226, s80, v226")
    A("v_and_b32 v7, 1, v1"); A("v_add_u32 v235, -1, v7"); A("v_and_b32 v235, 0xff, v235")
    A("v_and_b32 v7, 7, v1"); A("v_mul_u32_u24 v227, 272, v7"); A("v_and_b32 v7, 1, v8"); A("v_lshl_add_u32 v227, v7, 7, v227"); A("v_lshlrev_b32 v234, 9, v7")
    A("v_lshrrev_b32 v7, 5, v1"); A("v_lshl_add_u32 v227, v7, 4, v227"); A("v_add_u32 v227, s80, v227")
    A("v_and_b32 v7, 7, v1"); A("v_lshl_add_u32 v225, v7, 10, s78")
    traddr1280(230, 2048)
    A("v_add_u32 v230, s83, v230")
    for ct in range(1, 4): A(f"v_xor_b32 v{230+ct}, {32*ct}, v230")
    A("v_lshlrev_b32 v229, 3, v1"); A(f"v_add_u32 v228, {L_OB}, v229")
    A("v_lshl_add_u32 v234, v9, 3, v234"); A("s_lshl_b32 s78, s91, 10"); A(f"s_add_u32 s78, s78, {L_OB}"); A("v_add_u32 v234, s78, v234")
    A("s_lshl_b32 s80, s30, 14"); A("s_lshl_b32 s81, s37, 9"); A("s_add_u32 s84, s80, s81"); A("s_lshl_b32 s80, s91, 17")
    A("s_add_u32 s84, s84, s80"); A(f"s_add_u32 s84, s84, {WS_AP}"); A("s_add_u32 s85, s84, 8192")
    A("s_branch L_su9")
    A("L_su2:")
    A("s_cmp_eq_u32 s36, 2"); A("s_cbranch_scc0 L_su9")
    mlp5_setup()
    A(f"s_mul_i32 s84, s91, {160*3456}"); A("s_lshl_b32 s78, s37, 6"); A("s_add_u32 s84, s84, s78"); A("s_mul_i32 s85, s91, 10")
    A("v_mov_b32 v13, 0"); A("v_and_b32 v14, 31, v1"); A("v_lshlrev_b32 v247, 2, v14"); A(f"v_add_u32 v247, {L_PB + 256}, v247")
    A("s_lshl_b32 s78, s37, 5"); A("v_add_lshl_u32 v14, v14, s78, 1")
    A("global_load_short_d16_hi v13, v14, s[18:19]")
    traddr1280(16, 10240)
    for i in range(10):
        A(f"s_add_u32 s78, s85, {i}"); A("s_and_b32 s80, s78, 3"); A("s_lshl_b32 s80, s80, 5"); A(f"v_xor_b32 v{233+i}, s80, v16")
        A("s_lshr_b32 s78, s78, 2"); A("s_lshl_b32 s78, s78, 10"); A(f"v_add_u32 v{233+i}, s78, v{233+i}")
    for i in range(0, 32, 2): A(f"v_mov_b64 v[{192+i}:{193+i}], 0")
    A("v_and_b32 v7, 1, v1")
    A("v_lshlrev_b32 v243, 6, v7"); A("v_lshl_add_u32 v243, v8, 4, v243"); A("s_lshl_b32 s78, s91, 7"); A(f"s_add_u32 s78, s78, {L_H1}"); A("v_add_u32 v243, s78, v243")
    A(f"v_lshlrev_b32 v244, 2, v1"); A(f"v_add_u32 v244, {L_PB}, v244")
    A("v_lshrrev_b32 v7, 5, v1"); A("v_mul_u32_u24 v248, 48, v7"); A(f"v_add_u32 v248, {L_SB}, v248")
    A("v_lshlrev_b32 v245, 6, v7"); A("v_bfe_u32 v7, v1, 2, 2"); A("v_lshl_add_u32 v245, v7, 4, v245")
    A("v_bfe_u32 v7, v1, 4, 1"); A("v_lshl_add_u32 v245, v7, 3, v245"); A("v_and_b32 v7, 3, v1"); A("v_lshl_add_u32 v245, v7, 1, v245"); A("v_add_u32 v245, s78, v245")
    A("s_lshl_b32 s86, s37, 13"); A("s_and_b32 s78, s37, 1"); A("s_lshl_b32 s78, s78, 12"); A("s_sub_u32 s86, s86, s78")
    A("s_lshr_b32 s78, s91, 1"); A("s_lshl_b32 s78, s78, 13"); A("s_add_u32 s86, s86, s78")
    A("s_and_b32 s78, s91, 1"); A("s_mul_i32 s78, s78, 1280"); A("s_add_u32 s86, s86, s78"); A(f"s_add_u32 s86, s86, {WS_MP}")
    if CC: A("s_xor_b32 s86, s86, 0x2000")
    A("v_lshl_add_u32 v246, v8, 2, v9"); A("v_lshlrev_b32 v246, 4, v246")
    A(f"v_mov_b32 v24, {F(-2*0.7978845608028654*1.4426950408889634)}"); A(f"v_mov_b32 v25, {F(-2*0.7978845608028654*1.4426950408889634*0.044715)}")
    A(f"v_mov_b32 v26, {F(1+1e-5)}"); A(f"v_mov_b32 v27, {F(1e-10)}"); A(f"v_mov_b32 v250, {F(1/640)}"); A(f"v_mov_b32 v249, {L_CW}")
    A("L_su9:")
    while st["waited"] < pos[16 + KQ]:
        pump()
        if st["waited"] == pos[15]: stamp(3)
    stamp(4)
    C("""scores: dot products per 16-byte chunk, transposing reduction -> one key per lane, bf16 roundings as in the reference""")
    Q = 60
    A(f"s_mov_b32 s90, {SPIN*4}")
    flush()
    if "noqw" in exp: A("s_branch L_qw2")
    A("L_qw:")
    A(f"ds_read_b128 v[{Q}:{Q+3}], v10")
    A("s_waitcnt lgkmcnt(0)")
    A(f"v_max3_u32 v7, v{Q}, v{Q+1}, v{Q+2}"); A(f"v_max_u32 v7, v7, v{Q+3}"); A("v_cmp_eq_u32 vcc, -1, v7")
    A("s_cbranch_vccz L_qw2")
    if not NOSL: A("s_sleep 1")
    A("s_sub_u32 s90, s90, 1"); A("s_cbranch_scc0 L_qw")
    A("L_qw2:")
    L_mark = len(L)
    stamp(5)
    LIM = pos[31 - W] if QKP == "kv" else pos[30]
    P = 32
    for half in range(2):
        for r in range(4):
            for t in range(8*half, 8*half+8):
                A(f"v_dot2_f32_bf16 v{P+t}, v{K0+4*t+r}, v{Q+r}, {'0' if r == 0 else f'v{P+t}'}")
            if r & 1: pump(lim=LIM)
    R = 48
    for t in range(8): A(f"v_add_f32_dpp v{R+t}, v{P+t}, v{P+t} row_mirror row_mask:0xf bank_mask:0x3")
    for t in range(8): A(f"v_add_f32_dpp v{R+t}, v{P+t+8}, v{P+t+8} row_mirror row_mask:0xf bank_mask:0xc")
    for t in range(4): A(f"v_add_f32_dpp v{P+t}, v{R+t}, v{R+t} row_half_mirror row_mask:0xf bank_mask:0x5")
    for t in range(4): A(f"v_add_f32_dpp v{P+t}, v{R+t+4}, v{R+t+4} row_half_mirror row_mask:0xf bank_mask:0xa")
    pump(lim=LIM)
    for t in range(4): A(f"v_add_f32_dpp v{R+t}, v{P+t}, v{P+t} quad_perm:[2,3,0,1] row_mask:0xf bank_mask:0xf")
    A("s_mov_b32 vcc_lo, 0xcccccccc"); A("s_mov_b32 vcc_hi, 0xcccccccc")
    for t in range(2): A(f"v_cndmask_b32 v{P+t}, v{R+t}, v{R+t+2}, vcc")
    for t in range(2): A(f"v_add_f32_dpp v{R+t}, v{P+t}, v{P+t} quad_perm:[1,0,3,2] row_mask:0xf bank_mask:0xf")
    A("s_mov_b32 vcc_lo, 0xaaaaaaaa"); A("s_mov_b32 vcc_hi, 0xaaaaaaaa")
    S = 40
    A(f"v_cndmask_b32 v{S}, v{R}, v{R+1}, vcc")
    bf16r(S, S); A(f"v_mul_f32 v{S}, {F(128**-0.5)}, v{S}"); bf16r(S, S)
    A(f"v_mov_b32 v42, v{S}")
    pump(lim=LIM)
    row_allred("v_max_f32", 42); swap_allred("v_max_f32", 42, 44, 16); swap_allred("v_max_f32", 42, 44, 32)
    pump(lim=LIM)
    A(f"v_sub_f32 v43, v{S}, v42"); A(f"v_mul_f32 v43, {LOG2E:#x}, v43"); A("v_exp_f32 v43, v43")
    A("v_cvt_pk_bf16_f32 v45, v43, v43")
    row_allred("v_add_f32", 43); swap_allred("v_add_f32", 43, 44, 16); swap_allred("v_add_f32", 43, 44, 32)
    A("ds_write_b64 v11, v[42:43]")
    stamp(6)
    pump(lim=LIM)
    C("""p = exp(s - wave max); o partial = p V with p in element lane&7 of the A rows""")
    done = 0
    for t in range(16):
        for r in range(4): A(f"v_and_b32_dpp v{K0+4*t+r}, v45, v{20+r} row_newbcast:{t} row_mask:0xf bank_mask:0xf")
        if t >= 1 and pos[16 + done] <= st["waited"]:
            mfma(ACC, K0+4*done, V0+4*done, done == 0); done += 1
        if t in (4, 9): pump(lim=LIM)
    if "noqk" in exp:
        L[L_mark:] = [l for l in L[L_mark:] if not l.strip().startswith(("v_dot2", "v_add_f32_dpp", "v_and_b32_dpp", "v_max_f32_dpp", "v_permlane"))]
    stamp(7)
    for t in range(done, 16):
        while t and st["waited"] < pos[15 + t]: pump()
        if t == 15 and FPRE:
            A("ds_read_b128 v[52:55], v254 offset:48"); A("ds_read_b128 v[48:51], v254 offset:32"); A("ds_read_b32 v62, v254 offset:64")
            A("v_mov_b32 v61, 1"); A("v_mov_b32 v6, s56"); A("v_mov_b32 v7, s56"); A(f"s_mov_b32 s90, {SPIN*4}")
        wait_for(pos[16 + t]); mfma(ACC, K0+4*t, V0+4*t, t == 0)
        if t < 15: issue_to(pos[16 + t] + 1 + W)
    assert st["issued"] == len(seq)
    stamp(8)
    C("""the wave that draws the last ticket scales and adds the four partial rows and publishes them as bf16 + tags""")
    def wsum():
        for k in range(4):
            if FPRE: A(f"s_waitcnt lgkmcnt({3-k})")
            for hh in (0, 2):
                if k == 0: pk("mul", 28+hh, 32+hh, 48, mod="op_sel_hi:[1,0]")
                else: pk("fma", 28+hh, 32+4*k+hh, 48+2*k, 28+hh, mod="op_sel_hi:[1,0,1]")
            if FPRE and k == 0: A("v_readfirstlane_b32 s78, v60")
    if FPRE:
        keepp = list(pend); pend.clear()
        A("s_mov_b32 exec_hi, 0"); A("s_waitcnt lgkmcnt(0)")
        A("v_readfirstlane_b32 s80, v55"); A("v_readfirstlane_b32 s81, v62")
        A(f"ds_write_b128 v12, v[{ACC}:{ACC+3}]")
        A("s_mov_b32 exec_lo, 1")
        A("ds_add_rtn_u32 v60, v254, v61 offset:68")
        A("s_mov_b32 exec_lo, -1")
        for k in range(4): A(f"ds_read_b128 v[{32+4*k}:{35+4*k}], v3 offset:{512*k}")
        pend.extend(keepp)
        wsum()
        A("s_cmp_eq_u32 s80, -1"); A("s_cbranch_scc1 L_fw3")
    else:
        A("s_mov_b32 exec_hi, 0"); A("v_mov_b32 v61, 1"); A("v_mov_b32 v6, s56"); A("v_mov_b32 v7, s56")
        A(f"ds_write_b128 v12, v[{ACC}:{ACC+3}]")
        A("s_mov_b32 exec_lo, 1")
        A("ds_add_rtn_u32 v60, v254, v61 offset:68")
        A("s_mov_b32 exec_lo, -1")
        for k in range(4): A(f"ds_read_b128 v[{32+4*k}:{35+4*k}], v3 offset:{512*k}")
        A(f"s_mov_b32 s90, {SPIN*4}")
        keepp = list(pend); pend.clear()
        A("L_fw:")
        A("ds_read_b128 v[52:55], v254 offset:48"); A("ds_read_b128 v[48:51], v254 offset:32"); A("ds_read_b32 v62, v254 offset:64")
        pend.extend(keepp)
        A("s_waitcnt lgkmcnt(0)")
        A("v_readfirstlane_b32 s78, v60"); A("v_readfirstlane_b32 s80, v55"); A("v_readfirstlane_b32 s81, v62")
        for k in range(4):
            for hh in (0, 2):
                if k == 0: pk("mul", 28+hh, 32+hh, 48, mod="op_sel_hi:[1,0]")
                else: pk("fma", 28+hh, 32+4*k+hh, 48+2*k, 28+hh, mod="op_sel_hi:[1,0,1]")
        A("s_cmp_eq_u32 s80, -1"); A("s_cbranch_scc1 L_fw3")
    A("L_fw4:")
    A("s_cmp_eq_u32 s78, 2"); A("s_cbranch_scc0 L_fw2")
    A("v_cvt_pk_bf16_f32 v4, v28, v29"); A("v_cvt_pk_bf16_f32 v5, v30, v31")
    A("s_mov_b32 exec_lo, s81")
    A(f"buffer_store_dwordx4 v[4:7], v2, {WS}, s38 offen")
    A("s_not_b32 exec_lo, s81")
    A(f"buffer_store_dwordx4 v[4:7], v2, {WS}, s38 offen sc1")
    stamp(16)
    flush()
    A("L_fw2:")
    A("s_mov_b64 exec, -1")
    save = dict(st); NPRE = len(seq)
    if "notail" in exp: fin()
    A("s_cmp_eq_u32 s36, 2"); A("s_cbranch_scc1 L_mlp")
    A("s_cmp_eq_u32 s36, 0"); A("s_cbranch_scc1 L_idle")

    C("""---- wo role: wave w multiplies head w; A rows = (split, batch), the softmax factors scale the product rows ----""")
    mlld = lambda: A(f"buffer_load_dwordx4 v[208:211], v225, {WS}, 0 offen offset:512 sc1")
    for n in range(NR + PRE, 16 - NW):
        didx[n] = len(seq); seq.append(dma_a(n))
    blk = lambda n: didx[n]
    trd = [0]
    need = lambda ks: max(blk(4*ks + b) for b in range(4))
    kord = sorted(range(4), key=need)
    def trs():
        while trd[0] < 4 and need(kord[trd[0]]) <= st["waited"]:
            ks = kord[trd[0]]
            for ct in range(4):
                for u in range(2): A(f"ds_read_b64_tr_b16 v[{64+16*ks+4*ct+2*u}:{65+16*ks+4*ct+2*u}], v{230+ct} offset:{(4*ks+u)*1024}")
            trd[0] += 1
    Wc[0] = WO or W
    issue_to(pos[31] + 1 + W)
    trs()
    while st["issued"] < len(seq):
        pump(); trs()
    stamp(9)
    if P1G:
        def mlm():
            A("s_mov_b64 exec, 0x00ff00ff"); mlld(); A("s_mov_b64 exec, -1")
        l1 = [(r, lambda r=r, a=a: A(ldtext(r, a))) for r, a in ld1] + [(208, mlm)]
        A("v_mov_b32 v210, s56")
        poll_first(l1); st["issued"] += 5
        while trd[0] < 4:
            wait_for(need(kord[trd[0]])); trs()
        stamp(10)
        poll("1", l1, lambda: None, None, chk=lambda d, r: A(f"v_cmp_ne_u32 {d}, s56, v{r+2}"),
             clr=lambda r: r == 208 or A(f"ds_write_b64 v226, v[{r}:{r+1}] offset:{136*(r-176)}"))
    else:
        def round1(sk):
            for i, (r, a) in enumerate(ld1):
                if sk:
                    A(f"s_cmp_eq_u64 s[{62+2*i}:{63+2*i}], 0"); A(f"s_cbranch_scc1 L_r1_{i}")
                A(ldtext(r, a))
                if sk: A(f"L_r1_{i}:")
            A("s_mov_b64 exec, s[60:61]")
            if sk: A("s_cbranch_execz L_r1_4")
            mlld()
            if sk: A("L_r1_4:")
            A("s_mov_b64 exec, -1")
        A("s_mov_b64 s[60:61], 0x00ff00ff")
        A("v_mov_b32 v210, s56"); A("v_mov_b32 v211, s56")
        if WBAR == 1: A("s_barrier")
        if WBAR < 2:
            round1(False); st["issued"] += 5
        while trd[0] < 4:
            wait_for(need(kord[trd[0]])); trs()
        if WBAR == 2:
            A("s_barrier"); round1(False)
        stamp(10)
        A(f"s_mov_b32 s90, {SPIN}")
        if diag: flush()
        A("L_p1:")
        A("s_waitcnt vmcnt(0)")
        A("ds_write2_b64 v226, v[176:177], v[180:181] offset0:0 offset1:68"); A("ds_write2_b64 v226, v[184:185], v[188:189] offset0:136 offset1:204")
        for i in range(4): A(f"v_cmp_ne_u32 s[{62+2*i}:{63+2*i}], s56, v{178+4*i}")
        A("v_cmp_ne_u32 s[60:61], s56, v210"); A("v_cmp_ne_u32 vcc, s56, v211")
        A("s_or_b64 s[70:71], s[62:63], s[64:65]"); A("s_or_b64 s[72:73], s[66:67], s[68:69]"); A("s_or_b64 s[70:71], s[70:71], s[72:73]")
        A("s_or_b64 s[60:61], s[60:61], vcc"); A("s_or_b64 vcc, s[60:61], s[70:71]")
        A("s_cbranch_scc0 L_pd1")
        A("s_waitcnt lgkmcnt(0)")
        round1(True)
        A("s_sub_u32 s90, s90, 1"); A("s_cbranch_scc0 L_p1")
        A("s_waitcnt vmcnt(0)")
        A("L_pd1:")
    if diag: A("v_writelane_b32 v255, s90, 54")
    for ks in range(4): A(f"ds_read_b128 v[{192+4*ks}:{195+4*ks}], v227 offset:{32*ks}")
    stamp(11)
    fac = ["v_max_f32_dpp v210, v208, v208 quad_perm:[1,0,3,2] row_mask:0xf bank_mask:0xf",
           "v_max_f32_dpp v210, v210, v210 quad_perm:[2,3,0,1] row_mask:0xf bank_mask:0xf",
           "v_sub_f32 v208, v208, v210\nv_mul_f32 v208, %#x, v208" % LOG2E, "v_exp_f32 v208, v208", "v_mul_f32 v209, v208, v209",
           "v_add_f32_dpp v209, v209, v209 quad_perm:[1,0,3,2] row_mask:0xf bank_mask:0xf",
           "v_add_f32_dpp v209, v209, v209 quad_perm:[2,3,0,1] row_mask:0xf bank_mask:0xf",
           "v_rcp_f32 v209, v209", "v_mul_f32 v208, v208, v209", ""]
    for gh in range(2):
        for pr in range(2):
            fac.append("\n".join(f"v_mov_b32_dpp v{216+2*pr+b}, v208 row_newbcast:{4*b + 2*gh + pr} row_mask:{1 << gh:#x} bank_mask:0xf" for b in range(2)))
    n = 0
    for f_ in fac[:4]: A(f_)
    del fac[:4]
    for ct in range(4):
        for ks in range(4):
            if ct == 0: A(f"s_waitcnt lgkmcnt({3-ks})")
            mfma(144+4*ct, 192+4*ks, 64+16*ks+4*ct, ks == 0)
            if n < len(fac) and fac[n]: A(fac[n])
            n += 1
    A("s_mov_b32 exec_hi, 0")
    for ct in range(4):
        pk("mul", 144+4*ct, 144+4*ct, 216); pk("fma", 144+4*ct, 146+4*ct, 218, 144+4*ct)
        if ct & 1: A(f"ds_write2_b64 v234, v[{140+4*ct}:{141+4*ct}], v[{144+4*ct}:{145+4*ct}] offset0:{16*(ct-1)} offset1:{16*ct}")
    A("s_mov_b64 exec, -1")
    A("s_waitcnt lgkmcnt(0)"); A("s_barrier")
    for k in range(4): A(f"ds_read2st64_b64 v[{160+4*k}:{163+4*k}], v228 offset0:{2*k} offset1:{2*k+1}")
    for k in range(4):
        A(f"s_waitcnt lgkmcnt({3-k})"); pk("add", 160+4*k, 160+4*k, 162+4*k)
        if k & 1: pk("add", 156+4*k, 156+4*k, 160+4*k)
    pk("add", 160, 160, 168)
    A("v_bfi_b32 v160, v235, s56, v160")
    A(f"buffer_store_dwordx2 v[160:161], v229, {WS}, s84 offen sc1")
    A(f"buffer_store_dwordx2 v[160:161], v229, {WS}, s85 offen sc1")
    stamp(12)
    if WB == "wo":
        A("s_cmp_eq_u32 s31, 0"); A("s_cbranch_scc0 L_nwb"); A("s_cmp_eq_u32 s3, 1"); A("s_cbranch_scc0 L_nwb")
        A("s_waitcnt vmcnt(0)")
        A("buffer_wbl2 sc1")
        A("L_nwb:")
    fin()

    A("L_fw3:")
    A("s_cmp_eq_u32 s78, 2"); A("s_cbranch_scc0 L_fw2")
    if FPRE:
        A("ds_read_b128 v[52:55], v254 offset:48"); A("ds_read_b128 v[48:51], v254 offset:32"); A("ds_read_b32 v62, v254 offset:64")
        A("s_waitcnt lgkmcnt(0)")
        A("v_readfirstlane_b32 s80, v55"); A("v_readfirstlane_b32 s81, v62")
        wsum()
        A("s_cmp_eq_u32 s80, -1"); A("s_cbranch_scc0 L_fw4")
        A("s_sub_u32 s90, s90, 1"); A("s_cbranch_scc0 L_fw3")
    else:
        A("s_sub_u32 s90, s90, 1"); A("s_cbranch_scc0 L_fw")
    A("s_branch L_fw4")

    C("""---- no role: pull the group's w1 lines into L2 ----""")
    A("L_idle:")
    if IB: A("s_barrier")
    if T1 and not PT1: A(f"buffer_load_dword v6, v57, s[52:55], 0 offen {tnt}")
    for d in range(T1D): A(f"buffer_load_dword v{32+d}, v{251+d}, s[52:55], 0 offen {tnt}")
    if T2:
        A("s_mov_b32 s46, 2211840")
        A(f"buffer_load_dword v5, v252, s[44:47], 0 offen {tnt}")
    if probe2:
        A("s_cmp_eq_u32 s99, 0"); A("s_cbranch_scc1 L_q2z")
        A("L_q2y:"); A("s_sleep 2"); A("s_memrealtime s[62:63]"); A("s_waitcnt lgkmcnt(0)"); A("s_sub_u32 s62, s62, s99"); A("s_cmp_lt_i32 s62, 0"); A("s_cbranch_scc1 L_q2y")
        A("L_q2z:")
    if probe3 is not None:
        A("s_cmp_eq_u32 s31, 31"); A("s_cbranch_scc0 L_q3z"); A("s_cmp_eq_u32 s3, 1"); A("s_cbranch_scc0 L_q3z")
        A("v_readlane_b32 s60, v255, 0"); A("s_lshl_b32 s61, s30, 7"); A("s_add_u32 s61, s61, 0x3000"); A("v_mov_b32 v7, s60"); A("s_mov_b64 exec, 1")
        A(f"buffer_store_dword v7, v2, {WS}, s61 offen sc1"); A("s_mov_b64 exec, -1")
        A("s_cmp_eq_u32 s30, 7"); A("s_cbranch_scc0 L_q3z")
        for _ in range(4): A("s_sleep 127")
        for g in range(8): A(f"s_load_dword s{64+g}, s[40:41], {0x3000 + 128*g} glc")
        A("s_waitcnt lgkmcnt(0)")
        A("s_mov_b32 s72, s64"); A("s_mov_b32 s73, s64")
        for g in range(1, 8):
            A(f"s_min_u32 s72, s72, s{64+g}"); A(f"s_max_u32 s73, s73, s{64+g}")
        A(f"s_sub_u32 s73, s{73 if probe3 < 0 else 64 + probe3}, s72"); A("s_mul_i32 s73, s73, 20"); A("s_add_u32 s73, s73, s72"); A("s_add_u32 s73, s73, 4000")
        A("L_q3y:"); A("s_sleep 2"); A("s_memrealtime s[62:63]"); A("s_waitcnt lgkmcnt(0)"); A("s_sub_u32 s62, s62, s73"); A("s_cmp_lt_i32 s62, 0"); A("s_cbranch_scc1 L_q3y")
        A("L_q3z:")
    if not IB: A("s_barrier")
    if WB == "idle":
        A("s_cmp_eq_u32 s31, 31"); A("s_cbranch_scc0 L_nwb"); A("s_cmp_eq_u32 s3, 1"); A("s_cbranch_scc0 L_nwb")
        A("buffer_wbl2 sc1")
        A("L_nwb:")
    if WARM:
        nwv = (32 - WARM) * 4; per = 320 // nwv
        A(f"s_cmp_ge_u32 s31, {WARM}"); A("s_cbranch_scc0 L_widone")
        assert nwv in (8, 16)
        apbase(78)
        A(f"s_sub_u32 s81, s31, {WARM}"); A("s_lshl2_add_u32 s81, s81, s91")
        if nwv == 16:
            A("s_and_b32 s80, s81, 1"); A("s_mul_i32 s80, s80, 2560"); A("s_add_u32 s78, s78, s80"); A("s_lshr_b32 s81, s81, 1")
        A("s_lshl_b32 s81, s81, 14"); A("s_add_u32 s78, s78, s81")
        if CC is None:
            A(f"v_mov_b32 v7, {L_CW}"); A("ds_read_b32 v7, v7"); A("s_waitcnt lgkmcnt(0)"); A("v_readfirstlane_b32 s80, v7"); A("s_xor_b32 s78, s78, s80")
        A("v_lshlrev_b32 v7, 7, v1"); A(f"v_cmp_gt_u32 vcc, {per}, v1"); A("s_movk_i32 s90, 200")
        A("L_wi:")
        A("s_mov_b64 exec, vcc")
        A(f"buffer_load_dword v5, v7, {WS}, s78 offen sc1")
        A("s_waitcnt vmcnt(0)")
        if WSL: A(f"s_sleep {WSL}")
        A("v_cmp_eq_u32 vcc, -1, v5")
        A("s_cbranch_vccz L_widone")
        A("s_sub_u32 s90, s90, 1"); A("s_cbranch_scc0 L_wi")
        A("L_widone:")
    fin()

    C("""---- MLP role ----""")
    A("L_mlp:")
    st.update(save); del seq[NPRE:]; Wc[0] = WM or W
    if MPRE is None:
        seq.extend(dma_a(n) for n in range(NR + PRE, 10))
        issue_to(pos[31] + 1 + W)
        while st["issued"] < len(seq): pump()
    stamp(23)
    if not W1W: A("s_barrier")
    if MPRE is not None:
        redo[0] = True
        A("s_mov_b32 s46, 2211840"); A(f"s_sub_u32 s82, s82, {128*(NR + PRE - MPRE) - (128 if MPRE == 0 else 0)}")
        assert NR + PRE <= 10
        for n in range(MPRE, 10): dma_a(n)()
    stamp(24)
    wgt = [1] * len(seq)
    for n in range(10):
        if W1W:
            while sum(wgt[st["waited"] + 1:]) + 2 > W1W: wait_for(st["waited"] + 1)
            seq.append(None); wgt.append(2); st["issued"] += 1
        A(f"s_add_u32 m0, s88, {n*1024}")
        if n: A(f"s_add_u32 s84, s84, {16*3456}")
        A(f"buffer_load_dwordx4 v59, s[52:55], s84 offen {w1nt} lds")
    stamp(9)
    W1F, W2F, PL, HO, H1O = 64, 96, 136, 168, 192
    flush()
    A("s_waitcnt vmcnt(10)"); A("s_barrier")
    if CC is None: A("ds_read_b32 v15, v249")
    for i in range(10):
        for u in range(2):
            r = W2F + 4*i + 2*u
            A(f"ds_read_b64_tr_b16 v[{r}:{r+1}], v{233+i} offset:{L_W2 + u*20480}")
    if CC is None:
        A("s_waitcnt lgkmcnt(15)")
        A("v_readfirstlane_b32 s78, v15"); A("v_xor_b32 v225, v15, v225"); A("s_xor_b32 s86, s86, s78")
    C("""all five waves: thread = column pair; h = x + sum of the eight groups' attention sums""")
    A("L_mlp5:")
    sofr = [None, 76, 77, 87, 88, 89, 57, 58]
    for p in range(1, 8): A(f"s_mov_b32 s{sofr[p]}, {p*16384}")
    ld2 = [(PL + 4*p, lambda p=p: A(ldtext(PL + 4*p, f"v225, {WS}, {f's{sofr[p]}' if p else '0'} offen"))) for p in range(8)]
    A("v_mov_b32 v18, 0xffffff00"); A("v_mov_b32 v19, 0xff")
    for r in range(16): A(f"v_mov_b32 v{HO+r}, 0x3f803f80")
    A("s_mov_b32 s50, 0x00030003"); A("s_mov_b32 s51, 0x00030003"); A("s_mov_b32 s48, 0x00070007"); A("s_mov_b32 s49, 0x00070007")
    A("v_lshlrev_b32 v184, 16, v252"); A("v_lshlrev_b32 v185, 16, v253"); A("v_and_b32 v186, 0xffff0000, v252"); A("v_and_b32 v187, 0xffff0000, v253")
    if EF:
        poll_first(ld2); A("s_waitcnt vmcnt(8)")
    else: A("s_waitcnt vmcnt(0)")
    A("s_barrier")
    stamp(10)
    if not EF: poll_first(ld2)
    stamp(20)
    for ks in range(4):
        for ct in range(2):
            for u in range(2):
                r = W1F + 8*ks + 4*ct + 2*u
                A(f"ds_read_b64_tr_b16 v[{r}:{r+1}], v{231+ct} offset:{(2*ks+u)*1024}")
    stamp(22)
    SM = 40
    def sum2():
        for i in range(0, 16, 2): pk("add", SM+i, PL+i, PL+16+i)
        sum4(SM)
        if NR16:
            pk("add", SM, SM, 184); pk("add", SM+2, SM+2, 186)
    poll("2", ld2, sum2, 18)
    stamp(11)
    a, b_, c = SM, SM+4, SM+6
    def unpack():
        A(f"v_lshlrev_b32 v{a}, 16, v{b_}"); A(f"v_lshlrev_b32 v{a+1}, 16, v{b_+1}"); A(f"v_and_b32 v{a+2}, 0xffff0000, v{b_}"); A(f"v_and_b32 v{a+3}, 0xffff0000, v{b_+1}")
    if not NR16:
        A(f"v_cvt_pk_bf16_f32 v{b_}, v{a}, v{a+2}"); A(f"v_cvt_pk_bf16_f32 v{b_+1}, v{a+1}, v{a+3}"); unpack()
        pk("add", a, a, 184); pk("add", a+2, a+2, 186)
    A(f"v_cvt_pk_bf16_f32 v{b_}, v{a}, v{a+2}"); A(f"v_cvt_pk_bf16_f32 v{b_+1}, v{a+1}, v{a+3}")
    A(f"ds_write_b32 v226, v{b_}"); A(f"ds_write_b32 v226, v{b_+1} offset:{YBS}")
    A("s_mov_b64 exec, s[50:51]")
    for ks in range(4): A(f"ds_read_b128 v[{HO+4*ks}:{HO+3+4*ks}], v227 offset:{64*ks}")
    A("s_mov_b64 exec, -1")
    unpack()
    pk("mul", c+2, a, a); pk("add", c, a, a+2); pk("fma", c+2, a+2, a+2, c+2)
    A(f"v_permlane32_swap_b32 v{c}, v{c+2}"); A(f"v_permlane32_swap_b32 v{c+1}, v{c+3}"); pk("add", c, c, c+2)
    A(f"v_permlane16_swap_b32 v{c}, v{c+1}"); A(f"v_add_f32 v{c}, v{c}, v{c+1}")
    red = [f"v_add_f32_dpp v{c}, v{c}, v{c} {m} row_mask:0xf bank_mask:0xf" for m in ("row_mirror", "row_half_mirror", "quad_perm:[2,3,0,1]", "quad_perm:[1,0,3,2]")]
    for ks in range(4):
        A(f"s_waitcnt lgkmcnt({3-ks})")
        for ct in range(2): mfma(28+4*ct, W1F+8*ks+4*ct, HO+4*ks, ks == 0)
        A(red[ks])
    A(f"ds_write_b32 v230, v{c}")
    A("s_mov_b64 exec, s[48:49]")
    A("ds_write_b128 v228, v[28:31]"); A("ds_write_b128 v228, v[32:35] offset:64")
    A("s_mov_b64 exec, -1")
    A("s_waitcnt lgkmcnt(0)")
    stamp(26)
    A("s_barrier")
    stamp(12)
    A("s_cmp_eq_u32 s3, 0"); A("s_cbranch_scc1 L_final ; nf")
    pend_fin = list(pend)
    C("""LN(LN(h)) = (h-mean) / sqrt(var+eps) / sqrt(var/(var+eps)+eps) = (h-mean) * rsq(var*(1+eps) + eps*eps), exactly;
 applied behind the product: y @ w1 = rs * (h @ w1 - mean * colsum(w1)); gelu(z) = z / (1 + exp(-2u)), u = sqrt(2/pi)(z + 0.044715 z^3)""")
    A("ds_read_b128 v[40:43], v248"); A("ds_read_b128 v[44:47], v248 offset:16"); A("ds_read_b64 v[48:49], v248 offset:32")
    A("ds_read2st64_b32 v[52:53], v247 offset0:0 offset1:2"); A("ds_read2st64_b32 v[54:55], v247 offset0:4 offset1:6"); A("ds_read_b32 v15, v247 offset:2048")
    A("ds_read2st64_b32 v[36:37], v244 offset0:0 offset1:2"); A("ds_read2st64_b32 v[38:39], v244 offset0:4 offset1:6"); A("ds_read_b32 v50, v244 offset:2048")
    A("s_waitcnt lgkmcnt(6)")
    pk("add", 40, 40, 42); pk("add", 44, 44, 46); pk("add", 40, 40, 48); pk("add", 40, 40, 44)
    pk("mul", 40, 40, 250, mod="op_sel_hi:[1,0]")
    A("v_fma_f32 v41, -v40, v40, v41"); A("v_max_f32 v41, 0, v41")
    A("v_fma_f32 v41, v41, v26, v27"); A("v_rsq_f32 v41, v41")
    A("s_waitcnt lgkmcnt(3)")
    pk("add", 52, 52, 54); A("v_add_f32 v15, v15, v52"); A("v_add_f32 v15, v15, v53")
    A("s_waitcnt lgkmcnt(0)")
    pk("add", 36, 36, 38); A("v_fma_f32 v50, -v40, v15, v50"); A("v_add_f32 v36, v36, v37"); A("v_add_f32 v36, v36, v50")
    if NR16: A("v_fma_f32 v36, v36, v41, v13")
    else:
        A("v_mul_f32 v36, v36, v41")
        bf16r(36, 36); A("v_add_f32 v36, v36, v13"); bf16r(36, 36)
    A("v_mul_f32 v37, v36, v36"); A("v_fma_f32 v37, v37, v25, v24"); A("v_mul_f32 v37, v37, v36"); A("v_exp_f32 v37, v37")
    A("v_add_f32 v37, 1.0, v37"); A("v_rcp_f32 v37, v37"); A("v_mul_f32 v36, v36, v37")
    A("v_cvt_pk_bf16_f32 v36, v36, v36")
    A("ds_write_b16 v245, v36")
    for t in range(8):
        A(f"s_lshl_b64 exec, s[50:51], {2*t}")
        A(f"ds_read_b128 v[{H1O+4*t}:{H1O+3+4*t}], v243")
    A("s_mov_b64 exec, -1")
    for i in [0, 8, 1, 9, 2, 3, 4, 5, 6, 7]:
        t = i & 7
        if i < 8: A(f"s_waitcnt lgkmcnt({7-t})")
        mfma(28 + 4*(i >> 3), W2F+4*i, H1O+4*t, t == 0)
    A("v_bfi_b32 v32, v19, s56, v32")
    A("s_mov_b32 exec_lo, 0x000f000f"); A("s_mov_b32 exec_hi, 0x000f000f")
    A(f"buffer_store_dwordx4 v[32:35], v246, {WS}, s86 offen offset:1024 sc1")
    A("s_mov_b64 exec, -1")
    A("v_bfi_b32 v28, v19, s56, v28")
    A(f"buffer_store_dwordx4 v[28:31], v2, {WS}, s86 offen sc1")
    stamp(18)
    if h3 is not None:
        if h3 == -2:
            A("s_lshr_b32 s78, s91, 1"); A("s_lshr_b32 s80, s30, 2"); A("s_cmp_eq_u32 s78, s80"); A("s_cbranch_scc0 L_h3 ; nf")
        if h3 == -3: A("s_waitcnt vmcnt(1)")
        elif h3 < 0: A("s_waitcnt vmcnt(0)")
        if h3 == -2: A("L_h3:")
        A("s_barrier")
    stamp(13)
    fin()

    C("""---- final sum over the 54 slices: one 128-byte line of every record per wave, out = h + sum + b2 ----""")
    A("L_final:")
    pend.extend(pend_fin)
    A("s_cmp_ge_u32 s33, 20"); A("s_cbranch_scc1 L_epoch")
    A("ds_read_u16_d16_hi v16, v15")
    srd(44, 24, 2560)
    def l3(n):
        def f():
            if n == 6: A("s_mov_b32 exec_hi, 0xffff")
            A(ldtext(96 + 4*n, f"v56, {WS}, {f's{80+n}' if n else '0'} offen"))
            if n == 6: A("s_mov_b32 exec_hi, -1")
        return f
    ld3 = [(96 + 4*n, l3(n)) for n in range(7)]
    A("v_and_b32 v20, s56, v19"); A("v_and_b32 v120, s56, v19"); A("v_mov_b32 v121, 0"); A("v_mov_b64 v[122:123], 0")
    A("s_waitcnt lgkmcnt(0)")
    if NR16: A("v_add_f32 v16, v16, v17")
    if h3 is not None:
        A("s_barrier")
        if h3 > 0: A(f"s_sleep {h3}")
        if h3x: A(f"s_sleep {h3x}")
    poll_first(ld3)
    def sum3():
        for k in range(3):
            for hh in (0, 2): pk("add", 64+4*k+hh, 96+8*k+hh, 100+8*k+hh)
        for hh in (0, 2):
            pk("add", 64+hh, 64+hh, 68+hh); pk("add", 72+hh, 72+hh, 120+hh)
        for hh in (0, 2): pk("add", 64+hh, 64+hh, 72+hh)
    def red3():
        A("v_permlane32_swap_b32 v64, v66"); A("v_permlane32_swap_b32 v65, v67"); pk("add", 64, 64, 66)
        A("v_permlane16_swap_b32 v64, v65"); A("v_add_f32 v64, v64, v65")
        A("v_add_f32_dpp v64, v64, v64 row_ror:8 row_mask:0xf bank_mask:0xf")
    if SP3:
        A("s_waitcnt vmcnt(0)")
        for r, _ in ld3: A(f"v_xor_b32 v{r}, v20, v{r}")
        A("v_or3_b32 v7, v96, v100, v104"); A("v_or3_b32 v6, v108, v112, v116"); A("v_or3_b32 v7, v7, v6, v120")
        A("v_cmp_ne_u32_sdwa vcc, v7, 0 src0_sel:BYTE_0 src1_sel:DWORD")
        sum3(); red3()
        A("s_cbranch_vccnz L_slow3")
        A("L_back3:")
    else:
        poll("3", ld3, sum3, 18)
        red3()
    stamp(14)
    if diag: A("v_writelane_b32 v255, s90, 53")
    if not NR16:
        bf16r(64, 64); A("v_add_f32 v64, v64, v17"); bf16r(64, 64)
    A("v_add_f32 v64, v64, v16")
    A("v_cvt_pk_bf16_f32 v64, v64, v64")
    if hold == "before":
        for _ in range(4): A("s_sleep 90")
    A(f"buffer_store_short v64, v12, s[44:47], 0 offen {osc}")
    if hold == "after":
        for _ in range(4): A("s_sleep 90")
    stamp(15)
    fin()
    if SP3:
        A("L_slow3:")
        for r, _ in ld3: A(f"v_xor_b32 v{r}, v20, v{r}")
        poll("3", ld3, sum3, 18)
        red3()
        A("s_branch L_back3")
    C("""every wave that reads the epoch word has published by now (this wave has consumed sums over all of them)""")
    A("L_epoch:")
    A("s_cmp_eq_u32 s37, 53"); A("s_cbranch_scc0 L_fend")
    A("v_mov_b32 v34, s56"); A("s_mov_b64 exec, 1")
    A(f"buffer_store_dword v34, v2, {WS}, 0 offen {osc}")
    A("L_fend:")
    if diag: fin()
    A("L_end:")
    A("s_endpgm")

    body = [("    " + l if l.startswith("s_nop") else l).replace(" ; nf", "") for l in fix(L)]
    out = [HDR.rstrip("\n"),
           "; One launch, 256 workgroups of five waves (one per CU). Each streams 256 keys of one (batch, head); 80 of them then",
           "; apply wo, 54 the MLP. Hand-offs go through d_ws and carry a per-launch tag; all waits are bounded.",
           f"; @launch grid=(256,1,1) block=(320,1,1) lds={LDS_BYTES}",
           '.amdgcn_target "amdgcn-amd-amdhsa--gfx950"', ".text", f".globl {NAME}_kernel", ".p2align 8",
           f".type {NAME}_kernel,@function", f"{NAME}_kernel:"] + body + [
           '.section .rodata,"a"', ".p2align 6", f".amdhsa_kernel {NAME}_kernel",
           "  .amdhsa_next_free_vgpr 256", "  .amdhsa_next_free_sgpr 102", "  .amdhsa_accum_offset 256",
           "  .amdhsa_group_segment_fixed_size 0", "  .amdhsa_kernarg_size 104", "  .amdhsa_user_sgpr_count 2",
           "  .amdhsa_user_sgpr_kernarg_segment_ptr 1", "  .amdhsa_system_sgpr_workgroup_id_x 1",
           "  .amdhsa_float_denorm_mode_32 3",
           ".end_amdhsa_kernel"]
    return "\n".join(out) + "\n"

if __name__ == "__main__":
    import argparse
    ap = argparse.ArgumentParser(); ap.add_argument("-o", default=f"cdna_kernels/{NAME}.s"); ap.add_argument("--diag", action="store_true")
    ap.add_argument("--kw", default="")
    a = ap.parse_args()
    open(a.o, "w").write(gen(diag=a.diag, **eval("dict(%s)" % a.kw)))
```
